```python
import torch

def _softmax(x, axis=-1):
    return torch.softmax(x, dim=axis)
def _gelu(x):
    return torch.nn.functional.gelu(x, approximate="tanh")
def _silu(x):
    return torch.nn.functional.silu(x)
def _sigmoid(x):
    return torch.sigmoid(x)
def _layernorm(x, axis=-1, eps=1e-5):
    m = x.mean(dim=axis, keepdim=True)
    v = x.var(dim=axis, keepdim=True, unbiased=False)
    return (x - m) / torch.sqrt(v + eps)
def _scatter_add(tgt, idx, src, axis=0):
    return tgt.clone().index_add_(axis, idx, src)
def _segment_sum(src, seg, n):
    out = torch.zeros((n,) + src.shape[1:], dtype=src.dtype)
    return out.index_add_(0, seg, src)
def _pad(x, pw):
    flat = tuple(v for pair in reversed(pw) for v in pair)
    return torch.nn.functional.pad(x, flat)

kernel_name = 'sequential_preLN__sliding_block_cached__mixer_token_mlp__decode'

def setup_inputs():

    _w = (lambda a: (lambda t: t.to(torch.bfloat16) if t.is_floating_point() else t)(torch.as_tensor(a)))
    def _A_setup():
        B, Sq, D = 4, 1, 448
        Hq, Hkv, Sk, Dh = 16, 8, 8192, 256
        assert Hq % Hkv == 0, (Hq, Hkv)
        return {
            "x": _w((lambda *s: torch.randn(*s, dtype=torch.bfloat16) * 0.05)(B, Sq, D)),
            "k_cache": _w((lambda *s: torch.randn(*s, dtype=torch.bfloat16) * 1.6)(B, Hkv, Sk, Dh)),
            "v_cache": _w((lambda *s: torch.randn(*s, dtype=torch.bfloat16) * 0.4)(B, Hkv, Sk, Dh)),
            "wq": _w((lambda *s: torch.randn(*s, dtype=torch.bfloat16) * 1.6)(D, Hq * Dh) * (D ** -0.5)),
            "wo": _w((lambda *s: torch.randn(*s, dtype=torch.bfloat16) * 0.4)(Hq * Dh, D) * ((Hq * Dh) ** -0.5)),
        }
    _A_in = _A_setup()

    def _B_setup():
        B, S, D, F = 4, 1, 448, 1792
        return {
            "x": _w((lambda *s: torch.randn(*s, dtype=torch.bfloat16) * 0.05)(B, S, D)),
            "w1": _w((lambda *s: torch.randn(*s, dtype=torch.bfloat16) * 1.6)(S, F) * (S ** -0.5)),
            "b1": _w((lambda *s: torch.randn(*s, dtype=torch.bfloat16) * 1.6)(F) * 0.02),
            "w2": _w((lambda *s: torch.randn(*s, dtype=torch.bfloat16) * 0.1)(F, S) * (F ** -0.5)),
            "b2": _w((lambda *s: torch.randn(*s, dtype=torch.bfloat16) * 0.1)(S) * 0.02),
        }
    _B_in = _B_setup()

    return {
        "A_x": _A_in["x"],
        "A_k_cache": _A_in["k_cache"],
        "A_v_cache": _A_in["v_cache"],
        "A_wq": _A_in["wq"],
        "A_wo": _A_in["wo"],
        "B_x": _B_in["x"],
        "B_w1": _B_in["w1"],
        "B_b1": _B_in["b1"],
        "B_w2": _B_in["w2"],
        "B_b2": _B_in["b2"],
    }

def reference(A_x, A_k_cache, A_v_cache, A_wq, A_wo, B_x, B_w1, B_b1, B_w2, B_b2):
    def _A_ref(x, k_cache, v_cache, wq, wo):
        B, Sq, D = x.shape
        Hq, Dh = 16, 256
        Hkv, Sk = k_cache.shape[1], k_cache.shape[2]
        W = min(4096, max(256, Sk // 4))
        rep = Hq // Hkv
        q = (lambda x, *d: x.permute(*d))((x @ wq).reshape(B, Sq, Hq, Dh), 0, 2, 1, 3)
        k = (lambda x, n, axis: torch.repeat_interleave(x, n, dim=axis))(k_cache[:, :, Sk - W:, :], rep, axis=1)
        v = (lambda x, n, axis: torch.repeat_interleave(x, n, dim=axis))(v_cache[:, :, Sk - W:, :], rep, axis=1)
        scores = torch.einsum("bhqd,bhkd->bhqk", q, k) * (Dh ** -0.5)
        p = _softmax(scores, axis=-1)
        o = torch.einsum("bhqk,bhkd->bhqd", p, v)
        return (lambda x, *d: x.permute(*d))(o, 0, 2, 1, 3).reshape(B, Sq, Hq * Dh) @ wo

    def _B_ref(x, w1, b1, w2, b2):
        B, S, D = x.shape
        h = _layernorm(x, axis=-1)
        u = torch.einsum("bsd,sf->bdf", h, w1) + b1
        u = _gelu(u)
        y = torch.einsum("bdf,fs->bds", u, w2) + b2
        return (lambda x, *d: x.permute(*d))(y, 0, 2, 1)

    x = A_x
    h = x + _A_ref(_layernorm(x, axis=-1), A_k_cache, A_v_cache, A_wq, A_wo)
    h2 = h + _B_ref(_layernorm(h, axis=-1), B_w1, B_b1, B_w2, B_b2)
    return h2
```

```python
import sys, struct, math
KN = "sequential_preLN__sliding_block_cached__mixer_token_mlp__decode"

def fbits(x):
    return struct.unpack("<I", struct.pack("<f", x))[0]

WS_E, WS_CERT, WS_Q, WS_TBL, WS_STATS, WS_OP, WS_OUTP = 0, 0x1000, 0x10000, 0x20000, 0x30000, 0x40000, 0x100000
WS_STAMP = 0x10000000
SLOT = 16384
MISC = 9 * SLOT
LN, QL, PL, OL, TP, FL, HL = 0x0, 0x1000, 0x1500, 0x1A00, 0x1C00, 0x2000, 0x2200
HP = 576
F_LANDED, F_LNCNT, F_QRDY, F_MAXCNT, F_PCNT, F_TCNT, F_TAG, F_MX, F_FREE = FL, FL + 4, FL + 8, FL + 12, FL + 16, FL + 20, FL + 24, FL + 32, FL + 64
TBL_LDS = 2 * SLOT
TAGINC = 0x9E3779B9


def gen(D=32, NE=24, diag=0, ld="nt", ldq="nt", ldo="nt", rot=1, pf=1, slp=1):
    L = []
    uid = [0]

    def A(s):
        for ln in s.split("\n"):
            ln = ln.strip()
            if ln:
                L.append(ln if ln.endswith(":") else "    " + ln)

    def C(s):
        L.append("    ; " + s)

    def lab(p):
        uid[0] += 1
        return f"L_{p}{uid[0]}"

    E0 = 132 - NE
    sW, sWV = "s2", "s3"
    pX, pK, pV, pWQ, pWO, pW1, pB1, pW2, pB2, pOUT, pWS = "s[4:5]", (6, 7), (8, 9), (10, 11), (12, 13), "s[16:17]", "s[18:19]", "s[20:21]", "s[22:23]", "s[24:25]", "s[28:29]"
    sG, sI, sB, sS, sIDX, sBG = "s30", "s31", "s32", "s33", "s34", "s35"
    SRD = "s[36:39]"
    sBUD, sTAG, sFIN, sMASK = "s60", "s61", "s62", "s63"
    sT0, sT1, sT2, sT3, sT4, sT5 = "s40", "s41", "s42", "s43", "s44", "s45"
    vM, vG, vN, vONE = "v1", "v2", "v3", "v4"

    stamp_n = [0]

    def stamp(k):
        if diag:
            A(f"s_memrealtime s[{64 + 2 * k}:{65 + 2 * k}]")

    def stamps_out(base, n):
        if not diag:
            return
        A(f"s_waitcnt lgkmcnt(0)\ns_lshl_b32 {sT0}, {sW}, 9\ns_add_u32 {sT0}, {sT0}, {WS_STAMP + base * 8}\nv_mov_b32 v5, {sT0}\ns_mov_b64 exec, 1")
        for k in range(n):
            A(f"v_mov_b32 v6, s{64 + 2 * k}\nv_mov_b32 v7, s{65 + 2 * k}\nglobal_store_dwordx2 v5, v[6:7], {pWS} offset:{8 * k}\ns_nop 1")
        A("s_mov_b64 exec, -1")

    def spin_tail(top, sleep=True):
        if sleep and slp:
            A(f"s_sleep {slp}")
        A(f"s_sub_u32 {sBUD}, {sBUD}, 1\ns_cbranch_scc0 {top}\ns_branch L_end")

    def wait_lds(off, val, vt="v5", addr=vM, sleep=True):
        top, done = lab("w"), lab("d")
        A(f"{top}:\nds_read_b32 {vt}, {addr} offset:{off}\ns_waitcnt lgkmcnt(0)\nv_readfirstlane_b32 {sT5}, {vt}\ns_cmp_ge_u32 {sT5}, {val}\ns_cbranch_scc1 {done}")
        spin_tail(top, sleep)
        A(f"{done}:")

    def signal(off, vval=vONE, addr=vM):
        A(f"s_mov_b64 exec, 1\nds_add_u32 {addr}, {vval} offset:{off}\ns_mov_b64 exec, -1")

    DPP = ["quad_perm:[1,0,3,2] row_mask:0xf", "quad_perm:[2,3,0,1] row_mask:0xf", "row_half_mirror row_mask:0xf",
           "row_mirror row_mask:0xf", "row_bcast:15 row_mask:0xa", "row_bcast:31 row_mask:0xc"]

    def wave_sums(regs, sdst):
        A("s_nop 1")
        for m in DPP:
            for r in regs:
                A(f"v_add_f32_dpp {r}, {r}, {r} {m} bank_mask:0xf")
            A("s_nop 1" if len(regs) == 1 else "s_nop 0")
        for r, s in zip(regs, sdst):
            A(f"v_readlane_b32 {s}, {r}, 63")
        A("s_nop 1")

    def rne1(dst, src):
        A(f"v_cvt_pk_bf16_f32 {dst}, {src}, {src}\nv_lshlrev_b32 {dst}, 16, {dst}")

    def unpack2(lo, hi, src):
        A(f"v_lshlrev_b32 {lo}, 16, {src}\nv_and_b32 {hi}, {sMASK}, {src}")

    def ln_scale(vm, vr, sS1, sS2, vt, onepass):
        inv = hex(fbits(1.0 / 448.0))
        A(f"v_mov_b32 {vm}, {inv}\nv_mul_f32 {vr}, {sS2}, {vm}\nv_mul_f32 {vm}, {sS1}, {vm}")
        if onepass:
            A(f"v_fma_f32 {vr}, -{vm}, {vm}, {vr}\nv_max_f32 {vr}, 0, {vr}")
        A(f"v_cvt_pk_bf16_f32 {vt}, {vm}, {vr}")
        unpack2(vm, vr, vt)
        A(f"v_add_f32 {vr}, {hex(fbits(1e-5))}, {vr}")
        rne1(vr, vr)
        A(f"v_sqrt_f32 {vr}, {vr}\ns_nop 0")
        rne1(vr, vr)
        A(f"v_rcp_f32 {vr}, {vr}\ns_nop 0")

    def gelu4(sT, acc):
        A(f"""v_pk_mul_f32 v[60:61], v[48:49], {sT} op_sel_hi:[1,0]
        v_pk_mul_f32 v[62:63], v[50:51], {sT} op_sel_hi:[1,0]
        v_cvt_pk_bf16_f32 v64, v60, v61
        v_cvt_pk_bf16_f32 v65, v62, v63""")
        unpack2("v60", "v61", "v64")
        unpack2("v62", "v63", "v65")
        A("""v_pk_add_f32 v[60:61], v[60:61], v[52:53]
        v_pk_add_f32 v[62:63], v[62:63], v[54:55]
        v_cvt_pk_bf16_f32 v64, v60, v61
        v_cvt_pk_bf16_f32 v65, v62, v63""")
        unpack2("v60", "v61", "v64")
        unpack2("v62", "v63", "v65")
        A(f"""v_pk_mul_f32 v[64:65], v[60:61], v[60:61]
        v_pk_mul_f32 v[66:67], v[62:63], v[62:63]
        v_pk_fma_f32 v[64:65], v[64:65], s[46:47], v[58:59] op_sel_hi:[1,0,0]
        v_pk_fma_f32 v[66:67], v[66:67], s[46:47], v[58:59] op_sel_hi:[1,0,0]
        v_pk_mul_f32 v[64:65], v[64:65], v[60:61]
        v_pk_mul_f32 v[66:67], v[66:67], v[62:63]
        v_exp_f32 v64, v64
        v_exp_f32 v65, v65
        v_exp_f32 v66, v66
        v_exp_f32 v67, v67
        v_pk_add_f32 v[64:65], v[64:65], 1.0 op_sel_hi:[1,0]
        v_pk_add_f32 v[66:67], v[66:67], 1.0 op_sel_hi:[1,0]
        v_rcp_f32 v64, v64
        v_rcp_f32 v65, v65
        v_rcp_f32 v66, v66
        v_rcp_f32 v67, v67
        v_pk_mul_f32 v[60:61], v[60:61], v[64:65]
        v_pk_mul_f32 v[62:63], v[62:63], v[66:67]
        v_cvt_pk_bf16_f32 v64, v60, v61
        v_cvt_pk_bf16_f32 v65, v62, v63
        v_dot2_f32_bf16 {acc}, v64, v56, {acc}
        v_dot2_f32_bf16 {acc}, v65, v57, {acc}""")

    K1 = -2.0 * math.sqrt(2.0 / math.pi) * math.log2(math.e)
    K2 = K1 * 0.044715
    CEXP = math.log2(math.e) / 16.0

    def gelu_consts():
        A(f"v_mov_b32 v58, {hex(fbits(K1))}\ns_mov_b32 s46, {hex(fbits(K2))}\ns_mov_b32 s47, s46")

    def unpack_w():
        unpack2("v48", "v49", "v72")
        unpack2("v50", "v51", "v73")
        unpack2("v52", "v53", "v74")
        unpack2("v54", "v55", "v75")

    def swap_reduce4(a, b, c, d):
        A(f"""s_nop 1
        v_permlane16_swap_b32 {a}, {b}
        v_permlane16_swap_b32 {c}, {d}
        v_add_f32 {a}, {a}, {b}
        v_add_f32 {c}, {c}, {d}
        s_nop 1
        v_permlane32_swap_b32 {a}, {c}
        v_add_f32 {a}, {a}, {c}""")

    L.append(f"; @launch grid=(256,1,1) block=(576,1,1) lds={10 * SLOT}")
    L.append('.amdgcn_target "amdgcn-amd-amdhsa--gfx950"\n.text')
    L.append(f".globl {KN}_kernel\n.p2align 8\n.type {KN}_kernel,@function\n{KN}_kernel:")
    A(f"""s_cmp_ge_u32 {sW}, 256
    s_cbranch_scc1 L_end
    s_load_dwordx16 s[4:19], s[0:1], 0
    s_load_dwordx8 s[20:27], s[0:1], 64
    s_load_dwordx2 s[28:29], s[0:1], 96""")
    stamp(0)
    A(f"""v_lshrrev_b32 v1, 6, v0
    s_and_b32 {sG}, {sW}, 7
    v_readfirstlane_b32 {sWV}, v1
    s_lshr_b32 {sI}, {sW}, 3
    s_and_b32 {sB}, {sI}, 3
    s_lshr_b32 {sS}, {sI}, 2
    s_lshl_b32 {sBG}, {sB}, 3
    s_add_u32 {sBG}, {sBG}, {sG}
    s_mov_b32 {sBUD}, 0x80000
    v_mov_b32 {vM}, {MISC}
    s_mov_b32 s39, 0x20000
    s_cmp_lg_u32 {sWV}, 0
    s_cbranch_scc1 L_compute""")
    C("---------------- loader wave")
    sN, sSLOT, sBASE, sGS, sRG, sRS, sCNT, sGI, sKV = "s48", "s49", "s50", "s51", "s52", "s53", "s54", "s55", "s56"
    A(f"""s_setprio 3
    s_lshl_b32 {sT0}, {sG}, 5
    s_add_u32 {sT0}, {sT0}, {sI}
    s_lshl_b32 {sT0}, {sT0}, 5
    v_lshrrev_b32 v5, 1, v0
    v_lshlrev_b32 v5, 13, v5
    v_and_b32 v6, 1, v0
    v_lshl_or_b32 v5, v6, 4, v5
    v_add_u32 v8, {sT0}, v5
    v_add_u32 v9, {262144 - 1024}, v8
    v_add_u32 v10, {262144 - 1024}, v9
    v_add_u32 v11, {262144 - 1024}, v10
    s_mov_b32 {sN}, 0
    s_mov_b32 {sSLOT}, {8 * SLOT}
    s_mov_b32 {sBASE}, 0
    s_mov_b32 {sGS}, {4 * 262144}
    s_mov_b32 {sCNT}, 0
    s_mov_b32 s38, {448 * 8192}""")
    if rot == 1:
        A(f"s_and_b32 {sRG}, {sI}, 3\ns_lshr_b32 {sRS}, {sI}, 2")
    elif rot == 2:
        A(f"s_lshr_b32 {sRG}, {sI}, 3\ns_and_b32 {sRS}, {sI}, 7")
    else:
        A(f"s_mov_b32 {sRG}, 0\ns_mov_b32 {sRS}, 0")
    A(f"""s_lshl_b32 {sKV}, {sBG}, 22
    s_lshl_b32 {sT1}, {sS}, 17
    s_add_u32 {sKV}, {sKV}, {sT1}
    s_add_u32 {sKV}, {sKV}, 0x300000
    s_waitcnt lgkmcnt(0)
    s_mov_b32 s36, s{pWQ[0]}
    s_mov_b32 s37, s{pWQ[1]}""")

    def group_loop(flag):
        top = lab("grp")
        A(f"s_mov_b32 {sT2}, 0")
        A(f"""{top}:
        s_add_u32 {sGI}, {sT2}, {sRG}
        s_and_b32 {sGI}, {sGI}, 3
        s_lshl_b32 {sT0}, {sGI}, 12
        s_mul_i32 {sT1}, {sGI}, {sGS}
        s_add_u32 m0, {sT0}, {sSLOT}
        s_add_u32 {sT1}, {sT1}, {sBASE}""")
        for k in range(4):
            A(f"s_waitcnt vmcnt({D - 1})\nbuffer_load_dwordx4 v{8 + k}, {SRD}, {sT1} offen offset:{1024 * k} {flag} lds")
        nb, nw = lab("nb"), lab("nw")
        A(f"""s_add_u32 {sCNT}, {sCNT}, 4
        s_cmp_lg_u32 {sCNT}, {D}
        s_cbranch_scc1 {nb}
        s_barrier
        {nb}:
        s_sub_u32 {sT0}, {sCNT}, {D}
        s_cbranch_scc1 {nw}
        s_and_b32 {sT1}, {sT0}, 15
        s_cbranch_scc1 {nw}
        s_lshr_b32 {sT0}, {sT0}, 4
        v_mov_b32 v5, {sT0}
        ds_write_b32 {vM}, v5 offset:{F_LANDED}
        {nw}:
        s_add_u32 {sT2}, {sT2}, 1
        s_cmp_lt_u32 {sT2}, 4
        s_cbranch_scc1 {top}""")

    def next_slot():
        A(f"""s_add_u32 {sN}, {sN}, 1
        s_add_u32 {sSLOT}, {sSLOT}, {SLOT}
        s_cmp_eq_u32 {sSLOT}, {9 * SLOT}
        s_cselect_b32 {sSLOT}, 0, {sSLOT}""")

    def wait_free():
        A(f"s_lshl_b32 {sT0}, {sN}, 2\nv_add_u32 v6, {sT0}, {vM}")
        wait_lds(F_FREE - 36, 8, "v5", "v6")

    C("segment 0: wq slice")
    group_loop(ldq)
    stamp(1)
    next_slot()
    A(f"""v_lshrrev_b32 v5, 5, v0
    v_and_b32 v6, 31, v0
    v_lshlrev_b32 v7, 1, v5
    v_xor_b32 v6, v6, v7
    v_lshlrev_b32 v6, 4, v6
    v_lshl_or_b32 v8, v5, 9, v6
    v_xor_b32 v9, 64, v8
    v_xor_b32 v10, 0x80, v8
    v_xor_b32 v11, 0xc0, v8
    s_add_u32 s36, s{pK[0]}, {sKV}
    s_addc_u32 s37, s{pK[1]}, 0
    s_mov_b32 s38, {8 * SLOT}
    s_mov_b32 {sGS}, 4096""")
    C("segments 1..16: K then V")
    A(f"""L_kv:
    s_cmp_lt_u32 {sN}, 9
    s_cbranch_scc1 L_kv_go
    s_cmp_lg_u32 {sN}, 9
    s_cbranch_scc1 L_kv_free
    s_add_u32 s36, s{pV[0]}, {sKV}
    s_addc_u32 s37, s{pV[1]}, 0""")
    stamp(2)
    A("L_kv_free:")
    wait_free()
    A(f"""L_kv_go:
    s_add_u32 {sT0}, {sN}, {sRS}
    s_add_u32 {sT0}, {sT0}, 7
    s_and_b32 {sT0}, {sT0}, 7
    s_lshl_b32 {sBASE}, {sT0}, 14""")
    group_loop(ld)
    next_slot()
    A(f"s_cmp_lt_u32 {sN}, 17\ns_cbranch_scc1 L_kv")
    stamp(3)
    C("segments 17..20: wo slice (rows of head h, 112 columns + 16 spare)")
    A(f"""v_lshrrev_b32 v5, 4, v0
    v_and_b32 v6, 15, v0
    v_lshlrev_b32 v7, 1, v5
    v_xor_b32 v6, v6, v7
    v_lshlrev_b32 v6, 4, v6
    v_mul_u32_u24 v5, 896, v5
    v_xor_b32 v7, 0x80, v6
    v_add_u32 v8, v5, v6
    v_add_u32 v9, v5, v7
    v_add_u32 v9, {3584 - 1024}, v9
    v_add_u32 v10, {2 * (3584 - 1024)}, v8
    v_add_u32 v11, {2 * (3584 - 1024)}, v9
    s_mov_b32 s36, s{pWO[0]}
    s_mov_b32 s37, s{pWO[1]}
    s_mov_b32 s38, {4096 * 896}
    s_mov_b32 {sGS}, {16 * 896}
    s_lshl_b32 {sT0}, {sG}, 1
    s_lshr_b32 {sT1}, {sS}, 2
    s_add_u32 {sT0}, {sT0}, {sT1}
    s_mul_i32 {sBASE}, {sT0}, {256 * 896}
    s_and_b32 {sT1}, {sS}, 3
    s_mul_i32 {sT1}, {sT1}, 224
    s_add_u32 {sBASE}, {sBASE}, {sT1}
    L_wo:""")
    wait_free()
    group_loop(ldo)
    next_slot()
    A(f"s_add_u32 {sBASE}, {sBASE}, {64 * 896}\ns_cmp_lt_u32 {sN}, 21\ns_cbranch_scc1 L_wo")
    stamp(4)
    for k in range(21 - (D + 15) // 16 + 1, 22):
        A(f"s_waitcnt vmcnt({16 * (21 - k)})\nv_mov_b32 v5, {k}\nds_write_b32 {vM}, v5 offset:{F_LANDED}")
    stamp(5)
    A("s_waitcnt lgkmcnt(0)")
    stamps_out(0, 6)
    A("s_endpgm")

    C("---------------- compute waves")
    sCW = sWV
    A(f"""L_compute:
    s_sub_u32 {sCW}, {sWV}, 1
    v_and_b32 v0, 63, v0
    v_lshrrev_b32 {vG}, 4, v0
    v_and_b32 {vN}, 15, v0
    v_mov_b32 {vONE}, 1
    s_mov_b32 {sMASK}, 0xffff0000
    s_lshl_b32 {sIDX}, {sBG}, 3
    s_add_u32 {sIDX}, {sIDX}, {sS}
    s_lshl_b32 {sT0}, {sB}, 1
    s_xor_b32 {sT0}, {sT0}, {sG}
    s_or_b32 {sFIN}, {sT0}, {sS}
    s_mov_b32 s38, 0x200000
    v_lshlrev_b32 v6, 4, v0
    v_mov_b32 v16, 0
    v_mov_b32 v17, 0
    v_mov_b32 v18, 0
    v_mov_b32 v19, 0
    s_waitcnt lgkmcnt(0)
    s_mov_b32 s36, s28
    s_mov_b32 s37, s29
    s_cmp_ge_u32 {sCW}, 4
    s_cbranch_scc1 L_nox
    s_mul_i32 {sT0}, {sCW}, 896
    v_add_u32 v5, {sT0}, v6
    s_mov_b32 exec_hi, 0x00ffffff
    global_load_dwordx4 v[16:19], v5, {pX}
    s_mov_b32 exec_hi, -1
    L_nox:
    s_cmp_lg_u32 {sCW}, 0
    s_cbranch_scc1 L_notq0
    v_mov_b32 v7, 0
    global_load_dword v20, v7, {pWS} sc1
    v_lshl_add_u32 v5, v0, 2, {vM}
    v_lshrrev_b32 v8, 1, v0
    v_cmp_eq_u32 vcc, 4, v8
    v_mov_b32 v9, 0xff800000
    s_nop 0
    v_cndmask_b32 v8, 0, v9, vcc
    ds_write_b32 v5, v8 offset:{FL}
    s_waitcnt lgkmcnt(0)
    s_barrier
    s_waitcnt vmcnt(0)
    v_readfirstlane_b32 {sTAG}, v20
    s_nop 0
    s_add_u32 {sTAG}, {sTAG}, {hex(TAGINC)}
    v_mov_b32 v5, {sTAG}
    ds_write_b32 {vM}, v5 offset:{F_TAG}
    s_branch L_ln
    L_notq0:
    s_lshl_b32 {sT0}, {sCW}, 9
    s_sub_u32 {sT0}, {sT0}, 512
    v_lshl_add_u32 v5, v0, 3, {sT0}
    global_load_dwordx2 v[72:73], v5, {pW1}
    global_load_dwordx2 v[74:75], v5, {pB1}
    global_load_dwordx2 v[56:57], v5, {pW2}
    s_cmp_lg_u32 {sCW}, 4
    s_cbranch_scc1 L_noclr""")
    C("wave 4: sentinel-clear this workgroup's hand-off slots")
    A(f"""v_mov_b32 v7, 0
    global_load_ushort v76, v7, {pB2}
    v_mov_b32 v8, -1
    v_mov_b32 v9, -1
    v_mov_b32 v10, -1
    v_mov_b32 v11, -1
    s_lshl_b32 {sT0}, {sIDX}, 11
    s_add_u32 {sT0}, {sT0}, {WS_OP}
    buffer_store_dwordx4 v[8:11], v6, {SRD}, {sT0} offen sc1
    buffer_store_dwordx4 v[8:11], v6, {SRD}, {sT0} offen offset:1024 sc1
    s_lshr_b32 {sT0}, {sIDX}, 2
    s_mul_i32 {sT0}, {sT0}, 1792
    s_and_b32 {sT1}, {sS}, 3
    s_mul_i32 {sT1}, {sT1}, 448
    s_add_u32 {sT0}, {sT0}, {sT1}
    s_add_u32 {sT0}, {sT0}, {WS_OUTP}
    s_mov_b64 exec, 0xfffffff
    buffer_store_dwordx4 v[8:11], v6, {SRD}, {sT0} offen sc1
    s_mul_i32 {sT0}, {sW}, {NE * 4}
    s_add_u32 {sT0}, {sT0}, {WS_TBL}
    s_mov_b64 exec, {(1 << (NE // 4)) - 1}
    buffer_store_dwordx4 v[8:11], v6, {SRD}, {sT0} offen sc1
    s_mov_b64 exec, -1
    L_noclr:""")
    if pf:
        C("wave 5: pull 1 KiB of this kernel's code towards the L2 (speed only)")
        A(f"""s_cmp_lg_u32 {sCW}, 5
        s_cbranch_scc1 L_nopf
        s_getpc_b64 s[40:41]
        L_pfpc:
        s_and_b32 {sT2}, {sI}, {pf - 1}
        s_lshl_b32 {sT2}, {sT2}, 10
        s_min_u32 {sT2}, {sT2}, L_codeend-L_ln-1024
        s_add_u32 {sT2}, {sT2}, L_ln-L_pfpc
        s_add_u32 s40, s40, {sT2}
        s_addc_u32 s41, s41, 0
        v_mov_b32 v9, s41
        v_add_co_u32 v8, vcc, s40, v6
        s_nop 1
        v_addc_co_u32 v9, vcc, 0, v9, vcc
        global_load_dwordx4 v[12:15], v[8:9], off
        L_nopf:""")
    A(f"""s_barrier
    s_cmp_ge_u32 {sCW}, 4
    s_cbranch_scc1 L_table
    s_waitcnt vmcnt(3)""")
    C("LayerNorm of row cw of x (waves 0..3), bf16 rounding as the reference")
    A("L_ln:")
    for k in range(4):
        unpack2(f"v{20 + 2 * k}", f"v{21 + 2 * k}", f"v{16 + k}")
    A("""v_pk_add_f32 v[28:29], v[20:21], v[22:23]
    v_pk_add_f32 v[30:31], v[24:25], v[26:27]
    v_pk_add_f32 v[28:29], v[28:29], v[30:31]
    v_add_f32 v28, v28, v29""")
    wave_sums(["v28"], [sT0])
    A(f"v_mov_b32 v30, {hex(fbits(1.0 / 448.0))}\nv_mul_f32 v30, {sT0}, v30\nv_mov_b32 v28, 0\ns_mov_b32 exec_hi, 0x00ffffff")
    for k in range(8):
        A(f"v_sub_f32 v29, v{20 + k}, v30\nv_fmac_f32 v28, v29, v29")
    A("s_mov_b32 exec_hi, -1\ns_nop 3")
    wave_sums(["v28"], [sT1])
    ln_scale("v30", "v31", sT0, sT1, "v29", False)
    for k in range(4):
        a, b = f"v{20 + 2 * k}", f"v{21 + 2 * k}"
        A(f"v_sub_f32 {a}, {a}, v30\nv_sub_f32 {b}, {b}, v30\nv_cvt_pk_bf16_f32 v29, {a}, {b}")
        unpack2(a, b, "v29")
        A(f"v_mul_f32 {a}, {a}, v31\nv_mul_f32 {b}, {b}, v31\nv_cvt_pk_bf16_f32 v{16 + k}, {a}, {b}")
    A(f"""s_mul_i32 {sT0}, {sCW}, 960
    v_add3_u32 v5, v6, {sT0}, {vM}
    s_mov_b32 exec_hi, 0x00ffffff
    ds_write_b128 v5, v[16:19] offset:{LN}
    s_mov_b32 exec_hi, -1""")
    signal(F_LNCNT)
    A(f"s_cmp_lg_u32 {sCW}, 0\ns_cbranch_scc1 L_table")
    C("q projection: 16 columns x 4 batches")
    stamp(1)
    A(f"""s_setprio 2
    v_and_b32 v7, 3, {vN}
    v_mul_u32_u24 v7, 960, v7
    v_lshl_add_u32 v7, {vG}, 3, v7
    v_add_u32 v7, v7, {vM}
    v_lshlrev_b32 v8, 3, v0
    v_add_u32 v8, {8 * SLOT}, v8""")
    wait_lds(F_LNCNT, 4)
    for j in range(14):
        A(f"ds_read2_b64 v[{104 + 4 * j}:{107 + 4 * j}], v7 offset0:{8 * j} offset1:{8 * j + 4}")
    wait_lds(F_LANDED, 1)
    for j in range(14):
        A(f"ds_read_b64_tr_b16 v[{48 + 4 * j}:{49 + 4 * j}], v8 offset:{1024 * j}\nds_read_b64_tr_b16 v[{50 + 4 * j}:{51 + 4 * j}], v8 offset:{1024 * j + 512}")
    A("v_mov_b32 v9, 8")
    signal(F_FREE, "v9")
    A(f"""s_lshl_b32 {sT0}, {sG}, 5
    s_add_u32 {sT0}, {sT0}, {sI}
    s_lshl_b32 {sT0}, {sT0}, 6
    s_add_u32 {sT0}, {sT0}, {WS_Q}
    v_lshlrev_b32 v9, 14, {vN}
    v_lshl_add_u32 v9, {vG}, 4, v9
    s_waitcnt lgkmcnt(0)""")
    for j in range(14):
        A(f"v_mfma_f32_16x16x32_bf16 v[12:15], v[{48 + 4 * j}:{51 + 4 * j}], v[{104 + 4 * j}:{107 + 4 * j}], {'0' if j == 0 else 'v[12:15]'}")
    A(f"""v_mov_b32 v17, {sTAG}
    v_mov_b32 v19, {sTAG}
    s_nop 6
    v_cvt_pk_bf16_f32 v16, v12, v13
    v_cvt_pk_bf16_f32 v18, v14, v15
    s_mov_b32 exec_lo, 0x000f000f
    s_mov_b32 exec_hi, 0x000f000f
    buffer_store_dwordx4 v[16:19], v9, {SRD}, {sT0} offen sc1
    s_mov_b64 exec, -1""")
    stamp(2)
    C("gather q of this (batch, kv head): 256 tagged granules")
    A(f"""s_lshl_b32 {sT0}, {sB}, 14
    s_lshl_b32 {sT1}, {sG}, 11
    s_add_u32 {sT0}, {sT0}, {sT1}
    s_add_u32 {sT0}, {sT0}, {WS_Q}
    L_qpoll:
    buffer_load_dwordx4 v[20:23], v6, {SRD}, {sT0} offen sc1
    buffer_load_dwordx4 v[24:27], v6, {SRD}, {sT0} offen offset:1024 sc1
    s_waitcnt vmcnt(0)
    v_xor_b32 v21, {sTAG}, v21
    v_xor_b32 v23, {sTAG}, v23
    v_xor_b32 v25, {sTAG}, v25
    v_xor_b32 v27, {sTAG}, v27
    v_or3_b32 v21, v21, v23, v25
    v_or_b32 v21, v21, v27
    v_cmp_ne_u32 vcc, 0, v21
    s_cmp_eq_u64 vcc, 0
    s_cbranch_scc1 L_qok""")
    spin_tail("L_qpoll")
    A(f"""L_qok:
    v_mov_b32 v21, v22
    v_mov_b32 v25, v26
    v_lshl_add_u32 v5, v0, 3, {vM}
    ds_write_b64 v5, v[20:21] offset:{QL}
    ds_write_b64 v5, v[24:25] offset:{QL + HP}""")
    signal(F_QRDY)
    stamp(3)
    A("s_setprio 0\ns_branch L_qk")
    C("waves 1..7: this workgroup's entries of the scalar map t -> MLP(t), t running over bf16 values")
    A(f"""L_table:
    s_cmp_eq_u32 {sCW}, 4
    s_cbranch_scc1 L_tb4
    s_waitcnt vmcnt(0)
    L_tb4:
    s_waitcnt vmcnt(4)""")
    gelu_consts()
    unpack_w()
    A(f"""s_and_b32 {sT0}, {sW}, 127
    s_mul_i32 {sT0}, {sT0}, {NE}
    s_add_u32 {sT0}, {sT0}, {E0 << 7}
    s_lshr_b32 {sT1}, {sW}, 7
    s_lshl_b32 {sT1}, {sT1}, 15
    s_or_b32 {sT0}, {sT0}, {sT1}
    s_lshl_b32 s50, {sT0}, 16
    s_mov_b32 s52, 0
    v_and_b32 v7, 31, v0""")
    for r in range(80, 96):
        A(f"v_mov_b32 v{r}, 0")
    A(f"""L_tloop:
    v_cmp_eq_u32 vcc, s52, v7
    v_mov_b32 v68, 0
    s_add_u32 s52, s52, 1
    v_cndmask_b32 v69, 0, 1.0, vcc""")
    gelu4("s[50:51]", "v68")
    A(f"""s_add_u32 s50, s50, 0x10000
    s_cmp_lt_u32 s52, {NE}
    s_nop 0
    v_mfma_f32_32x32x2_f32 v[80:95], v68, v69, v[80:95]
    s_cbranch_scc1 L_tloop
    s_lshl_b32 {sT0}, {sCW}, 7
    v_lshl_add_u32 v5, v7, 2, {vM}
    v_add_u32 v8, {sT0}, v5
    s_nop 15""")
    for a, b in [(80, 82), (84, 86), (88, 90), (92, 94), (80, 84), (88, 92), (80, 88)]:
        A(f"v_pk_add_f32 v[{a}:{a + 1}], v[{a}:{a + 1}], v[{b}:{b + 1}]")
    A(f"""v_add_f32 v80, v80, v81
    v_mov_b32 v81, v80
    s_nop 1
    v_permlane32_swap_b32 v80, v81
    v_add_f32 v80, v80, v81
    ds_write_b32 v8, v80 offset:{TP - 128}""")
    signal(F_TCNT)
    A(f"s_cmp_lg_u32 {sCW}, 4\ns_cbranch_scc1 L_tb_done")
    wait_lds(F_TCNT, 7, "v9")
    for k in range(7):
        A(f"ds_read_b32 v{80 + k}, v5 offset:{TP + 128 * k}")
    wait_lds(F_LNCNT, 4, "v9")
    A(f"""ds_read_b32 v9, {vM} offset:{F_TAG}
    v_add_f32 v80, v80, v81
    v_add_f32 v82, v82, v83
    v_add_f32 v84, v84, v85
    v_add_f32 v80, v80, v82
    v_add_f32 v84, v84, v86
    v_add_f32 v80, v80, v84""")
    rne1("v80", "v80")
    A("s_waitcnt vmcnt(0) lgkmcnt(0)\nv_lshlrev_b32 v76, 16, v76\nv_add_f32 v80, v80, v76")
    rne1("v80", "v80")
    A(f"""s_mul_i32 {sT0}, {sW}, {NE * 4}
    s_add_u32 {sT0}, {sT0}, {WS_TBL}
    v_lshlrev_b32 v8, 2, v0
    s_mov_b64 exec, {(1 << NE) - 1}
    buffer_store_dword v80, v8, {SRD}, {sT0} offen sc1
    s_lshl_b32 {sT0}, {sIDX}, 2
    s_add_u32 {sT0}, {sT0}, {WS_CERT}
    s_mov_b64 exec, 1
    buffer_store_dword v9, v8, {SRD}, {sT0} offen sc1
    s_mov_b64 exec, -1
    L_tb_done:""")
    stamp(1)
    C("finishing workgroups, wave 7: every workgroup has cleared its slots and read the epoch word")
    A(f"""s_cmp_lg_u32 {sFIN}, 0
    s_cbranch_scc1 L_qk
    s_cmp_lg_u32 {sCW}, 7
    s_cbranch_scc1 L_qk""")
    wait_lds(F_LNCNT, 4, "v9")
    A(f"""ds_read_b32 v9, {vM} offset:{F_TAG}
    s_mov_b32 {sT0}, {WS_CERT}
    s_waitcnt lgkmcnt(0)
    L_cpoll:
    buffer_load_dwordx4 v[20:23], v6, {SRD}, {sT0} offen sc1
    s_waitcnt vmcnt(0)
    v_xor_b32 v20, v9, v20
    v_xor_b32 v21, v9, v21
    v_xor_b32 v22, v9, v22
    v_xor_b32 v23, v9, v23
    v_or3_b32 v20, v20, v21, v22
    v_or_b32 v20, v20, v23
    v_cmp_ne_u32 vcc, 0, v20
    s_cmp_eq_u64 vcc, 0
    s_cbranch_scc1 L_cok""")
    A("s_sleep 8")
    spin_tail("L_cpoll")
    A(f"""L_cok:
    s_cmp_lg_u32 {sB}, 0
    s_cbranch_scc1 L_qk
    v_mov_b32 v8, 0
    s_mov_b64 exec, 1
    buffer_store_dword v9, v8, {SRD}, 0 offen sc1
    s_mov_b64 exec, -1""")
    C("scores of key slot cw")
    A(f"""L_qk:
    v_and_b32 v7, 1, {vN}
    v_mul_u32_u24 v7, {HP}, v7
    v_lshl_add_u32 v7, {vG}, 4, v7
    v_add_u32 v7, v7, {vM}
    v_and_b32 v8, 7, {vN}
    v_lshlrev_b32 v8, 1, v8
    v_xor_b32 v8, v8, {vG}
    v_lshlrev_b32 v8, 4, v8
    v_lshl_or_b32 v8, {vN}, 9, v8
    s_lshl_b32 {sT0}, {sCW}, 14
    v_add_u32 v8, {sT0}, v8
    v_xor_b32 v9, 64, v8
    v_xor_b32 v10, 0x80, v8
    v_xor_b32 v11, 0xc0, v8
    s_lshl_b32 {sT0}, {sCW}, 2
    v_add_u32 v12, {sT0}, {vM}
    v_mov_b32 v13, 8
    s_add_u32 {sT4}, {sCW}, 2""")
    wait_lds(F_QRDY, 1)
    for j in range(8):
        A(f"ds_read_b128 v[{16 + 4 * j}:{19 + 4 * j}], v7 offset:{QL + 64 * j}")
    A(f"ds_read_b32 v14, {vM} offset:{F_TAG}")
    wait_lds(F_LANDED, sT4)
    stamp(4)
    for j in range(8):
        for t in range(2):
            r = 48 + 8 * j + 4 * t
            A(f"ds_read_b128 v[{r}:{r + 3}], v{8 + (j & 3)} offset:{256 * (j >> 2) + 8192 * t}")
    signal(F_FREE + 4, "v13", "v12")
    A(f"v_readfirstlane_b32 {sTAG}, v14")
    for j in range(8):
        A(f"s_waitcnt lgkmcnt({15 - 2 * j})")
        for t in range(2):
            r = 48 + 8 * j + 4 * t
            d = 112 + 4 * t
            A(f"v_mfma_f32_16x16x32_bf16 v[{d}:{d + 3}], v[{r}:{r + 3}], v[{16 + 4 * j}:{19 + 4 * j}], {'0' if j == 0 else f'v[{d}:{d + 3}]'}")
    A(f"""v_and_b32 v8, 1, {vN}
    v_lshl_add_u32 v8, v8, 2, {vM}
    s_lshl_b32 {sT0}, {sCW}, 6
    v_add_u32 v9, {sT0}, v7
    s_mov_b32 s46, {hex(fbits(CEXP))}
    s_nop 3""")
    for k in range(4):
        A(f"v_cvt_pk_bf16_f32 v{120 + k}, v{112 + 2 * k}, v{113 + 2 * k}")
    for k in range(4):
        unpack2(f"v{112 + 2 * k}", f"v{113 + 2 * k}", f"v{120 + k}")
    A(f"""v_max3_f32 v120, v112, v113, v114
    v_max3_f32 v121, v115, v116, v117
    v_max3_f32 v120, v120, v118, v119
    v_max_f32 v120, v120, v121
    s_mov_b32 exec_lo, 0x00030003
    s_mov_b32 exec_hi, 0x00030003
    ds_max_f32 v8, v120 offset:{F_MX}
    s_mov_b64 exec, -1""")
    signal(F_MAXCNT)
    wait_lds(F_MAXCNT, 8)
    A(f"ds_read_b32 v124, v8 offset:{F_MX}\ns_waitcnt lgkmcnt(0)")
    for k in range(8):
        A(f"v_sub_f32 v{112 + k}, v{112 + k}, v124")
    for k in range(8):
        A(f"v_mul_f32 v{112 + k}, s46, v{112 + k}")
    for k in range(8):
        A(f"v_exp_f32 v{112 + k}, v{112 + k}")
    A("s_nop 0")
    for k in range(4):
        A(f"v_cvt_pk_bf16_f32 v{120 + k}, v{112 + 2 * k}, v{113 + 2 * k}")
    A(f"""s_mov_b32 exec_lo, 0x00030003
    s_mov_b32 exec_hi, 0x00030003
    ds_write_b128 v9, v[120:123] offset:{PL}
    s_mov_b64 exec, -1""")
    signal(F_PCNT)
    C("addresses of the PV loop")
    A(f"""v_bfe_u32 v8, v0, 2, 3
    s_lshl_b32 {sT0}, {sCW}, 1
    v_xor_b32 v8, {sT0}, v8
    v_lshlrev_b32 v8, 5, v8
    v_lshrrev_b32 v9, 2, v0
    v_lshl_or_b32 v8, v9, 9, v8
    v_and_b32 v9, 3, v0
    v_lshl_or_b32 v8, v9, 3, v8
    v_xor_b32 v9, 32, v8""")
    for r in range(112, 120):
        A(f"v_mov_b32 v{r}, 0")
    C("addresses used after the stream")
    A(f"""v_lshrrev_b32 v13, 3, v0
    v_and_b32 v28, 1, {vN}
    v_lshlrev_b32 v28, 10, v28
    v_bfe_u32 v29, {vN}, 1, 1
    v_lshl_or_b32 v28, v29, 6, v28
    v_lshl_or_b32 v129, {vG}, 4, v28
    v_cmp_ne_u32 s[56:57], 0, v29
    s_lshl_b32 s51, {sIDX}, 11
    s_lshl_b32 {sT0}, {sCW}, 7
    s_add_u32 s51, s51, {sT0}
    s_add_u32 s51, s51, {WS_OP}
    v_and_b32 v28, 7, v0
    v_lshlrev_b32 v28, 4, v28
    v_lshl_or_b32 v130, v13, 11, v28
    s_lshl_b32 s52, {sBG}, 14
    s_lshr_b32 {sT1}, {sS}, 2
    s_lshl_b32 {sT1}, {sT1}, 10
    s_add_u32 s52, s52, {sT1}
    s_add_u32 s52, s52, {sT0}
    s_add_u32 s52, s52, {WS_OP}
    v_bfe_u32 v28, v0, 2, 3
    v_xor_b32 v28, {sCW}, v28
    v_lshlrev_b32 v28, 5, v28
    v_lshrrev_b32 v29, 2, v0
    v_lshl_or_b32 v28, v29, 8, v28
    v_and_b32 v29, 3, v0
    v_lshl_or_b32 v131, v29, 3, v28
    v_add_u32 v132, {7 * SLOT}, v131
    v_and_b32 v28, 3, v0
    v_lshlrev_b32 v28, 4, v28
    v_bfe_u32 v29, v0, 2, 1
    v_lshl_or_b32 v28, v29, 3, v28
    v_lshl_or_b32 v28, {vG}, 1, v28
    s_lshl_b32 {sT0}, {sCW}, 6
    v_add3_u32 v133, v28, {sT0}, {vM}
    v_lshl_add_u32 v134, {vG}, 4, {vM}
    v_lshlrev_b32 v135, 4, {vG}
    s_lshr_b32 s53, {sIDX}, 2
    s_mul_i32 s53, s53, 1792
    s_and_b32 {sT1}, {sS}, 3
    s_mul_i32 {sT1}, {sT1}, 448
    s_add_u32 s53, s53, {sT1}
    s_add_u32 s53, s53, {sT0}
    s_add_u32 s53, s53, {WS_OUTP}
    v_lshl_add_u32 v136, {vN}, 2, {vG}
    v_add_u32 v136, {sT0}, v136
    s_mul_i32 {sT1}, {sB}, 896
    v_lshl_add_u32 v137, v136, 1, {sT1}
    s_cmp_lg_u32 {sFIN}, 0
    s_cbranch_scc1 L_noxc
    s_cmp_eq_u32 {sCW}, 7
    s_cbranch_scc1 L_noxc
    global_load_ushort v138, v137, {pX}
    L_noxc:""")
    wait_lds(F_PCNT, 8)
    stamp(5)
    C("wave 0: row sums of the bf16 probabilities (ones x P), publish (max, sum) of both heads")
    A(f"s_cmp_lg_u32 {sCW}, 0\ns_cbranch_scc1 L_nostat")
    for j in range(8):
        A(f"ds_read_b128 v[{16 + 4 * j}:{19 + 4 * j}], v7 offset:{PL + 64 * j}")
    for r in range(48, 52):
        A(f"v_mov_b32 v{r}, 0x3f803f80")
    A(f"""s_lshl_b32 {sT0}, {sBG}, 8
    s_lshl_b32 {sT1}, {sS}, 4
    s_add_u32 {sT0}, {sT0}, {sT1}
    s_add_u32 {sT0}, {sT0}, {WS_STATS}
    v_lshlrev_b32 v10, 7, v0
    s_waitcnt lgkmcnt(0)""")
    for j in range(8):
        A(f"v_mfma_f32_16x16x32_bf16 v[52:55], v[48:51], v[{16 + 4 * j}:{19 + 4 * j}], {'0' if j == 0 else 'v[52:55]'}")
    A(f"""v_mov_b32 v125, {sTAG}
    v_mov_b32 v127, {sTAG}
    s_nop 6
    v_mov_b32 v126, v52
    s_mov_b64 exec, 3
    buffer_store_dwordx4 v[124:127], v10, {SRD}, {sT0} offen sc1
    s_mov_b64 exec, -1
    L_nostat:""")
    sJ, sVS, sJL = "s48", "s49", "s50"
    A(f"""s_mov_b32 {sJ}, 0
    s_mov_b32 {sVS}, {8 * SLOT}
    s_mov_b32 {sJL}, 2
    v_add_u32 v12, {F_FREE + 36}, {vM}
    L_pv:
    ds_read_b128 v[16:19], v7 offset:{PL}
    v_add_u32 v10, {sVS}, v8
    v_add_u32 v11, {sVS}, v9
    s_add_u32 {sT4}, {sJ}, 10""")
    wait_lds(F_LANDED, sT4)
    A(f"""ds_read_b64_tr_b16 v[20:21], v10
    ds_read_b64_tr_b16 v[22:23], v10 offset:8192
    ds_read_b64_tr_b16 v[24:25], v11
    ds_read_b64_tr_b16 v[26:27], v11 offset:8192""")
    signal(0, vONE, "v12")
    A(f"""v_add_u32 v7, 64, v7
    v_add_u32 v12, 4, v12
    s_add_u32 {sJ}, {sJ}, 1
    s_add_u32 {sVS}, {sVS}, {SLOT}
    s_cmp_eq_u32 {sVS}, {9 * SLOT}
    s_cselect_b32 {sVS}, 0, {sVS}
    s_cmp_lt_u32 {sJ}, {sJL}
    s_waitcnt lgkmcnt(3)
    v_mfma_f32_16x16x32_bf16 v[112:115], v[20:23], v[16:19], v[112:115]
    s_waitcnt lgkmcnt(1)
    v_mfma_f32_16x16x32_bf16 v[116:119], v[24:27], v[16:19], v[116:119]
    s_cbranch_scc1 L_pv
    s_cmp_eq_u32 {sJ}, 8
    s_cbranch_scc1 L_pv_done""")
    C("mid-stream: softmax statistics of the 8 key splits -> weight of split lane>>3 for this workgroup's head")
    A(f"""s_mov_b32 {sJL}, 8
    s_lshl_b32 {sT0}, {sBG}, 8
    s_lshr_b32 {sT1}, {sS}, 2
    s_lshl_b32 {sT1}, {sT1}, 7
    s_add_u32 {sT0}, {sT0}, {sT1}
    s_add_u32 {sT0}, {sT0}, {WS_STATS}
    v_lshlrev_b32 v14, 4, v13
    L_spoll:
    buffer_load_dwordx4 v[28:31], v14, {SRD}, {sT0} offen sc1
    s_waitcnt vmcnt(0)
    v_xor_b32 v29, {sTAG}, v29
    v_xor_b32 v31, {sTAG}, v31
    v_or_b32 v29, v29, v31
    v_cmp_ne_u32 vcc, 0, v29
    s_cmp_eq_u64 vcc, 0
    s_cbranch_scc1 L_sok""")
    A("s_sleep 4")
    spin_tail("L_spoll")
    A(f"""L_sok:
    v_max_f32_dpp v29, v28, v28 row_ror:8 row_mask:0xf bank_mask:0xf
    v_mov_b32 v31, v29
    s_nop 1
    v_permlane16_swap_b32 v29, v31
    v_max_f32 v29, v29, v31
    v_mov_b32 v31, v29
    s_nop 1
    v_permlane32_swap_b32 v29, v31
    v_max_f32 v29, v29, v31
    v_sub_f32 v28, v28, v29
    v_mul_f32 v28, s46, v28
    v_exp_f32 v28, v28
    s_nop 0
    v_mul_f32 v30, v30, v28
    s_nop 1
    v_add_f32_dpp v30, v30, v30 row_ror:8 row_mask:0xf bank_mask:0xf
    v_mov_b32 v31, v30
    s_nop 1
    v_permlane16_swap_b32 v30, v31
    v_add_f32 v30, v30, v31
    v_mov_b32 v31, v30
    s_nop 1
    v_permlane32_swap_b32 v30, v31
    v_add_f32 v30, v30, v31
    v_rcp_f32 v30, v30
    s_nop 0
    v_mul_f32 v128, v28, v30""")
    stamp(6)
    A("s_branch L_pv\nL_pv_done:")
    stamp(7)
    C("publish the partial output rows, then combine the 8 splits for this workgroup's head")
    A(f"""s_nop 5
    v_cndmask_b32 v112, v112, v116, s[56:57]
    v_cndmask_b32 v113, v113, v117, s[56:57]
    v_cndmask_b32 v114, v114, v118, s[56:57]
    v_cndmask_b32 v115, v115, v119, s[56:57]
    v_min_u32 v112, -2, v112
    v_min_u32 v113, -2, v113
    v_min_u32 v114, -2, v114
    v_min_u32 v115, -2, v115
    s_mov_b32 exec_lo, 0x000f000f
    s_mov_b32 exec_hi, 0x000f000f
    buffer_store_dwordx4 v[112:115], v129, {SRD}, s51 offen sc1
    s_mov_b64 exec, -1
    buffer_load_dwordx4 v[28:31], v130, {SRD}, s52 offen sc1""")
    wait_lds(F_LANDED, 21)
    for j in range(8):
        for u in range(2):
            part = j >> 1
            base, off = ("v132", 0) if part == 0 else ("v132", SLOT) if part == 1 else ("v131", 0) if part == 2 else ("v131", SLOT)
            r = 48 + 4 * j + 2 * u
            A(f"ds_read_b64_tr_b16 v[{r}:{r + 1}], {base} offset:{off + 8192 * (j & 1) + 4096 * u}")
    stamp(8)
    A(f"""L_opoll:
    s_waitcnt vmcnt(0)
    v_max3_u32 v5, v28, v29, v30
    v_max_u32 v5, v5, v31
    v_cmp_eq_u32 vcc, -1, v5
    s_cmp_eq_u64 vcc, 0
    s_cbranch_scc1 L_ook
    buffer_load_dwordx4 v[28:31], v130, {SRD}, s52 offen sc1""")
    spin_tail("L_opoll", sleep=False)
    A("L_ook:")
    stamp(9)
    A(f"""v_mul_f32 v28, v28, v128
    v_mul_f32 v29, v29, v128
    v_mul_f32 v30, v30, v128
    v_mul_f32 v31, v31, v128
    v_add_f32_dpp v28, v28, v28 row_ror:8 row_mask:0xf bank_mask:0xf
    v_add_f32_dpp v29, v29, v29 row_ror:8 row_mask:0xf bank_mask:0xf
    s_nop 0
    v_add_f32_dpp v30, v30, v30 row_ror:8 row_mask:0xf bank_mask:0xf
    v_add_f32_dpp v31, v31, v31 row_ror:8 row_mask:0xf bank_mask:0xf""")
    swap_reduce4("v28", "v29", "v30", "v31")
    A(f"""v_cvt_pk_bf16_f32 v28, v28, v28
    ds_write_b16 v133, v28 offset:{OL}
    s_cmp_lg_u32 {sFIN}, 0
    s_cbranch_scc1 L_notbl""")
    ntl = (NE * 256 * 4 + 8191) // 8192
    A(f"s_lshl_b32 {sT0}, {sCW}, 10\ns_add_u32 s54, {sT0}, {WS_TBL}")
    for k in range(ntl):
        A(f"s_add_u32 {sT1}, s54, {8192 * k}\nbuffer_load_dwordx4 v[{140 + 4 * k}:{143 + 4 * k}], v6, {SRD}, {sT1} offen sc1")
    A(f"""L_notbl:
    s_waitcnt lgkmcnt(0)
    s_barrier
    s_cmp_eq_u32 {sCW}, 7
    s_cbranch_scc1 L_nogemv""")
    for j in range(8):
        A(f"ds_read_b128 v[{80 + 4 * j}:{83 + 4 * j}], v134 offset:{OL + 64 * j}")
    for j in range(8):
        A(f"s_waitcnt lgkmcnt({7 - j})\nv_mfma_f32_16x16x32_bf16 v[112:115], v[{48 + 4 * j}:{51 + 4 * j}], v[{80 + 4 * j}:{83 + 4 * j}], {'0' if j == 0 else 'v[112:115]'}")
    A(f"""s_mov_b32 exec_lo, 0x00010001
    s_mov_b32 exec_hi, 0x00010001
    s_nop 5
    v_min_u32 v112, -2, v112
    v_min_u32 v113, -2, v113
    v_min_u32 v114, -2, v114
    v_min_u32 v115, -2, v115
    buffer_store_dwordx4 v[112:115], v135, {SRD}, s53 offen sc1
    s_mov_b64 exec, -1
    L_nogemv:""")
    stamp(10)
    A(f"""s_cmp_lg_u32 {sFIN}, 0
    s_cbranch_scc1 L_exit""")
    C("finishing workgroup of batch b: table to LDS, sum the 16 head partials, residual, LN, LN, table lookup")
    A(f"""s_mul_i32 s48, {sB}, {16 * 1792}
    s_lshl_b32 {sT0}, {sCW}, 8
    s_add_u32 s48, s48, {sT0}
    s_add_u32 s48, s48, {WS_OUTP}
    s_add_u32 s49, s48, {4 * 1792}
    s_add_u32 s50, s48, {8 * 1792}
    s_add_u32 s51, s48, {12 * 1792}
    v_mul_u32_u24 v7, 1792, {vG}
    v_lshl_add_u32 v7, {vN}, 4, v7
    s_lshl_b32 {sT0}, {sCW}, 10
    s_add_u32 {sT0}, {sT0}, {TBL_LDS}
    v_add_u32 v8, {sT0}, v6
    L_tpoll:
    s_waitcnt vmcnt(0)
    v_mov_b32 v5, 0""")
    nvalid = NE * 256 * 4
    for k in range(ntl):
        A(f"v_max3_u32 v9, v{140 + 4 * k}, v{141 + 4 * k}, v{142 + 4 * k}")
        if 8192 * (k + 1) > nvalid:
            A(f"s_cmp_lt_u32 {sCW}, {(nvalid - 8192 * k) // 1024}\ns_cselect_b32 {sT1}, -1, 0\nv_max_u32 v9, v9, v{143 + 4 * k}\nv_and_b32 v9, {sT1}, v9\nv_max_u32 v5, v5, v9")
        else:
            A(f"v_max3_u32 v5, v5, v9, v{143 + 4 * k}")
    A(f"""v_cmp_eq_u32 vcc, -1, v5
    s_cmp_eq_u64 vcc, 0
    s_cbranch_scc1 L_tok""")
    for k in range(ntl):
        A(f"s_add_u32 {sT1}, s54, {8192 * k}\nbuffer_load_dwordx4 v[{140 + 4 * k}:{143 + 4 * k}], v6, {SRD}, {sT1} offen sc1")
    spin_tail("L_tpoll")
    A(f"L_tok:\ns_cmp_eq_u32 {sCW}, 7\ns_cbranch_scc1 L_hskip")
    for m in range(4):
        A(f"buffer_load_dwordx4 v[{16 + 4 * m}:{19 + 4 * m}], v7, {SRD}, s{48 + m} offen sc1")
    A("L_hskip:")
    for k in range(ntl):
        A(f"ds_write_b128 v8, v[{140 + 4 * k}:{143 + 4 * k}] offset:{8192 * k}")
    A(f"""s_cmp_eq_u32 {sCW}, 7
    s_cbranch_scc0 L_hpoll
    s_waitcnt lgkmcnt(0)
    s_barrier
    s_branch L_exit
    L_hpoll:
    s_waitcnt vmcnt(0)
    v_max3_u32 v5, v16, v17, v18""")
    for k in range(6):
        A(f"v_max3_u32 v5, v5, v{19 + 2 * k}, v{20 + 2 * k}")
    A(f"""v_max_u32 v5, v5, v31
    v_cmp_eq_u32 vcc, -1, v5
    s_cmp_eq_u64 vcc, 0
    s_cbranch_scc1 L_hok""")
    for m in range(4):
        A(f"buffer_load_dwordx4 v[{16 + 4 * m}:{19 + 4 * m}], v7, {SRD}, s{48 + m} offen sc1")
    spin_tail("L_hpoll", sleep=False)
    A("L_hok:")
    stamp(11)
    A("""v_pk_add_f32 v[16:17], v[16:17], v[20:21]
    v_pk_add_f32 v[18:19], v[18:19], v[22:23]
    v_pk_add_f32 v[24:25], v[24:25], v[28:29]
    v_pk_add_f32 v[26:27], v[26:27], v[30:31]
    v_pk_add_f32 v[16:17], v[16:17], v[24:25]
    v_pk_add_f32 v[18:19], v[18:19], v[26:27]""")
    swap_reduce4("v16", "v17", "v18", "v19")
    rne1("v16", "v16")
    A("v_lshlrev_b32 v138, 16, v138\nv_add_f32 v16, v16, v138")
    rne1("v139", "v16")
    A(f"""v_lshl_add_u32 v5, v136, 2, {vM}
    ds_write_b32 v5, v139 offset:{HL}
    v_lshl_add_u32 v5, v0, 5, {vM}""")
    for r in range(20, 28):
        A(f"v_mov_b32 v{r}, 0")
    A(f"""s_waitcnt lgkmcnt(0)
    s_barrier
    s_mov_b32 exec_hi, 0x00ffffff
    ds_read_b128 v[20:23], v5 offset:{HL}
    ds_read_b128 v[24:27], v5 offset:{HL + 16}
    s_mov_b32 exec_hi, -1
    s_waitcnt lgkmcnt(0)""")

    def stats8():
        A("""v_pk_add_f32 v[28:29], v[20:21], v[22:23]
        v_pk_mul_f32 v[32:33], v[20:21], v[20:21]
        v_pk_add_f32 v[30:31], v[24:25], v[26:27]
        v_pk_fma_f32 v[32:33], v[22:23], v[22:23], v[32:33]
        v_pk_add_f32 v[28:29], v[28:29], v[30:31]
        v_pk_fma_f32 v[32:33], v[24:25], v[24:25], v[32:33]
        v_add_f32 v28, v28, v29
        v_pk_fma_f32 v[32:33], v[26:27], v[26:27], v[32:33]
        v_add_f32 v32, v32, v33""")
        wave_sums(["v28", "v32"], [sT0, sT1])
        ln_scale("v30", "v31", sT0, sT1, "v29", True)

    stats8()
    A("s_mov_b32 exec_hi, 0x00ffffff")
    for k in range(4):
        a, b = f"v{20 + 2 * k}", f"v{21 + 2 * k}"
        A(f"v_sub_f32 {a}, {a}, v30\nv_sub_f32 {b}, {b}, v30\nv_cvt_pk_bf16_f32 v29, {a}, {b}")
        unpack2(a, b, "v29")
        A(f"v_mul_f32 {a}, {a}, v31\nv_mul_f32 {b}, {b}, v31\nv_cvt_pk_bf16_f32 v29, {a}, {b}")
        unpack2(a, b, "v29")
    A("s_mov_b32 exec_hi, -1\nv_sub_f32 v34, v139, v30")
    rne1("v34", "v34")
    A("v_mul_f32 v34, v34, v31")
    rne1("v34", "v34")
    stats8()
    A("v_sub_f32 v34, v34, v30")
    rne1("v34", "v34")
    A(f"""v_mul_f32 v34, v34, v31
    v_cvt_pk_bf16_f32 v34, v34, v34
    v_and_b32 v35, 0x7fff, v34
    v_subrev_u32 v35, {E0 << 7}, v35
    v_bfe_u32 v36, v34, 15, 1
    v_cmp_le_u32 vcc, {128 * NE}, v35
    v_mul_u32_u24 v36, {128 * NE}, v36
    v_add_lshl_u32 v35, v35, v36, 2
    v_cndmask_b32 v35, v35, 0, vcc
    ds_read_b32 v36, v35 offset:{TBL_LDS}
    s_cmp_eq_u64 vcc, 0
    s_waitcnt lgkmcnt(0)
    s_cbranch_scc0 L_direct
    L_fin:
    v_add_f32 v36, v36, v139
    v_cvt_pk_bf16_f32 v36, v36, v36
    global_store_short v137, v36, {pOUT}""")
    stamp(12)
    A("L_exit:")
    if diag:
        A(f"s_cmp_eq_u32 {sCW}, 0\ns_cbranch_scc0 L_st1")
        stamps_out(8, 13)
        A(f"L_st1:\ns_cmp_eq_u32 {sCW}, 6\ns_cbranch_scc0 L_end")
        stamps_out(24, 13)
    A("L_end:\ns_endpgm")
    C("inputs outside the tabulated binades: evaluate the MLP directly, one element at a time")
    A(f"""L_direct:
    s_mov_b64 s[54:55], vcc
    v_lshlrev_b32 v34, 16, v34
    v_mov_b32 v7, 0
    global_load_ushort v76, v7, {pB2}""")
    gelu_consts()
    A(f"""L_dnext:
    s_ff1_i32_b64 s52, s[54:55]
    s_bitset0_b64 s[54:55], s52
    s_nop 3
    v_readlane_b32 s50, v34, s52
    v_mov_b32 v68, 0
    v_lshlrev_b32 v5, 3, v0
    s_mov_b32 s53, 0
    L_dloop:
    global_load_dwordx2 v[72:73], v5, {pW1}
    global_load_dwordx2 v[74:75], v5, {pB1}
    global_load_dwordx2 v[56:57], v5, {pW2}
    v_add_u32 v5, 512, v5
    s_waitcnt vmcnt(0)""")
    unpack_w()
    gelu4("s[50:51]", "v68")
    A("s_add_u32 s53, s53, 1\ns_cmp_lt_u32 s53, 7\ns_cbranch_scc1 L_dloop\ns_nop 2")
    wave_sums(["v68"], [sT0])
    A(f"v_mov_b32 v68, {sT0}")
    rne1("v68", "v68")
    A("v_lshlrev_b32 v69, 16, v76\nv_add_f32 v68, v68, v69")
    rne1("v68", "v68")
    A(f"""v_cmp_eq_u32 vcc, s52, v0
    s_cmp_eq_u64 s[54:55], 0
    s_nop 0
    v_cndmask_b32 v36, v36, v68, vcc
    s_cbranch_scc0 L_dnext
    s_branch L_fin
    L_codeend:""")
    L.append(f""".section .rodata,"a"
.p2align 6
.amdhsa_kernel {KN}_kernel
  .amdhsa_next_free_vgpr 160
  .amdhsa_next_free_sgpr 96
  .amdhsa_accum_offset 160
  .amdhsa_float_denorm_mode_32 3
  .amdhsa_group_segment_fixed_size 0
  .amdhsa_kernarg_size 104
  .amdhsa_user_sgpr_count 2
  .amdhsa_user_sgpr_kernarg_segment_ptr 1
  .amdhsa_system_sgpr_workgroup_id_x 1
.end_amdhsa_kernel""")
    return "\n".join(L) + "\n"


if __name__ == "__main__":
    names = []
    for spec in sys.argv[1:]:
        kw = {}
        name = None
        for kv in spec.split(","):
            if not kv:
                continue
            k, v = kv.split("=")
            if k == "o":
                name = v
                continue
            kw[k] = int(v) if v.lstrip("-").isdigit() else v.replace("+", " ").replace("none", "")
        name = name or "k_" + spec.replace(",", "_").replace("=", "").replace("+", "") + ".s"
        open(name, "w").write(gen(**kw))
        names.append(name)
    print(" ".join(names))
```

```python
import sys, struct, math
KN = "sequential_preLN__sliding_block_cached__mixer_token_mlp__decode"

def fbits(x):
    return struct.unpack("<I", struct.pack("<f", x))[0]

WS_E, WS_IDS, WS_TBL, WS_TBLN, WS_STATS, WS_Q, WS_OP, WS_OUTP = 0, 0x1000, 0x20000, 0x28000, 0x30000, 0x40000, 0x80000, 0x100000
WS_FAR = 0x200000
WS_STAMP = 0x10000000
SLOT = 16384
MISC = 9 * SLOT
LN, QL, PL, OL, TP, FL, HL = 0x0, 0x1000, 0x1500, 0x1A00, 0x1F00, 0x2300, 0x2400
HP = 576
F_LANDED, F_LNCNT, F_QCNT, F_MAXCNT, F_PCNT, F_TCNT, F_TAG, F_LOC, F_MX, F_FREE = FL, FL + 4, FL + 8, FL + 12, FL + 16, FL + 20, FL + 24, FL + 28, FL + 32, FL + 64
TBL_LDS = 7 * SLOT
TAGINC = 0x9E3779B9


def gen(D=24, DV=0, DW=48, NE=24, diag=0, ld="nt", ldq="nt", ldo="nt", rot=2, ra=1, rc=0, pf=0, epf=2, slp=1, pvslp=0, qback=8, tback=8, hback=0, oback=0, ost="sc1", onear=0, fst=0, lst=0, hld="sc1", jmid=6, QT=4, qit=1, rnd=1, dry=0, alg=1,
        x_tl=0, x_far=0, x_nofree=0, x_stop=0, x_pert=0):
    L = []
    uid = [0]
    cold = []

    def A(s):
        for ln in s.split("\n"):
            ln = ln.strip()
            if ln:
                L.append(ln if ln.endswith(":") else "    " + ln)

    def C(s):
        L.append("    ; " + s)

    def lab(p):
        uid[0] += 1
        return f"L_{p}{uid[0]}"

    assert D % 4 == 0 and DV % 4 == 0 and NE % 4 == 0
    E0 = 132 - NE
    LB = 1
    wpos = 8
    sW, sWV = "s2", "s3"
    pX, pK, pV, pWQ, pWO, pW1, pB1, pW2, pB2, pOUT, pWS = "s[4:5]", (6, 7), (8, 9), (10, 11), (12, 13), "s[16:17]", "s[18:19]", "s[20:21]", "s[22:23]", "s[24:25]", "s[28:29]"
    sG, sI, sB, sS, sIDX, sBG = "s30", "s31", "s32", "s33", "s34", "s35"
    SRD = "s[36:39]"
    sBUD, sTAG, sFIN, sMASK, sXCC, sFAR = "s60", "s61", "s62", "s63", "s14", "s15"
    sTBLN = "s27"
    sWT = "s26"
    sT0, sT1, sT2, sT3, sT4, sT5 = "s40", "s41", "s42", "s43", "s44", "s45"
    vM, vG, vN, vONE, vL16, vFF = "v1", "v2", "v3", "v4", "v6", "v15"

    def stamp(k):
        if diag:
            A(f"s_memrealtime s[{64 + 2 * k}:{65 + 2 * k}]")

    def stamps_out(base, n):
        if not diag:
            return
        A(f"s_waitcnt lgkmcnt(0)\ns_lshl_b32 {sT0}, {sW}, 9\ns_add_u32 {sT0}, {sT0}, {WS_STAMP + base * 8}\nv_mov_b32 v5, {sT0}\ns_mov_b64 exec, 1")
        for k in range(n):
            A(f"v_mov_b32 v6, s{64 + 2 * k}\nv_mov_b32 v7, s{65 + 2 * k}\nglobal_store_dwordx2 v5, v[6:7], {pWS} offset:{8 * k}\ns_nop 1")
        A("s_mov_b64 exec, -1")

    def spin_tail(top, sleep=None):
        sleep = slp if sleep is None else sleep
        if sleep:
            A(f"s_sleep {sleep}")
        A(f"s_sub_u32 {sBUD}, {sBUD}, 1\ns_cbranch_scc0 {top}\ns_branch L_end")

    def wait_lds(off, val, vt="v5", addr=vM, sleep=None):
        top, done = lab("w"), lab("d")
        A(f"{top}:\nds_read_b32 {vt}, {addr} offset:{off}\ns_waitcnt lgkmcnt(0)\nv_readfirstlane_b32 {sT5}, {vt}\ns_cmp_ge_u32 {sT5}, {val}\ns_cbranch_scc1 {done}")
        spin_tail(top, sleep)
        A(f"{done}:")

    def signal(off, vval=vONE, addr=vM):
        A(f"s_mov_b64 exec, 1\nds_add_u32 {addr}, {vval} offset:{off}\ns_mov_b64 exec, -1")

    def tags_ok(regs, ok, guard=None):
        t = ["v5", "v7", "v8", "v9", "v10", "v11", "v56", "v57"]
        parts = []
        for k in range(0, len(regs), 2):
            A(f"v_bitop3_b32 {t[k // 2]}, v{regs[k]}, v{regs[k + 1]}, {sTAG} bitop3:0x7e")
            parts.append(t[k // 2])
        if guard:
            A(guard(parts))
        while len(parts) > 1:
            if len(parts) >= 3:
                A(f"v_or3_b32 {parts[0]}, {parts[0]}, {parts[-1]}, {parts[-2]}")
                parts = parts[:-2]
            else:
                A(f"v_or_b32 {parts[0]}, {parts[0]}, {parts[1]}")
                parts = parts[:1]
        A(f"v_cmp_ne_u32_sdwa vcc, v5, 0 src0_sel:BYTE_0 src1_sel:DWORD\ns_cmp_eq_u64 vcc, 0\ns_cbranch_scc1 {ok}")

    def strip_tag(regs):
        for r in regs:
            A(f"v_bfi_b32 v{r}, {vFF}, 0, v{r}")

    def store_group(ins, soff):
        far, done = lab("far"), lab("pub")
        A(f"{ins.format(soff)}\ns_cmp_lg_u32 {sFAR}, 0\ns_cbranch_scc1 {far}\n{done}:")
        cold.append(f"{far}:\ns_add_u32 {sT5}, {soff}, {WS_FAR}\n{ins.format(sT5)} sc1\ns_branch {done}")

    def put_tag(regs, exact=False):
        if rnd and not exact:
            for r in regs:
                A(f"v_add_u32 v{r}, 0x80, v{r}")
        for r in regs:
            A(f"v_bfi_b32 v{r}, {vFF}, {sTAG}, v{r}")

    DPP = ["quad_perm:[1,0,3,2] row_mask:0xf", "quad_perm:[2,3,0,1] row_mask:0xf", "row_half_mirror row_mask:0xf",
           "row_mirror row_mask:0xf", "row_bcast:15 row_mask:0xa", "row_bcast:31 row_mask:0xc"]

    def wave_sums(regs, sdst):
        A("s_nop 1")
        for m in DPP:
            for r in regs:
                A(f"v_add_f32_dpp {r}, {r}, {r} {m} bank_mask:0xf")
            A("s_nop 1" if len(regs) == 1 else "s_nop 0")
        for r, s in zip(regs, sdst):
            A(f"v_readlane_b32 {s}, {r}, 63")
        A("s_nop 1")

    def rne1(dst, src):
        A(f"v_cvt_pk_bf16_f32 {dst}, 0, {src}")

    def unpack2(lo, hi, src):
        A(f"v_lshlrev_b32 {lo}, 16, {src}\nv_and_b32 {hi}, {sMASK}, {src}")

    def ln_scale(vm, vr, sS1, sS2, vinv, onepass):
        A(f"v_mul_f32 {vr}, {sS2}, {vinv}\nv_mul_f32 {vm}, {sS1}, {vinv}")
        if onepass:
            A(f"v_fma_f32 {vr}, -{vm}, {vm}, {vr}")
        A(f"v_cvt_pk_bf16_f32 {vr}, 0, abs({vr})")
        rne1(vm, vm)
        A(f"v_add_f32 {vr}, {hex(fbits(1e-5))}, {vr}")
        rne1(vr, vr)
        A(f"v_sqrt_f32 {vr}, {vr}\ns_nop 0")
        rne1(vr, vr)
        A(f"v_rcp_f32 {vr}, {vr}\ns_nop 0")

    def normalize(pairs, vm, vr, last=True):
        for a in pairs:
            A(f"v_pk_add_f32 v[{a}:{a + 1}], v[{a}:{a + 1}], v[{vm}:{vm + 1}] op_sel_hi:[1,0] neg_lo:[0,1] neg_hi:[0,1]")
        for a in pairs:
            rne1(f"v{a}", f"v{a}")
            rne1(f"v{a + 1}", f"v{a + 1}")
        for a in pairs:
            A(f"v_pk_mul_f32 v[{a}:{a + 1}], v[{a}:{a + 1}], v[{vm}:{vm + 1}] op_sel:[0,1] op_sel_hi:[1,1]")
        if last:
            for a in pairs:
                rne1(f"v{a}", f"v{a}")
                rne1(f"v{a + 1}", f"v{a + 1}")

    K1 = -2.0 * math.sqrt(2.0 / math.pi) * math.log2(math.e)
    K2 = K1 * 0.044715
    CEXP = math.log2(math.e) / 16.0

    def gelu(sTs, accs, first):
        el = [(i, e) for e in range(4) for i in range(len(sTs))]
        u = lambda i, e: f"v{60 + 4 * i + e}"
        p = lambda i, e: f"v{68 + 4 * i + e}"
        for i, e in el:
            A(f"v_fma_f32 {u(i, e)}, {sTs[i]}, v{48 + e}, v{52 + e}")
        for i, e in el:
            A(f"v_mul_f32 {p(i, e)}, {u(i, e)}, {u(i, e)}")
        for i, e in el:
            A(f"v_fmaak_f32 {p(i, e)}, {p(i, e)}, v47, {hex(fbits(K1))}")
        for i, e in el:
            A(f"v_mul_f32 {p(i, e)}, {p(i, e)}, {u(i, e)}")
        for i, e in el:
            A(f"v_exp_f32 {p(i, e)}, {p(i, e)}\nv_mul_f32 {u(i, e)}, {u(i, e)}, v{56 + e}")
        for i, e in el:
            A(f"v_add_f32 {p(i, e)}, 1.0, {p(i, e)}")
        for i, e in el:
            A(f"v_rcp_f32 {p(i, e)}, {p(i, e)}")
        A("s_nop 0")
        for i, e in el:
            A(f"v_mul_f32 {accs[i]}, {u(i, e)}, {p(i, e)}" if first and e == 0 else f"v_fmac_f32 {accs[i]}, {u(i, e)}, {p(i, e)}")

    def unpack_w():
        for k, src in enumerate((76, 77, 78, 79, 84, 85)):
            unpack2(f"v{48 + 2 * k}", f"v{49 + 2 * k}", f"v{src}")
        A(f"v_mov_b32 v47, {hex(fbits(K2))}")

    def load_w():
        A(f"global_load_dwordx2 v[76:77], v5, {pW1}\nglobal_load_dwordx2 v[78:79], v5, {pB1}\nglobal_load_dwordx2 v[84:85], v5, {pW2}")

    def swap_reduce4(*sets):
        A("s_nop 1")
        for a, b, c, d in sets:
            A(f"v_permlane16_swap_b32 {a}, {b}\nv_permlane16_swap_b32 {c}, {d}")
        for a, b, c, d in sets:
            A(f"v_add_f32 {a}, {a}, {b}\nv_add_f32 {c}, {c}, {d}")
        A("s_nop 1")
        for a, b, c, d in sets:
            A(f"v_permlane32_swap_b32 {a}, {c}")
        for a, b, c, d in sets:
            A(f"v_add_f32 {a}, {a}, {c}")

    L.append(f"; @launch grid=(256,1,1) block=(576,1,1) lds={10 * SLOT}")
    L.append('.amdgcn_target "amdgcn-amd-amdhsa--gfx950"\n.text')
    L.append(f".globl {KN}_kernel\n.p2align 8\n.type {KN}_kernel,@function\n{KN}_kernel:")
    A(f"""s_cmp_ge_u32 {sW}, 256
    s_cbranch_scc1 L_end
    s_load_dwordx16 s[4:19], s[0:1], 0
    s_load_dwordx8 s[20:27], s[0:1], 64
    s_load_dwordx2 s[28:29], s[0:1], 96""")
    stamp(0)
    A(f"""v_lshrrev_b32 v1, 6, v0
    s_and_b32 {sG}, {sW}, 7
    v_readfirstlane_b32 {sWV}, v1
    s_lshr_b32 {sI}, {sW}, 3
    s_and_b32 {sB}, {sI}, 3
    s_lshr_b32 {sS}, {sI}, 2""")
    A(f"""s_lshl_b32 {sBG}, {sB}, 3
    s_add_u32 {sBG}, {sBG}, {sG}
    s_mov_b32 {sBUD}, 0x80000
    v_mov_b32 {vM}, {MISC}
    s_mov_b32 s39, 0x20000
""")
    A(f"s_cmp_eq_u32 {sWV}, 0\ns_cbranch_scc1 L_loader")
    if epf:
        C("compute waves: pull this kernel's code towards the L2, 1 KiB pieces (speed only)")
        A(f"""s_getpc_b64 s[40:41]
        L_pc0:
        v_lshlrev_b32 v8, 4, v0
        v_add_u32 v10, {8 * 1024 - 1024}, v8
        v_min_u32 v10, L_codeend-L_pc0-16, v10
        v_add_u32 v8, {-1024 & 0xffffffff}, v8
        v_mov_b32 v9, s41
        v_add_co_u32 v8, vcc, s40, v8
        v_mov_b32 v11, s41
        v_addc_co_u32 v9, vcc, 0, v9, vcc
        global_load_dwordx4 v[20:23], v[8:9], off""")
        if epf > 1:
            A(f"""v_add_co_u32 v10, vcc, s40, v10
            s_nop 1
            v_addc_co_u32 v11, vcc, 0, v11, vcc
            global_load_dwordx4 v[20:23], v[10:11], off""")
    A("s_barrier\ns_branch L_compute\nL_loader:")
    C("---------------- loader wave")
    sN, sSLOT, sBASE, sGS, sRG, sRS, sCNT, sGI, sKV = "s48", "s49", "s50", "s51", "s52", "s53", "s54", "s55", "s56"
    sKJ = "s57"
    A("s_setprio 3")
    if True:
        C("rows 112b.. of wq, columns 512g+64s.. -> ring slot 8 (two lanes-wide issues run past the slice's descriptor)")
        A(f"""s_mul_i32 {sT0}, {sB}, {112 * 8192}
        s_lshl_b32 {sT1}, {sG}, 10
        s_add_u32 {sT0}, {sT0}, {sT1}
        s_lshl_b32 {sT1}, {sS}, 7
        s_add_u32 {sT0}, {sT0}, {sT1}
        v_lshrrev_b32 v12, 3, v0
        v_lshlrev_b32 v12, 13, v12
        v_and_b32 v13, 7, v0
        v_lshrrev_b32 v14, 4, v0
        v_lshlrev_b32 v14, 1, v14
        v_xor_b32 v13, v13, v14
        v_lshl_or_b32 v12, v13, 4, v12
        v_add_u32 v13, {65536 - 1024}, v12
        v_add_u32 v14, {65536 - 1024}, v13
        v_add_u32 v15, {65536 - 1024}, v14
        s_mov_b32 s46, {111 * 8192 + 128}
        s_mov_b32 s47, 0x20000
        s_mov_b32 {sT1}, 0
        s_waitcnt lgkmcnt(0)
        s_add_u32 s44, s{pWQ[0]}, {sT0}
        s_addc_u32 s45, s{pWQ[1]}, 0""")
        if lst:
            stamp(7)
        for u in range(16):
            if u % 4 == 0:
                A(f"s_mov_b32 m0, {8 * SLOT + 1024 * u}")
                A(f"s_add_u32 {sT1}, {sT1}, {4 * 65536}" if u else "s_nop 0")
            A(f"buffer_load_dwordx4 v{12 + u % 4}, s[44:47], {sT1} offen offset:{1024 * (u % 4)} {ldq} lds")
            if u == 3:
                A(f"""v_lshrrev_b32 v6, 1, v0
    v_cmp_eq_u32 vcc, 4, v6
    v_lshl_add_u32 v5, v0, 2, {vM}
    v_mov_b32 v7, 0xff800000
    v_cndmask_b32 v6, 0, v7, vcc
    ds_write_b32 v5, v6 offset:{FL}
                s_waitcnt lgkmcnt(0)
                s_barrier""")
                stamp(1)
    A(f"""    v_lshrrev_b32 v5, 5, v0
    v_and_b32 v6, 31, v0
    v_lshlrev_b32 v7, 1, v5
    v_xor_b32 v6, v6, v7
    v_lshlrev_b32 v6, 4, v6
    v_lshl_or_b32 v8, v5, 9, v6
    v_xor_b32 v9, 64, v8
    v_xor_b32 v10, 0x80, v8
    v_xor_b32 v11, 0xc0, v8
    s_mov_b32 {sN}, 0
    s_mov_b32 {sSLOT}, 0
    s_mov_b32 {sGS}, 4096
    s_mov_b32 {sCNT}, 16
    s_mov_b32 s38, {8 * SLOT}""")
    sR = sI
    if ra != 1 or rc:
        A(f"s_mul_i32 {sT0}, {sI}, {ra}\ns_mul_i32 {sT1}, {sG}, {rc}\ns_add_u32 {sT0}, {sT0}, {sT1}\ns_and_b32 {sT0}, {sT0}, 31")
        sR = sT0
    if rot == 1:
        A(f"s_and_b32 {sRG}, {sR}, 3\ns_lshr_b32 {sRS}, {sR}, 2")
    elif rot == 2:
        A(f"s_lshr_b32 {sRG}, {sR}, 3\ns_and_b32 {sRS}, {sR}, 7")
    elif rot == 3:
        A(f"s_mov_b32 {sRG}, 0\ns_and_b32 {sRS}, {sR}, 7")
    elif rot == 4:
        A(f"s_and_b32 {sRG}, {sR}, 3\ns_mov_b32 {sRS}, 0")
    elif rot == 5:
        A(f"s_lshr_b32 {sRG}, {sR}, 2\ns_and_b32 {sRS}, {sR}, 3")
    else:
        A(f"s_mov_b32 {sRG}, 0\ns_mov_b32 {sRS}, 0")
    A(f"""s_lshl_b32 {sKV}, {sBG}, 22
    s_lshl_b32 {sT1}, {sS}, 17
    s_add_u32 {sKV}, {sKV}, {sT1}
    s_add_u32 {sKV}, {sKV}, 0x300000
""")
    A(f"""s_add_u32 s36, s{pK[0]}, {sKV}
    s_addc_u32 s37, s{pK[1]}, 0""")

    def group_loop(flag, first, D, vb=8):
        top = lab("grp")
        A(f"s_mov_b32 {sT2}, 0")
        A(f"""{top}:
        s_add_u32 {sGI}, {sT2}, {sRG}
        s_and_b32 {sGI}, {sGI}, 3
        s_lshl_b32 {sT0}, {sGI}, 12
        s_mul_i32 {sT1}, {sGI}, {sGS}
        s_add_u32 m0, {sT0}, {sSLOT}
        s_add_u32 {sT1}, {sT1}, {sBASE}""")
        for k in range(4):
            A(f"s_waitcnt vmcnt({D - 1})\nbuffer_load_dwordx4 v{vb + k}, {SRD}, {sT1} offen offset:{1024 * k} {flag} lds")
        nb, nw = lab("nb"), lab("nw")
        A(f"s_add_u32 {sCNT}, {sCNT}, 4")
        A(f"""s_sub_u32 {sT0}, {sCNT}, {D}
        s_cbranch_scc1 {nw}
        s_and_b32 {sT1}, {sT0}, 15
        s_cbranch_scc1 {nw}
        s_lshr_b32 {sT0}, {sT0}, 4
        v_mov_b32 v5, {sT0}
        ds_write_b32 {vM}, v5 offset:{F_LANDED}
        {nw}:
        s_add_u32 {sT2}, {sT2}, 1
        s_cmp_lt_u32 {sT2}, 4
        s_cbranch_scc1 {top}""")

    def next_slot():
        A(f"""s_add_u32 {sN}, {sN}, 1
        s_add_u32 {sSLOT}, {sSLOT}, {SLOT}
        s_cmp_eq_u32 {sSLOT}, {9 * SLOT}
        s_cselect_b32 {sSLOT}, 0, {sSLOT}""")

    def wait_free():
        if x_nofree:
            return
        A(f"s_lshl_b32 {sT0}, {sN}, 2\nv_add_u32 v6, {sT0}, {vM}")
        wait_lds(F_FREE - 32, 8, "v5", "v6")

    def landed(k):
        A(f"v_mov_b32 v5, {k}\nds_write_b32 {vM}, v5 offset:{F_LANDED}")

    def drain(total, D):
        for k in range(total - (D + 15) // 16 + 1, total + 1):
            A(f"s_waitcnt vmcnt({16 * (total - k)})")
            landed(k)

    def seg_base():
        A(f"s_add_u32 {sT0}, {sN}, {sRS}\ns_and_b32 {sT0}, {sT0}, 7\ns_lshl_b32 {sBASE}, {sT0}, 14")

    assert wpos == 8
    DV = DV or D
    if lst:
        stamp(8)
    C("segments 0..7: K")
    A("L_k:")
    seg_base()
    group_loop(ld, True, D)
    next_slot()
    A(f"""s_cmp_lt_u32 {sN}, 8
    s_cbranch_scc1 L_k
    s_add_u32 s36, s{pV[0]}, {sKV}
    s_addc_u32 s37, s{pV[1]}, 0""")
    stamp(2)
    C("segments 8..15: V, each into a slot its readers have released")
    A("L_v:")
    wait_free()
    seg_base()
    group_loop(ld, False, DV)
    next_slot()
    A(f"s_cmp_lt_u32 {sN}, 16\ns_cbranch_scc1 L_v")
    stamp(3)
    A(f"s_cmp_lg_u32 {sS}, 7\ns_cbranch_scc1 L_wo")
    A("L_nowo:")
    drain(16 + LB, DV)
    A("s_branch L_ldone")
    C("two segments of wo: rows of head 2g + (b&1), 64 columns -> slots 7, 8")
    A(f"""L_wo:
    {"s_branch L_nowo" if x_stop == 9 else ""}
    v_lshrrev_b32 v5, 3, v0
    v_and_b32 v6, 7, v0
    v_lshrrev_b32 v7, 4, v0
    v_lshlrev_b32 v7, 1, v7
    v_xor_b32 v6, v6, v7
    v_lshlrev_b32 v6, 4, v6
    v_mul_u32_u24 v5, 896, v5
    v_add_u32 v12, v5, v6
    v_add_u32 v13, {7168 - 1024}, v12
    v_add_u32 v14, {7168 - 1024}, v13
    v_add_u32 v15, {7168 - 1024}, v14
    s_mov_b32 s36, s{pWO[0]}
    s_mov_b32 s37, s{pWO[1]}
    s_mov_b32 s38, {4096 * 896}
    s_lshl_b32 {sT0}, {sG}, 1
    s_and_b32 {sT1}, {sB}, 1
    s_add_u32 {sT0}, {sT0}, {sT1}
    s_mul_i32 {sBASE}, {sT0}, {256 * 896}
    s_lshl_b32 {sT1}, {sS}, 7
    s_add_u32 {sBASE}, {sBASE}, {sT1}""")
    T0 = 16 * (16 + LB)
    done = (T0 - DV) // 16
    for u in range(32):
        if u % 16 == 0 and not x_nofree:
            wait_lds(F_FREE + 4 * (8 + u // 16), 8)
        if u % 4 == 0:
            A(f"s_mov_b32 m0, {7 * SLOT + 1024 * u}")
            A(f"s_add_u32 {sBASE}, {sBASE}, {4 * 7168}" if u else "s_nop 0")
        if u + DV >= DW:
            A(f"s_waitcnt vmcnt({DW - 1})")
            k = (T0 + u - DW + 1) // 16
            if k > done:
                landed(k)
                done = k
        A(f"buffer_load_dwordx4 v{12 + u % 4}, {SRD}, {sBASE} offen offset:{1024 * (u % 4)} {ldo} lds")
    stamp(4)
    for k in range(done + 1, 18 + LB + 1):
        if k != 17 + LB:
            A(f"s_waitcnt vmcnt({16 * (18 + LB - k)})")
            landed(k)
    A("L_ldone:")
    stamp(5)
    A("s_waitcnt lgkmcnt(0)")
    if diag:
        A(f"s_sub_u32 {sT0}, 0x80000, {sBUD}\ns_mul_i32 {sT0}, {sT0}, 100\ns_add_u32 s76, s64, {sT0}\ns_addc_u32 s77, s65, 0")
    stamps_out(0, 7)
    if lst:
        A('s_mov_b32 s64, s78\ns_mov_b32 s65, s79\ns_mov_b32 s66, s80\ns_mov_b32 s67, s81')
        stamps_out(40, 2)
    A("s_endpgm")

    C("---------------- compute waves")
    sCW = sWV
    A(f"""L_compute:
    {"s_endpgm" if x_stop == 9 else ""}
    s_sub_u32 {sCW}, {sWV}, 1
    v_and_b32 v0, 63, v0
    v_lshlrev_b32 {vL16}, 4, v0
    s_mul_i32 {sT0}, {sCW}, 896
    v_add_u32 v5, {sT0}, {vL16}
    v_mov_b32 v16, 0
    v_mov_b32 v17, 0
    v_mov_b32 v18, 0
    v_mov_b32 v19, 0
    v_lshrrev_b32 {vG}, 4, v0
    v_and_b32 {vN}, 15, v0
    v_mov_b32 {vONE}, 1
    v_mov_b32 {vFF}, 0xff
    v_mov_b32 v14, 0
    s_mov_b32 {sMASK}, 0xffff0000
    s_lshl_b32 {sIDX}, {sBG}, 3
    s_add_u32 {sIDX}, {sIDX}, {sS}
    s_lshl_b32 {sT0}, {sB}, 1
    s_xor_b32 {sFIN}, {sT0}, {sG}
    s_mov_b32 s38, 0x400000
    s_lshl_b32 {sT0}, {sG}, 2
    s_add_u32 {sT0}, {sT0}, {sB}
    s_lshl_b32 {sT0}, {sT0}, 3
    s_add_u32 {sT0}, {sT0}, {sS}
    s_waitcnt lgkmcnt(0)
    s_mov_b32 {sWT}, {sT0}
    s_mov_b32 {sTBLN}, {WS_TBLN}
    s_lshl_b32 s47, {sBG}, 13
    s_lshl_b32 {sT0}, {sCW}, 10
    s_or_b32 s47, s47, {sT0}
    s_or_b32 s47, s47, {WS_Q}
    s_cmp_ge_u32 {sCW}, 4
    s_mov_b32 s36, s28
    s_mov_b32 s37, s29
    s_load_dword {sTAG}, {pWS}, {WS_E}
    s_cbranch_scc1 L_nox
    s_mov_b32 exec_hi, 0x00ffffff
    global_load_dwordx4 v[16:19], v5, {pX}
    s_mov_b32 exec_hi, -1
    L_nox:
    s_cmp_lg_u32 {sCW}, 0
    s_cbranch_scc1 L_notq0
    v_mov_b32 v7, 0
    global_load_ushort v167, v7, {pB2}
    s_getreg_b32 {sXCC}, hwreg(HW_REG_XCC_ID, 0, 4)
    s_lshl_b32 s59, {sG}, 7
    s_add_u32 s59, s59, {WS_IDS}
    s_lshl_b32 {sT0}, {sI}, 2
    s_add_u32 {sT0}, {sT0}, s59
    v_lshlrev_b32 v7, 8, {sXCC}
    s_waitcnt lgkmcnt(0)
    s_add_u32 {sTAG}, {sTAG}, {hex(TAGINC)}
    v_bfi_b32 v8, {vFF}, {sTAG}, v7
    s_mov_b64 exec, 1
    buffer_store_dword v8, {vL16}, {SRD}, {sT0} offen
    s_mov_b64 exec, -1
    s_waitcnt vmcnt(2)
    s_branch L_ln
    L_notq0:
    s_lshl_b32 {sT0}, {sCW}, 9
    s_sub_u32 {sT0}, {sT0}, 512
    v_lshl_add_u32 v5, v0, 3, {sT0}""")
    load_w()
    if pf:
        C("wave 5: pull 1 KiB of this kernel's code towards the L2 (speed only)")
        A(f"""s_cmp_lg_u32 {sCW}, 5
        s_cbranch_scc1 L_nopf
        s_getpc_b64 s[40:41]
        L_pfpc:
        s_and_b32 {sT2}, {sI}, {pf - 1}
        s_lshl_b32 {sT2}, {sT2}, 10
        s_min_u32 {sT2}, {sT2}, L_codeend-L_ln-1024
        s_add_u32 {sT2}, {sT2}, L_ln-L_pfpc
        s_add_u32 s40, s40, {sT2}
        s_addc_u32 s41, s41, 0
        v_mov_b32 v9, s41
        v_add_co_u32 v8, vcc, s40, {vL16}
        s_nop 1
        v_addc_co_u32 v9, vcc, 0, v9, vcc
        global_load_dwordx4 v[20:23], v[8:9], off
        L_nopf:""")
    A(f"""s_waitcnt lgkmcnt(0)
    s_add_u32 {sTAG}, {sTAG}, {hex(TAGINC)}
    s_cmp_ge_u32 {sCW}, 4
    s_cbranch_scc1 L_table
    s_waitcnt vmcnt(3)""")
    C("LayerNorm of row cw of x (waves 0..3), bf16 rounding as the reference")
    A("L_ln:\ns_setprio 2")
    for k in range(4):
        unpack2(f"v{20 + 2 * k}", f"v{21 + 2 * k}", f"v{16 + k}")
    A("""v_pk_add_f32 v[28:29], v[20:21], v[22:23]
    v_pk_add_f32 v[30:31], v[24:25], v[26:27]
    v_pk_add_f32 v[28:29], v[28:29], v[30:31]
    v_add_f32 v28, v28, v29""")
    wave_sums(["v28"], [sT0])
    A(f"v_mov_b32 v32, {hex(fbits(1.0 / 448.0))}\nv_mul_f32 v30, {sT0}, v32\nv_mov_b32 v28, 0\ns_mov_b32 exec_hi, 0x00ffffff")
    for k in range(8):
        A(f"v_sub_f32 v29, v{20 + k}, v30\nv_fmac_f32 v28, v29, v29")
    A("s_mov_b32 exec_hi, -1")
    wave_sums(["v28"], [sT1])
    ln_scale("v30", "v31", sT0, sT1, "v32", False)
    normalize([20, 22, 24, 26], 30, 31, False)
    for k in range(4):
        A(f"v_cvt_pk_bf16_f32 v{16 + k}, v{20 + 2 * k}, v{21 + 2 * k}")
    A(f"""s_mul_i32 {sT0}, {sCW}, 960
    v_add3_u32 v5, {vL16}, {sT0}, {vM}
    s_mov_b32 exec_hi, 0x00ffffff
    ds_write_b128 v5, v[16:19] offset:{LN}
    s_mov_b32 exec_hi, -1""")
    signal(F_LNCNT)
    A(f"s_cmp_lg_u32 {sCW}, 0\ns_cbranch_scc1 L_table")
    C("partial q projection: 64 columns x 4 batches over 112 rows")
    stamp(1)
    A(f"""v_and_b32 v7, 3, {vN}
    v_lshlrev_b32 v12, 16, v7
    v_mul_u32_u24 v7, 960, v7
    v_lshl_add_u32 v7, {vG}, 3, v7
    s_mul_i32 {sT0}, {sB}, 224
    v_add3_u32 v7, v7, {sT0}, {vM}
    v_bfe_u32 v8, v0, 3, 2
    v_lshlrev_b32 v8, 5, v8
    v_lshrrev_b32 v9, 2, v0
    v_lshl_or_b32 v8, v9, 7, v8
    v_and_b32 v9, 3, v0
    v_lshl_or_b32 v8, v9, 3, v8
    v_add_u32 v8, {8 * SLOT}, v8
    v_xor_b32 v9, 32, v8
    v_xor_b32 v10, 64, v8
    v_xor_b32 v11, 0x60, v8
    v_lshrrev_b32 v13, 2, {vN}
    v_cmp_eq_u32 s[52:53], 1, v13
    v_cmp_eq_u32 s[54:55], 2, v13
    v_cmp_eq_u32 s[56:57], 3, v13
    v_lshl_or_b32 v12, v13, 6, v12
    v_lshl_or_b32 v12, {vG}, 4, v12
    v_mov_b32 v13, 8
    s_lshl_b32 {sT0}, {sG}, 3
    s_add_u32 {sT0}, {sT0}, {sS}
    s_lshl_b32 {sT0}, {sT0}, 10
    s_lshl_b32 {sT1}, {sB}, 8
    s_add_u32 {sT0}, {sT0}, {sT1}
    s_add_u32 {sT0}, {sT0}, {WS_Q}""")
    wait_lds(F_LNCNT, 4)
    for j in range(3):
        A(f"ds_read2_b64 v[{16 + 4 * j}:{19 + 4 * j}], v7 offset0:{8 * j} offset1:{8 * j + 4}")
    A("ds_read_b64 v[28:29], v7 offset:192")
    wait_lds(F_LANDED, 1)
    for j in range(4):
        for t in range(4):
            r = 48 + 16 * j + 4 * t
            A(f"ds_read_b64_tr_b16 v[{r}:{r + 1}], v{8 + t} offset:{4096 * j}")
            if j < 3:
                A(f"ds_read_b64_tr_b16 v[{r + 2}:{r + 3}], v{8 + t} offset:{4096 * j + 2048}")
    signal(F_FREE, "v13")
    A("s_waitcnt lgkmcnt(0)")
    for j in range(4):
        for t in range(4):
            r, d = 48 + 16 * j + 4 * t, 112 + 4 * t
            if j < 3:
                A(f"v_mfma_f32_16x16x32_bf16 v[{d}:{d + 3}], v[{r}:{r + 3}], v[{16 + 4 * j}:{19 + 4 * j}], {'0' if j == 0 else f'v[{d}:{d + 3}]'}")
            else:
                A(f"v_mfma_f32_16x16x16_bf16 v[{d}:{d + 3}], v[{r}:{r + 1}], v[28:29], v[{d}:{d + 3}]")
    A("s_nop 7")
    for t in range(1, 4):
        for r in range(4):
            A(f"v_cndmask_b32 v{112 + r}, v{112 + r}, v{112 + 4 * t + r}, s[{50 + 2 * t}:{51 + 2 * t}]")
    put_tag(range(112, 116))
    A(f"""buffer_store_dwordx4 v[112:115], v12, {SRD}, {sT0} offen
    s_add_u32 s58, {sT0}, {WS_FAR}
    v_mov_b32 v14, v12""")
    stamp(2)
    if x_stop == 1:
        A("s_endpgm")
    A("s_branch L_qk")
    C("waves 1..7: this workgroup's entries of the scalar map t -> MLP(t), t running over bf16 values")
    A("L_table:\ns_setprio 0\ns_waitcnt vmcnt(0)")
    if x_stop == 1:
        A("s_endpgm")
    unpack_w()
    A(f"""s_and_b32 {sT0}, {sWT}, 127
    s_mul_i32 {sT0}, {sT0}, {NE}
    s_add_u32 {sT0}, {sT0}, {E0 << 7}
    s_lshr_b32 {sT1}, {sWT}, 7
    s_lshl_b32 {sT1}, {sT1}, 15
    s_or_b32 {sT0}, {sT0}, {sT1}
    s_lshl_b32 s50, {sT0}, 16
    s_mov_b32 s54, 0
    s_lshl_b32 {sT0}, {sCW}, 7
    v_lshl_add_u32 v8, {vG}, 2, {vM}
    v_add_u32 v8, {sT0}, v8
    L_tloop:
    s_cmp_lg_u32 s54, {(x_tl or NE) - 4 * qit}
    s_cbranch_scc1 L_tnoq
    buffer_load_dwordx4 v[20:23], {vL16}, {SRD}, s47 offen sc1
    L_tnoq:
    s_add_u32 s51, s50, 0x10000
    s_add_u32 s52, s50, 0x20000
    s_add_u32 s53, s50, 0x30000""")
    gelu(["s50", "s51"], ["v80", "v81"], True)
    gelu(["s52", "s53"], ["v82", "v83"], True)
    swap_reduce4(("v80", "v81", "v82", "v83"))
    A("s_add_u32 s50, s50, 0x40000\ns_add_u32 s54, s54, 4")
    for m in DPP[:4]:
        A(f"v_add_f32_dpp v80, v80, v80 {m} bank_mask:0xf\ns_nop 1")
    A(f"""s_cmp_lt_u32 s54, {x_tl or NE}
    ds_write_b32 v8, v80 offset:{TP - 128}
    v_add_u32 v8, 16, v8
    s_cbranch_scc1 L_tloop""")
    signal(F_TCNT)
    stamp(1)
    C("key slot cw -> registers, slot is released at once")
    A(f"""L_qk:
    s_setprio 1
    v_and_b32 v8, 7, {vN}
    v_lshlrev_b32 v8, 1, v8
    v_xor_b32 v8, v8, {vG}
    v_lshlrev_b32 v8, 4, v8
    v_lshl_or_b32 v8, {vN}, 9, v8
    s_lshl_b32 {sT0}, {sCW}, 14
    v_add_u32 v8, {sT0}, v8
    v_xor_b32 v9, 64, v8
    v_xor_b32 v10, 0x80, v8
    v_xor_b32 v11, 0xc0, v8
    s_lshl_b32 {sT0}, {sCW}, 2
    v_add_u32 v12, {sT0}, {vM}
    v_mov_b32 v13, 8
    s_add_u32 {sT4}, {sCW}, {1 + LB}""")
    wait_lds(F_LANDED, sT4)
    for j in range(8):
        for t in range(2):
            r = 48 + 8 * j + 4 * t
            A(f"ds_read_b128 v[{r}:{r + 3}], v{8 + (j & 3)} offset:{256 * (j >> 2) + 8192 * t}")
    signal(F_FREE + 4, "v13", "v12")
    stamp(3)
    if x_stop == 2:
        A("s_endpgm")
    C("64 columns of q: sum of the four row-quarter partials")
    A(f"""s_lshr_b32 {sT1}, {sCW}, 2
    s_mul_i32 {sT1}, {sT1}, {HP}
    s_and_b32 {sT2}, {sCW}, 3
    s_lshl_b32 {sT2}, {sT2}, 7
    s_add_u32 {sT1}, {sT1}, {sT2}
    v_lshlrev_b32 v12, 1, {vG}
    v_lshl_or_b32 v12, {vN}, 3, v12
    v_add3_u32 v12, v12, {sT1}, {vM}
    s_cmp_lg_u32 {sCW}, 0
    s_cbranch_scc1 L_qchk""")
    wait_lds(F_LANDED, QT + LB)
    A(f"buffer_load_dwordx4 v[20:23], {vL16}, {SRD}, s47 offen sc1")
    C("wave 0: do the 32 workgroups of this kv head share this compute die (one L2)?  Not seen yet counts as no")
    A(f"""v_and_b32 v16, 31, v0
    v_lshlrev_b32 v16, 2, v16
    buffer_load_dword v17, v16, {SRD}, s59 offen sc1
    v_lshlrev_b32 v18, 8, {sXCC}
    v_bfi_b32 v18, {vFF}, {sTAG}, v18
    s_waitcnt vmcnt(0)
    v_cmp_ne_u32 vcc, v17, v18
    v_mov_b32 v17, 1
    s_cmp_lg_u64 vcc, 0
    s_cbranch_scc1 L_idfar
    {"s_branch L_idfar" if x_far else ""}
    L_idloc:
    ds_write_b32 {vM}, v17 offset:{F_LOC}
    L_qchk:
    s_waitcnt vmcnt(0)""")
    cold.append(f"""L_idfar:
    buffer_store_dwordx4 v[112:115], v14, {SRD}, s58 offen sc1
    v_mov_b32 v17, {WS_FAR + 1}
    s_branch L_idloc""")
    tags_ok([20, 21, 22, 23], "L_qok")
    wait_lds(F_LOC, 1, sleep=qback)
    A(f"""s_sub_u32 {sT5}, {sT5}, 1
    s_xor_b32 s47, s47, {sT5}
    s_sleep {qback}
    buffer_load_dwordx4 v[20:23], {vL16}, {SRD}, s47 offen sc1""")
    spin_tail("L_qchk", 0)
    A("L_qok:")
    strip_tag(range(20, 24))
    swap_reduce4(("v20", "v21", "v22", "v23"))
    A(f"""v_cvt_pk_bf16_f32 v20, v20, v20
    ds_write_b16 v12, v20 offset:{QL}""")
    signal(F_QCNT)
    A(f"""v_and_b32 v7, 1, {vN}
    v_lshl_add_u32 v8, v7, 2, {vM}
    v_mul_u32_u24 v7, {HP}, v7
    v_lshl_add_u32 v7, {vG}, 4, v7
    v_add_u32 v7, v7, {vM}
    s_lshl_b32 {sT0}, {sCW}, 6
    v_add_u32 v9, {sT0}, v7
    s_mov_b32 s46, {hex(fbits(CEXP))}""")
    wait_lds(F_QCNT, 8)
    stamp(4)
    A(f"ds_read_b32 v5, {vM} offset:{F_LOC}")
    for j in range(8):
        A(f"ds_read_b128 v[{16 + 4 * j}:{19 + 4 * j}], v7 offset:{QL + 64 * j}")
    for j in range(8):
        A(f"s_waitcnt lgkmcnt({7 - j})")
        if j == 0:
            A(f"v_readfirstlane_b32 {sFAR}, v5")
        for t in range(2):
            r = 48 + 8 * j + 4 * t
            d = 112 + 4 * t
            A(f"v_mfma_f32_16x16x32_bf16 v[{d}:{d + 3}], v[{r}:{r + 3}], v[{16 + 4 * j}:{19 + 4 * j}], {'0' if j == 0 else f'v[{d}:{d + 3}]'}")
    A(f"s_sub_u32 {sFAR}, {sFAR}, 1\ns_nop 6")
    for k in range(8):
        rne1(f"v{112 + k}", f"v{112 + k}")
    A(f"""v_max3_f32 v120, v112, v113, v114
    v_max3_f32 v121, v115, v116, v117
    v_max3_f32 v120, v120, v118, v119
    v_max_f32 v120, v120, v121
    s_mov_b32 exec_lo, 0x00030003
    s_mov_b32 exec_hi, 0x00030003
    ds_max_f32 v8, v120 offset:{F_MX}
    s_mov_b64 exec, -1""")
    signal(F_MAXCNT)
    wait_lds(F_MAXCNT, 8)
    A(f"ds_read_b32 v124, v8 offset:{F_MX}\ns_waitcnt lgkmcnt(0)")
    for k in range(8):
        A(f"v_sub_f32 v{112 + k}, v{112 + k}, v124")
    for k in range(8):
        A(f"v_mul_f32 v{112 + k}, s46, v{112 + k}")
    for k in range(8):
        A(f"v_exp_f32 v{112 + k}, v{112 + k}")
    A("s_nop 0")
    for k in range(4):
        A(f"v_cvt_pk_bf16_f32 v{120 + k}, v{112 + 2 * k}, v{113 + 2 * k}")
    A(f"""s_mov_b32 exec_lo, 0x00030003
    s_mov_b32 exec_hi, 0x00030003
    ds_write_b128 v9, v[120:123] offset:{PL}
    s_mov_b64 exec, -1""")
    signal(F_PCNT)
    C("addresses of the PV loop and of the stages behind it")
    A(f"""v_mov_b32 v43, v7
    v_bfe_u32 v8, v0, 2, 3
    s_lshl_b32 {sT0}, {sCW}, 1
    v_xor_b32 v8, {sT0}, v8
    v_lshlrev_b32 v8, 5, v8
    v_lshrrev_b32 v9, 2, v0
    v_lshl_or_b32 v8, v9, 9, v8
    v_and_b32 v10, 3, v0
    v_lshl_or_b32 v44, v10, 3, v8
    v_xor_b32 v45, 32, v44""")
    for r in range(112, 120):
        A(f"v_mov_b32 v{r}, 0")
    A(f"""v_and_b32 v28, 1, {vN}
    v_lshlrev_b32 v28, 10, v28
    v_bfe_u32 v29, {vN}, 1, 1
    v_lshl_or_b32 v28, v29, 6, v28
    v_lshl_or_b32 v160, {vG}, 4, v28
    v_cmp_ne_u32 s[56:57], 0, v29
    s_lshl_b32 s51, {sIDX}, 11
    s_lshl_b32 {sT0}, {sCW}, 7
    s_add_u32 s51, s51, {sT0}
    s_add_u32 s51, s51, {WS_OP}
    v_lshlrev_b32 v161, 6, {vG}
    v_lshlrev_b32 v28, 4, {vN}
    v_lshl_or_b32 v162, {vG}, 11, v28
    s_and_b32 {sT2}, {sBG}, 0x17
    s_lshr_b32 {sT1}, {sCW}, 2
    s_lshl_b32 {sT1}, {sT1}, 3
    s_add_u32 {sT2}, {sT2}, {sT1}
    s_and_b32 {sT3}, {sB}, 1
    s_lshl_b32 s52, {sT2}, 14
    s_lshl_b32 {sT1}, {sT3}, 10
    s_add_u32 s52, s52, {sT1}
    s_and_b32 {sT1}, {sCW}, 3
    s_lshl_b32 {sT1}, {sT1}, 8
    s_add_u32 s52, s52, {sT1}
    s_add_u32 s52, s52, {WS_OP}
    s_add_u32 s59, s52, {4 << 11}
    v_bfe_u32 v28, v0, 3, 2
    s_and_b32 {sT1}, {sCW}, 3
    v_xor_b32 v28, {sT1}, v28
    v_lshlrev_b32 v28, 5, v28
    v_lshl_or_b32 v28, v9, 7, v28
    v_lshl_or_b32 v163, v10, 3, v28
    v_add_u32 v164, {((8 + wpos) % 9) * SLOT}, v163
    v_lshlrev_b32 v28, 4, v10
    v_bfe_u32 v29, v0, 2, 1
    v_lshl_or_b32 v28, v29, 3, v28
    v_bfe_u32 v29, v0, 3, 1
    v_lshl_or_b32 v28, v29, 6, v28
    v_lshl_or_b32 v28, {vG}, 1, v28
    s_lshr_b32 {sT0}, {sCW}, 2
    s_mul_i32 {sT0}, {sT0}, {HP}
    s_lshl_b32 {sT1}, {sT1}, 7
    s_add_u32 {sT0}, {sT0}, {sT1}
    v_add3_u32 v165, v28, {sT0}, {vM}
    s_lshl_b32 {sT0}, {sCW}, 6
    v_add_u32 v166, {OL - PL}, v7
    v_mul_u32_u24 v14, {16 * 1792}, {vN}
    v_lshl_add_u32 v14, {vG}, 4, v14
    s_and_b32 s53, {sB}, 2
    s_lshl_b32 s53, s53, 3
    s_add_u32 s53, s53, {sG}
    s_lshl_b32 s53, s53, 1
    s_add_u32 s53, s53, {sT3}
    s_mul_i32 s53, s53, 1792
    s_lshl_b32 {sT1}, {sS}, 8
    s_add_u32 s53, s53, {sT1}
    s_add_u32 s53, s53, {sT0}
    s_add_u32 s53, s53, {WS_OUTP}
    s_lshl_b32 s54, {sT2}, 9
    s_lshl_b32 {sT1}, {sT3}, 3
    s_add_u32 s54, s54, {sT1}
    s_add_u32 s54, s54, {WS_STATS}
    v_lshl_add_u32 v136, {vN}, 2, {vG}
    v_add_u32 v136, {sT0}, v136
    s_mul_i32 {sT1}, {sB}, 896
    v_lshl_add_u32 v137, v136, 1, {sT1}
    s_and_b32 s55, {sWT}, 0xf8
    s_mul_i32 s55, s55, {NE * 4}
    s_xor_b32 {sT1}, {sS}, 7
    s_or_b32 {sFIN}, {sFIN}, {sT1}""")
    if onear:
        C("lanes of the output rows whose finishing workgroup belongs to this kv head (kept in L2 when the group is on one die)")
        A(f"""s_and_b32 {sT1}, {sB}, 2
        s_lshl_b32 {sT1}, {sT1}, 1
        s_sub_u32 {sT1}, {sG}, {sT1}
        s_cmp_eq_u32 {sT1}, 0
        s_cselect_b32 s0, 0x00010001, 0
        s_cmp_eq_u32 {sT1}, 2
        s_cselect_b32 s0, 0x00020002, s0
        s_cmp_lg_u32 {sFAR}, 0
        s_cselect_b32 s0, 0, s0
        s_xor_b32 s1, s0, 0x00030003""")
    wait_lds(F_PCNT, 8)
    stamp(5)
    if x_stop == 3:
        A("s_endpgm")
    C("wave 0: row sums of the bf16 probabilities (ones x P), publish (max, sum) of both heads")
    A(f"s_cmp_lg_u32 {sCW}, 0\ns_cbranch_scc1 L_nostat")
    for j in range(8):
        A(f"ds_read_b128 v[{48 + 4 * j}:{51 + 4 * j}], v43 offset:{PL + 64 * j}")
    for r in range(16, 20):
        A(f"v_mov_b32 v{r}, 0x3f803f80")
    A(f"""s_lshl_b32 {sT0}, {sIDX}, 6
    s_add_u32 {sT0}, {sT0}, {WS_STATS}
    s_waitcnt lgkmcnt(0)""")
    for j in range(8):
        A(f"v_mfma_f32_16x16x32_bf16 v[20:23], v[16:19], v[{48 + 4 * j}:{51 + 4 * j}], {'0' if j == 0 else 'v[20:23]'}")
    A(f"""v_mov_b32_dpp v126, v124 quad_perm:[1,0,3,2] row_mask:0xf bank_mask:0xf
    s_nop 6
    v_mov_b32 v125, v20
    v_mov_b32_dpp v127, v20 quad_perm:[1,0,3,2] row_mask:0xf bank_mask:0xf""")
    put_tag([125, 127])
    put_tag([124, 126], True)
    A("s_mov_b64 exec, 1")
    store_group(f"buffer_store_dwordx4 v[124:127], {vL16}, {SRD}, {{}} offen", sT0)
    C("wave 0: finish and publish the table entries")
    A(f"s_mov_b64 exec, -1\nv_and_b32 v7, 31, v0\nv_lshl_add_u32 v7, v7, 2, {vM}")
    wait_lds(F_TCNT, 7)
    for k in range(7):
        A(f"ds_read_b32 v{16 + k}, v7 offset:{TP + 128 * k}")
    A(f"""s_mul_i32 {sT0}, {sWT}, {NE * 4}
    s_add_u32 {sT0}, {sT0}, {WS_TBLN}
    v_lshlrev_b32 v8, 2, v0
    v_lshlrev_b32 v46, 16, v167
    s_waitcnt lgkmcnt(0)
    v_add_f32 v16, v16, v17
    v_add_f32 v18, v18, v19
    v_add_f32 v20, v20, v21
    v_add_f32 v16, v16, v18
    v_add_f32 v20, v20, v22
    v_add_f32 v16, v16, v20""")
    rne1("v16", "v16")
    A("v_add_f32 v16, v16, v46")
    rne1("v16", "v16")
    put_tag([16], True)
    A(f"s_mov_b64 exec, {(1 << NE) - 1}")
    store_group(f"buffer_store_dword v16, v8, {SRD}, {{}} offen", sT0)
    A("s_mov_b64 exec, -1\nL_nostat:")
    sJ, sVS, sJL = "s48", "s49", "s50"
    ntl = (NE * 128 + 1023) // 1024
    lastm = (1 << ((NE * 128 - 1024 * (ntl - 1)) // 16)) - 1

    def table_loads():
        for k in range(ntl):
            if k == ntl - 1:
                A(f"s_mov_b32 exec_lo, {hex(lastm & 0xffffffff)}\ns_mov_b32 exec_hi, {hex(lastm >> 32)}")
            A(f"buffer_load_dwordx4 v[{140 + 4 * k}:{143 + 4 * k}], {vL16}, {SRD}, s55 offen offset:{1024 * k} sc1")
        A("s_mov_b64 exec, -1")

    A(f"""s_mov_b32 {sJ}, 0
    s_mov_b32 {sVS}, {8 * SLOT}
    s_mov_b32 {sJL}, {jmid}
    v_add_u32 v12, {F_FREE + 36}, {vM}
    s_mov_b32 {sT4}, {9 + LB}
    s_cmp_eq_u32 {sS}, 7
    s_cselect_b32 s58, 0, 2
    L_pv:
    ds_read_b128 v[16:19], v43 offset:{PL}
    v_add_u32 v10, {sVS}, v44
    v_add_u32 v11, {sVS}, v45""")
    wait_lds(F_LANDED, sT4, sleep=pvslp)
    A(f"""ds_read_b64_tr_b16 v[20:21], v10
    ds_read_b64_tr_b16 v[22:23], v10 offset:8192
    ds_read_b64_tr_b16 v[24:25], v11
    ds_read_b64_tr_b16 v[26:27], v11 offset:8192""")
    signal(0, vONE, "v12")
    A(f"""v_add_u32 v43, 64, v43
    s_add_u32 {sJ}, {sJ}, 1""")
    if wpos < 8:
        A(f"""s_cmp_eq_u32 {sJ}, {wpos}
        s_cselect_b32 {sT0}, s58, 0
        s_add_u32 {sT0}, {sT0}, 1
        s_add_u32 {sT4}, {sT4}, {sT0}
        s_lshl_b32 {sT1}, {sT0}, 2
        v_add_u32 v12, {sT1}, v12
        s_lshl_b32 {sT1}, {sT0}, 14
        s_add_u32 {sVS}, {sVS}, {sT1}
        s_sub_u32 {sT1}, {sVS}, {9 * SLOT}
        s_cselect_b32 {sVS}, {sVS}, {sT1}""")
    else:
        A(f"""v_add_u32 v12, 4, v12
        s_add_u32 {sT4}, {sT4}, 1
        s_add_u32 {sVS}, {sVS}, {SLOT}
        s_cmp_eq_u32 {sVS}, {9 * SLOT}
        s_cselect_b32 {sVS}, 0, {sVS}""")
    A(f"""    s_cmp_lt_u32 {sJ}, {sJL}
    s_waitcnt lgkmcnt(3)
    v_mfma_f32_16x16x32_bf16 v[112:115], v[20:23], v[16:19], v[112:115]
    s_waitcnt lgkmcnt(1)
    v_mfma_f32_16x16x32_bf16 v[116:119], v[24:27], v[16:19], v[116:119]
    s_cbranch_scc1 L_pv
    s_cmp_eq_u32 {sJ}, 8
    s_cbranch_scc1 L_pv_done""")
    C("before the last value slots: fetch what the next stage needs besides the partial rows")
    A(f"""s_mov_b32 {sJL}, 8
    s_cmp_eq_u32 {sS}, 7
    s_cbranch_scc1 L_mid7
    buffer_load_dwordx2 v[32:33], v161, {SRD}, s54 offen sc1
    buffer_load_dwordx2 v[34:35], v161, {SRD}, s54 offen offset:256 sc1""")
    A(f"""s_branch L_pv
    L_mid7:
    s_cmp_lg_u32 {sCW}, 0
    s_cbranch_scc1 L_mid8
    v_mov_b32 v32, {sTAG}
    v_mov_b32 v33, {sTAG}
    v_mov_b32 v34, {sTAG}
    v_mov_b32 v35, {sTAG}
    s_add_u32 s54, s55, {WS_TBLN}
    s_mov_b32 exec_hi, {hex((1 << (2 * NE - 32)) - 1)}
    buffer_load_dwordx4 v[32:35], {vL16}, {SRD}, s54 offen sc1
    s_mov_b32 exec_hi, -1
    L_mid8:
    s_cmp_lg_u32 {sFIN}, 0
    s_cbranch_scc1 L_pv
    s_cmp_eq_u32 {sCW}, 7
    s_cbranch_scc1 L_pv
    global_load_ushort v138, v137, {pX}
    s_branch L_pv
    L_pv_done:""")
    stamp(7)
    if x_stop == 4:
        A("s_endpgm")
    C("publish the partial output rows")
    A(f"""s_nop 5
    v_cndmask_b32 v112, v112, v116, s[56:57]
    v_cndmask_b32 v113, v113, v117, s[56:57]
    v_cndmask_b32 v114, v114, v118, s[56:57]
    v_cndmask_b32 v115, v115, v119, s[56:57]""")
    put_tag(range(112, 116), True)
    A(f"""s_mov_b32 exec_lo, 0x000f000f
    s_mov_b32 exec_hi, 0x000f000f
""")
    store_group(f"buffer_store_dwordx4 v[112:115], v160, {SRD}, {{}} offen", "s51")
    opoll = f"""buffer_load_dwordx4 v[24:27], v162, {SRD}, s52 offen sc1
    buffer_load_dwordx4 v[28:31], v162, {SRD}, s59 offen sc1"""
    A(f"""s_mov_b64 exec, -1
    s_cmp_eq_u32 {sS}, 7
    s_cbranch_scc1 L_last""")
    A(opoll)
    A(f"s_cmp_lg_u32 {sFAR}, 0\ns_cbranch_scc1 L_spoll0\ns_waitcnt vmcnt(3)\nL_spoll:")
    cold.append("L_spoll0:\ns_waitcnt vmcnt(0)\ns_branch L_spoll")
    tags_ok([32, 33, 34, 35], "L_sok")
    A(f"""s_xor_b32 s54, s54, {sFAR}
    buffer_load_dwordx2 v[32:33], v161, {SRD}, s54 offen sc1
    buffer_load_dwordx2 v[34:35], v161, {SRD}, s54 offen offset:256 sc1
    s_waitcnt vmcnt(0)""")
    spin_tail("L_spoll", 0)
    A("L_sok:")
    C("weights of the splits row and row+4")
    A(f"""v_and_b32 v32, {sMASK}, v32
    v_and_b32 v34, {sMASK}, v34""")
    strip_tag([33, 35])

    def rowred(op, d, t):
        for sw in ("v_permlane16_swap_b32", "v_permlane32_swap_b32"):
            A(f"v_mov_b32 {t}, {d}\ns_nop 1\n{sw} {d}, {t}\n{op} {d}, {d}, {t}")

    A("v_max_f32 v36, v32, v34")
    rowred("v_max_f32", "v36", "v37")
    A("""v_sub_f32 v32, v32, v36
    v_sub_f32 v34, v34, v36
    v_mul_f32 v32, s46, v32
    v_mul_f32 v34, s46, v34
    v_exp_f32 v32, v32
    v_exp_f32 v34, v34
    s_nop 0
    v_mul_f32 v36, v33, v32
    v_fmac_f32 v36, v35, v34""")
    rowred("v_add_f32", "v36", "v37")
    A("""v_rcp_f32 v36, v36
    s_nop 0
    v_mul_f32 v32, v32, v36
    v_mul_f32 v34, v34, v36""")
    A(f"s_cmp_ge_u32 {sCW}, 4\ns_cbranch_scc1 L_opoll")
    wait_lds(F_LANDED, 10 + wpos + LB, sleep=pvslp)
    for j in range(8):
        for u in range(2):
            part = j >> 2
            sl0, sl = (8 + wpos) % 9, (8 + wpos + part) % 9
            base, off = ("v164", (sl - sl0) * SLOT) if sl >= sl0 else ("v163", sl * SLOT)
            r = 48 + 4 * j + 2 * u
            A(f"ds_read_b64_tr_b16 v[{r}:{r + 1}], {base} offset:{off + 4096 * (j & 3) + 2048 * u}")
    stamp(8)
    A("L_opoll:\ns_waitcnt vmcnt(0)")
    tags_ok(list(range(24, 32)), "L_ook")
    if oback:
        A(f"s_sleep {oback}")
    A(f"s_xor_b32 s52, s52, {sFAR}\ns_xor_b32 s59, s59, {sFAR}")
    A(opoll)
    spin_tail("L_opoll", 0)
    A("L_ook:")
    stamp(9)
    strip_tag(range(24, 32))
    A("""v_pk_mul_f32 v[24:25], v[24:25], v[32:33] op_sel_hi:[1,0]
    v_pk_mul_f32 v[26:27], v[26:27], v[32:33] op_sel_hi:[1,0]
    v_pk_fma_f32 v[24:25], v[28:29], v[34:35], v[24:25] op_sel_hi:[1,0,1]
    v_pk_fma_f32 v[26:27], v[30:31], v[34:35], v[26:27] op_sel_hi:[1,0,1]""")
    swap_reduce4(("v24", "v25", "v26", "v27"))
    A(f"""v_cvt_pk_bf16_f32 v24, v24, v24
    ds_write_b16 v165, v24 offset:{OL}
    s_cmp_ge_u32 {sCW}, 4
    s_waitcnt lgkmcnt(0)
    s_barrier
    s_cbranch_scc1 L_exit""")
    for j in range(8):
        A(f"ds_read_b128 v[{16 + 4 * j}:{19 + 4 * j}], v166 offset:{PL + 64 * j}")
    for j in range(8):
        A(f"s_waitcnt lgkmcnt({7 - j})\nv_mfma_f32_16x16x32_bf16 v[112:115], v[{48 + 4 * j}:{51 + 4 * j}], v[{16 + 4 * j}:{19 + 4 * j}], {'0' if j == 0 else 'v[112:115]'}")
    A(f"""s_mov_b32 exec_lo, 0x00030003
    s_mov_b32 exec_hi, 0x00030003
    s_nop 5""")
    put_tag(range(112, 116), True)
    if onear:
        A(f"""s_mov_b32 exec_lo, s1
        s_mov_b32 exec_hi, s1
        buffer_store_dwordx4 v[112:115], v14, {SRD}, s53 offen {ost}
        s_mov_b32 exec_lo, s0
        s_mov_b32 exec_hi, s0
        s_cbranch_execz L_onear
        buffer_store_dwordx4 v[112:115], v14, {SRD}, s53 offen
        L_onear:
        s_mov_b64 exec, -1""")
    else:
        A(f"""buffer_store_dwordx4 v[112:115], v14, {SRD}, s53 offen {ost}
        s_mov_b64 exec, -1""")
    stamp(10)
    A("s_branch L_exit")
    C("workgroups of split 7, wave 0: pass the table entries of the 8 splits on to the finishing workgroups")
    A(f"""L_last:
    s_cmp_lg_u32 {sCW}, 0
    s_cbranch_scc1 L_nofwd
    L_fpoll:
    s_waitcnt vmcnt(0)""")
    tags_ok([32, 33, 34, 35], "L_fok")
    A(f"""s_xor_b32 s54, s54, {sFAR}
    s_mov_b32 exec_hi, {hex((1 << (2 * NE - 32)) - 1)}
    buffer_load_dwordx4 v[32:35], {vL16}, {SRD}, s54 offen sc1
    s_mov_b32 exec_hi, -1""")
    spin_tail("L_fpoll")
    A(f"""L_fok:
    s_add_u32 s54, s55, {WS_TBL}
    s_mov_b32 exec_hi, {hex((1 << (2 * NE - 32)) - 1)}
    buffer_store_dwordx4 v[32:35], {vL16}, {SRD}, s54 offen sc1
    s_mov_b32 exec_hi, -1
    L_nofwd:""")
    C("finishing workgroup of batch b: table to LDS, sum the 16 head partials, residual, LN, LN, table lookup")
    A(f"""s_cmp_lg_u32 {sFIN}, 0
    s_cbranch_scc1 L_exit
    s_xor_b32 {sT0}, {sCW}, {sG}
    s_or_b32 {sT0}, {sT0}, {sFAR}
    s_cselect_b32 s55, {WS_TBL}, {sTBLN}
    s_mul_i32 {sT0}, {sCW}, {NE * 128}
    s_add_u32 s55, s55, {sT0}
    s_add_u32 {sT0}, {sT0}, {TBL_LDS}
    v_add_u32 v13, {sT0}, {vL16}""")
    for r in range(140 + 4 * (ntl - 1), 140 + 4 * ntl):
        A(f"v_mov_b32 v{r}, {sTAG}")
    table_loads()
    A(f"""    s_mul_i32 s48, {sB}, {16 * 1792}
    s_lshl_b32 {sT0}, {sCW}, 8
    s_add_u32 s48, s48, {sT0}
    s_add_u32 s48, s48, {WS_OUTP}
    s_add_u32 s49, s48, {4 * 1792}
    s_add_u32 s50, s48, {8 * 1792}
    s_add_u32 s51, s48, {12 * 1792}
    v_mul_u32_u24 v12, 1792, {vG}
    v_lshl_add_u32 v12, {vN}, 4, v12
    L_tpoll:
    s_waitcnt vmcnt(0)""")
    tags_ok(list(range(140, 140 + 4 * ntl)), "L_tok")
    A(f"s_sleep {tback}")
    table_loads()
    spin_tail("L_tpoll", 0)
    A(f"L_tok:\ns_mov_b32 s47, {128 * NE}")
    stamp(6)
    wait_lds(F_FREE + 36, 8)
    for k in range(ntl):
        if k == ntl - 1:
            A(f"s_mov_b32 exec_lo, {hex(lastm & 0xffffffff)}\ns_mov_b32 exec_hi, {hex(lastm >> 32)}")
        A(f"ds_write_b128 v13, v[{140 + 4 * k}:{143 + 4 * k}] offset:{1024 * k}")
    A("s_mov_b64 exec, -1")
    A(f"""s_cmp_eq_u32 {sCW}, 7
    s_cbranch_scc0 L_hget
    s_waitcnt lgkmcnt(0)
    s_barrier""")
    C("every workgroup has read the epoch word (its table entries carry the tag): advance it")
    A(f"""s_cmp_lg_u32 {sB}, 0
    s_cbranch_scc1 L_exit
    v_mov_b32 v5, {sTAG}
    s_mov_b64 exec, 1
    buffer_store_dword v5, {vL16}, {SRD}, 0 offen sc1
    s_mov_b64 exec, -1
    s_branch L_exit
    L_hget:
    v_lshl_add_u32 v13, v136, 2, {vM}
    v_lshl_add_u32 v14, v0, 5, {vM}
    s_lshl_b32 {sT0}, {sCW}, 3
    v_add_u32 v40, {sT0}, v14
    s_mul_i32 {sT1}, {sB}, 896
    s_lshl_b32 {sT0}, {sCW}, 2
    s_add_u32 {sT1}, {sT1}, {sT0}
    v_add_u32 v41, {sT1}, {vL16}
    v_lshlrev_b32 v137, 16, v138
    v_mov_b32 v42, {hex(fbits(1.0 / 448.0))}
    s_mov_b32 s52, {TBL_LDS}
    s_mov_b32 s53, 0x7060302""")
    for r in range(48, 56):
        A(f"v_mov_b32 v{r}, 0")
    if dry:
        C("first pass over the closing code on dummy data: only brings it into the instruction cache")
        A("s_mov_b32 s54, 1\ns_branch L_hok\nL_hreal:\ns_mov_b32 s54, 0\ns_mov_b32 exec_hi, -1")
    A("L_hpoll:")
    for m in range(4):
        A(f"buffer_load_dwordx4 v[{16 + 4 * m}:{19 + 4 * m}], v12, {SRD}, s{48 + m} offen {hld}")
    A("s_waitcnt vmcnt(0)")
    tags_ok(list(range(16, 32)), "L_hok")
    spin_tail("L_hpoll", hback)
    A("L_hok:")
    stamp(11)
    strip_tag(range(16, 32))
    A("""v_pk_add_f32 v[16:17], v[16:17], v[20:21]
    v_pk_add_f32 v[18:19], v[18:19], v[22:23]
    v_pk_add_f32 v[24:25], v[24:25], v[28:29]
    v_pk_add_f32 v[26:27], v[26:27], v[30:31]
    v_pk_add_f32 v[16:17], v[16:17], v[24:25]
    v_pk_add_f32 v[18:19], v[18:19], v[26:27]""")
    swap_reduce4(("v16", "v17", "v18", "v19"))
    rne1("v16", "v16")
    A("v_add_f32 v16, v16, v137")
    rne1("v16", "v16")
    A(f"ds_write_b32 v13, v16 offset:{HL}")
    if dry:
        A("s_cmp_lg_u32 s54, 0\ns_cbranch_scc1 L_hdry")
    A(f"""s_cmp_ge_u32 {sCW}, 4
    s_waitcnt lgkmcnt(0)
    s_barrier
    s_cbranch_scc1 L_exit
    L_hdry:""")
    if fst:
        stamp(8)
    A(f"""    s_mov_b32 exec_hi, 0x00ffffff
    ds_read_b128 v[48:51], v14 offset:{HL}
    ds_read_b128 v[52:55], v14 offset:{HL + 16}
    ds_read_b64 v[138:139], v40 offset:{HL}
    s_mov_b32 exec_hi, -1
    s_waitcnt lgkmcnt(1)""")

    def stats8():
        sums8()
        ln_scale("v22", "v23", sT0, sT1, "v42", True)

    def sums8():
        A("""v_pk_add_f32 v[20:21], v[48:49], v[50:51]
        v_pk_mul_f32 v[24:25], v[48:49], v[48:49]
        v_pk_add_f32 v[22:23], v[52:53], v[54:55]
        v_pk_fma_f32 v[24:25], v[50:51], v[50:51], v[24:25]
        v_pk_add_f32 v[20:21], v[20:21], v[22:23]
        v_pk_fma_f32 v[24:25], v[52:53], v[52:53], v[24:25]
        v_add_f32 v20, v20, v21
        v_pk_fma_f32 v[24:25], v[54:55], v[54:55], v[24:25]
        v_add_f32 v24, v24, v25""")
        wave_sums(["v20", "v24"], [sT0, sT1])

    if alg:
        C("first LayerNorm: mean / variance of h.  Its output is a = (h - m1) * r1, so the second LayerNorm's")
        C("statistics follow exactly: mean(a) = (mean - m1) * r1, var(a) = var * r1 * r1")
        sums8()
        if fst:
            stamp(9)
        A(f"""v_mul_f32 v26, {sT1}, v42
        v_mul_f32 v27, {sT0}, v42
        v_fma_f32 v26, -v27, v27, v26""")
        rne1("v22", "v27")
        A(f"""v_cvt_pk_bf16_f32 v23, 0, abs(v26)
        v_sub_f32 v24, v27, v22
        v_add_f32 v23, {hex(fbits(1e-5))}, v23""")
        rne1("v23", "v23")
        A("""v_sqrt_f32 v23, v23
        s_waitcnt lgkmcnt(0)
        v_pk_add_f32 v[36:37], v[138:139], v[22:23] op_sel_hi:[1,0] neg_lo:[0,1] neg_hi:[0,1]""")
        rne1("v23", "v23")
        A("v_rcp_f32 v23, v23")
        rne1("v36", "v36")
        A("v_mul_f32 v25, abs(v26), v23")
        rne1("v37", "v37")
        A("v_mul_f32 v25, v25, v23\nv_mul_f32 v24, v24, v23")
        rne1("v25", "v25")
        A(f"""v_pk_mul_f32 v[36:37], v[36:37], v[22:23] op_sel:[0,1] op_sel_hi:[1,1]
        v_add_f32 v25, {hex(fbits(1e-5))}, v25""")
        rne1("v24", "v24")
        rne1("v25", "v25")
        rne1("v36", "v36")
        A("v_sqrt_f32 v25, v25")
        rne1("v37", "v37")
        rne1("v25", "v25")
        A("v_pk_add_f32 v[36:37], v[36:37], v[24:25] op_sel_hi:[1,0] neg_lo:[0,1] neg_hi:[0,1]\nv_rcp_f32 v25, v25")
        rne1("v36", "v36")
        rne1("v37", "v37")
        A("s_mov_b32 exec_hi, 0x00ffffff\nv_pk_mul_f32 v[36:37], v[36:37], v[24:25] op_sel:[0,1] op_sel_hi:[1,1]")
        rne1("v36", "v36")
        rne1("v37", "v37")
    else:
        stats8()
        A("s_waitcnt lgkmcnt(0)\nv_mov_b32 v36, v138\nv_mov_b32 v37, v139\ns_mov_b32 exec_hi, 0x00ffffff")
        normalize([48, 50, 52, 54, 36], 22, 23)
        A("s_mov_b32 exec_hi, -1")
        stats8()
        A("s_mov_b32 exec_hi, 0x00ffffff")
        normalize([36], 22, 23)
    if fst:
        stamp(10)
    A(f"""v_bfe_u32 v16, v36, 16, 15
    v_bfe_u32 v17, v37, 16, 15
    v_subrev_u32 v16, {E0 << 7}, v16
    v_subrev_u32 v17, {E0 << 7}, v17
    v_lshrrev_b32 v18, 31, v36
    v_lshrrev_b32 v19, 31, v37
    v_cmp_le_u32 vcc, {128 * NE}, v16
    v_cmp_le_u32 s[56:57], s47, v17
    v_mad_u32_u24 v16, v18, s47, v16
    v_mad_u32_u24 v17, v19, s47, v17
    v_cndmask_b32 v16, v16, 0, vcc
    v_cndmask_b32 v17, v17, 0, s[56:57]
    v_lshl_add_u32 v16, v16, 2, s52
    v_lshl_add_u32 v17, v17, 2, s52
    ds_read_b32 v38, v16
    ds_read_b32 v39, v17""")
    if dry:
        A("s_cmp_lg_u32 s54, 0\ns_cbranch_scc1 L_hreal")
    A(f"""s_or_b64 s[58:59], vcc, s[56:57]
    s_waitcnt lgkmcnt(0)
    v_and_b32 v38, {sMASK}, v38
    v_and_b32 v39, {sMASK}, v39
    s_cbranch_scc1 L_direct
    L_fin:
    v_pk_add_f32 v[38:39], v[38:39], v[138:139]""")
    if x_pert:
        A(f"v_cmp_eq_u32 vcc, 0, v41\nv_mov_b32 v5, {hex(fbits(x_pert / 10000.0))}\ns_nop 0\nv_cndmask_b32 v5, 0, v5, vcc\nv_add_f32 v38, v38, v5")
    A(f"""    v_cvt_pk_bf16_f32 v38, v38, v39
    global_store_dword v41, v38, {pOUT}
    s_mov_b32 exec_hi, -1""")
    stamp(12)
    A("L_exit:")
    if diag:
        A(f"s_cmp_eq_u32 {sCW}, 0\ns_cbranch_scc0 L_st1")
        stamps_out(8, 13)
        A(f"L_st1:\ns_cmp_eq_u32 {sCW}, 3\ns_cbranch_scc0 L_end")
        stamps_out(24, 13)
    A("L_end:\ns_endpgm")
    C("inputs outside the tabulated binades: evaluate the MLP directly, one element at a time")
    A(f"""L_direct:
    s_mov_b32 exec_hi, -1
    s_mov_b64 s[54:55], vcc
    s_mov_b32 s58, 0
    v_mov_b32 v7, 0
    global_load_ushort v46, v7, {pB2}
    L_dpass:
    s_cmp_eq_u64 s[54:55], 0
    s_cbranch_scc1 L_dswap
    s_ff1_i32_b64 s52, s[54:55]
    s_bitset0_b64 s[54:55], s52
    s_nop 3
    v_readlane_b32 s50, v36, s52
    v_mov_b32 v80, 0
    v_lshlrev_b32 v5, 3, v0
    s_mov_b32 s53, 0
    L_dloop:""")
    load_w()
    A("v_add_u32 v5, 512, v5\ns_waitcnt vmcnt(0)")
    unpack_w()
    gelu(["s50"], ["v80"], False)
    A("s_add_u32 s53, s53, 1\ns_cmp_lt_u32 s53, 7\ns_cbranch_scc1 L_dloop")
    wave_sums(["v80"], [sT0])
    A(f"v_mov_b32 v80, {sT0}")
    rne1("v80", "v80")
    A("v_lshlrev_b32 v81, 16, v46\nv_add_f32 v80, v80, v81")
    rne1("v80", "v80")
    A(f"""v_cmp_eq_u32 vcc, s52, v0
    s_nop 1
    v_cndmask_b32 v38, v38, v80, vcc
    s_branch L_dpass
    L_dswap:
    v_swap_b32 v36, v37
    v_swap_b32 v38, v39
    s_mov_b64 s[54:55], s[56:57]
    s_add_u32 s58, s58, 1
    s_cmp_eq_u32 s58, 1
    s_cbranch_scc1 L_dpass
    s_mov_b32 exec_hi, 0x00ffffff
    s_branch L_fin""")
    for c in cold:
        A(c)
    A("L_codeend:")
    L.append(f""".section .rodata,"a"
.p2align 6
.amdhsa_kernel {KN}_kernel
  .amdhsa_next_free_vgpr 168
  .amdhsa_next_free_sgpr 96
  .amdhsa_accum_offset 168
  .amdhsa_float_denorm_mode_32 3
  .amdhsa_group_segment_fixed_size 0
  .amdhsa_kernarg_size 104
  .amdhsa_user_sgpr_count 2
  .amdhsa_user_sgpr_kernarg_segment_ptr 1
  .amdhsa_system_sgpr_workgroup_id_x 1
.end_amdhsa_kernel""")
    return "\n".join(L) + "\n"


if __name__ == "__main__":
    names = []
    for spec in sys.argv[1:]:
        kw = {}
        name = None
        for kv in spec.split(","):
            if not kv:
                continue
            k, v = kv.split("=")
            if k == "o":
                name = v
                continue
            kw[k] = int(v) if v.lstrip("-").isdigit() else v.replace("+", " ").replace("none", "")
        name = name or "k_" + spec.replace(",", "_").replace("=", "").replace("+", "") + ".s"
        open(name, "w").write(gen(**kw))
        names.append(name)
    print(" ".join(names))
```

```python
import sys, struct, math
KN = "sequential_preLN__sliding_block_cached__mixer_token_mlp__decode"

def fbits(x):
    return struct.unpack("<I", struct.pack("<f", x))[0]

WS_E, WS_IDS, WS_TBL, WS_TBLN, WS_STATS, WS_Q, WS_OP, WS_OUTP = 0, 0x1000, 0x20000, 0x28000, 0x30000, 0x40000, 0x80000, 0x100000
WS_FAR = 0x200000
WS_STAMP = 0x10000000
SLOT = 16384
MISC = 9 * SLOT
LN, QL, PL, OL, TP, FL, HL = 0x0, 0x1000, 0x1500, 0x1A00, 0x1F00, 0x2300, 0x2400
HP = 576
F_LANDED, F_LNCNT, F_QCNT, F_MAXCNT, F_PCNT, F_TCNT, F_TAG, F_LOC, F_MX, F_FREE = FL, FL + 4, FL + 8, FL + 12, FL + 16, FL + 20, FL + 24, FL + 28, FL + 32, FL + 64
TBL_LDS = 7 * SLOT
TAGINC = 0x9E3779B9


def gen(D=24, DV=0, DW=48, NE=24, diag=0, ld="nt", ldq="nt", ldo="nt", rot=2, ra=1, rc=0, pf=1, epf=3, bar=4, slp=1, pvslp=0, qback=8, tback=8, hback=0, oback=0, ost="sc1", onear=0, fst=0, lst=0, hld="sc1", jmid=6, QT=4, qit=1, rnd=1, dry=0, alg=1,
        x_tl=0, x_far=0, x_nofree=0, x_stop=0, x_pert=0):
    L = []
    uid = [0]
    cold = []

    def A(s):
        for ln in s.split("\n"):
            ln = ln.strip()
            if ln:
                L.append(ln if ln.endswith(":") else "    " + ln)

    def C(s):
        L.append("    ; " + s)

    def lab(p):
        uid[0] += 1
        return f"L_{p}{uid[0]}"

    assert D % 4 == 0 and DV % 4 == 0 and NE % 4 == 0
    E0 = 132 - NE
    LB = 1
    wpos = 8
    sW, sWV = "s2", "s3"
    pX, pK, pV, pWQ, pWO, pW1, pB1, pW2, pB2, pOUT, pWS = "s[4:5]", (6, 7), (8, 9), (10, 11), (12, 13), "s[16:17]", "s[18:19]", "s[20:21]", "s[22:23]", "s[24:25]", "s[28:29]"
    sG, sI, sB, sS, sIDX, sBG = "s30", "s31", "s32", "s33", "s34", "s35"
    SRD = "s[36:39]"
    sBUD, sTAG, sFIN, sMASK, sXCC, sFAR = "s60", "s61", "s62", "s63", "s14", "s15"
    sTBLN = "s27"
    sWT = "s26"
    sT0, sT1, sT2, sT3, sT4, sT5 = "s40", "s41", "s42", "s43", "s44", "s45"
    vM, vG, vN, vONE, vL16, vFF = "v1", "v2", "v3", "v4", "v6", "v15"

    def stamp(k):
        if diag:
            A(f"s_memrealtime s[{64 + 2 * k}:{65 + 2 * k}]")

    def stamps_out(base, n):
        if not diag:
            return
        A(f"s_waitcnt lgkmcnt(0)\ns_lshl_b32 {sT0}, {sW}, 9\ns_add_u32 {sT0}, {sT0}, {WS_STAMP + base * 8}\nv_mov_b32 v5, {sT0}\ns_mov_b64 exec, 1")
        for k in range(n):
            A(f"v_mov_b32 v6, s{64 + 2 * k}\nv_mov_b32 v7, s{65 + 2 * k}\nglobal_store_dwordx2 v5, v[6:7], {pWS} offset:{8 * k}\ns_nop 1")
        A("s_mov_b64 exec, -1")

    def spin_tail(top, sleep=None):
        sleep = slp if sleep is None else sleep
        if sleep:
            A(f"s_sleep {sleep}")
        A(f"s_sub_u32 {sBUD}, {sBUD}, 1\ns_cbranch_scc0 {top}\ns_branch L_end")

    def wait_lds(off, val, vt="v5", addr=vM, sleep=None):
        top, done = lab("w"), lab("d")
        A(f"{top}:\nds_read_b32 {vt}, {addr} offset:{off}\ns_waitcnt lgkmcnt(0)\nv_readfirstlane_b32 {sT5}, {vt}\ns_cmp_ge_u32 {sT5}, {val}\ns_cbranch_scc1 {done}")
        spin_tail(top, sleep)
        A(f"{done}:")

    def signal(off, vval=vONE, addr=vM):
        A(f"s_mov_b64 exec, 1\nds_add_u32 {addr}, {vval} offset:{off}\ns_mov_b64 exec, -1")

    def tags_ok(regs, ok, guard=None):
        t = ["v5", "v7", "v8", "v9", "v10", "v11", "v56", "v57"]
        parts = []
        for k in range(0, len(regs), 2):
            A(f"v_bitop3_b32 {t[k // 2]}, v{regs[k]}, v{regs[k + 1]}, {sTAG} bitop3:0x7e")
            parts.append(t[k // 2])
        if guard:
            A(guard(parts))
        while len(parts) > 1:
            if len(parts) >= 3:
                A(f"v_or3_b32 {parts[0]}, {parts[0]}, {parts[-1]}, {parts[-2]}")
                parts = parts[:-2]
            else:
                A(f"v_or_b32 {parts[0]}, {parts[0]}, {parts[1]}")
                parts = parts[:1]
        A(f"v_cmp_ne_u32_sdwa vcc, v5, 0 src0_sel:BYTE_0 src1_sel:DWORD\ns_cmp_eq_u64 vcc, 0\ns_cbranch_scc1 {ok}")

    def strip_tag(regs):
        for r in regs:
            A(f"v_bfi_b32 v{r}, {vFF}, 0, v{r}")

    def store_group(ins, soff):
        far, done = lab("far"), lab("pub")
        A(f"{ins.format(soff)}\ns_cmp_lg_u32 {sFAR}, 0\ns_cbranch_scc1 {far}\n{done}:")
        cold.append(f"{far}:\ns_add_u32 {sT5}, {soff}, {WS_FAR}\n{ins.format(sT5)} sc1\ns_branch {done}")

    def put_tag(regs, exact=False):
        if rnd and not exact:
            for r in regs:
                A(f"v_add_u32 v{r}, 0x80, v{r}")
        for r in regs:
            A(f"v_bfi_b32 v{r}, {vFF}, {sTAG}, v{r}")

    DPP = ["quad_perm:[1,0,3,2] row_mask:0xf", "quad_perm:[2,3,0,1] row_mask:0xf", "row_half_mirror row_mask:0xf",
           "row_mirror row_mask:0xf", "row_bcast:15 row_mask:0xa", "row_bcast:31 row_mask:0xc"]

    def wave_sums(regs, sdst):
        A("s_nop 1")
        for m in DPP:
            for r in regs:
                A(f"v_add_f32_dpp {r}, {r}, {r} {m} bank_mask:0xf")
            A("s_nop 1" if len(regs) == 1 else "s_nop 0")
        for r, s in zip(regs, sdst):
            A(f"v_readlane_b32 {s}, {r}, 63")
        A("s_nop 1")

    def rne1(dst, src):
        A(f"v_cvt_pk_bf16_f32 {dst}, 0, {src}")

    def unpack2(lo, hi, src):
        A(f"v_lshlrev_b32 {lo}, 16, {src}\nv_and_b32 {hi}, {sMASK}, {src}")

    def ln_scale(vm, vr, sS1, sS2, vinv, onepass):
        A(f"v_mul_f32 {vr}, {sS2}, {vinv}\nv_mul_f32 {vm}, {sS1}, {vinv}")
        if onepass:
            A(f"v_fma_f32 {vr}, -{vm}, {vm}, {vr}")
        A(f"v_cvt_pk_bf16_f32 {vr}, 0, abs({vr})")
        rne1(vm, vm)
        A(f"v_add_f32 {vr}, {hex(fbits(1e-5))}, {vr}")
        rne1(vr, vr)
        A(f"v_sqrt_f32 {vr}, {vr}\ns_nop 0")
        rne1(vr, vr)
        A(f"v_rcp_f32 {vr}, {vr}\ns_nop 0")

    def normalize(pairs, vm, vr, last=True):
        for a in pairs:
            A(f"v_pk_add_f32 v[{a}:{a + 1}], v[{a}:{a + 1}], v[{vm}:{vm + 1}] op_sel_hi:[1,0] neg_lo:[0,1] neg_hi:[0,1]")
        for a in pairs:
            rne1(f"v{a}", f"v{a}")
            rne1(f"v{a + 1}", f"v{a + 1}")
        for a in pairs:
            A(f"v_pk_mul_f32 v[{a}:{a + 1}], v[{a}:{a + 1}], v[{vm}:{vm + 1}] op_sel:[0,1] op_sel_hi:[1,1]")
        if last:
            for a in pairs:
                rne1(f"v{a}", f"v{a}")
                rne1(f"v{a + 1}", f"v{a + 1}")

    K1 = -2.0 * math.sqrt(2.0 / math.pi) * math.log2(math.e)
    K2 = K1 * 0.044715
    CEXP = math.log2(math.e) / 16.0

    def gelu(sTs, accs, first):
        el = [(i, e) for e in range(4) for i in range(len(sTs))]
        u = lambda i, e: f"v{60 + 4 * i + e}"
        p = lambda i, e: f"v{68 + 4 * i + e}"
        for i, e in el:
            A(f"v_fma_f32 {u(i, e)}, {sTs[i]}, v{48 + e}, v{52 + e}")
        for i, e in el:
            A(f"v_mul_f32 {p(i, e)}, {u(i, e)}, {u(i, e)}")
        for i, e in el:
            A(f"v_fmaak_f32 {p(i, e)}, {p(i, e)}, v47, {hex(fbits(K1))}")
        for i, e in el:
            A(f"v_mul_f32 {p(i, e)}, {p(i, e)}, {u(i, e)}")
        for i, e in el:
            A(f"v_exp_f32 {p(i, e)}, {p(i, e)}\nv_mul_f32 {u(i, e)}, {u(i, e)}, v{56 + e}")
        for i, e in el:
            A(f"v_add_f32 {p(i, e)}, 1.0, {p(i, e)}")
        for i, e in el:
            A(f"v_rcp_f32 {p(i, e)}, {p(i, e)}")
        A("s_nop 0")
        for i, e in el:
            A(f"v_mul_f32 {accs[i]}, {u(i, e)}, {p(i, e)}" if first and e == 0 else f"v_fmac_f32 {accs[i]}, {u(i, e)}, {p(i, e)}")

    def unpack_w():
        for k, src in enumerate((76, 77, 78, 79, 84, 85)):
            unpack2(f"v{48 + 2 * k}", f"v{49 + 2 * k}", f"v{src}")
        A(f"v_mov_b32 v47, {hex(fbits(K2))}")

    def load_w():
        A(f"global_load_dwordx2 v[76:77], v5, {pW1}\nglobal_load_dwordx2 v[78:79], v5, {pB1}\nglobal_load_dwordx2 v[84:85], v5, {pW2}")

    def swap_reduce4(*sets):
        A("s_nop 1")
        for a, b, c, d in sets:
            A(f"v_permlane16_swap_b32 {a}, {b}\nv_permlane16_swap_b32 {c}, {d}")
        for a, b, c, d in sets:
            A(f"v_add_f32 {a}, {a}, {b}\nv_add_f32 {c}, {c}, {d}")
        A("s_nop 1")
        for a, b, c, d in sets:
            A(f"v_permlane32_swap_b32 {a}, {c}")
        for a, b, c, d in sets:
            A(f"v_add_f32 {a}, {a}, {c}")

    L.append(f"; @launch grid=(256,1,1) block=(576,1,1) lds={10 * SLOT}")
    L.append('.amdgcn_target "amdgcn-amd-amdhsa--gfx950"\n.text')
    L.append(f".globl {KN}_kernel\n.p2align 8\n.type {KN}_kernel,@function\n{KN}_kernel:")
    A(f"""s_cmp_ge_u32 {sW}, 256
    s_cbranch_scc1 L_end
    s_load_dwordx16 s[4:19], s[0:1], 0""")
    if epf == 3:
        C("every wave pulls 1 KiB of this kernel's code towards the L2 (speed only)")
        A("""s_getpc_b64 s[40:41]
        L_pc0:
        v_lshlrev_b32 v8, 4, v0
        v_mov_b32 v9, s41
        v_add_co_u32 v8, vcc, s40, v8
        v_addc_co_u32 v9, vcc, 0, v9, vcc
        global_load_dwordx4 v[20:23], v[8:9], off""")
    A(f"""s_load_dwordx8 s[20:27], s[0:1], 64
    s_load_dwordx2 s[28:29], s[0:1], 96""")
    stamp(0)
    A(f"""v_lshrrev_b32 v1, 6, v0
    s_and_b32 {sG}, {sW}, 7
    v_readfirstlane_b32 {sWV}, v1
    s_lshr_b32 {sI}, {sW}, 3
    s_and_b32 {sB}, {sI}, 3
    s_lshr_b32 {sS}, {sI}, 2""")
    A(f"""s_lshl_b32 {sBG}, {sB}, 3
    s_add_u32 {sBG}, {sBG}, {sG}
""")
    A(f"s_cmp_eq_u32 {sWV}, 0\ns_cbranch_scc1 L_loader")
    if epf in (1, 2):
        C("compute waves: pull this kernel's code towards the L2, 1 KiB pieces (speed only)")
        A(f"""s_getpc_b64 s[40:41]
        L_pc0:
        v_lshlrev_b32 v8, 4, v0
        v_add_u32 v10, {8 * 1024 - 1024}, v8
        v_min_u32 v10, L_codeend-L_pc0-16, v10
        v_add_u32 v8, {-1024 & 0xffffffff}, v8
        v_mov_b32 v9, s41
        v_add_co_u32 v8, vcc, s40, v8
        v_mov_b32 v11, s41
        v_addc_co_u32 v9, vcc, 0, v9, vcc
        global_load_dwordx4 v[20:23], v[8:9], off""")
        if epf > 1:
            A(f"""v_add_co_u32 v10, vcc, s40, v10
            s_nop 1
            v_addc_co_u32 v11, vcc, 0, v11, vcc
            global_load_dwordx4 v[20:23], v[10:11], off""")
    A("s_barrier\ns_branch L_compute\nL_loader:")
    C("---------------- loader wave")
    sN, sSLOT, sBASE, sGS, sRG, sRS, sCNT, sGI, sKV = "s48", "s49", "s50", "s51", "s52", "s53", "s54", "s55", "s56"
    sKJ = "s57"
    A("s_setprio 3")
    if True:
        C("rows 112b.. of wq, columns 512g+64s.. -> ring slot 8 (two lanes-wide issues run past the slice's descriptor)")
        A(f"""s_mul_i32 {sT0}, {sB}, {112 * 8192}
        s_lshl_b32 {sT1}, {sG}, 10
        s_add_u32 {sT0}, {sT0}, {sT1}
        s_lshl_b32 {sT1}, {sS}, 7
        s_add_u32 {sT0}, {sT0}, {sT1}
        v_lshrrev_b32 v12, 3, v0
        v_lshlrev_b32 v12, 13, v12
        v_and_b32 v13, 7, v0
        v_lshrrev_b32 v14, 4, v0
        v_lshlrev_b32 v14, 1, v14
        v_xor_b32 v13, v13, v14
        v_lshl_or_b32 v12, v13, 4, v12
        v_add_u32 v13, {65536 - 1024}, v12
        v_add_u32 v14, {65536 - 1024}, v13
        v_add_u32 v15, {65536 - 1024}, v14
        s_mov_b32 s46, {111 * 8192 + 128}
        s_mov_b32 s47, 0x20000
        s_mov_b32 m0, {8 * SLOT}
        s_waitcnt lgkmcnt(0)
        s_add_u32 s44, s{pWQ[0]}, {sT0}
        s_addc_u32 s45, s{pWQ[1]}, 0""")
        if lst:
            stamp(7)
        for u in range(16):
            if u % 4 == 0 and u:
                A(f"s_mov_b32 m0, {8 * SLOT + 1024 * u}\ns_mov_b32 {sT1}, {65536 * u}")
            A(f"buffer_load_dwordx4 v{12 + u % 4}, s[44:47], {sT1 if u > 3 else 0} offen offset:{1024 * (u % 4)} {ldq} lds")
            if u == bar - 1:
                A(f"""s_mov_b32 {sBUD}, 0x80000
                v_mov_b32 {vM}, {MISC}
                s_mov_b32 s39, 0x20000
                v_lshrrev_b32 v6, 1, v0
    v_cmp_eq_u32 vcc, 4, v6
    v_lshl_add_u32 v5, v0, 2, {vM}
    v_mov_b32 v7, 0xff800000
    v_cndmask_b32 v6, 0, v7, vcc
    ds_write_b32 v5, v6 offset:{FL}
                s_waitcnt lgkmcnt(0)
                s_barrier""")
                stamp(1)
    A(f"""    v_lshrrev_b32 v5, 5, v0
    v_and_b32 v6, 31, v0
    v_lshlrev_b32 v7, 1, v5
    v_xor_b32 v6, v6, v7
    v_lshlrev_b32 v6, 4, v6
    v_lshl_or_b32 v8, v5, 9, v6
    v_xor_b32 v9, 64, v8
    v_xor_b32 v10, 0x80, v8
    v_xor_b32 v11, 0xc0, v8
    s_mov_b32 {sN}, 0
    s_mov_b32 {sSLOT}, 0
    s_mov_b32 {sGS}, 4096
    s_mov_b32 {sCNT}, 16
    s_mov_b32 s38, {8 * SLOT}""")
    sR = sI
    if ra != 1 or rc:
        A(f"s_mul_i32 {sT0}, {sI}, {ra}\ns_mul_i32 {sT1}, {sG}, {rc}\ns_add_u32 {sT0}, {sT0}, {sT1}\ns_and_b32 {sT0}, {sT0}, 31")
        sR = sT0
    if rot == 1:
        A(f"s_and_b32 {sRG}, {sR}, 3\ns_lshr_b32 {sRS}, {sR}, 2")
    elif rot == 2:
        A(f"s_lshr_b32 {sRG}, {sR}, 3\ns_and_b32 {sRS}, {sR}, 7")
    elif rot == 3:
        A(f"s_mov_b32 {sRG}, 0\ns_and_b32 {sRS}, {sR}, 7")
    elif rot == 4:
        A(f"s_and_b32 {sRG}, {sR}, 3\ns_mov_b32 {sRS}, 0")
    elif rot == 5:
        A(f"s_lshr_b32 {sRG}, {sR}, 2\ns_and_b32 {sRS}, {sR}, 3")
    else:
        A(f"s_mov_b32 {sRG}, 0\ns_mov_b32 {sRS}, 0")
    A(f"""s_lshl_b32 {sKV}, {sBG}, 22
    s_lshl_b32 {sT1}, {sS}, 17
    s_add_u32 {sKV}, {sKV}, {sT1}
    s_add_u32 {sKV}, {sKV}, 0x300000
""")
    A(f"""s_add_u32 s36, s{pK[0]}, {sKV}
    s_addc_u32 s37, s{pK[1]}, 0""")

    def group_loop(flag, first, D, vb=8):
        top = lab("grp")
        A(f"s_mov_b32 {sT2}, 0")
        A(f"""{top}:
        s_add_u32 {sGI}, {sT2}, {sRG}
        s_and_b32 {sGI}, {sGI}, 3
        s_lshl_b32 {sT0}, {sGI}, 12
        s_mul_i32 {sT1}, {sGI}, {sGS}
        s_add_u32 m0, {sT0}, {sSLOT}
        s_add_u32 {sT1}, {sT1}, {sBASE}""")
        for k in range(4):
            A(f"s_waitcnt vmcnt({D - 1})\nbuffer_load_dwordx4 v{vb + k}, {SRD}, {sT1} offen offset:{1024 * k} {flag} lds")
        nb, nw = lab("nb"), lab("nw")
        A(f"s_add_u32 {sCNT}, {sCNT}, 4")
        A(f"""s_sub_u32 {sT0}, {sCNT}, {D}
        s_cbranch_scc1 {nw}
        s_and_b32 {sT1}, {sT0}, 15
        s_cbranch_scc1 {nw}
        s_lshr_b32 {sT0}, {sT0}, 4
        v_mov_b32 v5, {sT0}
        ds_write_b32 {vM}, v5 offset:{F_LANDED}
        {nw}:
        s_add_u32 {sT2}, {sT2}, 1
        s_cmp_lt_u32 {sT2}, 4
        s_cbranch_scc1 {top}""")

    def next_slot():
        A(f"""s_add_u32 {sN}, {sN}, 1
        s_add_u32 {sSLOT}, {sSLOT}, {SLOT}
        s_cmp_eq_u32 {sSLOT}, {9 * SLOT}
        s_cselect_b32 {sSLOT}, 0, {sSLOT}""")

    def wait_free():
        if x_nofree:
            return
        A(f"s_lshl_b32 {sT0}, {sN}, 2\nv_add_u32 v6, {sT0}, {vM}")
        wait_lds(F_FREE - 32, 8, "v5", "v6")

    def landed(k):
        A(f"v_mov_b32 v5, {k}\nds_write_b32 {vM}, v5 offset:{F_LANDED}")

    def drain(total, D):
        for k in range(total - (D + 15) // 16 + 1, total + 1):
            A(f"s_waitcnt vmcnt({16 * (total - k)})")
            landed(k)

    def seg_base():
        A(f"s_add_u32 {sT0}, {sN}, {sRS}\ns_and_b32 {sT0}, {sT0}, 7\ns_lshl_b32 {sBASE}, {sT0}, 14")

    assert wpos == 8
    DV = DV or D
    if lst:
        stamp(8)
    C("segments 0..7: K")
    A("L_k:")
    seg_base()
    group_loop(ld, True, D)
    next_slot()
    A(f"""s_cmp_lt_u32 {sN}, 8
    s_cbranch_scc1 L_k
    s_add_u32 s36, s{pV[0]}, {sKV}
    s_addc_u32 s37, s{pV[1]}, 0""")
    stamp(2)
    C("segments 8..15: V, each into a slot its readers have released")
    A("L_v:")
    wait_free()
    seg_base()
    group_loop(ld, False, DV)
    next_slot()
    A(f"s_cmp_lt_u32 {sN}, 16\ns_cbranch_scc1 L_v")
    stamp(3)
    A(f"s_cmp_lg_u32 {sS}, 7\ns_cbranch_scc1 L_wo")
    A("L_nowo:")
    drain(16 + LB, DV)
    A("s_branch L_ldone")
    C("two segments of wo: rows of head 2g + (b&1), 64 columns -> slots 7, 8")
    A(f"""L_wo:
    {"s_branch L_nowo" if x_stop == 9 else ""}
    v_lshrrev_b32 v5, 3, v0
    v_and_b32 v6, 7, v0
    v_lshrrev_b32 v7, 4, v0
    v_lshlrev_b32 v7, 1, v7
    v_xor_b32 v6, v6, v7
    v_lshlrev_b32 v6, 4, v6
    v_mul_u32_u24 v5, 896, v5
    v_add_u32 v12, v5, v6
    v_add_u32 v13, {7168 - 1024}, v12
    v_add_u32 v14, {7168 - 1024}, v13
    v_add_u32 v15, {7168 - 1024}, v14
    s_mov_b32 s36, s{pWO[0]}
    s_mov_b32 s37, s{pWO[1]}
    s_mov_b32 s38, {4096 * 896}
    s_lshl_b32 {sT0}, {sG}, 1
    s_and_b32 {sT1}, {sB}, 1
    s_add_u32 {sT0}, {sT0}, {sT1}
    s_mul_i32 {sBASE}, {sT0}, {256 * 896}
    s_lshl_b32 {sT1}, {sS}, 7
    s_add_u32 {sBASE}, {sBASE}, {sT1}""")
    T0 = 16 * (16 + LB)
    done = (T0 - DV) // 16
    for u in range(32):
        if u % 16 == 0 and not x_nofree:
            wait_lds(F_FREE + 4 * (8 + u // 16), 8)
        if u % 4 == 0:
            A(f"s_mov_b32 m0, {7 * SLOT + 1024 * u}")
            A(f"s_add_u32 {sBASE}, {sBASE}, {4 * 7168}" if u else "s_nop 0")
        if u + DV >= DW:
            A(f"s_waitcnt vmcnt({DW - 1})")
            k = (T0 + u - DW + 1) // 16
            if k > done:
                landed(k)
                done = k
        A(f"buffer_load_dwordx4 v{12 + u % 4}, {SRD}, {sBASE} offen offset:{1024 * (u % 4)} {ldo} lds")
    stamp(4)
    for k in range(done + 1, 18 + LB + 1):
        if k != 17 + LB:
            A(f"s_waitcnt vmcnt({16 * (18 + LB - k)})")
            landed(k)
    A("L_ldone:")
    stamp(5)
    A("s_waitcnt lgkmcnt(0)")
    if diag:
        A(f"s_sub_u32 {sT0}, 0x80000, {sBUD}\ns_mul_i32 {sT0}, {sT0}, 100\ns_add_u32 s76, s64, {sT0}\ns_addc_u32 s77, s65, 0")
    stamps_out(0, 7)
    if lst:
        A('s_mov_b32 s64, s78\ns_mov_b32 s65, s79\ns_mov_b32 s66, s80\ns_mov_b32 s67, s81')
        stamps_out(40, 2)
    A("s_endpgm")

    C("---------------- compute waves")
    sCW = sWV
    A(f"""L_compute:
    {"s_endpgm" if x_stop == 9 else ""}
    s_sub_u32 {sCW}, {sWV}, 1
    s_mov_b32 {sBUD}, 0x80000
    v_mov_b32 {vM}, {MISC}
    s_mov_b32 s39, 0x20000
    v_and_b32 v0, 63, v0
    v_lshlrev_b32 {vL16}, 4, v0
    s_mul_i32 {sT0}, {sCW}, 896
    v_add_u32 v5, {sT0}, {vL16}
    v_mov_b32 v16, 0
    v_mov_b32 v17, 0
    v_mov_b32 v18, 0
    v_mov_b32 v19, 0
    v_lshrrev_b32 {vG}, 4, v0
    v_and_b32 {vN}, 15, v0
    v_mov_b32 {vONE}, 1
    v_mov_b32 {vFF}, 0xff
    v_mov_b32 v14, 0
    s_mov_b32 {sMASK}, 0xffff0000
    s_lshl_b32 {sIDX}, {sBG}, 3
    s_add_u32 {sIDX}, {sIDX}, {sS}
    s_lshl_b32 {sT0}, {sB}, 1
    s_xor_b32 {sFIN}, {sT0}, {sG}
    s_mov_b32 s38, 0x400000
    s_lshl_b32 {sT0}, {sG}, 2
    s_add_u32 {sT0}, {sT0}, {sB}
    s_lshl_b32 {sT0}, {sT0}, 3
    s_add_u32 {sT0}, {sT0}, {sS}
    s_waitcnt lgkmcnt(0)
    s_mov_b32 {sWT}, {sT0}
    s_mov_b32 {sTBLN}, {WS_TBLN}
    s_lshl_b32 s47, {sBG}, 13
    s_lshl_b32 {sT0}, {sCW}, 10
    s_or_b32 s47, s47, {sT0}
    s_or_b32 s47, s47, {WS_Q}
    s_cmp_ge_u32 {sCW}, 4
    s_mov_b32 s36, s28
    s_mov_b32 s37, s29
    s_load_dword {sTAG}, {pWS}, {WS_E}
    s_cbranch_scc1 L_nox
    s_mov_b32 exec_hi, 0x00ffffff
    global_load_dwordx4 v[16:19], v5, {pX}
    s_mov_b32 exec_hi, -1
    L_nox:
    s_cmp_lg_u32 {sCW}, 0
    s_cbranch_scc1 L_notq0
    v_mov_b32 v7, 0
    global_load_ushort v167, v7, {pB2}
    s_getreg_b32 {sXCC}, hwreg(HW_REG_XCC_ID, 0, 4)
    s_lshl_b32 s59, {sG}, 7
    s_add_u32 s59, s59, {WS_IDS}
    s_lshl_b32 {sT0}, {sI}, 2
    s_add_u32 {sT0}, {sT0}, s59
    v_lshlrev_b32 v7, 8, {sXCC}
    s_waitcnt lgkmcnt(0)
    s_add_u32 {sTAG}, {sTAG}, {hex(TAGINC)}
    v_bfi_b32 v8, {vFF}, {sTAG}, v7
    s_mov_b64 exec, 1
    buffer_store_dword v8, {vL16}, {SRD}, {sT0} offen
    s_mov_b64 exec, -1
    s_waitcnt vmcnt(2)
    s_branch L_ln
    L_notq0:
    s_lshl_b32 {sT0}, {sCW}, 9
    s_sub_u32 {sT0}, {sT0}, 512
    v_lshl_add_u32 v5, v0, 3, {sT0}""")
    load_w()
    if pf:
        C("wave 7: the last KiB of the code")
        A(f"""s_cmp_lg_u32 {sCW}, 7
        s_cbranch_scc1 L_nopf
        s_getpc_b64 s[40:41]
        L_pfpc:
        s_add_u32 s40, s40, L_pfend-L_pfpc-1024
        s_addc_u32 s41, s41, 0
        v_mov_b32 v9, s41
        v_add_co_u32 v8, vcc, s40, {vL16}
        s_nop 1
        v_addc_co_u32 v9, vcc, 0, v9, vcc
        global_load_dwordx4 v[20:23], v[8:9], off
        L_nopf:""")
    A(f"""s_waitcnt lgkmcnt(0)
    s_add_u32 {sTAG}, {sTAG}, {hex(TAGINC)}
    s_cmp_ge_u32 {sCW}, 4
    s_cbranch_scc1 L_table
    s_waitcnt vmcnt(3)""")
    C("LayerNorm of row cw of x (waves 0..3), bf16 rounding as the reference")
    A("L_ln:\ns_setprio 2")
    for k in range(4):
        unpack2(f"v{20 + 2 * k}", f"v{21 + 2 * k}", f"v{16 + k}")
    A("""v_pk_add_f32 v[28:29], v[20:21], v[22:23]
    v_pk_add_f32 v[30:31], v[24:25], v[26:27]
    v_pk_add_f32 v[28:29], v[28:29], v[30:31]
    v_add_f32 v28, v28, v29""")
    wave_sums(["v28"], [sT0])
    A(f"v_mov_b32 v32, {hex(fbits(1.0 / 448.0))}\nv_mul_f32 v30, {sT0}, v32\nv_mov_b32 v28, 0\ns_mov_b32 exec_hi, 0x00ffffff")
    for k in range(8):
        A(f"v_sub_f32 v29, v{20 + k}, v30\nv_fmac_f32 v28, v29, v29")
    A("s_mov_b32 exec_hi, -1")
    wave_sums(["v28"], [sT1])
    ln_scale("v30", "v31", sT0, sT1, "v32", False)
    normalize([20, 22, 24, 26], 30, 31, False)
    for k in range(4):
        A(f"v_cvt_pk_bf16_f32 v{16 + k}, v{20 + 2 * k}, v{21 + 2 * k}")
    A(f"""s_mul_i32 {sT0}, {sCW}, 960
    v_add3_u32 v5, {vL16}, {sT0}, {vM}
    s_mov_b32 exec_hi, 0x00ffffff
    ds_write_b128 v5, v[16:19] offset:{LN}
    s_mov_b32 exec_hi, -1""")
    signal(F_LNCNT)
    A(f"s_cmp_lg_u32 {sCW}, 0\ns_cbranch_scc1 L_table")
    C("partial q projection: 64 columns x 4 batches over 112 rows")
    stamp(1)
    A(f"""v_and_b32 v7, 3, {vN}
    v_lshlrev_b32 v12, 16, v7
    v_mul_u32_u24 v7, 960, v7
    v_lshl_add_u32 v7, {vG}, 3, v7
    s_mul_i32 {sT0}, {sB}, 224
    v_add3_u32 v7, v7, {sT0}, {vM}
    v_bfe_u32 v8, v0, 3, 2
    v_lshlrev_b32 v8, 5, v8
    v_lshrrev_b32 v9, 2, v0
    v_lshl_or_b32 v8, v9, 7, v8
    v_and_b32 v9, 3, v0
    v_lshl_or_b32 v8, v9, 3, v8
    v_add_u32 v8, {8 * SLOT}, v8
    v_xor_b32 v9, 32, v8
    v_xor_b32 v10, 64, v8
    v_xor_b32 v11, 0x60, v8
    v_lshrrev_b32 v13, 2, {vN}
    v_cmp_eq_u32 s[52:53], 1, v13
    v_cmp_eq_u32 s[54:55], 2, v13
    v_cmp_eq_u32 s[56:57], 3, v13
    v_lshl_or_b32 v12, v13, 6, v12
    v_lshl_or_b32 v12, {vG}, 4, v12
    v_mov_b32 v13, 8
    s_lshl_b32 {sT0}, {sG}, 3
    s_add_u32 {sT0}, {sT0}, {sS}
    s_lshl_b32 {sT0}, {sT0}, 10
    s_lshl_b32 {sT1}, {sB}, 8
    s_add_u32 {sT0}, {sT0}, {sT1}
    s_add_u32 {sT0}, {sT0}, {WS_Q}""")
    wait_lds(F_LNCNT, 4)
    for j in range(3):
        A(f"ds_read2_b64 v[{16 + 4 * j}:{19 + 4 * j}], v7 offset0:{8 * j} offset1:{8 * j + 4}")
    A("ds_read_b64 v[28:29], v7 offset:192")
    wait_lds(F_LANDED, 1)
    for j in range(4):
        for t in range(4):
            r = 48 + 16 * j + 4 * t
            A(f"ds_read_b64_tr_b16 v[{r}:{r + 1}], v{8 + t} offset:{4096 * j}")
            if j < 3:
                A(f"ds_read_b64_tr_b16 v[{r + 2}:{r + 3}], v{8 + t} offset:{4096 * j + 2048}")
    signal(F_FREE, "v13")
    A("s_waitcnt lgkmcnt(0)")
    for j in range(4):
        for t in range(4):
            r, d = 48 + 16 * j + 4 * t, 112 + 4 * t
            if j < 3:
                A(f"v_mfma_f32_16x16x32_bf16 v[{d}:{d + 3}], v[{r}:{r + 3}], v[{16 + 4 * j}:{19 + 4 * j}], {'0' if j == 0 else f'v[{d}:{d + 3}]'}")
            else:
                A(f"v_mfma_f32_16x16x16_bf16 v[{d}:{d + 3}], v[{r}:{r + 1}], v[28:29], v[{d}:{d + 3}]")
    A("s_nop 7")
    for t in range(1, 4):
        for r in range(4):
            A(f"v_cndmask_b32 v{112 + r}, v{112 + r}, v{112 + 4 * t + r}, s[{50 + 2 * t}:{51 + 2 * t}]")
    put_tag(range(112, 116))
    A(f"""buffer_store_dwordx4 v[112:115], v12, {SRD}, {sT0} offen
    s_add_u32 s58, {sT0}, {WS_FAR}
    v_mov_b32 v14, v12""")
    stamp(2)
    if x_stop == 1:
        A("s_endpgm")
    A("s_branch L_qk")
    C("waves 1..7: this workgroup's entries of the scalar map t -> MLP(t), t running over bf16 values")
    A("L_table:\ns_setprio 0\ns_waitcnt vmcnt(0)")
    if x_stop == 1:
        A("s_endpgm")
    unpack_w()
    A(f"""s_and_b32 {sT0}, {sWT}, 127
    s_mul_i32 {sT0}, {sT0}, {NE}
    s_add_u32 {sT0}, {sT0}, {E0 << 7}
    s_lshr_b32 {sT1}, {sWT}, 7
    s_lshl_b32 {sT1}, {sT1}, 15
    s_or_b32 {sT0}, {sT0}, {sT1}
    s_lshl_b32 s50, {sT0}, 16
    s_mov_b32 s54, 0
    s_lshl_b32 {sT0}, {sCW}, 7
    v_lshl_add_u32 v8, {vG}, 2, {vM}
    v_add_u32 v8, {sT0}, v8
    L_tloop:
    s_cmp_lg_u32 s54, {(x_tl or NE) - 4 * qit}
    s_cbranch_scc1 L_tnoq
    buffer_load_dwordx4 v[20:23], {vL16}, {SRD}, s47 offen sc1
    L_tnoq:
    s_add_u32 s51, s50, 0x10000
    s_add_u32 s52, s50, 0x20000
    s_add_u32 s53, s50, 0x30000""")
    gelu(["s50", "s51"], ["v80", "v81"], True)
    gelu(["s52", "s53"], ["v82", "v83"], True)
    swap_reduce4(("v80", "v81", "v82", "v83"))
    A("s_add_u32 s50, s50, 0x40000\ns_add_u32 s54, s54, 4")
    for m in DPP[:4]:
        A(f"v_add_f32_dpp v80, v80, v80 {m} bank_mask:0xf\ns_nop 1")
    A(f"""s_cmp_lt_u32 s54, {x_tl or NE}
    ds_write_b32 v8, v80 offset:{TP - 128}
    v_add_u32 v8, 16, v8
    s_cbranch_scc1 L_tloop""")
    signal(F_TCNT)
    stamp(1)
    C("key slot cw -> registers, slot is released at once")
    A(f"""L_qk:
    s_setprio 1
    v_and_b32 v8, 7, {vN}
    v_lshlrev_b32 v8, 1, v8
    v_xor_b32 v8, v8, {vG}
    v_lshlrev_b32 v8, 4, v8
    v_lshl_or_b32 v8, {vN}, 9, v8
    s_lshl_b32 {sT0}, {sCW}, 14
    v_add_u32 v8, {sT0}, v8
    v_xor_b32 v9, 64, v8
    v_xor_b32 v10, 0x80, v8
    v_xor_b32 v11, 0xc0, v8
    s_lshl_b32 {sT0}, {sCW}, 2
    v_add_u32 v12, {sT0}, {vM}
    v_mov_b32 v13, 8
    s_add_u32 {sT4}, {sCW}, {1 + LB}""")
    wait_lds(F_LANDED, sT4)
    for j in range(8):
        for t in range(2):
            r = 48 + 8 * j + 4 * t
            A(f"ds_read_b128 v[{r}:{r + 3}], v{8 + (j & 3)} offset:{256 * (j >> 2) + 8192 * t}")
    signal(F_FREE + 4, "v13", "v12")
    stamp(3)
    if x_stop == 2:
        A("s_endpgm")
    C("64 columns of q: sum of the four row-quarter partials")
    A(f"""s_lshr_b32 {sT1}, {sCW}, 2
    s_mul_i32 {sT1}, {sT1}, {HP}
    s_and_b32 {sT2}, {sCW}, 3
    s_lshl_b32 {sT2}, {sT2}, 7
    s_add_u32 {sT1}, {sT1}, {sT2}
    v_lshlrev_b32 v12, 1, {vG}
    v_lshl_or_b32 v12, {vN}, 3, v12
    v_add3_u32 v12, v12, {sT1}, {vM}
    s_cmp_lg_u32 {sCW}, 0
    s_cbranch_scc1 L_qchk""")
    wait_lds(F_LANDED, QT + LB)
    A(f"buffer_load_dwordx4 v[20:23], {vL16}, {SRD}, s47 offen sc1")
    C("wave 0: do the 32 workgroups of this kv head share this compute die (one L2)?  Not seen yet counts as no")
    A(f"""v_and_b32 v16, 31, v0
    v_lshlrev_b32 v16, 2, v16
    buffer_load_dword v17, v16, {SRD}, s59 offen sc1
    v_lshlrev_b32 v18, 8, {sXCC}
    v_bfi_b32 v18, {vFF}, {sTAG}, v18
    s_waitcnt vmcnt(0)
    v_cmp_ne_u32 vcc, v17, v18
    v_mov_b32 v17, 1
    s_cmp_lg_u64 vcc, 0
    s_cbranch_scc1 L_idfar
    {"s_branch L_idfar" if x_far else ""}
    L_idloc:
    ds_write_b32 {vM}, v17 offset:{F_LOC}
    L_qchk:
    s_waitcnt vmcnt(0)""")
    cold.append(f"""L_idfar:
    buffer_store_dwordx4 v[112:115], v14, {SRD}, s58 offen sc1
    v_mov_b32 v17, {WS_FAR + 1}
    s_branch L_idloc""")
    tags_ok([20, 21, 22, 23], "L_qok")
    wait_lds(F_LOC, 1, sleep=qback)
    A(f"""s_sub_u32 {sT5}, {sT5}, 1
    s_xor_b32 s47, s47, {sT5}
    s_sleep {qback}
    buffer_load_dwordx4 v[20:23], {vL16}, {SRD}, s47 offen sc1""")
    spin_tail("L_qchk", 0)
    A("L_qok:")
    strip_tag(range(20, 24))
    swap_reduce4(("v20", "v21", "v22", "v23"))
    A(f"""v_cvt_pk_bf16_f32 v20, v20, v20
    ds_write_b16 v12, v20 offset:{QL}""")
    signal(F_QCNT)
    A(f"""v_and_b32 v7, 1, {vN}
    v_lshl_add_u32 v8, v7, 2, {vM}
    v_mul_u32_u24 v7, {HP}, v7
    v_lshl_add_u32 v7, {vG}, 4, v7
    v_add_u32 v7, v7, {vM}
    s_lshl_b32 {sT0}, {sCW}, 6
    v_add_u32 v9, {sT0}, v7
    s_mov_b32 s46, {hex(fbits(CEXP))}""")
    wait_lds(F_QCNT, 8)
    stamp(4)
    A(f"ds_read_b32 v5, {vM} offset:{F_LOC}")
    for j in range(8):
        A(f"ds_read_b128 v[{16 + 4 * j}:{19 + 4 * j}], v7 offset:{QL + 64 * j}")
    for j in range(8):
        A(f"s_waitcnt lgkmcnt({7 - j})")
        if j == 0:
            A(f"v_readfirstlane_b32 {sFAR}, v5")
        for t in range(2):
            r = 48 + 8 * j + 4 * t
            d = 112 + 4 * t
            A(f"v_mfma_f32_16x16x32_bf16 v[{d}:{d + 3}], v[{r}:{r + 3}], v[{16 + 4 * j}:{19 + 4 * j}], {'0' if j == 0 else f'v[{d}:{d + 3}]'}")
    A(f"s_sub_u32 {sFAR}, {sFAR}, 1\ns_nop 6")
    for k in range(8):
        rne1(f"v{112 + k}", f"v{112 + k}")
    A(f"""v_max3_f32 v120, v112, v113, v114
    v_max3_f32 v121, v115, v116, v117
    v_max3_f32 v120, v120, v118, v119
    v_max_f32 v120, v120, v121
    s_mov_b32 exec_lo, 0x00030003
    s_mov_b32 exec_hi, 0x00030003
    ds_max_f32 v8, v120 offset:{F_MX}
    s_mov_b64 exec, -1""")
    signal(F_MAXCNT)
    wait_lds(F_MAXCNT, 8)
    A(f"ds_read_b32 v124, v8 offset:{F_MX}\ns_waitcnt lgkmcnt(0)")
    for k in range(8):
        A(f"v_sub_f32 v{112 + k}, v{112 + k}, v124")
    for k in range(8):
        A(f"v_mul_f32 v{112 + k}, s46, v{112 + k}")
    for k in range(8):
        A(f"v_exp_f32 v{112 + k}, v{112 + k}")
    A("s_nop 0")
    for k in range(4):
        A(f"v_cvt_pk_bf16_f32 v{120 + k}, v{112 + 2 * k}, v{113 + 2 * k}")
    A(f"""s_mov_b32 exec_lo, 0x00030003
    s_mov_b32 exec_hi, 0x00030003
    ds_write_b128 v9, v[120:123] offset:{PL}
    s_mov_b64 exec, -1""")
    signal(F_PCNT)
    C("addresses of the PV loop and of the stages behind it")
    A(f"""v_mov_b32 v43, v7
    v_bfe_u32 v8, v0, 2, 3
    s_lshl_b32 {sT0}, {sCW}, 1
    v_xor_b32 v8, {sT0}, v8
    v_lshlrev_b32 v8, 5, v8
    v_lshrrev_b32 v9, 2, v0
    v_lshl_or_b32 v8, v9, 9, v8
    v_and_b32 v10, 3, v0
    v_lshl_or_b32 v44, v10, 3, v8
    v_xor_b32 v45, 32, v44""")
    for r in range(112, 120):
        A(f"v_mov_b32 v{r}, 0")
    A(f"""v_and_b32 v28, 1, {vN}
    v_lshlrev_b32 v28, 10, v28
    v_bfe_u32 v29, {vN}, 1, 1
    v_lshl_or_b32 v28, v29, 6, v28
    v_lshl_or_b32 v160, {vG}, 4, v28
    v_cmp_ne_u32 s[56:57], 0, v29
    s_lshl_b32 s51, {sIDX}, 11
    s_lshl_b32 {sT0}, {sCW}, 7
    s_add_u32 s51, s51, {sT0}
    s_add_u32 s51, s51, {WS_OP}
    v_lshlrev_b32 v161, 6, {vG}
    v_lshlrev_b32 v28, 4, {vN}
    v_lshl_or_b32 v162, {vG}, 11, v28
    s_and_b32 {sT2}, {sBG}, 0x17
    s_lshr_b32 {sT1}, {sCW}, 2
    s_lshl_b32 {sT1}, {sT1}, 3
    s_add_u32 {sT2}, {sT2}, {sT1}
    s_and_b32 {sT3}, {sB}, 1
    s_lshl_b32 s52, {sT2}, 14
    s_lshl_b32 {sT1}, {sT3}, 10
    s_add_u32 s52, s52, {sT1}
    s_and_b32 {sT1}, {sCW}, 3
    s_lshl_b32 {sT1}, {sT1}, 8
    s_add_u32 s52, s52, {sT1}
    s_add_u32 s52, s52, {WS_OP}
    s_add_u32 s59, s52, {4 << 11}
    v_bfe_u32 v28, v0, 3, 2
    s_and_b32 {sT1}, {sCW}, 3
    v_xor_b32 v28, {sT1}, v28
    v_lshlrev_b32 v28, 5, v28
    v_lshl_or_b32 v28, v9, 7, v28
    v_lshl_or_b32 v163, v10, 3, v28
    v_add_u32 v164, {((8 + wpos) % 9) * SLOT}, v163
    v_lshlrev_b32 v28, 4, v10
    v_bfe_u32 v29, v0, 2, 1
    v_lshl_or_b32 v28, v29, 3, v28
    v_bfe_u32 v29, v0, 3, 1
    v_lshl_or_b32 v28, v29, 6, v28
    v_lshl_or_b32 v28, {vG}, 1, v28
    s_lshr_b32 {sT0}, {sCW}, 2
    s_mul_i32 {sT0}, {sT0}, {HP}
    s_lshl_b32 {sT1}, {sT1}, 7
    s_add_u32 {sT0}, {sT0}, {sT1}
    v_add3_u32 v165, v28, {sT0}, {vM}
    s_lshl_b32 {sT0}, {sCW}, 6
    v_add_u32 v166, {OL - PL}, v7
    v_mul_u32_u24 v14, {16 * 1792}, {vN}
    v_lshl_add_u32 v14, {vG}, 4, v14
    s_and_b32 s53, {sB}, 2
    s_lshl_b32 s53, s53, 3
    s_add_u32 s53, s53, {sG}
    s_lshl_b32 s53, s53, 1
    s_add_u32 s53, s53, {sT3}
    s_mul_i32 s53, s53, 1792
    s_lshl_b32 {sT1}, {sS}, 8
    s_add_u32 s53, s53, {sT1}
    s_add_u32 s53, s53, {sT0}
    s_add_u32 s53, s53, {WS_OUTP}
    s_lshl_b32 s54, {sT2}, 9
    s_lshl_b32 {sT1}, {sT3}, 3
    s_add_u32 s54, s54, {sT1}
    s_add_u32 s54, s54, {WS_STATS}
    v_lshl_add_u32 v136, {vN}, 2, {vG}
    v_add_u32 v136, {sT0}, v136
    s_mul_i32 {sT1}, {sB}, 896
    v_lshl_add_u32 v137, v136, 1, {sT1}
    s_and_b32 s55, {sWT}, 0xf8
    s_mul_i32 s55, s55, {NE * 4}
    s_xor_b32 {sT1}, {sS}, 7
    s_or_b32 {sFIN}, {sFIN}, {sT1}""")
    if onear:
        C("lanes of the output rows whose finishing workgroup belongs to this kv head (kept in L2 when the group is on one die)")
        A(f"""s_and_b32 {sT1}, {sB}, 2
        s_lshl_b32 {sT1}, {sT1}, 1
        s_sub_u32 {sT1}, {sG}, {sT1}
        s_cmp_eq_u32 {sT1}, 0
        s_cselect_b32 s0, 0x00010001, 0
        s_cmp_eq_u32 {sT1}, 2
        s_cselect_b32 s0, 0x00020002, s0
        s_cmp_lg_u32 {sFAR}, 0
        s_cselect_b32 s0, 0, s0
        s_xor_b32 s1, s0, 0x00030003""")
    wait_lds(F_PCNT, 8)
    stamp(5)
    if x_stop == 3:
        A("s_endpgm")
    C("wave 0: row sums of the bf16 probabilities (ones x P), publish (max, sum) of both heads")
    A(f"s_cmp_lg_u32 {sCW}, 0\ns_cbranch_scc1 L_nostat")
    for j in range(8):
        A(f"ds_read_b128 v[{48 + 4 * j}:{51 + 4 * j}], v43 offset:{PL + 64 * j}")
    for r in range(16, 20):
        A(f"v_mov_b32 v{r}, 0x3f803f80")
    A(f"""s_lshl_b32 {sT0}, {sIDX}, 6
    s_add_u32 {sT0}, {sT0}, {WS_STATS}
    s_waitcnt lgkmcnt(0)""")
    for j in range(8):
        A(f"v_mfma_f32_16x16x32_bf16 v[20:23], v[16:19], v[{48 + 4 * j}:{51 + 4 * j}], {'0' if j == 0 else 'v[20:23]'}")
    A(f"""v_mov_b32_dpp v126, v124 quad_perm:[1,0,3,2] row_mask:0xf bank_mask:0xf
    s_nop 6
    v_mov_b32 v125, v20
    v_mov_b32_dpp v127, v20 quad_perm:[1,0,3,2] row_mask:0xf bank_mask:0xf""")
    put_tag([125, 127])
    put_tag([124, 126], True)
    A("s_mov_b64 exec, 1")
    store_group(f"buffer_store_dwordx4 v[124:127], {vL16}, {SRD}, {{}} offen", sT0)
    C("wave 0: finish and publish the table entries")
    A(f"s_mov_b64 exec, -1\nv_and_b32 v7, 31, v0\nv_lshl_add_u32 v7, v7, 2, {vM}")
    wait_lds(F_TCNT, 7)
    for k in range(7):
        A(f"ds_read_b32 v{16 + k}, v7 offset:{TP + 128 * k}")
    A(f"""s_mul_i32 {sT0}, {sWT}, {NE * 4}
    s_add_u32 {sT0}, {sT0}, {WS_TBLN}
    v_lshlrev_b32 v8, 2, v0
    v_lshlrev_b32 v46, 16, v167
    s_waitcnt lgkmcnt(0)
    v_add_f32 v16, v16, v17
    v_add_f32 v18, v18, v19
    v_add_f32 v20, v20, v21
    v_add_f32 v16, v16, v18
    v_add_f32 v20, v20, v22
    v_add_f32 v16, v16, v20""")
    rne1("v16", "v16")
    A("v_add_f32 v16, v16, v46")
    rne1("v16", "v16")
    put_tag([16], True)
    A(f"s_mov_b64 exec, {(1 << NE) - 1}")
    store_group(f"buffer_store_dword v16, v8, {SRD}, {{}} offen", sT0)
    A("s_mov_b64 exec, -1\nL_nostat:")
    sJ, sVS, sJL = "s48", "s49", "s50"
    ntl = (NE * 128 + 1023) // 1024
    lastm = (1 << ((NE * 128 - 1024 * (ntl - 1)) // 16)) - 1

    def table_loads():
        for k in range(ntl):
            if k == ntl - 1:
                A(f"s_mov_b32 exec_lo, {hex(lastm & 0xffffffff)}\ns_mov_b32 exec_hi, {hex(lastm >> 32)}")
            A(f"buffer_load_dwordx4 v[{140 + 4 * k}:{143 + 4 * k}], {vL16}, {SRD}, s55 offen offset:{1024 * k} sc1")
        A("s_mov_b64 exec, -1")

    A(f"""s_mov_b32 {sJ}, 0
    s_mov_b32 {sVS}, {8 * SLOT}
    s_mov_b32 {sJL}, {jmid}
    v_add_u32 v12, {F_FREE + 36}, {vM}
    s_mov_b32 {sT4}, {9 + LB}
    s_cmp_eq_u32 {sS}, 7
    s_cselect_b32 s58, 0, 2
    L_pv:
    ds_read_b128 v[16:19], v43 offset:{PL}
    v_add_u32 v10, {sVS}, v44
    v_add_u32 v11, {sVS}, v45""")
    wait_lds(F_LANDED, sT4, sleep=pvslp)
    A(f"""ds_read_b64_tr_b16 v[20:21], v10
    ds_read_b64_tr_b16 v[22:23], v10 offset:8192
    ds_read_b64_tr_b16 v[24:25], v11
    ds_read_b64_tr_b16 v[26:27], v11 offset:8192""")
    signal(0, vONE, "v12")
    A(f"""v_add_u32 v43, 64, v43
    s_add_u32 {sJ}, {sJ}, 1""")
    if wpos < 8:
        A(f"""s_cmp_eq_u32 {sJ}, {wpos}
        s_cselect_b32 {sT0}, s58, 0
        s_add_u32 {sT0}, {sT0}, 1
        s_add_u32 {sT4}, {sT4}, {sT0}
        s_lshl_b32 {sT1}, {sT0}, 2
        v_add_u32 v12, {sT1}, v12
        s_lshl_b32 {sT1}, {sT0}, 14
        s_add_u32 {sVS}, {sVS}, {sT1}
        s_sub_u32 {sT1}, {sVS}, {9 * SLOT}
        s_cselect_b32 {sVS}, {sVS}, {sT1}""")
    else:
        A(f"""v_add_u32 v12, 4, v12
        s_add_u32 {sT4}, {sT4}, 1
        s_add_u32 {sVS}, {sVS}, {SLOT}
        s_cmp_eq_u32 {sVS}, {9 * SLOT}
        s_cselect_b32 {sVS}, 0, {sVS}""")
    A(f"""    s_cmp_lt_u32 {sJ}, {sJL}
    s_waitcnt lgkmcnt(3)
    v_mfma_f32_16x16x32_bf16 v[112:115], v[20:23], v[16:19], v[112:115]
    s_waitcnt lgkmcnt(1)
    v_mfma_f32_16x16x32_bf16 v[116:119], v[24:27], v[16:19], v[116:119]
    s_cbranch_scc1 L_pv
    s_cmp_eq_u32 {sJ}, 8
    s_cbranch_scc1 L_pv_done""")
    C("before the last value slots: fetch what the next stage needs besides the partial rows")
    A(f"""s_mov_b32 {sJL}, 8
    s_cmp_eq_u32 {sS}, 7
    s_cbranch_scc1 L_mid7
    buffer_load_dwordx2 v[32:33], v161, {SRD}, s54 offen sc1
    buffer_load_dwordx2 v[34:35], v161, {SRD}, s54 offen offset:256 sc1""")
    A(f"""s_branch L_pv
    L_mid7:
    s_cmp_lg_u32 {sCW}, 0
    s_cbranch_scc1 L_mid8
    v_mov_b32 v32, {sTAG}
    v_mov_b32 v33, {sTAG}
    v_mov_b32 v34, {sTAG}
    v_mov_b32 v35, {sTAG}
    s_add_u32 s54, s55, {WS_TBLN}
    s_mov_b32 exec_hi, {hex((1 << (2 * NE - 32)) - 1)}
    buffer_load_dwordx4 v[32:35], {vL16}, {SRD}, s54 offen sc1
    s_mov_b32 exec_hi, -1
    L_mid8:
    s_cmp_lg_u32 {sFIN}, 0
    s_cbranch_scc1 L_pv
    s_cmp_eq_u32 {sCW}, 7
    s_cbranch_scc1 L_pv
    global_load_ushort v138, v137, {pX}
    s_branch L_pv
    L_pv_done:""")
    stamp(7)
    if x_stop == 4:
        A("s_endpgm")
    C("publish the partial output rows")
    A(f"""s_nop 5
    v_cndmask_b32 v112, v112, v116, s[56:57]
    v_cndmask_b32 v113, v113, v117, s[56:57]
    v_cndmask_b32 v114, v114, v118, s[56:57]
    v_cndmask_b32 v115, v115, v119, s[56:57]""")
    put_tag(range(112, 116), True)
    A(f"""s_mov_b32 exec_lo, 0x000f000f
    s_mov_b32 exec_hi, 0x000f000f
""")
    store_group(f"buffer_store_dwordx4 v[112:115], v160, {SRD}, {{}} offen", "s51")
    opoll = f"""buffer_load_dwordx4 v[24:27], v162, {SRD}, s52 offen sc1
    buffer_load_dwordx4 v[28:31], v162, {SRD}, s59 offen sc1"""
    A(f"""s_mov_b64 exec, -1
    s_cmp_eq_u32 {sS}, 7
    s_cbranch_scc1 L_last""")
    A(opoll)
    A(f"s_cmp_lg_u32 {sFAR}, 0\ns_cbranch_scc1 L_spoll0\ns_waitcnt vmcnt(3)\nL_spoll:")
    cold.append("L_spoll0:\ns_waitcnt vmcnt(0)\ns_branch L_spoll")
    tags_ok([32, 33, 34, 35], "L_sok")
    A(f"""s_xor_b32 s54, s54, {sFAR}
    buffer_load_dwordx2 v[32:33], v161, {SRD}, s54 offen sc1
    buffer_load_dwordx2 v[34:35], v161, {SRD}, s54 offen offset:256 sc1
    s_waitcnt vmcnt(0)""")
    spin_tail("L_spoll", 0)
    A("L_sok:")
    C("weights of the splits row and row+4")
    A(f"""v_and_b32 v32, {sMASK}, v32
    v_and_b32 v34, {sMASK}, v34""")
    strip_tag([33, 35])

    def rowred(op, d, t):
        for sw in ("v_permlane16_swap_b32", "v_permlane32_swap_b32"):
            A(f"v_mov_b32 {t}, {d}\ns_nop 1\n{sw} {d}, {t}\n{op} {d}, {d}, {t}")

    A("v_max_f32 v36, v32, v34")
    rowred("v_max_f32", "v36", "v37")
    A("""v_sub_f32 v32, v32, v36
    v_sub_f32 v34, v34, v36
    v_mul_f32 v32, s46, v32
    v_mul_f32 v34, s46, v34
    v_exp_f32 v32, v32
    v_exp_f32 v34, v34
    s_nop 0
    v_mul_f32 v36, v33, v32
    v_fmac_f32 v36, v35, v34""")
    rowred("v_add_f32", "v36", "v37")
    A("""v_rcp_f32 v36, v36
    s_nop 0
    v_mul_f32 v32, v32, v36
    v_mul_f32 v34, v34, v36""")
    A(f"s_cmp_ge_u32 {sCW}, 4\ns_cbranch_scc1 L_opoll")
    wait_lds(F_LANDED, 10 + wpos + LB, sleep=pvslp)
    for j in range(8):
        for u in range(2):
            part = j >> 2
            sl0, sl = (8 + wpos) % 9, (8 + wpos + part) % 9
            base, off = ("v164", (sl - sl0) * SLOT) if sl >= sl0 else ("v163", sl * SLOT)
            r = 48 + 4 * j + 2 * u
            A(f"ds_read_b64_tr_b16 v[{r}:{r + 1}], {base} offset:{off + 4096 * (j & 3) + 2048 * u}")
    stamp(8)
    A("L_opoll:\ns_waitcnt vmcnt(0)")
    tags_ok(list(range(24, 32)), "L_ook")
    if oback:
        A(f"s_sleep {oback}")
    A(f"s_xor_b32 s52, s52, {sFAR}\ns_xor_b32 s59, s59, {sFAR}")
    A(opoll)
    spin_tail("L_opoll", 0)
    A("L_ook:")
    stamp(9)
    strip_tag(range(24, 32))
    A("""v_pk_mul_f32 v[24:25], v[24:25], v[32:33] op_sel_hi:[1,0]
    v_pk_mul_f32 v[26:27], v[26:27], v[32:33] op_sel_hi:[1,0]
    v_pk_fma_f32 v[24:25], v[28:29], v[34:35], v[24:25] op_sel_hi:[1,0,1]
    v_pk_fma_f32 v[26:27], v[30:31], v[34:35], v[26:27] op_sel_hi:[1,0,1]""")
    swap_reduce4(("v24", "v25", "v26", "v27"))
    A(f"""v_cvt_pk_bf16_f32 v24, v24, v24
    ds_write_b16 v165, v24 offset:{OL}
    s_cmp_ge_u32 {sCW}, 4
    s_waitcnt lgkmcnt(0)
    s_barrier
    s_cbranch_scc1 L_exit""")
    for j in range(8):
        A(f"ds_read_b128 v[{16 + 4 * j}:{19 + 4 * j}], v166 offset:{PL + 64 * j}")
    for j in range(8):
        A(f"s_waitcnt lgkmcnt({7 - j})\nv_mfma_f32_16x16x32_bf16 v[112:115], v[{48 + 4 * j}:{51 + 4 * j}], v[{16 + 4 * j}:{19 + 4 * j}], {'0' if j == 0 else 'v[112:115]'}")
    A(f"""s_mov_b32 exec_lo, 0x00030003
    s_mov_b32 exec_hi, 0x00030003
    s_nop 5""")
    put_tag(range(112, 116), True)
    if onear:
        A(f"""s_mov_b32 exec_lo, s1
        s_mov_b32 exec_hi, s1
        buffer_store_dwordx4 v[112:115], v14, {SRD}, s53 offen {ost}
        s_mov_b32 exec_lo, s0
        s_mov_b32 exec_hi, s0
        s_cbranch_execz L_onear
        buffer_store_dwordx4 v[112:115], v14, {SRD}, s53 offen
        L_onear:
        s_mov_b64 exec, -1""")
    else:
        A(f"""buffer_store_dwordx4 v[112:115], v14, {SRD}, s53 offen {ost}
        s_mov_b64 exec, -1""")
    stamp(10)
    A("s_branch L_exit")
    C("workgroups of split 7, wave 0: pass the table entries of the 8 splits on to the finishing workgroups")
    A(f"""L_last:
    s_cmp_lg_u32 {sCW}, 0
    s_cbranch_scc1 L_nofwd
    L_fpoll:
    s_waitcnt vmcnt(0)""")
    tags_ok([32, 33, 34, 35], "L_fok")
    A(f"""s_xor_b32 s54, s54, {sFAR}
    s_mov_b32 exec_hi, {hex((1 << (2 * NE - 32)) - 1)}
    buffer_load_dwordx4 v[32:35], {vL16}, {SRD}, s54 offen sc1
    s_mov_b32 exec_hi, -1""")
    spin_tail("L_fpoll")
    A(f"""L_fok:
    s_add_u32 s54, s55, {WS_TBL}
    s_mov_b32 exec_hi, {hex((1 << (2 * NE - 32)) - 1)}
    buffer_store_dwordx4 v[32:35], {vL16}, {SRD}, s54 offen sc1
    s_mov_b32 exec_hi, -1
    L_nofwd:""")
    C("finishing workgroup of batch b: table to LDS, sum the 16 head partials, residual, LN, LN, table lookup")
    A(f"""s_cmp_lg_u32 {sFIN}, 0
    s_cbranch_scc1 L_exit
    s_xor_b32 {sT0}, {sCW}, {sG}
    s_or_b32 {sT0}, {sT0}, {sFAR}
    s_cselect_b32 s55, {WS_TBL}, {sTBLN}
    s_mul_i32 {sT0}, {sCW}, {NE * 128}
    s_add_u32 s55, s55, {sT0}
    s_add_u32 {sT0}, {sT0}, {TBL_LDS}
    v_add_u32 v13, {sT0}, {vL16}""")
    for r in range(140 + 4 * (ntl - 1), 140 + 4 * ntl):
        A(f"v_mov_b32 v{r}, {sTAG}")
    table_loads()
    A(f"""    s_mul_i32 s48, {sB}, {16 * 1792}
    s_lshl_b32 {sT0}, {sCW}, 8
    s_add_u32 s48, s48, {sT0}
    s_add_u32 s48, s48, {WS_OUTP}
    s_add_u32 s49, s48, {4 * 1792}
    s_add_u32 s50, s48, {8 * 1792}
    s_add_u32 s51, s48, {12 * 1792}
    v_mul_u32_u24 v12, 1792, {vG}
    v_lshl_add_u32 v12, {vN}, 4, v12
    L_tpoll:
    s_waitcnt vmcnt(0)""")
    tags_ok(list(range(140, 140 + 4 * ntl)), "L_tok")
    A(f"s_sleep {tback}")
    table_loads()
    spin_tail("L_tpoll", 0)
    A(f"L_tok:\ns_mov_b32 s47, {128 * NE}")
    stamp(6)
    wait_lds(F_FREE + 36, 8)
    for k in range(ntl):
        if k == ntl - 1:
            A(f"s_mov_b32 exec_lo, {hex(lastm & 0xffffffff)}\ns_mov_b32 exec_hi, {hex(lastm >> 32)}")
        A(f"ds_write_b128 v13, v[{140 + 4 * k}:{143 + 4 * k}] offset:{1024 * k}")
    A("s_mov_b64 exec, -1")
    A(f"""s_cmp_eq_u32 {sCW}, 7
    s_cbranch_scc0 L_hget
    s_waitcnt lgkmcnt(0)
    s_barrier""")
    C("every workgroup has read the epoch word (its table entries carry the tag): advance it")
    A(f"""s_cmp_lg_u32 {sB}, 0
    s_cbranch_scc1 L_exit
    v_mov_b32 v5, {sTAG}
    s_mov_b64 exec, 1
    buffer_store_dword v5, {vL16}, {SRD}, 0 offen sc1
    s_mov_b64 exec, -1
    s_branch L_exit
    L_hget:
    v_lshl_add_u32 v13, v136, 2, {vM}
    v_lshl_add_u32 v14, v0, 5, {vM}
    s_lshl_b32 {sT0}, {sCW}, 3
    v_add_u32 v40, {sT0}, v14
    s_mul_i32 {sT1}, {sB}, 896
    s_lshl_b32 {sT0}, {sCW}, 2
    s_add_u32 {sT1}, {sT1}, {sT0}
    v_add_u32 v41, {sT1}, {vL16}
    v_lshlrev_b32 v137, 16, v138
    v_mov_b32 v42, {hex(fbits(1.0 / 448.0))}
    s_mov_b32 s52, {TBL_LDS}
    s_mov_b32 s53, 0x7060302""")
    for r in range(48, 56):
        A(f"v_mov_b32 v{r}, 0")
    if dry:
        C("first pass over the closing code on dummy data: only brings it into the instruction cache")
        A("s_mov_b32 s54, 1\ns_branch L_hok\nL_hreal:\ns_mov_b32 s54, 0\ns_mov_b32 exec_hi, -1")
    A("L_hpoll:")
    for m in range(4):
        A(f"buffer_load_dwordx4 v[{16 + 4 * m}:{19 + 4 * m}], v12, {SRD}, s{48 + m} offen {hld}")
    A("s_waitcnt vmcnt(0)")
    tags_ok(list(range(16, 32)), "L_hok")
    spin_tail("L_hpoll", hback)
    A("L_hok:")
    stamp(11)
    strip_tag(range(16, 32))
    A("""v_pk_add_f32 v[16:17], v[16:17], v[20:21]
    v_pk_add_f32 v[18:19], v[18:19], v[22:23]
    v_pk_add_f32 v[24:25], v[24:25], v[28:29]
    v_pk_add_f32 v[26:27], v[26:27], v[30:31]
    v_pk_add_f32 v[16:17], v[16:17], v[24:25]
    v_pk_add_f32 v[18:19], v[18:19], v[26:27]""")
    swap_reduce4(("v16", "v17", "v18", "v19"))
    rne1("v16", "v16")
    A("v_add_f32 v16, v16, v137")
    rne1("v16", "v16")
    A(f"ds_write_b32 v13, v16 offset:{HL}")
    if dry:
        A("s_cmp_lg_u32 s54, 0\ns_cbranch_scc1 L_hdry")
    A(f"""s_cmp_ge_u32 {sCW}, 4
    s_waitcnt lgkmcnt(0)
    s_barrier
    s_cbranch_scc1 L_exit
    L_hdry:""")
    if fst:
        stamp(8)
    A(f"""    s_mov_b32 exec_hi, 0x00ffffff
    ds_read_b128 v[48:51], v14 offset:{HL}
    ds_read_b128 v[52:55], v14 offset:{HL + 16}
    ds_read_b64 v[138:139], v40 offset:{HL}
    s_mov_b32 exec_hi, -1
    s_waitcnt lgkmcnt(1)""")

    def stats8():
        sums8()
        ln_scale("v22", "v23", sT0, sT1, "v42", True)

    def sums8():
        A("""v_pk_add_f32 v[20:21], v[48:49], v[50:51]
        v_pk_mul_f32 v[24:25], v[48:49], v[48:49]
        v_pk_add_f32 v[22:23], v[52:53], v[54:55]
        v_pk_fma_f32 v[24:25], v[50:51], v[50:51], v[24:25]
        v_pk_add_f32 v[20:21], v[20:21], v[22:23]
        v_pk_fma_f32 v[24:25], v[52:53], v[52:53], v[24:25]
        v_add_f32 v20, v20, v21
        v_pk_fma_f32 v[24:25], v[54:55], v[54:55], v[24:25]
        v_add_f32 v24, v24, v25""")
        wave_sums(["v20", "v24"], [sT0, sT1])

    if alg:
        C("first LayerNorm: mean / variance of h.  Its output is a = (h - m1) * r1, so the second LayerNorm's")
        C("statistics follow exactly: mean(a) = (mean - m1) * r1, var(a) = var * r1 * r1")
        sums8()
        if fst:
            stamp(9)
        A(f"""v_mul_f32 v26, {sT1}, v42
        v_mul_f32 v27, {sT0}, v42
        v_fma_f32 v26, -v27, v27, v26""")
        rne1("v22", "v27")
        A(f"""v_cvt_pk_bf16_f32 v23, 0, abs(v26)
        v_sub_f32 v24, v27, v22
        v_add_f32 v23, {hex(fbits(1e-5))}, v23""")
        rne1("v23", "v23")
        A("""v_sqrt_f32 v23, v23
        s_waitcnt lgkmcnt(0)
        v_pk_add_f32 v[36:37], v[138:139], v[22:23] op_sel_hi:[1,0] neg_lo:[0,1] neg_hi:[0,1]""")
        rne1("v23", "v23")
        A("v_rcp_f32 v23, v23")
        rne1("v36", "v36")
        A("v_mul_f32 v25, abs(v26), v23")
        rne1("v37", "v37")
        A("v_mul_f32 v25, v25, v23\nv_mul_f32 v24, v24, v23")
        rne1("v25", "v25")
        A(f"""v_pk_mul_f32 v[36:37], v[36:37], v[22:23] op_sel:[0,1] op_sel_hi:[1,1]
        v_add_f32 v25, {hex(fbits(1e-5))}, v25""")
        rne1("v24", "v24")
        rne1("v25", "v25")
        rne1("v36", "v36")
        A("v_sqrt_f32 v25, v25")
        rne1("v37", "v37")
        rne1("v25", "v25")
        A("v_pk_add_f32 v[36:37], v[36:37], v[24:25] op_sel_hi:[1,0] neg_lo:[0,1] neg_hi:[0,1]\nv_rcp_f32 v25, v25")
        rne1("v36", "v36")
        rne1("v37", "v37")
        A("s_mov_b32 exec_hi, 0x00ffffff\nv_pk_mul_f32 v[36:37], v[36:37], v[24:25] op_sel:[0,1] op_sel_hi:[1,1]")
        rne1("v36", "v36")
        rne1("v37", "v37")
    else:
        stats8()
        A("s_waitcnt lgkmcnt(0)\nv_mov_b32 v36, v138\nv_mov_b32 v37, v139\ns_mov_b32 exec_hi, 0x00ffffff")
        normalize([48, 50, 52, 54, 36], 22, 23)
        A("s_mov_b32 exec_hi, -1")
        stats8()
        A("s_mov_b32 exec_hi, 0x00ffffff")
        normalize([36], 22, 23)
    if fst:
        stamp(10)
    A(f"""v_bfe_u32 v16, v36, 16, 15
    v_bfe_u32 v17, v37, 16, 15
    v_subrev_u32 v16, {E0 << 7}, v16
    v_subrev_u32 v17, {E0 << 7}, v17
    v_lshrrev_b32 v18, 31, v36
    v_lshrrev_b32 v19, 31, v37
    v_cmp_le_u32 vcc, {128 * NE}, v16
    v_cmp_le_u32 s[56:57], s47, v17
    v_mad_u32_u24 v16, v18, s47, v16
    v_mad_u32_u24 v17, v19, s47, v17
    v_cndmask_b32 v16, v16, 0, vcc
    v_cndmask_b32 v17, v17, 0, s[56:57]
    v_lshl_add_u32 v16, v16, 2, s52
    v_lshl_add_u32 v17, v17, 2, s52
    ds_read_b32 v38, v16
    ds_read_b32 v39, v17""")
    if dry:
        A("s_cmp_lg_u32 s54, 0\ns_cbranch_scc1 L_hreal")
    A(f"""s_or_b64 s[58:59], vcc, s[56:57]
    s_waitcnt lgkmcnt(0)
    v_and_b32 v38, {sMASK}, v38
    v_and_b32 v39, {sMASK}, v39
    s_cbranch_scc1 L_direct
    L_fin:
    v_pk_add_f32 v[38:39], v[38:39], v[138:139]""")
    if x_pert:
        A(f"v_cmp_eq_u32 vcc, 0, v41\nv_mov_b32 v5, {hex(fbits(x_pert / 10000.0))}\ns_nop 0\nv_cndmask_b32 v5, 0, v5, vcc\nv_add_f32 v38, v38, v5")
    A(f"""    v_cvt_pk_bf16_f32 v38, v38, v39
    global_store_dword v41, v38, {pOUT}
    s_mov_b32 exec_hi, -1""")
    stamp(12)
    A("L_exit:")
    if diag:
        A(f"s_cmp_eq_u32 {sCW}, 0\ns_cbranch_scc0 L_st1")
        stamps_out(8, 13)
        A(f"L_st1:\ns_cmp_eq_u32 {sCW}, 3\ns_cbranch_scc0 L_end")
        stamps_out(24, 13)
    A("L_end:\ns_endpgm\nL_pfend:")
    C("inputs outside the tabulated binades: evaluate the MLP directly, one element at a time")
    A(f"""L_direct:
    s_mov_b32 exec_hi, -1
    s_mov_b64 s[54:55], vcc
    s_mov_b32 s58, 0
    v_mov_b32 v7, 0
    global_load_ushort v46, v7, {pB2}
    L_dpass:
    s_cmp_eq_u64 s[54:55], 0
    s_cbranch_scc1 L_dswap
    s_ff1_i32_b64 s52, s[54:55]
    s_bitset0_b64 s[54:55], s52
    s_nop 3
    v_readlane_b32 s50, v36, s52
    v_mov_b32 v80, 0
    v_lshlrev_b32 v5, 3, v0
    s_mov_b32 s53, 0
    L_dloop:""")
    load_w()
    A("v_add_u32 v5, 512, v5\ns_waitcnt vmcnt(0)")
    unpack_w()
    gelu(["s50"], ["v80"], False)
    A("s_add_u32 s53, s53, 1\ns_cmp_lt_u32 s53, 7\ns_cbranch_scc1 L_dloop")
    wave_sums(["v80"], [sT0])
    A(f"v_mov_b32 v80, {sT0}")
    rne1("v80", "v80")
    A("v_lshlrev_b32 v81, 16, v46\nv_add_f32 v80, v80, v81")
    rne1("v80", "v80")
    A(f"""v_cmp_eq_u32 vcc, s52, v0
    s_nop 1
    v_cndmask_b32 v38, v38, v80, vcc
    s_branch L_dpass
    L_dswap:
    v_swap_b32 v36, v37
    v_swap_b32 v38, v39
    s_mov_b64 s[54:55], s[56:57]
    s_add_u32 s58, s58, 1
    s_cmp_eq_u32 s58, 1
    s_cbranch_scc1 L_dpass
    s_mov_b32 exec_hi, 0x00ffffff
    s_branch L_fin""")
    for c in cold:
        A(c)
    A("L_codeend:")
    if epf == 3:
        L.append(".if L_codeend - L_pc0 < 9216\n.error \"code prefetch would run past the code\"\n.endif")
    L.append(f""".section .rodata,"a"
.p2align 6
.amdhsa_kernel {KN}_kernel
  .amdhsa_next_free_vgpr 168
  .amdhsa_next_free_sgpr 96
  .amdhsa_accum_offset 168
  .amdhsa_float_denorm_mode_32 3
  .amdhsa_group_segment_fixed_size 0
  .amdhsa_kernarg_size 104
  .amdhsa_user_sgpr_count 2
  .amdhsa_user_sgpr_kernarg_segment_ptr 1
  .amdhsa_system_sgpr_workgroup_id_x 1
.end_amdhsa_kernel""")
    return "\n".join(L) + "\n"


if __name__ == "__main__":
    names = []
    for spec in sys.argv[1:]:
        kw = {}
        name = None
        for kv in spec.split(","):
            if not kv:
                continue
            k, v = kv.split("=")
            if k == "o":
                name = v
                continue
            kw[k] = int(v) if v.lstrip("-").isdigit() else v.replace("+", " ").replace("none", "")
        name = name or "k_" + spec.replace(",", "_").replace("=", "").replace("+", "") + ".s"
        open(name, "w").write(gen(**kw))
        names.append(name)
    print(" ".join(names))
```

```python
import sys, struct, math
KN = "sequential_preLN__sliding_block_cached__mixer_token_mlp__decode"

def fbits(x):
    return struct.unpack("<I", struct.pack("<f", x))[0]

WS_E, WS_IDS, WS_TBL, WS_TBLN, WS_STATS, WS_Q, WS_OP, WS_OUTP = 0, 0x1000, 0x20000, 0x28000, 0x30000, 0x40000, 0x80000, 0x100000
WS_FAR = 0x200000
WS_STAMP = 0x10000000
SLOT = 16384
MISC = 9 * SLOT
LN, QL, PL, OL, TP, FL, HL = 0x0, 0x1000, 0x1500, 0x1A00, 0x1F00, 0x2300, 0x2400
HP = 576
F_LANDED, F_LNCNT, F_QCNT, F_MAXCNT, F_PCNT, F_TCNT, F_TAG, F_LOC, F_MX, F_FREE = FL, FL + 4, FL + 8, FL + 12, FL + 16, FL + 20, FL + 24, FL + 28, FL + 32, FL + 64
TBL_LDS = 7 * SLOT
TAGINC = 0x9E3779B9


def gen(D=24, DV=0, DW=40, NE=24, diag=0, ld="nt", ldq="nt", ldo="nt", rot=2, ra=1, rc=0, pf=1, epf=4, pfm=7, bar=4, uni=1, nL=16, obar=1, vbar=1, wbar=1, slp=1, pvslp=0, qback=8, tback=8, hback=0, oback=0, nst="", ost="sc1", fst=0, lst=0, hld="sc1", jmid=6, QT=4, qit=1, rnd=1, dry=0, alg=1,
        x_tl=0, x_far=0, x_nofree=0, x_stop=0, x_pert=0):
    L = []
    uid = [0]
    cold = []

    def A(s):
        for ln in s.split("\n"):
            ln = ln.strip()
            if ln:
                L.append(ln if ln.endswith(":") else "    " + ln)

    def C(s):
        L.append("    ; " + s)

    def lab(p):
        uid[0] += 1
        return f"L_{p}{uid[0]}"

    assert D % 4 == 0 and DV % 4 == 0 and NE % 4 == 0
    E0 = 132 - NE
    LB = 1
    wpos = 8
    sW, sWV = "s2", "s3"
    pX, pK, pV, pWQ, pWO, pW1, pB1, pW2, pB2, pOUT, pWS = "s[4:5]", (6, 7), (8, 9), (10, 11), (12, 13), "s[16:17]", "s[18:19]", "s[20:21]", "s[22:23]", "s[24:25]", "s[28:29]"
    sG, sI, sB, sS, sIDX, sBG = "s30", "s31", "s32", "s33", "s34", "s35"
    SRD = "s[36:39]"
    sBUD, sTAG, sFIN, sMASK, sXCC, sFAR = "s60", "s61", "s62", "s63", "s14", "s15"
    sTAG1 = "s0"
    tagof = lambda r: sTAG1 if r & 2 else sTAG
    sTBLN = "s27"
    sWT = "s26"
    sT0, sT1, sT2, sT3, sT4, sT5 = "s40", "s41", "s42", "s43", "s44", "s45"
    vM, vG, vN, vONE, vL16, vFF = "v1", "v2", "v3", "v4", "v6", "v15"

    def stamp(k):
        if diag:
            A(f"s_memrealtime s[{64 + 2 * k}:{65 + 2 * k}]")

    def stamps_out(base, n):
        if not diag:
            return
        A(f"s_waitcnt lgkmcnt(0)\ns_lshl_b32 {sT0}, {sW}, 9\ns_add_u32 {sT0}, {sT0}, {WS_STAMP + base * 8}\nv_mov_b32 v5, {sT0}\ns_mov_b64 exec, 1")
        for k in range(n):
            A(f"v_mov_b32 v6, s{64 + 2 * k}\nv_mov_b32 v7, s{65 + 2 * k}\nglobal_store_dwordx2 v5, v[6:7], {pWS} offset:{8 * k}\ns_nop 1")
        A("s_mov_b64 exec, -1")

    def spin_tail(top, sleep=None):
        sleep = slp if sleep is None else sleep
        if sleep:
            A(f"s_sleep {sleep}")
        A(f"s_sub_u32 {sBUD}, {sBUD}, 1\ns_cbranch_scc0 {top}\ns_branch L_end")

    def wait_lds(off, val, vt="v5", addr=vM, sleep=None):
        top, done = lab("w"), lab("d")
        A(f"{top}:\nds_read_b32 {vt}, {addr} offset:{off}\ns_waitcnt lgkmcnt(0)\nv_readfirstlane_b32 {sT5}, {vt}\ns_cmp_ge_u32 {sT5}, {val}\ns_cbranch_scc1 {done}")
        spin_tail(top, sleep)
        A(f"{done}:")

    def signal(off, vval=vONE, addr=vM):
        A(f"s_mov_b64 exec, 1\nds_add_u32 {addr}, {vval} offset:{off}\ns_mov_b64 exec, -1")

    def tags_ok(regs, ok, guard=None, tags=None, sel="BYTE_0"):
        t = ["v5", "v7", "v8", "v9", "v10", "v11", "v56", "v57"]
        parts = []
        for k in range(0, len(regs), 2):
            A(f"v_bitop3_b32 {t[k // 2]}, v{regs[k]}, v{regs[k + 1]}, {tags[k // 2] if tags else tagof(regs[k])} bitop3:0x7e")
            parts.append(t[k // 2])
        if guard:
            A(guard(parts))
        while len(parts) > 1:
            if len(parts) >= 3:
                A(f"v_or3_b32 {parts[0]}, {parts[0]}, {parts[-1]}, {parts[-2]}")
                parts = parts[:-2]
            else:
                A(f"v_or_b32 {parts[0]}, {parts[0]}, {parts[1]}")
                parts = parts[:1]
        A(f"v_cmp_ne_u32_sdwa vcc, v5, 0 src0_sel:{sel} src1_sel:DWORD\ns_cmp_eq_u64 vcc, 0\ns_cbranch_scc1 {ok}")

    def strip_tag(regs):
        for r in regs:
            A(f"v_bfi_b32 v{r}, {vFF}, 0, v{r}")

    def store_group(ins, soff):
        far, done = lab("far"), lab("pub")
        A(f"{ins.format(soff)} {nst}\ns_cmp_lg_u32 {sFAR}, 0\ns_cbranch_scc1 {far}\n{done}:")
        cold.append(f"{far}:\ns_add_u32 {sT5}, {soff}, {WS_FAR}\n{ins.format(sT5)} sc1\ns_branch {done}")

    def put_tag(regs, exact=False, tag=None):
        if rnd and not exact:
            for r in regs:
                A(f"v_add_u32 v{r}, 0x80, v{r}")
        for r in regs:
            A(f"v_bfi_b32 v{r}, {vFF}, {tag or tagof(r)}, v{r}")

    DPP = ["quad_perm:[1,0,3,2] row_mask:0xf", "quad_perm:[2,3,0,1] row_mask:0xf", "row_half_mirror row_mask:0xf",
           "row_mirror row_mask:0xf", "row_bcast:15 row_mask:0xa", "row_bcast:31 row_mask:0xc"]

    def wave_sums(regs, sdst):
        A("s_nop 1")
        for m in DPP:
            for r in regs:
                A(f"v_add_f32_dpp {r}, {r}, {r} {m} bank_mask:0xf")
            A("s_nop 1" if len(regs) == 1 else "s_nop 0")
        for r, s in zip(regs, sdst):
            A(f"v_readlane_b32 {s}, {r}, 63")
        A("s_nop 1")

    def rne1(dst, src):
        A(f"v_cvt_pk_bf16_f32 {dst}, 0, {src}")

    def unpack2(lo, hi, src):
        A(f"v_lshlrev_b32 {lo}, 16, {src}\nv_and_b32 {hi}, {sMASK}, {src}")

    def ln_scale(vm, vr, sS1, sS2, vinv, onepass):
        A(f"v_mul_f32 {vr}, {sS2}, {vinv}\nv_mul_f32 {vm}, {sS1}, {vinv}")
        if onepass:
            A(f"v_fma_f32 {vr}, -{vm}, {vm}, {vr}")
        A(f"v_cvt_pk_bf16_f32 {vr}, 0, abs({vr})")
        rne1(vm, vm)
        A(f"v_add_f32 {vr}, {hex(fbits(1e-5))}, {vr}")
        rne1(vr, vr)
        A(f"v_sqrt_f32 {vr}, {vr}\ns_nop 0")
        rne1(vr, vr)
        A(f"v_rcp_f32 {vr}, {vr}\ns_nop 0")

    def normalize(pairs, vm, vr, last=True):
        for a in pairs:
            A(f"v_pk_add_f32 v[{a}:{a + 1}], v[{a}:{a + 1}], v[{vm}:{vm + 1}] op_sel_hi:[1,0] neg_lo:[0,1] neg_hi:[0,1]")
        for a in pairs:
            rne1(f"v{a}", f"v{a}")
            rne1(f"v{a + 1}", f"v{a + 1}")
        for a in pairs:
            A(f"v_pk_mul_f32 v[{a}:{a + 1}], v[{a}:{a + 1}], v[{vm}:{vm + 1}] op_sel:[0,1] op_sel_hi:[1,1]")
        if last:
            for a in pairs:
                rne1(f"v{a}", f"v{a}")
                rne1(f"v{a + 1}", f"v{a + 1}")

    K1 = -2.0 * math.sqrt(2.0 / math.pi) * math.log2(math.e)
    K2 = K1 * 0.044715
    CEXP = math.log2(math.e) / 16.0

    def gelu(sTs, accs, first):
        el = [(i, e) for e in range(4) for i in range(len(sTs))]
        u = lambda i, e: f"v{60 + 4 * i + e}"
        p = lambda i, e: f"v{68 + 4 * i + e}"
        for i, e in el:
            A(f"v_fma_f32 {u(i, e)}, {sTs[i]}, v{48 + e}, v{52 + e}")
        for i, e in el:
            A(f"v_mul_f32 {p(i, e)}, {u(i, e)}, {u(i, e)}")
        for i, e in el:
            A(f"v_fmaak_f32 {p(i, e)}, {p(i, e)}, v47, {hex(fbits(K1))}")
        for i, e in el:
            A(f"v_mul_f32 {p(i, e)}, {p(i, e)}, {u(i, e)}")
        for i, e in el:
            A(f"v_exp_f32 {p(i, e)}, {p(i, e)}\nv_mul_f32 {u(i, e)}, {u(i, e)}, v{56 + e}")
        for i, e in el:
            A(f"v_add_f32 {p(i, e)}, 1.0, {p(i, e)}")
        for i, e in el:
            A(f"v_rcp_f32 {p(i, e)}, {p(i, e)}")
        A("s_nop 0")
        for i, e in el:
            A(f"v_mul_f32 {accs[i]}, {u(i, e)}, {p(i, e)}" if first and e == 0 else f"v_fmac_f32 {accs[i]}, {u(i, e)}, {p(i, e)}")

    def unpack_w():
        for k, src in enumerate((76, 77, 78, 79, 84, 85)):
            unpack2(f"v{48 + 2 * k}", f"v{49 + 2 * k}", f"v{src}")
        A(f"v_mov_b32 v47, {hex(fbits(K2))}")

    def load_w():
        A(f"global_load_dwordx2 v[76:77], v5, {pW1}\nglobal_load_dwordx2 v[78:79], v5, {pB1}\nglobal_load_dwordx2 v[84:85], v5, {pW2}")

    def swap_reduce4(*sets):
        A("s_nop 1")
        for a, b, c, d in sets:
            A(f"v_permlane16_swap_b32 {a}, {b}\nv_permlane16_swap_b32 {c}, {d}")
        for a, b, c, d in sets:
            A(f"v_add_f32 {a}, {a}, {b}\nv_add_f32 {c}, {c}, {d}")
        A("s_nop 1")
        for a, b, c, d in sets:
            A(f"v_permlane32_swap_b32 {a}, {c}")
        for a, b, c, d in sets:
            A(f"v_add_f32 {a}, {a}, {c}")

    L.append(f"; @launch grid=(256,1,1) block=(576,1,1) lds={10 * SLOT}")
    L.append('.amdgcn_target "amdgcn-amd-amdhsa--gfx950"\n.text')
    L.append(f".globl {KN}_kernel\n.p2align 8\n.type {KN}_kernel,@function\n{KN}_kernel:")
    A(f"""s_cmp_ge_u32 {sW}, 256
    s_cbranch_scc1 L_end
    s_load_dwordx16 s[4:19], s[0:1], 0""")
    if epf == 4:
        C("some waves pull 1 KiB of this kernel's code towards the L2 (speed only)")
        A(f"""v_lshrrev_b32 v1, 6, v0
        s_lshr_b32 {sI}, {sW}, 3
        v_readfirstlane_b32 {sWV}, v1
        s_getpc_b64 s[40:41]
        L_pc0:
        v_lshlrev_b32 v8, 4, v0
        s_add_u32 {sT2}, {sWV}, {sI}
        s_and_b32 {sT2}, {sT2}, {pfm}
        s_cbranch_scc1 L_nopf0
        v_mov_b32 v9, s41
        v_add_co_u32 v8, vcc, s40, v8
        v_addc_co_u32 v9, vcc, 0, v9, vcc
        global_load_dwordx4 v[20:23], v[8:9], off
        L_nopf0:""")
    if epf == 3:
        C("every wave pulls 1 KiB of this kernel's code towards the L2 (speed only)")
        A("""s_getpc_b64 s[40:41]
        L_pc0:
        v_lshlrev_b32 v8, 4, v0
        v_mov_b32 v9, s41
        v_add_co_u32 v8, vcc, s40, v8
        v_addc_co_u32 v9, vcc, 0, v9, vcc
        global_load_dwordx4 v[20:23], v[8:9], off""")
    A(f"""s_load_dwordx8 s[20:27], s[0:1], 64
    s_load_dwordx2 s[28:29], s[0:1], 96""")
    stamp(0)
    if epf != 4:
        A(f"v_lshrrev_b32 v1, 6, v0\ns_lshr_b32 {sI}, {sW}, 3\nv_readfirstlane_b32 {sWV}, v1")
    A(f"""s_and_b32 {sG}, {sW}, 7
    s_and_b32 {sB}, {sI}, 3
    s_lshr_b32 {sS}, {sI}, 2""")
    A(f"""s_lshl_b32 {sBG}, {sB}, 3
    s_add_u32 {sBG}, {sBG}, {sG}
""")
    A(f"s_cmp_eq_u32 {sWV}, 0\ns_cbranch_scc1 L_loader")
    if epf in (1, 2):
        C("compute waves: pull this kernel's code towards the L2, 1 KiB pieces (speed only)")
        A(f"""s_getpc_b64 s[40:41]
        L_pc0:
        v_lshlrev_b32 v8, 4, v0
        v_add_u32 v10, {8 * 1024 - 1024}, v8
        v_min_u32 v10, L_codeend-L_pc0-16, v10
        v_add_u32 v8, {-1024 & 0xffffffff}, v8
        v_mov_b32 v9, s41
        v_add_co_u32 v8, vcc, s40, v8
        v_mov_b32 v11, s41
        v_addc_co_u32 v9, vcc, 0, v9, vcc
        global_load_dwordx4 v[20:23], v[8:9], off""")
        if epf > 1:
            A(f"""v_add_co_u32 v10, vcc, s40, v10
            s_nop 1
            v_addc_co_u32 v11, vcc, 0, v11, vcc
            global_load_dwordx4 v[20:23], v[10:11], off""")
    A("s_barrier\ns_branch L_compute\nL_loader:")
    C("---------------- loader wave")
    sN, sSLOT, sBASE, sGS, sRG, sRS, sCNT, sGI, sKV = "s48", "s49", "s50", "s51", "s52", "s53", "s54", "s55", "s56"
    sKJ = "s57"
    A("s_setprio 3")
    if True:
        C("rows 112b.. of wq, columns 512g+64s.. -> ring slot 8 (two lanes-wide issues run past the slice's descriptor)")
        A(f"""s_mul_i32 {sT0}, {sB}, {112 * 8192}
        s_lshl_b32 {sT1}, {sG}, 10
        s_add_u32 {sT0}, {sT0}, {sT1}
        s_lshl_b32 {sT1}, {sS}, 7
        s_add_u32 {sT0}, {sT0}, {sT1}
        v_lshrrev_b32 v12, 3, v0
        v_lshlrev_b32 v12, 13, v12
        v_and_b32 v13, 7, v0
        v_lshrrev_b32 v14, 4, v0
        v_lshlrev_b32 v14, 1, v14
        v_xor_b32 v13, v13, v14
        v_lshl_or_b32 v12, v13, 4, v12
        v_add_u32 v13, {65536 - 1024}, v12
        v_add_u32 v14, {65536 - 1024}, v13
        v_add_u32 v15, {65536 - 1024}, v14
        s_mov_b32 s46, {111 * 8192 + 128}
        s_mov_b32 s47, 0x20000
        s_mov_b32 m0, {8 * SLOT}
        s_waitcnt lgkmcnt(0)
        s_add_u32 s44, s{pWQ[0]}, {sT0}
        s_addc_u32 s45, s{pWQ[1]}, 0""")
        if lst:
            stamp(7)
        for u in range(16):
            if u % 4 == 0 and u:
                A(f"s_mov_b32 m0, {8 * SLOT + 1024 * u}\ns_mov_b32 {sT1}, {65536 * u}")
            A(f"buffer_load_dwordx4 v{12 + u % 4}, s[44:47], {sT1 if u > 3 else 0} offen offset:{1024 * (u % 4)} {ldq} lds")
            if u == bar - 1:
                A(f"""s_mov_b32 {sBUD}, 0x80000
                v_mov_b32 {vM}, {MISC}
                s_mov_b32 s39, 0x20000
                v_lshrrev_b32 v6, 1, v0
    v_cmp_eq_u32 vcc, 4, v6
    v_lshl_add_u32 v5, v0, 2, {vM}
    v_mov_b32 v7, 0xff800000
    v_cndmask_b32 v6, 0, v7, vcc
    ds_write_b32 v5, v6 offset:{FL}
                s_waitcnt lgkmcnt(0)
                s_barrier""")
                stamp(1)
    A(f"""    v_lshrrev_b32 v5, 5, v0
    v_and_b32 v6, 31, v0
    v_lshlrev_b32 v7, 1, v5
    v_xor_b32 v6, v6, v7
    v_lshlrev_b32 v6, 4, v6
    v_lshl_or_b32 v8, v5, 9, v6
    v_xor_b32 v9, 64, v8
    v_xor_b32 v10, 0x80, v8
    v_xor_b32 v11, 0xc0, v8
    s_mov_b32 {sN}, 0
    s_mov_b32 {sSLOT}, 0
    s_mov_b32 {sGS}, 4096
    s_mov_b32 {sCNT}, 16
    s_mov_b32 s38, {8 * SLOT}""")
    sR = sI
    if ra != 1 or rc:
        A(f"s_mul_i32 {sT0}, {sI}, {ra}\ns_mul_i32 {sT1}, {sG}, {rc}\ns_add_u32 {sT0}, {sT0}, {sT1}\ns_and_b32 {sT0}, {sT0}, 31")
        sR = sT0
    if rot == 1:
        A(f"s_and_b32 {sRG}, {sR}, 3\ns_lshr_b32 {sRS}, {sR}, 2")
    elif rot == 2:
        A(f"s_lshr_b32 {sRG}, {sR}, 3\ns_and_b32 {sRS}, {sR}, 7")
    elif rot == 3:
        A(f"s_mov_b32 {sRG}, 0\ns_and_b32 {sRS}, {sR}, 7")
    elif rot == 4:
        A(f"s_and_b32 {sRG}, {sR}, 3\ns_mov_b32 {sRS}, 0")
    elif rot == 5:
        A(f"s_lshr_b32 {sRG}, {sR}, 2\ns_and_b32 {sRS}, {sR}, 3")
    else:
        A(f"s_mov_b32 {sRG}, 0\ns_mov_b32 {sRS}, 0")
    A(f"""s_lshl_b32 {sKV}, {sBG}, 22
    s_lshl_b32 {sT1}, {sS}, 17
    s_add_u32 {sKV}, {sKV}, {sT1}
    s_add_u32 {sKV}, {sKV}, 0x300000
""")
    A(f"""s_add_u32 s36, s{pK[0]}, {sKV}
    s_addc_u32 s37, s{pK[1]}, 0""")

    def group_loop(flag, first, D, vb=8):
        top = lab("grp")
        A(f"s_mov_b32 {sT2}, 0")
        A(f"""{top}:
        s_add_u32 {sGI}, {sT2}, {sRG}
        s_and_b32 {sGI}, {sGI}, 3
        s_lshl_b32 {sT0}, {sGI}, 12
        s_mul_i32 {sT1}, {sGI}, {sGS}
        s_add_u32 m0, {sT0}, {sSLOT}
        s_add_u32 {sT1}, {sT1}, {sBASE}""")
        for k in range(4):
            A(f"s_waitcnt vmcnt({D - 1})\nbuffer_load_dwordx4 v{vb + k}, {SRD}, {sT1} offen offset:{1024 * k} {flag} lds")
        nb, nw = lab("nb"), lab("nw")
        A(f"s_add_u32 {sCNT}, {sCNT}, 4")
        A(f"""s_sub_u32 {sT0}, {sCNT}, {D}
        s_cbranch_scc1 {nw}
        s_and_b32 {sT1}, {sT0}, 15
        s_cbranch_scc1 {nw}
        s_lshr_b32 {sT0}, {sT0}, 4
        v_mov_b32 v5, {sT0}
        ds_write_b32 {vM}, v5 offset:{F_LANDED}
        {nw}:
        s_add_u32 {sT2}, {sT2}, 1
        s_cmp_lt_u32 {sT2}, 4
        s_cbranch_scc1 {top}""")

    def next_slot():
        A(f"""s_add_u32 {sN}, {sN}, 1
        s_add_u32 {sSLOT}, {sSLOT}, {SLOT}
        s_cmp_eq_u32 {sSLOT}, {9 * SLOT}
        s_cselect_b32 {sSLOT}, 0, {sSLOT}""")

    def wait_free():
        if x_nofree:
            return
        A(f"s_lshl_b32 {sT0}, {sN}, 2\nv_add_u32 v6, {sT0}, {vM}")
        wait_lds(F_FREE - 32, 8, "v5", "v6")

    def landed(k):
        A(f"v_mov_b32 v5, {k}\nds_write_b32 {vM}, v5 offset:{F_LANDED}")

    def drain(total, D):
        for k in range(total - (D + 15) // 16 + 1, total + 1):
            A(f"s_waitcnt vmcnt({16 * (total - k)})")
            if vbar and k == total:
                A("s_barrier")
            else:
                landed(k)

    def seg_base():
        A(f"s_add_u32 {sT0}, {sN}, {sRS}\ns_and_b32 {sT0}, {sT0}, 7\ns_lshl_b32 {sBASE}, {sT0}, 14")

    assert wpos == 8
    DV = DV or D
    if lst:
        stamp(8)
    if uni:
        assert DV == D or nL < 16
        C("segments 0..7: K, 8..15: V (each V segment into a slot its readers have released)")
        A("L_kv:")
        seg_base()
        group_loop(ld, True, D)
        next_slot()
        A(f"""s_cmp_lt_u32 {sN}, 8
        s_cbranch_scc1 L_kv
        s_cmp_eq_u32 {sN}, {nL}
        s_cbranch_scc1 L_kvend
        s_add_u32 s36, s{pV[0]}, {sKV}
        s_addc_u32 s37, s{pV[1]}, 0""")
        if diag:
            A(f"s_cmp_lg_u32 {sN}, 8\ns_cbranch_scc1 L_nost2")
            stamp(2)
            A("L_nost2:")
        if x_nofree:
            A("s_branch L_kv")
        A(f"""s_lshl_b32 {sT0}, {sN}, 2
        v_add_u32 v6, {sT0}, {vM}
        L_free:
        ds_read_b32 v5, v6 offset:{F_FREE - 32}
        s_waitcnt lgkmcnt(0)
        v_readfirstlane_b32 {sT5}, v5
        s_cmp_ge_u32 {sT5}, 8
        s_cbranch_scc1 L_kv""")
        spin_tail("L_free")
        A("L_kvend:")
        if nL < 16:
            A("L_v:")
            wait_free()
            seg_base()
            group_loop(ld, False, DV)
            next_slot()
            A(f"s_cmp_lt_u32 {sN}, 16\ns_cbranch_scc1 L_v")
    else:
        C("segments 0..7: K")
        A("L_k:")
        seg_base()
        group_loop(ld, True, D)
        next_slot()
        A(f"""s_cmp_lt_u32 {sN}, 8
        s_cbranch_scc1 L_k
        s_add_u32 s36, s{pV[0]}, {sKV}
        s_addc_u32 s37, s{pV[1]}, 0""")
        stamp(2)
        C("segments 8..15: V, each into a slot its readers have released")
        A("L_v:")
        wait_free()
        seg_base()
        group_loop(ld, False, DV)
        next_slot()
        A(f"s_cmp_lt_u32 {sN}, 16\ns_cbranch_scc1 L_v")
    stamp(3)
    A(f"s_cmp_lg_u32 {sS}, 7\ns_cbranch_scc1 L_wo")
    A("L_nowo:")
    drain(16 + LB, DV)
    A("s_branch L_ldone")
    C("two segments of wo: rows of head 2g + (b&1), 64 columns -> slots 7, 8")
    A(f"""L_wo:
    {"s_branch L_nowo" if x_stop == 9 else ""}
    v_lshrrev_b32 v5, 3, v0
    v_and_b32 v6, 7, v0
    v_lshrrev_b32 v7, 4, v0
    v_lshlrev_b32 v7, 1, v7
    v_xor_b32 v6, v6, v7
    v_lshlrev_b32 v6, 4, v6
    v_mul_u32_u24 v5, 896, v5
    v_add_u32 v12, v5, v6
    v_add_u32 v13, {7168 - 1024}, v12
    v_add_u32 v14, {7168 - 1024}, v13
    v_add_u32 v15, {7168 - 1024}, v14
    s_mov_b32 s36, s{pWO[0]}
    s_mov_b32 s37, s{pWO[1]}
    s_mov_b32 s38, {4096 * 896}
    s_lshl_b32 {sT0}, {sG}, 1
    s_and_b32 {sT1}, {sB}, 1
    s_add_u32 {sT0}, {sT0}, {sT1}
    s_mul_i32 {sBASE}, {sT0}, {256 * 896}
    s_lshl_b32 {sT1}, {sS}, 7
    s_add_u32 {sBASE}, {sBASE}, {sT1}""")
    T0 = 16 * (16 + LB)
    done = (T0 - DV) // 16
    for u in range(32):
        if u % 16 == 0 and not x_nofree:
            wait_lds(F_FREE + 4 * (8 + u // 16), 8)
        if u % 4 == 0:
            A(f"s_mov_b32 m0, {7 * SLOT + 1024 * u}")
            A(f"s_add_u32 {sBASE}, {sBASE}, {4 * 7168}" if u else "s_nop 0")
        if u + DV >= DW:
            A(f"s_waitcnt vmcnt({DW - 1})")
            k = (T0 + u - DW + 1) // 16
            if k > done:
                landed(k)
                done = k
        A(f"buffer_load_dwordx4 v{12 + u % 4}, {SRD}, {sBASE} offen offset:{1024 * (u % 4)} {ldo} lds")
    stamp(4)
    assert done < 16 + LB
    for k in range(done + 1, 18 + LB + 1):
        if k != 17 + LB:
            A(f"s_waitcnt vmcnt({16 * (18 + LB - k)})")
            if (vbar and k == 16 + LB) or (wbar and k == 18 + LB):
                A("s_barrier")
            else:
                landed(k)
            if obar and k == 16 + LB:
                A("s_barrier")
    A("L_ldone:")
    stamp(5)
    A("s_waitcnt lgkmcnt(0)")
    if diag:
        A(f"s_sub_u32 {sT0}, 0x80000, {sBUD}\ns_mul_i32 {sT0}, {sT0}, 100\ns_add_u32 s76, s64, {sT0}\ns_addc_u32 s77, s65, 0")
    stamps_out(0, 7)
    if lst:
        A('s_mov_b32 s64, s78\ns_mov_b32 s65, s79\ns_mov_b32 s66, s80\ns_mov_b32 s67, s81')
        stamps_out(40, 2)
    A("s_endpgm")

    C("---------------- compute waves")
    sCW = sWV
    A(f"""L_compute:
    {"s_endpgm" if x_stop == 9 else ""}
    s_sub_u32 {sCW}, {sWV}, 1
    s_mov_b32 {sBUD}, 0x80000
    v_mov_b32 {vM}, {MISC}
    s_mov_b32 s39, 0x20000
    v_and_b32 v0, 63, v0
    v_lshlrev_b32 {vL16}, 4, v0
    s_mul_i32 {sT0}, {sCW}, 896
    v_add_u32 v5, {sT0}, {vL16}
    v_mov_b32 v16, 0
    v_mov_b32 v17, 0
    v_mov_b32 v18, 0
    v_mov_b32 v19, 0
    v_lshrrev_b32 {vG}, 4, v0
    v_and_b32 {vN}, 15, v0
    v_mov_b32 {vONE}, 1
    v_mov_b32 {vFF}, 0xff
    v_mov_b32 v14, 0
    s_mov_b32 {sMASK}, 0xffff0000
    s_lshl_b32 {sIDX}, {sBG}, 3
    s_add_u32 {sIDX}, {sIDX}, {sS}
    s_lshl_b32 {sT0}, {sB}, 1
    s_xor_b32 {sFIN}, {sT0}, {sG}
    s_mov_b32 s38, 0x400000
    s_lshl_b32 {sT0}, {sG}, 2
    s_add_u32 {sT0}, {sT0}, {sB}
    s_lshl_b32 {sT0}, {sT0}, 3
    s_add_u32 {sT0}, {sT0}, {sS}
    s_waitcnt lgkmcnt(0)
    s_mov_b32 {sWT}, {sT0}
    s_mov_b32 {sTBLN}, {WS_TBLN}
    s_lshl_b32 s47, {sBG}, 13
    s_lshl_b32 {sT0}, {sCW}, 10
    s_or_b32 s47, s47, {sT0}
    s_or_b32 s47, s47, {WS_Q}
    s_cmp_ge_u32 {sCW}, 4
    s_mov_b32 s36, s28
    s_mov_b32 s37, s29
    s_load_dword {sTAG}, {pWS}, {WS_E}
    s_cbranch_scc1 L_nox
    s_mov_b32 exec_hi, 0x00ffffff
    global_load_dwordx4 v[16:19], v5, {pX}
    s_mov_b32 exec_hi, -1
    L_nox:
    s_cmp_lg_u32 {sCW}, 0
    s_cbranch_scc1 L_notq0
    v_mov_b32 v7, 0
    global_load_ushort v167, v7, {pB2}
    s_getreg_b32 {sXCC}, hwreg(HW_REG_XCC_ID, 0, 4)
    s_lshl_b32 s59, {sG}, 7
    s_add_u32 s59, s59, {WS_IDS}
    s_lshl_b32 {sT0}, {sI}, 2
    s_add_u32 {sT0}, {sT0}, s59
    s_lshl_b32 {sXCC}, {sXCC}, 24
    s_waitcnt lgkmcnt(0)
    s_add_u32 {sTAG}, {sTAG}, {hex(TAGINC)}
    s_lshr_b32 {sTAG1}, {sTAG}, 8
    s_and_b32 {sT1}, {sTAG}, 0xffffff
    s_or_b32 {sXCC}, {sXCC}, {sT1}
    v_mov_b32 v8, {sXCC}
    s_mov_b64 exec, 1
    buffer_store_dword v8, {vL16}, {SRD}, {sT0} offen
    s_mov_b64 exec, -1
    s_waitcnt vmcnt(2)
    s_branch L_ln
    L_notq0:
    s_lshl_b32 {sT0}, {sCW}, 9
    s_sub_u32 {sT0}, {sT0}, 512
    v_lshl_add_u32 v5, v0, 3, {sT0}""")
    load_w()
    if pf:
        C("wave 7: the last KiB of the code")
        A(f"""s_cmp_lg_u32 {sCW}, 7
        s_cbranch_scc1 L_nopf
        s_getpc_b64 s[40:41]
        L_pfpc:
        s_add_u32 s40, s40, L_pfend-L_pfpc-1024
        s_addc_u32 s41, s41, 0
        v_mov_b32 v9, s41
        v_add_co_u32 v8, vcc, s40, {vL16}
        s_nop 1
        v_addc_co_u32 v9, vcc, 0, v9, vcc
        global_load_dwordx4 v[20:23], v[8:9], off
        L_nopf:""")
    A(f"""s_waitcnt lgkmcnt(0)
    s_add_u32 {sTAG}, {sTAG}, {hex(TAGINC)}
    s_lshr_b32 {sTAG1}, {sTAG}, 8
    s_cmp_ge_u32 {sCW}, 4
    s_cbranch_scc1 L_table
    s_waitcnt vmcnt(3)""")
    C("LayerNorm of row cw of x (waves 0..3), bf16 rounding as the reference")
    A("L_ln:\ns_setprio 2")
    for k in range(4):
        unpack2(f"v{20 + 2 * k}", f"v{21 + 2 * k}", f"v{16 + k}")
    A("""v_pk_add_f32 v[28:29], v[20:21], v[22:23]
    v_pk_add_f32 v[30:31], v[24:25], v[26:27]
    v_pk_add_f32 v[28:29], v[28:29], v[30:31]
    v_add_f32 v28, v28, v29""")
    wave_sums(["v28"], [sT0])
    A(f"v_mov_b32 v32, {hex(fbits(1.0 / 448.0))}\nv_mul_f32 v30, {sT0}, v32\nv_mov_b32 v28, 0\ns_mov_b32 exec_hi, 0x00ffffff")
    for k in range(8):
        A(f"v_sub_f32 v29, v{20 + k}, v30\nv_fmac_f32 v28, v29, v29")
    A("s_mov_b32 exec_hi, -1")
    wave_sums(["v28"], [sT1])
    ln_scale("v30", "v31", sT0, sT1, "v32", False)
    normalize([20, 22, 24, 26], 30, 31, False)
    for k in range(4):
        A(f"v_cvt_pk_bf16_f32 v{16 + k}, v{20 + 2 * k}, v{21 + 2 * k}")
    A(f"""s_mul_i32 {sT0}, {sCW}, 960
    v_add3_u32 v5, {vL16}, {sT0}, {vM}
    s_mov_b32 exec_hi, 0x00ffffff
    ds_write_b128 v5, v[16:19] offset:{LN}
    s_mov_b32 exec_hi, -1""")
    signal(F_LNCNT)
    A(f"s_cmp_lg_u32 {sCW}, 0\ns_cbranch_scc1 L_table")
    C("partial q projection: 64 columns x 4 batches over 112 rows")
    stamp(1)
    A(f"""v_and_b32 v7, 3, {vN}
    v_lshlrev_b32 v12, 16, v7
    v_mul_u32_u24 v7, 960, v7
    v_lshl_add_u32 v7, {vG}, 3, v7
    s_mul_i32 {sT0}, {sB}, 224
    v_add3_u32 v7, v7, {sT0}, {vM}
    v_bfe_u32 v8, v0, 3, 2
    v_lshlrev_b32 v8, 5, v8
    v_lshrrev_b32 v9, 2, v0
    v_lshl_or_b32 v8, v9, 7, v8
    v_and_b32 v9, 3, v0
    v_lshl_or_b32 v8, v9, 3, v8
    v_add_u32 v8, {8 * SLOT}, v8
    v_xor_b32 v9, 32, v8
    v_xor_b32 v10, 64, v8
    v_xor_b32 v11, 0x60, v8
    v_lshrrev_b32 v13, 2, {vN}
    v_cmp_eq_u32 s[52:53], 1, v13
    v_cmp_eq_u32 s[54:55], 2, v13
    v_cmp_eq_u32 s[56:57], 3, v13
    v_lshl_or_b32 v12, v13, 6, v12
    v_lshl_or_b32 v12, {vG}, 4, v12
    v_mov_b32 v13, 8
    s_lshl_b32 {sT0}, {sG}, 3
    s_add_u32 {sT0}, {sT0}, {sS}
    s_lshl_b32 {sT0}, {sT0}, 10
    s_lshl_b32 {sT1}, {sB}, 8
    s_add_u32 {sT0}, {sT0}, {sT1}
    s_add_u32 {sT0}, {sT0}, {WS_Q}""")
    wait_lds(F_LNCNT, 4)
    for j in range(3):
        A(f"ds_read2_b64 v[{16 + 4 * j}:{19 + 4 * j}], v7 offset0:{8 * j} offset1:{8 * j + 4}")
    A("ds_read_b64 v[28:29], v7 offset:192")
    wait_lds(F_LANDED, 1)
    for j in range(4):
        for t in range(4):
            r = 48 + 16 * j + 4 * t
            A(f"ds_read_b64_tr_b16 v[{r}:{r + 1}], v{8 + t} offset:{4096 * j}")
            if j < 3:
                A(f"ds_read_b64_tr_b16 v[{r + 2}:{r + 3}], v{8 + t} offset:{4096 * j + 2048}")
    signal(F_FREE, "v13")
    A("s_waitcnt lgkmcnt(0)")
    for j in range(4):
        for t in range(4):
            r, d = 48 + 16 * j + 4 * t, 112 + 4 * t
            if j < 3:
                A(f"v_mfma_f32_16x16x32_bf16 v[{d}:{d + 3}], v[{r}:{r + 3}], v[{16 + 4 * j}:{19 + 4 * j}], {'0' if j == 0 else f'v[{d}:{d + 3}]'}")
            else:
                A(f"v_mfma_f32_16x16x16_bf16 v[{d}:{d + 3}], v[{r}:{r + 1}], v[28:29], v[{d}:{d + 3}]")
    A("s_nop 7")
    for t in range(1, 4):
        for r in range(4):
            A(f"v_cndmask_b32 v{112 + r}, v{112 + r}, v{112 + 4 * t + r}, s[{50 + 2 * t}:{51 + 2 * t}]")
    put_tag(range(112, 116))
    A(f"""buffer_store_dwordx4 v[112:115], v12, {SRD}, {sT0} offen {nst}
    s_add_u32 s58, {sT0}, {WS_FAR}
    v_mov_b32 v14, v12""")
    stamp(2)
    if x_stop == 1:
        A("s_endpgm")
    A("s_branch L_qk")
    C("waves 1..7: this workgroup's entries of the scalar map t -> MLP(t), t running over bf16 values")
    A("L_table:\ns_setprio 0\ns_waitcnt vmcnt(0)")
    if x_stop == 1:
        A("s_endpgm")
    unpack_w()
    A(f"""s_and_b32 {sT0}, {sWT}, 127
    s_mul_i32 {sT0}, {sT0}, {NE}
    s_add_u32 {sT0}, {sT0}, {E0 << 7}
    s_lshr_b32 {sT1}, {sWT}, 7
    s_lshl_b32 {sT1}, {sT1}, 15
    s_or_b32 {sT0}, {sT0}, {sT1}
    s_lshl_b32 s50, {sT0}, 16
    s_mov_b32 s54, 0
    s_lshl_b32 {sT0}, {sCW}, 7
    v_lshl_add_u32 v8, {vG}, 2, {vM}
    v_add_u32 v8, {sT0}, v8
    L_tloop:
    s_cmp_lg_u32 s54, {(x_tl or NE) - 4 * qit}
    s_cbranch_scc1 L_tnoq
    buffer_load_dwordx4 v[20:23], {vL16}, {SRD}, s47 offen sc1
    L_tnoq:
    s_add_u32 s51, s50, 0x10000
    s_add_u32 s52, s50, 0x20000
    s_add_u32 s53, s50, 0x30000""")
    gelu(["s50", "s51"], ["v80", "v81"], True)
    gelu(["s52", "s53"], ["v82", "v83"], True)
    swap_reduce4(("v80", "v81", "v82", "v83"))
    A("s_add_u32 s50, s50, 0x40000\ns_add_u32 s54, s54, 4")
    for m in DPP[:4]:
        A(f"v_add_f32_dpp v80, v80, v80 {m} bank_mask:0xf\ns_nop 1")
    A(f"""s_cmp_lt_u32 s54, {x_tl or NE}
    ds_write_b32 v8, v80 offset:{TP - 128}
    v_add_u32 v8, 16, v8
    s_cbranch_scc1 L_tloop""")
    signal(F_TCNT)
    stamp(1)
    C("key slot cw -> registers, slot is released at once")
    A(f"""L_qk:
    s_setprio 1
    v_and_b32 v8, 7, {vN}
    v_lshlrev_b32 v8, 1, v8
    v_xor_b32 v8, v8, {vG}
    v_lshlrev_b32 v8, 4, v8
    v_lshl_or_b32 v8, {vN}, 9, v8
    s_lshl_b32 {sT0}, {sCW}, 14
    v_add_u32 v8, {sT0}, v8
    v_xor_b32 v9, 64, v8
    v_xor_b32 v10, 0x80, v8
    v_xor_b32 v11, 0xc0, v8
    s_lshl_b32 {sT0}, {sCW}, 2
    v_add_u32 v12, {sT0}, {vM}
    v_mov_b32 v13, 8
    s_add_u32 {sT4}, {sCW}, {1 + LB}""")
    wait_lds(F_LANDED, sT4)
    for j in range(8):
        for t in range(2):
            r = 48 + 8 * j + 4 * t
            A(f"ds_read_b128 v[{r}:{r + 3}], v{8 + (j & 3)} offset:{256 * (j >> 2) + 8192 * t}")
    signal(F_FREE + 4, "v13", "v12")
    stamp(3)
    if x_stop == 2:
        A("s_endpgm")
    C("64 columns of q: sum of the four row-quarter partials")
    A(f"""s_lshr_b32 {sT1}, {sCW}, 2
    s_mul_i32 {sT1}, {sT1}, {HP}
    s_and_b32 {sT2}, {sCW}, 3
    s_lshl_b32 {sT2}, {sT2}, 7
    s_add_u32 {sT1}, {sT1}, {sT2}
    v_lshlrev_b32 v12, 1, {vG}
    v_lshl_or_b32 v12, {vN}, 3, v12
    v_add3_u32 v12, v12, {sT1}, {vM}
    s_cmp_lg_u32 {sCW}, 0
    s_cbranch_scc1 L_qchk""")
    wait_lds(F_LANDED, QT + LB)
    A(f"buffer_load_dwordx4 v[20:23], {vL16}, {SRD}, s47 offen sc1")
    C("wave 0: do the 32 workgroups of this kv head share this compute die (one L2)?  Not seen yet counts as no")
    A(f"""v_and_b32 v16, 31, v0
    v_lshlrev_b32 v16, 2, v16
    buffer_load_dword v17, v16, {SRD}, s59 offen sc1
    s_waitcnt vmcnt(0)
    v_cmp_ne_u32 vcc, {sXCC}, v17
    v_mov_b32 v17, 1
    s_cmp_lg_u64 vcc, 0
    s_cbranch_scc1 L_idfar
    {"s_branch L_idfar" if x_far else ""}
    L_idloc:
    ds_write_b32 {vM}, v17 offset:{F_LOC}
    L_qchk:
    s_waitcnt vmcnt(0)""")
    cold.append(f"""L_idfar:
    buffer_store_dwordx4 v[112:115], v14, {SRD}, s58 offen sc1
    v_mov_b32 v17, {WS_FAR + 1}
    s_branch L_idloc""")
    tags_ok([20, 21, 22, 23], "L_qok")
    wait_lds(F_LOC, 1, sleep=qback)
    A(f"""s_sub_u32 {sT5}, {sT5}, 1
    s_xor_b32 s47, s47, {sT5}
    s_sleep {qback}
    buffer_load_dwordx4 v[20:23], {vL16}, {SRD}, s47 offen sc1""")
    spin_tail("L_qchk", 0)
    A("L_qok:")
    strip_tag(range(20, 24))
    swap_reduce4(("v20", "v21", "v22", "v23"))
    A(f"""v_cvt_pk_bf16_f32 v20, v20, v20
    ds_write_b16 v12, v20 offset:{QL}""")
    signal(F_QCNT)
    A(f"""v_and_b32 v7, 1, {vN}
    v_lshl_add_u32 v8, v7, 2, {vM}
    v_mul_u32_u24 v7, {HP}, v7
    v_lshl_add_u32 v7, {vG}, 4, v7
    v_add_u32 v7, v7, {vM}
    s_lshl_b32 {sT0}, {sCW}, 6
    v_add_u32 v9, {sT0}, v7
    s_mov_b32 s46, {hex(fbits(CEXP))}""")
    wait_lds(F_QCNT, 8)
    stamp(4)
    A(f"ds_read_b32 v5, {vM} offset:{F_LOC}")
    for j in range(8):
        A(f"ds_read_b128 v[{16 + 4 * j}:{19 + 4 * j}], v7 offset:{QL + 64 * j}")
    for j in range(8):
        A(f"s_waitcnt lgkmcnt({7 - j})")
        if j == 0:
            A(f"v_readfirstlane_b32 {sFAR}, v5")
        for t in range(2):
            r = 48 + 8 * j + 4 * t
            d = 112 + 4 * t
            A(f"v_mfma_f32_16x16x32_bf16 v[{d}:{d + 3}], v[{r}:{r + 3}], v[{16 + 4 * j}:{19 + 4 * j}], {'0' if j == 0 else f'v[{d}:{d + 3}]'}")
    A(f"s_sub_u32 {sFAR}, {sFAR}, 1\ns_nop 6")
    for k in range(8):
        rne1(f"v{112 + k}", f"v{112 + k}")
    A(f"""v_max3_f32 v120, v112, v113, v114
    v_max3_f32 v121, v115, v116, v117
    v_max3_f32 v120, v120, v118, v119
    v_max_f32 v120, v120, v121
    s_mov_b32 exec_lo, 0x00030003
    s_mov_b32 exec_hi, 0x00030003
    ds_max_f32 v8, v120 offset:{F_MX}
    s_mov_b64 exec, -1""")
    signal(F_MAXCNT)
    wait_lds(F_MAXCNT, 8)
    A(f"ds_read_b32 v124, v8 offset:{F_MX}\ns_waitcnt lgkmcnt(0)")
    for k in range(8):
        A(f"v_sub_f32 v{112 + k}, v{112 + k}, v124")
    for k in range(8):
        A(f"v_mul_f32 v{112 + k}, s46, v{112 + k}")
    for k in range(8):
        A(f"v_exp_f32 v{112 + k}, v{112 + k}")
    A("s_nop 0")
    for k in range(4):
        A(f"v_cvt_pk_bf16_f32 v{120 + k}, v{112 + 2 * k}, v{113 + 2 * k}")
    A(f"""s_mov_b32 exec_lo, 0x00030003
    s_mov_b32 exec_hi, 0x00030003
    ds_write_b128 v9, v[120:123] offset:{PL}
    s_mov_b64 exec, -1""")
    signal(F_PCNT)
    C("addresses of the PV loop and of the stages behind it")
    A(f"""v_mov_b32 v43, v7
    v_bfe_u32 v8, v0, 2, 3
    s_lshl_b32 {sT0}, {sCW}, 1
    v_xor_b32 v8, {sT0}, v8
    v_lshlrev_b32 v8, 5, v8
    v_lshrrev_b32 v9, 2, v0
    v_lshl_or_b32 v8, v9, 9, v8
    v_and_b32 v10, 3, v0
    v_lshl_or_b32 v44, v10, 3, v8
    v_xor_b32 v45, 32, v44""")
    for r in range(112, 120):
        A(f"v_mov_b32 v{r}, 0")
    A(f"""v_and_b32 v28, 1, {vN}
    v_lshlrev_b32 v28, 10, v28
    v_bfe_u32 v29, {vN}, 1, 1
    v_lshl_or_b32 v28, v29, 6, v28
    v_lshl_or_b32 v160, {vG}, 4, v28
    v_cmp_ne_u32 s[56:57], 0, v29
    s_lshl_b32 s51, {sIDX}, 11
    s_lshl_b32 {sT0}, {sCW}, 7
    s_add_u32 s51, s51, {sT0}
    s_add_u32 s51, s51, {WS_OP}
    v_lshlrev_b32 v161, 6, {vG}
    v_lshlrev_b32 v28, 4, {vN}
    v_lshl_or_b32 v162, {vG}, 11, v28
    s_and_b32 {sT2}, {sBG}, 0x17
    s_lshr_b32 {sT1}, {sCW}, 2
    s_lshl_b32 {sT1}, {sT1}, 3
    s_add_u32 {sT2}, {sT2}, {sT1}
    s_and_b32 {sT3}, {sB}, 1
    s_lshl_b32 s52, {sT2}, 14
    s_lshl_b32 {sT1}, {sT3}, 10
    s_add_u32 s52, s52, {sT1}
    s_and_b32 {sT1}, {sCW}, 3
    s_lshl_b32 {sT1}, {sT1}, 8
    s_add_u32 s52, s52, {sT1}
    s_add_u32 s52, s52, {WS_OP}
    s_add_u32 s59, s52, {4 << 11}
    v_bfe_u32 v28, v0, 3, 2
    s_and_b32 {sT1}, {sCW}, 3
    v_xor_b32 v28, {sT1}, v28
    v_lshlrev_b32 v28, 5, v28
    v_lshl_or_b32 v28, v9, 7, v28
    v_lshl_or_b32 v163, v10, 3, v28
    v_add_u32 v164, {((8 + wpos) % 9) * SLOT}, v163
    v_lshlrev_b32 v28, 4, v10
    v_bfe_u32 v29, v0, 2, 1
    v_lshl_or_b32 v28, v29, 3, v28
    v_bfe_u32 v29, v0, 3, 1
    v_lshl_or_b32 v28, v29, 6, v28
    v_lshl_or_b32 v28, {vG}, 1, v28
    s_lshr_b32 {sT0}, {sCW}, 2
    s_mul_i32 {sT0}, {sT0}, {HP}
    s_lshl_b32 {sT1}, {sT1}, 7
    s_add_u32 {sT0}, {sT0}, {sT1}
    v_add3_u32 v165, v28, {sT0}, {vM}
    s_lshl_b32 {sT0}, {sCW}, 6
    v_add_u32 v166, {OL - PL}, v7
    v_mul_u32_u24 v14, {16 * 1792}, {vN}
    v_lshl_add_u32 v14, {vG}, 4, v14
    s_and_b32 s53, {sB}, 2
    s_lshl_b32 s53, s53, 3
    s_add_u32 s53, s53, {sG}
    s_lshl_b32 s53, s53, 1
    s_add_u32 s53, s53, {sT3}
    s_mul_i32 s53, s53, 1792
    s_lshl_b32 {sT1}, {sS}, 8
    s_add_u32 s53, s53, {sT1}
    s_add_u32 s53, s53, {sT0}
    s_add_u32 s53, s53, {WS_OUTP}
    s_lshl_b32 s54, {sT2}, 9
    s_lshl_b32 {sT1}, {sT3}, 3
    s_add_u32 s54, s54, {sT1}
    s_add_u32 s54, s54, {WS_STATS}
    v_lshl_add_u32 v136, {vN}, 2, {vG}
    v_add_u32 v136, {sT0}, v136
    s_mul_i32 {sT1}, {sB}, 896
    v_lshl_add_u32 v137, v136, 1, {sT1}
    s_and_b32 s55, {sWT}, 0xf8
    s_mul_i32 s55, s55, {NE * 4}
    s_xor_b32 {sT1}, {sS}, 7
    s_or_b32 {sFIN}, {sFIN}, {sT1}""")
    wait_lds(F_PCNT, 8)
    stamp(5)
    if x_stop == 3:
        A("s_endpgm")
    C("wave 0: row sums of the bf16 probabilities (ones x P), publish (max, sum) of both heads")
    A(f"s_cmp_lg_u32 {sCW}, 0\ns_cbranch_scc1 L_nostat")
    for j in range(8):
        A(f"ds_read_b128 v[{48 + 4 * j}:{51 + 4 * j}], v43 offset:{PL + 64 * j}")
    for r in range(16, 20):
        A(f"v_mov_b32 v{r}, 0x3f803f80")
    A(f"""s_lshl_b32 {sT0}, {sIDX}, 6
    s_add_u32 {sT0}, {sT0}, {WS_STATS}
    s_waitcnt lgkmcnt(0)""")
    for j in range(8):
        A(f"v_mfma_f32_16x16x32_bf16 v[20:23], v[16:19], v[{48 + 4 * j}:{51 + 4 * j}], {'0' if j == 0 else 'v[20:23]'}")
    A(f"""v_mov_b32_dpp v126, v124 quad_perm:[1,0,3,2] row_mask:0xf bank_mask:0xf
    s_nop 6
    v_mov_b32 v125, v20
    v_mov_b32_dpp v127, v20 quad_perm:[1,0,3,2] row_mask:0xf bank_mask:0xf""")
    put_tag([125, 127], tag=sTAG1)
    put_tag([124, 126], True, sTAG)
    A("s_mov_b64 exec, 1")
    store_group(f"buffer_store_dwordx4 v[124:127], {vL16}, {SRD}, {{}} offen", sT0)
    C("wave 0: finish and publish the table entries")
    A(f"s_mov_b64 exec, -1\nv_and_b32 v7, 31, v0\nv_lshl_add_u32 v7, v7, 2, {vM}")
    wait_lds(F_TCNT, 7)
    for k in range(7):
        A(f"ds_read_b32 v{16 + k}, v7 offset:{TP + 128 * k}")
    A(f"""s_mul_i32 {sT0}, {sWT}, {NE * 4}
    s_add_u32 {sT0}, {sT0}, {WS_TBLN}
    v_lshlrev_b32 v8, 2, v0
    v_lshlrev_b32 v46, 16, v167
    s_waitcnt lgkmcnt(0)
    v_add_f32 v16, v16, v17
    v_add_f32 v18, v18, v19
    v_add_f32 v20, v20, v21
    v_add_f32 v16, v16, v18
    v_add_f32 v20, v20, v22
    v_add_f32 v16, v16, v20""")
    rne1("v16", "v16")
    A("v_add_f32 v16, v16, v46")
    rne1("v16", "v16")
    A(f"v_mov_b32 v17, {sTAG}\nv_bfi_b32 v16, {sMASK}, v16, v17")
    A(f"s_mov_b64 exec, {(1 << NE) - 1}")
    store_group(f"buffer_store_dword v16, v8, {SRD}, {{}} offen", sT0)
    A("s_mov_b64 exec, -1\nL_nostat:")
    sJ, sVS, sJL = "s48", "s49", "s50"
    ntl = (NE * 128 + 1023) // 1024
    lastm = (1 << ((NE * 128 - 1024 * (ntl - 1)) // 16)) - 1

    def table_loads():
        for k in range(ntl):
            if k == ntl - 1:
                A(f"s_mov_b32 exec_lo, {hex(lastm & 0xffffffff)}\ns_mov_b32 exec_hi, {hex(lastm >> 32)}")
            A(f"buffer_load_dwordx4 v[{140 + 4 * k}:{143 + 4 * k}], {vL16}, {SRD}, s55 offen offset:{1024 * k} sc1")
        A("s_mov_b64 exec, -1")

    A(f"""s_mov_b32 {sJ}, 0
    s_mov_b32 {sVS}, {8 * SLOT}
    s_mov_b32 {sJL}, {jmid}
    v_add_u32 v12, {F_FREE + 36}, {vM}
    s_mov_b32 {sT4}, {9 + LB}
    s_cmp_eq_u32 {sS}, 7
    s_cselect_b32 s58, 0, 2
    L_pv:
    ds_read_b128 v[16:19], v43 offset:{PL}
    v_add_u32 v10, {sVS}, v44
    v_add_u32 v11, {sVS}, v45""")
    if vbar:
        C("the last slot is announced by a barrier with the loader")
        A(f"s_cmp_lg_u32 {sJ}, 7\ns_waitcnt lgkmcnt(0)\ns_cbranch_scc1 L_pvwait\ns_barrier\nL_pvgo:")
        pvwait = (f"""L_pvwait:
        ds_read_b32 v5, {vM} offset:{F_LANDED}
        s_waitcnt lgkmcnt(0)
        v_readfirstlane_b32 {sT5}, v5
        s_cmp_ge_u32 {sT5}, {sT4}
        s_cbranch_scc1 L_pvgo
        s_sleep 1
        s_sub_u32 {sBUD}, {sBUD}, 1
        s_cbranch_scc0 L_pvwait
        s_branch L_end""")
    else:
        wait_lds(F_LANDED, sT4, sleep=pvslp)
    A(f"""ds_read_b64_tr_b16 v[20:21], v10
    ds_read_b64_tr_b16 v[22:23], v10 offset:8192
    ds_read_b64_tr_b16 v[24:25], v11
    ds_read_b64_tr_b16 v[26:27], v11 offset:8192""")
    signal(0, vONE, "v12")
    A(f"""v_add_u32 v43, 64, v43
    s_add_u32 {sJ}, {sJ}, 1""")
    if wpos < 8:
        A(f"""s_cmp_eq_u32 {sJ}, {wpos}
        s_cselect_b32 {sT0}, s58, 0
        s_add_u32 {sT0}, {sT0}, 1
        s_add_u32 {sT4}, {sT4}, {sT0}
        s_lshl_b32 {sT1}, {sT0}, 2
        v_add_u32 v12, {sT1}, v12
        s_lshl_b32 {sT1}, {sT0}, 14
        s_add_u32 {sVS}, {sVS}, {sT1}
        s_sub_u32 {sT1}, {sVS}, {9 * SLOT}
        s_cselect_b32 {sVS}, {sVS}, {sT1}""")
    else:
        A(f"""v_add_u32 v12, 4, v12
        s_add_u32 {sT4}, {sT4}, 1
        s_add_u32 {sVS}, {sVS}, {SLOT}
        s_cmp_eq_u32 {sVS}, {9 * SLOT}
        s_cselect_b32 {sVS}, 0, {sVS}""")
    A(f"""    s_cmp_lt_u32 {sJ}, {sJL}
    s_waitcnt lgkmcnt(3)
    v_mfma_f32_16x16x32_bf16 v[112:115], v[20:23], v[16:19], v[112:115]
    s_waitcnt lgkmcnt(1)
    v_mfma_f32_16x16x32_bf16 v[116:119], v[24:27], v[16:19], v[116:119]
    s_cbranch_scc1 L_pv
    s_cmp_eq_u32 {sJ}, 8
    s_cbranch_scc1 L_pv_done""")
    C("before the last value slots: fetch what the next stage needs besides the partial rows")
    A(f"""s_mov_b32 {sJL}, 8
    s_cmp_eq_u32 {sS}, 7
    s_cbranch_scc1 L_mid7
    buffer_load_dwordx2 v[32:33], v161, {SRD}, s54 offen sc1
    buffer_load_dwordx2 v[34:35], v161, {SRD}, s54 offen offset:256 sc1""")
    A(f"""s_branch L_pv
    L_mid7:
    s_cmp_lg_u32 {sCW}, 0
    s_cbranch_scc1 L_mid8
    v_mov_b32 v32, {sTAG}
    v_mov_b32 v33, {sTAG}
    v_mov_b32 v34, {sTAG}
    v_mov_b32 v35, {sTAG}
    s_add_u32 s54, s55, {WS_TBLN}
    s_mov_b32 exec_hi, {hex((1 << (2 * NE - 32)) - 1)}
    buffer_load_dwordx4 v[32:35], {vL16}, {SRD}, s54 offen sc1
    s_mov_b32 exec_hi, -1
    L_mid8:
    s_cmp_lg_u32 {sFIN}, 0
    s_cbranch_scc1 L_pv
    s_cmp_eq_u32 {sCW}, 7
    s_cbranch_scc1 L_pv
    global_load_ushort v138, v137, {pX}
    s_branch L_pv""")
    if vbar:
        A(pvwait)
    A("L_pv_done:")
    stamp(7)
    if x_stop == 4:
        A("s_endpgm")
    C("publish the partial output rows")
    A(f"""s_nop 5
    v_cndmask_b32 v112, v112, v116, s[56:57]
    v_cndmask_b32 v113, v113, v117, s[56:57]
    v_cndmask_b32 v114, v114, v118, s[56:57]
    v_cndmask_b32 v115, v115, v119, s[56:57]""")
    put_tag(range(112, 116), True)
    A(f"""s_mov_b32 exec_lo, 0x000f000f
    s_mov_b32 exec_hi, 0x000f000f
""")
    store_group(f"buffer_store_dwordx4 v[112:115], v160, {SRD}, {{}} offen", "s51")
    opoll = f"""buffer_load_dwordx4 v[24:27], v162, {SRD}, s52 offen sc1
    buffer_load_dwordx4 v[28:31], v162, {SRD}, s59 offen sc1"""
    A(f"""s_mov_b64 exec, -1
    s_cmp_eq_u32 {sS}, 7
    s_cbranch_scc1 L_last""")
    if obar:
        C("all partial rows of this workgroup are on their way before the first look at the group's rows")
        A("s_barrier")
    A(opoll)
    A(f"s_cmp_lg_u32 {sFAR}, 0\ns_cbranch_scc1 L_spoll0\ns_waitcnt vmcnt(3)\nL_spoll:")
    cold.append("L_spoll0:\ns_waitcnt vmcnt(0)\ns_branch L_spoll")
    tags_ok([32, 34, 33, 35], "L_sok", tags=[sTAG, sTAG1])
    A(f"""s_xor_b32 s54, s54, {sFAR}
    buffer_load_dwordx2 v[32:33], v161, {SRD}, s54 offen sc1
    buffer_load_dwordx2 v[34:35], v161, {SRD}, s54 offen offset:256 sc1
    s_waitcnt vmcnt(0)""")
    spin_tail("L_spoll", 0)
    A("L_sok:")
    C("weights of the splits row and row+4")
    A(f"""v_and_b32 v32, {sMASK}, v32
    v_and_b32 v34, {sMASK}, v34""")
    strip_tag([33, 35])

    def rowred(op, d, t):
        for sw in ("v_permlane16_swap_b32", "v_permlane32_swap_b32"):
            A(f"v_mov_b32 {t}, {d}\ns_nop 1\n{sw} {d}, {t}\n{op} {d}, {d}, {t}")

    A("v_max_f32 v36, v32, v34")
    rowred("v_max_f32", "v36", "v37")
    A("""v_sub_f32 v32, v32, v36
    v_sub_f32 v34, v34, v36
    v_mul_f32 v32, s46, v32
    v_mul_f32 v34, s46, v34
    v_exp_f32 v32, v32
    v_exp_f32 v34, v34
    s_nop 0
    v_mul_f32 v36, v33, v32
    v_fmac_f32 v36, v35, v34""")
    rowred("v_add_f32", "v36", "v37")
    A("""v_rcp_f32 v36, v36
    s_nop 0
    v_mul_f32 v32, v32, v36
    v_mul_f32 v34, v34, v36""")
    if wbar:
        C("wo has landed (barrier with the loader)")
        A(f"s_cmp_ge_u32 {sCW}, 4\ns_barrier\ns_cbranch_scc1 L_opoll")
    else:
        A(f"s_cmp_ge_u32 {sCW}, 4\ns_cbranch_scc1 L_opoll")
        wait_lds(F_LANDED, 10 + wpos + LB, sleep=pvslp)
    for j in range(8):
        for u in range(2):
            part = j >> 2
            sl0, sl = (8 + wpos) % 9, (8 + wpos + part) % 9
            base, off = ("v164", (sl - sl0) * SLOT) if sl >= sl0 else ("v163", sl * SLOT)
            r = 48 + 4 * j + 2 * u
            A(f"ds_read_b64_tr_b16 v[{r}:{r + 1}], {base} offset:{off + 4096 * (j & 3) + 2048 * u}")
    stamp(8)
    A("L_opoll:\ns_waitcnt vmcnt(0)")
    tags_ok(list(range(24, 32)), "L_ook")
    if oback:
        A(f"s_sleep {oback}")
    A(f"s_xor_b32 s52, s52, {sFAR}\ns_xor_b32 s59, s59, {sFAR}")
    A(opoll)
    spin_tail("L_opoll", 0)
    A("L_ook:")
    stamp(9)
    strip_tag(range(24, 32))
    A("""v_pk_mul_f32 v[24:25], v[24:25], v[32:33] op_sel_hi:[1,0]
    v_pk_mul_f32 v[26:27], v[26:27], v[32:33] op_sel_hi:[1,0]
    v_pk_fma_f32 v[24:25], v[28:29], v[34:35], v[24:25] op_sel_hi:[1,0,1]
    v_pk_fma_f32 v[26:27], v[30:31], v[34:35], v[26:27] op_sel_hi:[1,0,1]""")
    swap_reduce4(("v24", "v25", "v26", "v27"))
    A(f"""v_cvt_pk_bf16_f32 v24, v24, v24
    ds_write_b16 v165, v24 offset:{OL}
    s_cmp_ge_u32 {sCW}, 4
    s_waitcnt lgkmcnt(0)
    s_barrier
    s_cbranch_scc1 L_exit""")
    for j in range(8):
        A(f"ds_read_b128 v[{16 + 4 * j}:{19 + 4 * j}], v166 offset:{PL + 64 * j}")
    for j in range(8):
        A(f"s_waitcnt lgkmcnt({7 - j})\nv_mfma_f32_16x16x32_bf16 v[112:115], v[{48 + 4 * j}:{51 + 4 * j}], v[{16 + 4 * j}:{19 + 4 * j}], {'0' if j == 0 else 'v[112:115]'}")
    A(f"""s_mov_b32 exec_lo, 0x00030003
    s_mov_b32 exec_hi, 0x00030003
    s_nop 5""")
    put_tag(range(112, 116), True)
    A(f"""buffer_store_dwordx4 v[112:115], v14, {SRD}, s53 offen {ost}
    s_mov_b64 exec, -1""")
    stamp(10)
    A("s_branch L_exit")
    C("workgroups of split 7, wave 0: pass the table entries of the 8 splits on to the finishing workgroups")
    A(f"""L_last:
    s_cmp_lg_u32 {sCW}, 0
    s_cbranch_scc1 L_nofwd
    L_fpoll:
    s_waitcnt vmcnt(0)""")
    tags_ok([32, 33, 34, 35], "L_fok", tags=[sTAG] * 2, sel="WORD_0")
    A(f"""s_xor_b32 s54, s54, {sFAR}
    s_mov_b32 exec_hi, {hex((1 << (2 * NE - 32)) - 1)}
    buffer_load_dwordx4 v[32:35], {vL16}, {SRD}, s54 offen sc1
    s_mov_b32 exec_hi, -1""")
    spin_tail("L_fpoll")
    A(f"""L_fok:
    s_add_u32 s54, s55, {WS_TBL}
    s_mov_b32 exec_hi, {hex((1 << (2 * NE - 32)) - 1)}
    buffer_store_dwordx4 v[32:35], {vL16}, {SRD}, s54 offen sc1
    s_mov_b32 exec_hi, -1
    L_nofwd:""")
    C("finishing workgroup of batch b: table to LDS, sum the 16 head partials, residual, LN, LN, table lookup")
    A(f"""s_cmp_lg_u32 {sFIN}, 0
    s_cbranch_scc1 L_exit
    s_xor_b32 {sT0}, {sCW}, {sG}
    s_or_b32 {sT0}, {sT0}, {sFAR}
    s_cselect_b32 s55, {WS_TBL}, {sTBLN}
    s_mul_i32 {sT0}, {sCW}, {NE * 128}
    s_add_u32 s55, s55, {sT0}
    s_add_u32 {sT0}, {sT0}, {TBL_LDS}
    v_add_u32 v13, {sT0}, {vL16}""")
    for r in range(140 + 4 * (ntl - 1), 140 + 4 * ntl):
        A(f"v_mov_b32 v{r}, {sTAG}")
    table_loads()
    A(f"""    s_mul_i32 s48, {sB}, {16 * 1792}
    s_lshl_b32 {sT0}, {sCW}, 8
    s_add_u32 s48, s48, {sT0}
    s_add_u32 s48, s48, {WS_OUTP}
    s_add_u32 s49, s48, {4 * 1792}
    s_add_u32 s50, s48, {8 * 1792}
    s_add_u32 s51, s48, {12 * 1792}
    v_mul_u32_u24 v12, 1792, {vG}
    v_lshl_add_u32 v12, {vN}, 4, v12
    L_tpoll:
    s_waitcnt vmcnt(0)""")
    tags_ok(list(range(140, 140 + 4 * ntl)), "L_tok", tags=[sTAG] * (2 * ntl), sel="WORD_0")
    A(f"s_sleep {tback}")
    table_loads()
    spin_tail("L_tpoll", 0)
    A(f"L_tok:\ns_mov_b32 s47, {128 * NE}")
    stamp(6)
    wait_lds(F_FREE + 36, 8)
    for k in range(ntl):
        if k == ntl - 1:
            A(f"s_mov_b32 exec_lo, {hex(lastm & 0xffffffff)}\ns_mov_b32 exec_hi, {hex(lastm >> 32)}")
        A(f"ds_write_b128 v13, v[{140 + 4 * k}:{143 + 4 * k}] offset:{1024 * k}")
    A("s_mov_b64 exec, -1")
    A(f"""s_cmp_eq_u32 {sCW}, 7
    s_cbranch_scc0 L_hget
    s_waitcnt lgkmcnt(0)
    s_barrier""")
    C("every workgroup has read the epoch word (its table entries carry the tag): advance it")
    A(f"""s_cmp_lg_u32 {sB}, 0
    s_cbranch_scc1 L_exit
    v_mov_b32 v5, {sTAG}
    s_mov_b64 exec, 1
    buffer_store_dword v5, {vL16}, {SRD}, 0 offen sc1
    s_mov_b64 exec, -1
    s_branch L_exit
    L_hget:
    v_lshl_add_u32 v13, v136, 2, {vM}
    v_lshl_add_u32 v14, v0, 5, {vM}
    s_lshl_b32 {sT0}, {sCW}, 3
    v_add_u32 v40, {sT0}, v14
    s_mul_i32 {sT1}, {sB}, 896
    s_lshl_b32 {sT0}, {sCW}, 2
    s_add_u32 {sT1}, {sT1}, {sT0}
    v_add_u32 v41, {sT1}, {vL16}
    v_lshlrev_b32 v137, 16, v138
    v_mov_b32 v42, {hex(fbits(1.0 / 448.0))}
    s_mov_b32 s52, {TBL_LDS}
    s_mov_b32 s53, 0x7060302""")
    for r in range(48, 56):
        A(f"v_mov_b32 v{r}, 0")
    if dry:
        C("first pass over the closing code on dummy data: only brings it into the instruction cache")
        A("s_mov_b32 s54, 1\ns_branch L_hok\nL_hreal:\ns_mov_b32 s54, 0\ns_mov_b32 exec_hi, -1")
    A("L_hpoll:")
    for m in range(4):
        A(f"buffer_load_dwordx4 v[{16 + 4 * m}:{19 + 4 * m}], v12, {SRD}, s{48 + m} offen {hld}")
    A("s_waitcnt vmcnt(0)")
    tags_ok(list(range(16, 32)), "L_hok")
    spin_tail("L_hpoll", hback)
    A("L_hok:")
    stamp(11)
    strip_tag(range(16, 32))
    A("""v_pk_add_f32 v[16:17], v[16:17], v[20:21]
    v_pk_add_f32 v[18:19], v[18:19], v[22:23]
    v_pk_add_f32 v[24:25], v[24:25], v[28:29]
    v_pk_add_f32 v[26:27], v[26:27], v[30:31]
    v_pk_add_f32 v[16:17], v[16:17], v[24:25]
    v_pk_add_f32 v[18:19], v[18:19], v[26:27]""")
    swap_reduce4(("v16", "v17", "v18", "v19"))
    rne1("v16", "v16")
    A("v_add_f32 v16, v16, v137")
    rne1("v16", "v16")
    A(f"ds_write_b32 v13, v16 offset:{HL}")
    if dry:
        A("s_cmp_lg_u32 s54, 0\ns_cbranch_scc1 L_hdry")
    A(f"""s_cmp_ge_u32 {sCW}, 4
    s_waitcnt lgkmcnt(0)
    s_barrier
    s_cbranch_scc1 L_exit
    L_hdry:""")
    if fst:
        stamp(8)
    A(f"""    s_mov_b32 exec_hi, 0x00ffffff
    ds_read_b128 v[48:51], v14 offset:{HL}
    ds_read_b128 v[52:55], v14 offset:{HL + 16}
    ds_read_b64 v[138:139], v40 offset:{HL}
    s_mov_b32 exec_hi, -1
    s_waitcnt lgkmcnt(1)""")

    def stats8():
        sums8()
        ln_scale("v22", "v23", sT0, sT1, "v42", True)

    def sums8():
        A("""v_pk_add_f32 v[20:21], v[48:49], v[50:51]
        v_pk_mul_f32 v[24:25], v[48:49], v[48:49]
        v_pk_add_f32 v[22:23], v[52:53], v[54:55]
        v_pk_fma_f32 v[24:25], v[50:51], v[50:51], v[24:25]
        v_pk_add_f32 v[20:21], v[20:21], v[22:23]
        v_pk_fma_f32 v[24:25], v[52:53], v[52:53], v[24:25]
        v_add_f32 v20, v20, v21
        v_pk_fma_f32 v[24:25], v[54:55], v[54:55], v[24:25]
        v_add_f32 v24, v24, v25""")
        wave_sums(["v20", "v24"], [sT0, sT1])

    if alg:
        C("first LayerNorm: mean / variance of h.  Its output is a = (h - m1) * r1, so the second LayerNorm's")
        C("statistics follow exactly: mean(a) = (mean - m1) * r1, var(a) = var * r1 * r1")
        sums8()
        if fst:
            stamp(9)
        A(f"""v_mul_f32 v26, {sT1}, v42
        v_mul_f32 v27, {sT0}, v42
        v_fma_f32 v26, -v27, v27, v26""")
        rne1("v22", "v27")
        A(f"""v_cvt_pk_bf16_f32 v23, 0, abs(v26)
        v_sub_f32 v24, v27, v22
        v_add_f32 v23, {hex(fbits(1e-5))}, v23""")
        rne1("v23", "v23")
        A("""v_sqrt_f32 v23, v23
        s_waitcnt lgkmcnt(0)
        v_pk_add_f32 v[36:37], v[138:139], v[22:23] op_sel_hi:[1,0] neg_lo:[0,1] neg_hi:[0,1]""")
        rne1("v23", "v23")
        A("v_rcp_f32 v23, v23")
        rne1("v36", "v36")
        A("v_mul_f32 v25, abs(v26), v23")
        rne1("v37", "v37")
        A("v_mul_f32 v25, v25, v23\nv_mul_f32 v24, v24, v23")
        rne1("v25", "v25")
        A(f"""v_pk_mul_f32 v[36:37], v[36:37], v[22:23] op_sel:[0,1] op_sel_hi:[1,1]
        v_add_f32 v25, {hex(fbits(1e-5))}, v25""")
        rne1("v24", "v24")
        rne1("v25", "v25")
        rne1("v36", "v36")
        A("v_sqrt_f32 v25, v25")
        rne1("v37", "v37")
        rne1("v25", "v25")
        A("v_pk_add_f32 v[36:37], v[36:37], v[24:25] op_sel_hi:[1,0] neg_lo:[0,1] neg_hi:[0,1]\nv_rcp_f32 v25, v25")
        rne1("v36", "v36")
        rne1("v37", "v37")
        A("s_mov_b32 exec_hi, 0x00ffffff\nv_pk_mul_f32 v[36:37], v[36:37], v[24:25] op_sel:[0,1] op_sel_hi:[1,1]")
        rne1("v36", "v36")
        rne1("v37", "v37")
    else:
        stats8()
        A("s_waitcnt lgkmcnt(0)\nv_mov_b32 v36, v138\nv_mov_b32 v37, v139\ns_mov_b32 exec_hi, 0x00ffffff")
        normalize([48, 50, 52, 54, 36], 22, 23)
        A("s_mov_b32 exec_hi, -1")
        stats8()
        A("s_mov_b32 exec_hi, 0x00ffffff")
        normalize([36], 22, 23)
    if fst:
        stamp(10)
    A(f"""v_bfe_u32 v16, v36, 16, 15
    v_bfe_u32 v17, v37, 16, 15
    v_subrev_u32 v16, {E0 << 7}, v16
    v_subrev_u32 v17, {E0 << 7}, v17
    v_lshrrev_b32 v18, 31, v36
    v_lshrrev_b32 v19, 31, v37
    v_cmp_le_u32 vcc, {128 * NE}, v16
    v_cmp_le_u32 s[56:57], s47, v17
    v_mad_u32_u24 v16, v18, s47, v16
    v_mad_u32_u24 v17, v19, s47, v17
    v_cndmask_b32 v16, v16, 0, vcc
    v_cndmask_b32 v17, v17, 0, s[56:57]
    v_lshl_add_u32 v16, v16, 2, s52
    v_lshl_add_u32 v17, v17, 2, s52
    ds_read_b32 v38, v16
    ds_read_b32 v39, v17""")
    if dry:
        A("s_cmp_lg_u32 s54, 0\ns_cbranch_scc1 L_hreal")
    A(f"""s_or_b64 s[58:59], vcc, s[56:57]
    s_waitcnt lgkmcnt(0)
    v_and_b32 v38, {sMASK}, v38
    v_and_b32 v39, {sMASK}, v39
    s_cbranch_scc1 L_direct
    L_fin:
    v_pk_add_f32 v[38:39], v[38:39], v[138:139]""")
    if x_pert:
        A(f"v_cmp_eq_u32 vcc, 0, v41\nv_mov_b32 v5, {hex(fbits(x_pert / 10000.0))}\ns_nop 0\nv_cndmask_b32 v5, 0, v5, vcc\nv_add_f32 v38, v38, v5")
    A(f"""    v_cvt_pk_bf16_f32 v38, v38, v39
    global_store_dword v41, v38, {pOUT}
    s_mov_b32 exec_hi, -1""")
    stamp(12)
    A("L_exit:")
    if diag:
        A(f"s_cmp_eq_u32 {sCW}, 0\ns_cbranch_scc0 L_st1")
        stamps_out(8, 13)
        A(f"L_st1:\ns_cmp_eq_u32 {sCW}, 3\ns_cbranch_scc0 L_end")
        stamps_out(24, 13)
    A("L_end:\ns_endpgm\nL_pfend:")
    C("inputs outside the tabulated binades: evaluate the MLP directly, one element at a time")
    A(f"""L_direct:
    s_mov_b32 exec_hi, -1
    s_mov_b64 s[54:55], vcc
    s_mov_b32 s58, 0
    v_mov_b32 v7, 0
    global_load_ushort v46, v7, {pB2}
    L_dpass:
    s_cmp_eq_u64 s[54:55], 0
    s_cbranch_scc1 L_dswap
    s_ff1_i32_b64 s52, s[54:55]
    s_bitset0_b64 s[54:55], s52
    s_nop 3
    v_readlane_b32 s50, v36, s52
    v_mov_b32 v80, 0
    v_lshlrev_b32 v5, 3, v0
    s_mov_b32 s53, 0
    L_dloop:""")
    load_w()
    A("v_add_u32 v5, 512, v5\ns_waitcnt vmcnt(0)")
    unpack_w()
    gelu(["s50"], ["v80"], False)
    A("s_add_u32 s53, s53, 1\ns_cmp_lt_u32 s53, 7\ns_cbranch_scc1 L_dloop")
    wave_sums(["v80"], [sT0])
    A(f"v_mov_b32 v80, {sT0}")
    rne1("v80", "v80")
    A("v_lshlrev_b32 v81, 16, v46\nv_add_f32 v80, v80, v81")
    rne1("v80", "v80")
    A(f"""v_cmp_eq_u32 vcc, s52, v0
    s_nop 1
    v_cndmask_b32 v38, v38, v80, vcc
    s_branch L_dpass
    L_dswap:
    v_swap_b32 v36, v37
    v_swap_b32 v38, v39
    s_mov_b64 s[54:55], s[56:57]
    s_add_u32 s58, s58, 1
    s_cmp_eq_u32 s58, 1
    s_cbranch_scc1 L_dpass
    s_mov_b32 exec_hi, 0x00ffffff
    s_branch L_fin""")
    for c in cold:
        A(c)
    A("L_codeend:")
    if epf >= 3:
        L.append(".if L_codeend - L_pc0 < 9216\n.error \"code prefetch would run past the code\"\n.endif")
    L.append(f""".section .rodata,"a"
.p2align 6
.amdhsa_kernel {KN}_kernel
  .amdhsa_next_free_vgpr 168
  .amdhsa_next_free_sgpr 96
  .amdhsa_accum_offset 168
  .amdhsa_float_denorm_mode_32 3
  .amdhsa_group_segment_fixed_size 0
  .amdhsa_kernarg_size 104
  .amdhsa_user_sgpr_count 2
  .amdhsa_user_sgpr_kernarg_segment_ptr 1
  .amdhsa_system_sgpr_workgroup_id_x 1
.end_amdhsa_kernel""")
    return "\n".join(L) + "\n"


if __name__ == "__main__":
    names = []
    for spec in sys.argv[1:]:
        kw = {}
        name = None
        for kv in spec.split(","):
            if not kv:
                continue
            k, v = kv.split("=")
            if k == "o":
                name = v
                continue
            kw[k] = int(v) if v.lstrip("-").isdigit() else v.replace("+", " ").replace("none", "")
        name = name or "k_" + spec.replace(",", "_").replace("=", "").replace("+", "") + ".s"
        open(name, "w").write(gen(**kw))
        names.append(name)
    print(" ".join(names))
```

```python
import sys, struct, math
KN = "sequential_preLN__sliding_block_cached__mixer_token_mlp__decode"

def fbits(x):
    return struct.unpack("<I", struct.pack("<f", x))[0]

WS_E, WS_IDS, WS_TBL, WS_TBLN, WS_STATS, WS_Q, WS_OP, WS_OUTP = 0, 0x1000, 0x20000, 0x28000, 0x30000, 0x40000, 0x80000, 0x100000
WS_FAR = 0x200000
WS_STAMP = 0x10000000
SLOT = 16384
MISC = 9 * SLOT
LN, QL, PL, OL, TP, FL, HL = 0x0, 0x1000, 0x1500, 0x1A00, 0x1F00, 0x2300, 0x2400
HP = 576
F_LANDED, F_LNCNT, F_QCNT, F_MAXCNT, F_PCNT, F_TCNT, F_TAG, F_LOC, F_MX, F_FREE = FL, FL + 4, FL + 8, FL + 12, FL + 16, FL + 20, FL + 24, FL + 28, FL + 32, FL + 64
TBL_LDS = 7 * SLOT
TAGINC = 0x9E3779B9


def gen(D=24, DV=0, DW=40, NE=24, diag=0, ld="nt", ldq="nt", ldo="nt", rot=2, ra=1, rc=0, pf=1, epf=4, pfm=7, bar=4, uni=1, nL=16, tight=1, obar=1, vbar=1, wbar=1, slp=1, pvslp=0, qback=8, tback=8, hback=0, oback=0, nst="", fst_fl="", wb=0, efl="", ost="sc1", fst=0, lst=0, hld="sc1", jmid=6, QT=4, qit=1, rnd=1, dry=0, alg=1,
        x_tl=0, x_far=0, x_nofree=0, x_stop=0, x_pert=0):
    L = []
    uid = [0]
    cold = []

    def A(s):
        for ln in s.split("\n"):
            ln = ln.strip()
            if ln:
                L.append(ln if ln.endswith(":") else "    " + ln)

    def C(s):
        L.append("    ; " + s)

    def lab(p):
        uid[0] += 1
        return f"L_{p}{uid[0]}"

    assert NE % 4 == 0
    E0 = 132 - NE
    LB = 1
    wpos = 8
    sW, sWV = "s2", "s3"
    pX, pK, pV, pWQ, pWO, pW1, pB1, pW2, pB2, pOUT, pWS = "s[4:5]", (6, 7), (8, 9), (10, 11), (12, 13), "s[16:17]", "s[18:19]", "s[20:21]", "s[22:23]", "s[24:25]", "s[28:29]"
    sG, sI, sB, sS, sIDX, sBG = "s30", "s31", "s32", "s33", "s34", "s35"
    SRD = "s[36:39]"
    sBUD, sTAG, sFIN, sMASK, sXCC, sFAR = "s60", "s61", "s62", "s63", "s14", "s15"
    sTAG1 = "s0"
    tagof = lambda r: sTAG1 if r & 2 else sTAG
    sTBLN = "s27"
    sWT = "s26"
    sT0, sT1, sT2, sT3, sT4, sT5 = "s40", "s41", "s42", "s43", "s44", "s45"
    vM, vG, vN, vONE, vL16, vFF = "v1", "v2", "v3", "v4", "v6", "v15"

    def stamp(k):
        if diag:
            A(f"s_memrealtime s[{64 + 2 * k}:{65 + 2 * k}]")

    def stamps_out(base, n):
        if not diag:
            return
        A(f"s_waitcnt lgkmcnt(0)\ns_lshl_b32 {sT0}, {sW}, 9\ns_add_u32 {sT0}, {sT0}, {WS_STAMP + base * 8}\nv_mov_b32 v5, {sT0}\ns_mov_b64 exec, 1")
        for k in range(n):
            A(f"v_mov_b32 v6, s{64 + 2 * k}\nv_mov_b32 v7, s{65 + 2 * k}\nglobal_store_dwordx2 v5, v[6:7], {pWS} offset:{8 * k}\ns_nop 1")
        A("s_mov_b64 exec, -1")

    def spin_tail(top, sleep=None):
        sleep = slp if sleep is None else sleep
        if sleep:
            A(f"s_sleep {sleep}")
        A(f"s_sub_u32 {sBUD}, {sBUD}, 1\ns_cbranch_scc0 {top}\ns_branch L_end")

    def wait_lds(off, val, vt="v5", addr=vM, sleep=None):
        top, done = lab("w"), lab("d")
        A(f"{top}:\nds_read_b32 {vt}, {addr} offset:{off}\ns_waitcnt lgkmcnt(0)\nv_readfirstlane_b32 {sT5}, {vt}\ns_cmp_ge_u32 {sT5}, {val}\ns_cbranch_scc1 {done}")
        spin_tail(top, sleep)
        A(f"{done}:")

    def signal(off, vval=vONE, addr=vM):
        A(f"s_mov_b64 exec, 1\nds_add_u32 {addr}, {vval} offset:{off}\ns_mov_b64 exec, -1")

    def tags_ok(regs, ok, guard=None, tags=None, sel="BYTE_0", retry=None, between=None):
        t = ["v5", "v7", "v8", "v9", "v10", "v11", "v56", "v57"]
        parts = []
        for k in range(0, len(regs), 2):
            A(f"v_bitop3_b32 {t[k // 2]}, v{regs[k]}, v{regs[k + 1]}, {tags[k // 2] if tags else tagof(regs[k])} bitop3:0x7e")
            parts.append(t[k // 2])
        if guard:
            A(guard(parts))
        while len(parts) > 1:
            if len(parts) >= 3:
                A(f"v_or3_b32 {parts[0]}, {parts[0]}, {parts[-1]}, {parts[-2]}")
                parts = parts[:-2]
            else:
                A(f"v_or_b32 {parts[0]}, {parts[0]}, {parts[1]}")
                parts = parts[:1]
        A(f"v_cmp_ne_u32_sdwa vcc, v5, 0 src0_sel:{sel} src1_sel:DWORD")
        if retry:
            between()
            A(f"s_cmp_lg_u64 vcc, 0\ns_cbranch_scc1 {retry}")
        else:
            A(f"s_cmp_eq_u64 vcc, 0\ns_cbranch_scc1 {ok}")

    def strip_tag(regs):
        for r in regs:
            A(f"v_bfi_b32 v{r}, {vFF}, 0, v{r}")

    def store_group(ins, soff):
        far, done = lab("far"), lab("pub")
        A(f"{ins.format(soff)} {nst}\ns_cmp_lg_u32 {sFAR}, 0\ns_cbranch_scc1 {far}\n{done}:")
        cold.append(f"{far}:\ns_add_u32 {sT5}, {soff}, {WS_FAR}\n{ins.format(sT5)} sc1\ns_branch {done}")

    def put_tag(regs, exact=False, tag=None):
        if rnd and not exact:
            for r in regs:
                A(f"v_add_u32 v{r}, 0x80, v{r}")
        for r in regs:
            A(f"v_bfi_b32 v{r}, {vFF}, {tag or tagof(r)}, v{r}")

    DPP = ["quad_perm:[1,0,3,2] row_mask:0xf", "quad_perm:[2,3,0,1] row_mask:0xf", "row_half_mirror row_mask:0xf",
           "row_mirror row_mask:0xf", "row_bcast:15 row_mask:0xa", "row_bcast:31 row_mask:0xc"]

    def wave_sums(regs, sdst):
        A("s_nop 1" if len(regs) == 1 else "s_nop 0")
        for m in DPP:
            for r in regs:
                A(f"v_add_f32_dpp {r}, {r}, {r} {m} bank_mask:0xf")
            if len(regs) == 1 or m != DPP[-1]:
                A("s_nop 1" if len(regs) == 1 else "s_nop 0")
        for r, s in zip(regs, sdst):
            A(f"v_readlane_b32 {s}, {r}, 63")
        A("s_nop 1")

    def rne1(dst, src):
        A(f"v_cvt_pk_bf16_f32 {dst}, 0, {src}")

    def unpack2(lo, hi, src):
        A(f"v_lshlrev_b32 {lo}, 16, {src}\nv_and_b32 {hi}, {sMASK}, {src}")

    def ln_scale(vm, vr, sS1, sS2, vinv, onepass):
        A(f"v_mul_f32 {vr}, {sS2}, {vinv}\nv_mul_f32 {vm}, {sS1}, {vinv}")
        if onepass:
            A(f"v_fma_f32 {vr}, -{vm}, {vm}, {vr}")
        A(f"v_cvt_pk_bf16_f32 {vr}, 0, abs({vr})")
        rne1(vm, vm)
        A(f"v_add_f32 {vr}, {hex(fbits(1e-5))}, {vr}")
        rne1(vr, vr)
        A(f"v_sqrt_f32 {vr}, {vr}\ns_nop 0")
        rne1(vr, vr)
        A(f"v_rcp_f32 {vr}, {vr}\ns_nop 0")

    def normalize(pairs, vm, vr, last=True):
        for a in pairs:
            A(f"v_pk_add_f32 v[{a}:{a + 1}], v[{a}:{a + 1}], v[{vm}:{vm + 1}] op_sel_hi:[1,0] neg_lo:[0,1] neg_hi:[0,1]")
        for a in pairs:
            rne1(f"v{a}", f"v{a}")
            rne1(f"v{a + 1}", f"v{a + 1}")
        for a in pairs:
            A(f"v_pk_mul_f32 v[{a}:{a + 1}], v[{a}:{a + 1}], v[{vm}:{vm + 1}] op_sel:[0,1] op_sel_hi:[1,1]")
        if last:
            for a in pairs:
                rne1(f"v{a}", f"v{a}")
                rne1(f"v{a + 1}", f"v{a + 1}")

    K1 = -2.0 * math.sqrt(2.0 / math.pi) * math.log2(math.e)
    K2 = K1 * 0.044715
    CEXP = math.log2(math.e) / 16.0

    def gelu(sTs, accs, first):
        el = [(i, e) for e in range(4) for i in range(len(sTs))]
        u = lambda i, e: f"v{60 + 4 * i + e}"
        p = lambda i, e: f"v{68 + 4 * i + e}"
        for i, e in el:
            A(f"v_fma_f32 {u(i, e)}, {sTs[i]}, v{48 + e}, v{52 + e}")
        for i, e in el:
            A(f"v_mul_f32 {p(i, e)}, {u(i, e)}, {u(i, e)}")
        for i, e in el:
            A(f"v_fmaak_f32 {p(i, e)}, {p(i, e)}, v47, {hex(fbits(K1))}")
        for i, e in el:
            A(f"v_mul_f32 {p(i, e)}, {p(i, e)}, {u(i, e)}")
        for i, e in el:
            A(f"v_exp_f32 {p(i, e)}, {p(i, e)}\nv_mul_f32 {u(i, e)}, {u(i, e)}, v{56 + e}")
        for i, e in el:
            A(f"v_add_f32 {p(i, e)}, 1.0, {p(i, e)}")
        for i, e in el:
            A(f"v_rcp_f32 {p(i, e)}, {p(i, e)}")
        A("s_nop 0")
        for i, e in el:
            A(f"v_mul_f32 {accs[i]}, {u(i, e)}, {p(i, e)}" if first and e == 0 else f"v_fmac_f32 {accs[i]}, {u(i, e)}, {p(i, e)}")

    def unpack_w():
        for k, src in enumerate((76, 77, 78, 79, 84, 85)):
            unpack2(f"v{48 + 2 * k}", f"v{49 + 2 * k}", f"v{src}")
        A(f"v_mov_b32 v47, {hex(fbits(K2))}")

    def load_w():
        A(f"global_load_dwordx2 v[76:77], v5, {pW1}\nglobal_load_dwordx2 v[78:79], v5, {pB1}\nglobal_load_dwordx2 v[84:85], v5, {pW2}")

    def swap_reduce4(*sets, pad=True):
        if pad:
            A("s_nop 0")
        for a, b, c, d in sets:
            A(f"v_permlane16_swap_b32 {a}, {b}\nv_permlane16_swap_b32 {c}, {d}")
        for a, b, c, d in sets:
            A(f"v_add_f32 {a}, {a}, {b}\nv_add_f32 {c}, {c}, {d}")
        A("s_nop 1")
        for a, b, c, d in sets:
            A(f"v_permlane32_swap_b32 {a}, {c}")
        for a, b, c, d in sets:
            A(f"v_add_f32 {a}, {a}, {c}")

    L.append(f"""; Fused decode block, one launch: LN -> q projection -> sliding-window GQA attention (last 2048 keys) -> output
;
;   all 32 members run on its own die it also writes a second copy through to memory, and readers then try both copies.""")
    L.append(f"; @launch grid=(256,1,1) block=(576,1,1) lds={10 * SLOT}")
    L.append('.amdgcn_target "amdgcn-amd-amdhsa--gfx950"\n.text')
    L.append(f".globl {KN}_kernel\n.p2align 8\n.type {KN}_kernel,@function\n{KN}_kernel:")
    A(f"""s_cmpk_ge_u32 {sW}, 256
    s_cbranch_scc1 L_end
    s_load_dwordx16 s[4:19], s[0:1], 0""")
    if epf == 4:
        C("some waves pull 1 KiB of this kernel's code towards the L2 (speed only)")
        A(f"""v_lshrrev_b32 v1, 6, v0
        s_lshr_b32 {sI}, {sW}, 3
        v_readfirstlane_b32 {sWV}, v1
        s_getpc_b64 s[40:41]
        L_pc0:
        v_lshlrev_b32 v8, 4, v0
        s_add_u32 {sT2}, {sWV}, {sI}
        s_and_b32 {sT2}, {sT2}, {pfm}
        s_cbranch_scc1 L_nopf0
        v_mov_b32 v9, s41
        v_add_co_u32 v8, vcc, s40, v8
        v_addc_co_u32 v9, vcc, 0, v9, vcc
        global_load_dwordx4 v[20:23], v[8:9], off
        L_nopf0:""")
    if epf == 3:
        C("every wave pulls 1 KiB of this kernel's code towards the L2 (speed only)")
        A("""s_getpc_b64 s[40:41]
        L_pc0:
        v_lshlrev_b32 v8, 4, v0
        v_mov_b32 v9, s41
        v_add_co_u32 v8, vcc, s40, v8
        v_addc_co_u32 v9, vcc, 0, v9, vcc
        global_load_dwordx4 v[20:23], v[8:9], off""")
    rest = "s_load_dwordx8 s[20:27], s[0:1], 64\ns_load_dwordx2 s[28:29], s[0:1], 96"
    if not tight:
        A(rest)
    stamp(0)
    if epf != 4:
        A(f"v_lshrrev_b32 v1, 6, v0\ns_lshr_b32 {sI}, {sW}, 3\nv_readfirstlane_b32 {sWV}, v1")
    A(f"""s_and_b32 {sG}, {sW}, 7
    s_and_b32 {sB}, {sI}, 3
    s_lshr_b32 {sS}, {sI}, 2""")
    A(f"""s_lshl3_add_u32 {sBG}, {sB}, {sG}
""")
    A(f"s_cmp_eq_u32 {sWV}, 0\ns_cbranch_scc1 L_loader")
    if epf in (1, 2):
        C("compute waves: pull this kernel's code towards the L2, 1 KiB pieces (speed only)")
        A(f"""s_getpc_b64 s[40:41]
        L_pc0:
        v_lshlrev_b32 v8, 4, v0
        v_add_u32 v10, {8 * 1024 - 1024}, v8
        v_min_u32 v10, L_codeend-L_pc0-16, v10
        v_add_u32 v8, {-1024 & 0xffffffff}, v8
        v_mov_b32 v9, s41
        v_add_co_u32 v8, vcc, s40, v8
        v_mov_b32 v11, s41
        v_addc_co_u32 v9, vcc, 0, v9, vcc
        global_load_dwordx4 v[20:23], v[8:9], off""")
        if epf > 1:
            A(f"""v_add_co_u32 v10, vcc, s40, v10
            s_nop 1
            v_addc_co_u32 v11, vcc, 0, v11, vcc
            global_load_dwordx4 v[20:23], v[10:11], off""")
    A("s_barrier\ns_branch L_compute\nL_loader:")
    C("---------------- loader wave")
    sN, sSLOT, sBASE, sGS, sRG, sRS, sCNT, sGI, sKV = "s48", "s49", "s50", "s51", "s52", "s53", "s54", "s55", "s56"
    sKJ = "s57"
    if True:
        C("rows 112b.. of wq, columns 512g+64s.. -> ring slot 8 (two lanes-wide issues run past the slice's descriptor)")
        A(f"""s_mov_b32 s46, {112 * 8192}
        s_mul_i32 {sT0}, {sB}, s46
        s_lshl3_add_u32 {sT1}, {sG}, {sS}
        s_lshl_b32 {sT1}, {sT1}, 7
        s_add_u32 {sT0}, {sT0}, {sT1}
        s_mov_b32 {sT3}, {65536 - 1024}
        v_lshrrev_b32 v12, 3, v0
        v_lshlrev_b32 v12, 13, v12
        v_and_b32 v13, 7, v0
        v_lshrrev_b32 v14, 4, v0
        v_lshlrev_b32 v14, 1, v14
        v_xor_b32 v13, v13, v14
        v_lshl_or_b32 v12, v13, 4, v12
        v_add_u32 v13, {sT3}, v12
        v_add_u32 v14, {sT3}, v13
        v_add_u32 v15, {sT3}, v14
        s_mov_b32 s47, 0x20000
        s_mov_b32 m0, s47
        {f"s_lshl_b32 {sT2}, s47, 1" if tight else ""}
        {f"s_mov_b32 {sT1}, 0" if tight else ""}
        s_waitcnt lgkmcnt(0)
        s_add_u32 s44, s{pWQ[0]}, {sT0}
        s_addc_u32 s45, s{pWQ[1]}, 0""")
        if lst:
            stamp(7)
        flags = f"""s_setprio 3
        s_mov_b32 {sBUD}, 0x80000
        v_mov_b32 {vM}, {MISC}
        s_mov_b32 s39, 0x20000
        v_lshrrev_b32 v6, 1, v0
        v_cmp_eq_u32 vcc, 4, v6
        v_lshl_add_u32 v5, v0, 2, {vM}
        v_mov_b32 v7, 0xff800000
        v_cndmask_b32 v6, 0, v7, vcc
        ds_write_b32 v5, v6 offset:{FL}
        s_waitcnt lgkmcnt(0)
        s_barrier"""
        if tight:
            A("L_wq:")
            for k in range(4):
                A(f"buffer_load_dwordx4 v{12 + k}, s[44:47], {sT1} offen offset:{1024 * k} {ldq} lds")
            A(f"""s_addk_i32 m0, 4096
            s_add_u32 {sT1}, {sT1}, {sT2}
            s_bitcmp0_b32 {sT1}, 20
            s_cbranch_scc1 L_wq""")
            A(flags)
            stamp(1)
            if diag:
                A("s_load_dwordx2 s[28:29], s[0:1], 96")
        for u in range(0 if tight else 16):
            if u % 4 == 0 and u:
                A(f"s_mov_b32 m0, {8 * SLOT + 1024 * u}\ns_mov_b32 {sT1}, {65536 * u}")
            A(f"buffer_load_dwordx4 v{12 + u % 4}, s[44:47], {sT1 if u > 3 else 0} offen offset:{1024 * (u % 4)} {ldq} lds")
            if u == bar - 1:
                A(flags)
                stamp(1)
    A(f"""    v_lshrrev_b32 v5, 5, v0
    v_and_b32 v6, 31, v0
    v_lshlrev_b32 v7, 1, v5
    v_xor_b32 v6, v6, v7
    v_lshlrev_b32 v6, 4, v6
    v_lshl_or_b32 v8, v5, 9, v6
    v_xor_b32 v9, 64, v8
    v_xor_b32 v10, 0x80, v8
    v_xor_b32 v11, 0xc0, v8
    s_mov_b32 {sN}, 0
    s_mov_b32 {sSLOT}, 0
    s_mov_b32 {sGS}, 4096
    s_mov_b32 {sCNT}, 16
    s_mov_b32 s38, {8 * SLOT}""")
    sR = sI
    if ra != 1 or rc:
        A(f"s_mul_i32 {sT0}, {sI}, {ra}\ns_mul_i32 {sT1}, {sG}, {rc}\ns_add_u32 {sT0}, {sT0}, {sT1}\ns_and_b32 {sT0}, {sT0}, 31")
        sR = sT0
    if rot == 1:
        A(f"s_and_b32 {sRG}, {sR}, 3\ns_lshr_b32 {sRS}, {sR}, 2")
    elif rot == 2:
        A(f"s_lshr_b32 {sRG}, {sR}, 3\ns_and_b32 {sRS}, {sR}, 7")
    elif rot == 3:
        A(f"s_mov_b32 {sRG}, 0\ns_and_b32 {sRS}, {sR}, 7")
    elif rot == 4:
        A(f"s_and_b32 {sRG}, {sR}, 3\ns_mov_b32 {sRS}, 0")
    elif rot == 5:
        A(f"s_lshr_b32 {sRG}, {sR}, 2\ns_and_b32 {sRS}, {sR}, 3")
    else:
        A(f"s_mov_b32 {sRG}, 0\ns_mov_b32 {sRS}, 0")
    A(f"""s_lshl_b32 {sKV}, {sBG}, 22
    s_lshl_b32 {sT1}, {sS}, 17
    s_add_u32 {sKV}, {sKV}, {sT1}
    s_add_u32 {sKV}, {sKV}, 0x300000
""")
    A(f"""s_add_u32 s36, s{pK[0]}, {sKV}
    s_addc_u32 s37, s{pK[1]}, 0""")

    def group_loop(flag, first, D, vb=8):
        top = lab("grp")
        A(f"s_mov_b32 {sT2}, 0")
        A(f"""{top}:
        s_add_u32 {sGI}, {sT2}, {sRG}
        s_and_b32 {sGI}, {sGI}, 3
        s_lshl_b32 {sT0}, {sGI}, 12
        s_mul_i32 {sT1}, {sGI}, {sGS}
        s_add_u32 m0, {sT0}, {sSLOT}
        s_add_u32 {sT1}, {sT1}, {sBASE}""")
        for k in range(4):
            A(f"s_waitcnt vmcnt({D - 1})\nbuffer_load_dwordx4 v{vb + k}, {SRD}, {sT1} offen offset:{1024 * k} {flag} lds")
        nb, nw = lab("nb"), lab("nw")
        A(f"s_add_u32 {sCNT}, {sCNT}, 4")
        A(f"""s_sub_u32 {sT0}, {sCNT}, {(D + 3) // 4 * 4}
        s_cbranch_scc1 {nw}
        s_and_b32 {sT1}, {sT0}, 15
        s_cbranch_scc1 {nw}
        s_lshr_b32 {sT0}, {sT0}, 4
        v_mov_b32 v5, {sT0}
        ds_write_b32 {vM}, v5 offset:{F_LANDED}
        {nw}:
        s_add_u32 {sT2}, {sT2}, 1
        s_cmp_lt_u32 {sT2}, 4
        s_cbranch_scc1 {top}""")

    def next_slot():
        A(f"""s_add_u32 {sN}, {sN}, 1
        s_add_u32 {sSLOT}, {sSLOT}, {SLOT}
        s_cmp_eq_u32 {sSLOT}, {9 * SLOT}
        s_cselect_b32 {sSLOT}, 0, {sSLOT}""")

    def wait_free():
        if x_nofree:
            return
        A(f"s_lshl_b32 {sT0}, {sN}, 2\nv_add_u32 v6, {sT0}, {vM}")
        wait_lds(F_FREE - 32, 8, "v5", "v6")

    def landed(k):
        A(f"v_mov_b32 v5, {k}\nds_write_b32 {vM}, v5 offset:{F_LANDED}")

    def drain(total, D):
        for k in range(total - (D + 15) // 16 + 1, total + 1):
            A(f"s_waitcnt vmcnt({16 * (total - k)})")
            if vbar and k == total:
                A("s_barrier")
            else:
                landed(k)

    def seg_base():
        A(f"s_add_u32 {sT0}, {sN}, {sRS}\ns_and_b32 {sT0}, {sT0}, 7\ns_lshl_b32 {sBASE}, {sT0}, 14")

    assert wpos == 8
    DV = DV or D
    if lst:
        stamp(8)
    if uni:
        assert DV == D or nL < 16
        C("segments 0..7: K, 8..15: V (each V segment into a slot its readers have released)")
        A("L_kv:")
        seg_base()
        group_loop(ld, True, D)
        next_slot()
        A(f"""s_cmp_lt_u32 {sN}, 8
        s_cbranch_scc1 L_kv
        s_cmp_eq_u32 {sN}, {nL}
        s_cbranch_scc1 L_kvend
        s_add_u32 s36, s{pV[0]}, {sKV}
        s_addc_u32 s37, s{pV[1]}, 0""")
        if diag:
            A(f"s_cmp_lg_u32 {sN}, 8\ns_cbranch_scc1 L_nost2")
            stamp(2)
            A("L_nost2:")
        if x_nofree:
            A("s_branch L_kv")
        A(f"""s_lshl_b32 {sT0}, {sN}, 2
        v_add_u32 v6, {sT0}, {vM}
        L_free:
        ds_read_b32 v5, v6 offset:{F_FREE - 32}
        s_waitcnt lgkmcnt(0)
        v_readfirstlane_b32 {sT5}, v5
        s_cmp_ge_u32 {sT5}, 8
        s_cbranch_scc1 L_kv""")
        spin_tail("L_free")
        A("L_kvend:")
        if nL < 16:
            A("L_v:")
            wait_free()
            seg_base()
            group_loop(ld, False, DV)
            next_slot()
            A(f"s_cmp_lt_u32 {sN}, 16\ns_cbranch_scc1 L_v")
    else:
        C("segments 0..7: K")
        A("L_k:")
        seg_base()
        group_loop(ld, True, D)
        next_slot()
        A(f"""s_cmp_lt_u32 {sN}, 8
        s_cbranch_scc1 L_k
        s_add_u32 s36, s{pV[0]}, {sKV}
        s_addc_u32 s37, s{pV[1]}, 0""")
        stamp(2)
        C("segments 8..15: V, each into a slot its readers have released")
        A("L_v:")
        wait_free()
        seg_base()
        group_loop(ld, False, DV)
        next_slot()
        A(f"s_cmp_lt_u32 {sN}, 16\ns_cbranch_scc1 L_v")
    stamp(3)
    A(f"s_cmp_lg_u32 {sS}, 7\ns_cbranch_scc1 L_wo")
    A("L_nowo:")
    drain(16 + LB, DV)
    A("s_branch L_ldone")
    C("two segments of wo: rows of head 2g + (b&1), 64 columns -> slots 7, 8")
    A(f"""L_wo:
    {"s_branch L_nowo" if x_stop == 9 else ""}
    v_lshrrev_b32 v5, 3, v0
    v_and_b32 v6, 7, v0
    v_lshrrev_b32 v7, 4, v0
    v_lshlrev_b32 v7, 1, v7
    v_xor_b32 v6, v6, v7
    v_lshlrev_b32 v6, 4, v6
    v_mul_u32_u24 v5, 896, v5
    v_add_u32 v12, v5, v6
    v_add_u32 v13, {7168 - 1024}, v12
    v_add_u32 v14, {7168 - 1024}, v13
    v_add_u32 v15, {7168 - 1024}, v14
    s_mov_b32 s36, s{pWO[0]}
    s_mov_b32 s37, s{pWO[1]}
    s_mov_b32 s38, {4096 * 896}
    s_lshl_b32 {sT0}, {sG}, 1
    s_and_b32 {sT1}, {sB}, 1
    s_add_u32 {sT0}, {sT0}, {sT1}
    s_mul_i32 {sBASE}, {sT0}, {256 * 896}
    s_lshl_b32 {sT1}, {sS}, 7
    s_add_u32 {sBASE}, {sBASE}, {sT1}""")
    T0 = 16 * (16 + LB)
    done = (T0 - (DV + 3) // 4 * 4) // 16
    for u in range(32):
        if u % 16 == 0 and not x_nofree:
            wait_lds(F_FREE + 4 * (8 + u // 16), 8)
        if u % 4 == 0:
            A(f"s_mov_b32 m0, {7 * SLOT + 1024 * u}")
            A(f"s_add_u32 {sBASE}, {sBASE}, {4 * 7168}" if u else "s_nop 0")
        if u + DV >= DW:
            A(f"s_waitcnt vmcnt({DW - 1})")
            k = (T0 + u - DW + 1) // 16
            if k > done:
                landed(k)
                done = k
        A(f"buffer_load_dwordx4 v{12 + u % 4}, {SRD}, {sBASE} offen offset:{1024 * (u % 4)} {ldo} lds")
    stamp(4)
    assert done < 16 + LB
    for k in range(done + 1, 18 + LB + 1):
        if k != 17 + LB:
            A(f"s_waitcnt vmcnt({16 * (18 + LB - k)})")
            if (vbar and k == 16 + LB) or (wbar and k == 18 + LB):
                A("s_barrier")
            else:
                landed(k)
            if obar and k == 16 + LB:
                A("s_barrier")
    A("L_ldone:")
    stamp(5)
    A("s_waitcnt lgkmcnt(0)")
    if diag:
        A(f"s_sub_u32 {sT0}, 0x80000, {sBUD}\ns_mul_i32 {sT0}, {sT0}, 100\ns_add_u32 s76, s64, {sT0}\ns_addc_u32 s77, s65, 0")
    stamps_out(0, 7)
    if lst:
        A('s_mov_b32 s64, s78\ns_mov_b32 s65, s79\ns_mov_b32 s66, s80\ns_mov_b32 s67, s81')
        stamps_out(40, 2)
    A("s_endpgm")

    C("---------------- compute waves")
    sCW = sWV
    A(f"""L_compute:
    {"s_endpgm" if x_stop == 9 else ""}
    {rest if tight else ""}
    s_sub_u32 {sCW}, {sWV}, 1
    s_mov_b32 {sBUD}, 0x80000
    v_mov_b32 {vM}, {MISC}
    s_mov_b32 s39, 0x20000
    v_and_b32 v0, 63, v0
    v_lshlrev_b32 {vL16}, 4, v0
    s_mul_i32 {sT0}, {sCW}, 896
    v_add_u32 v5, {sT0}, {vL16}
    v_mov_b32 v16, 0
    v_mov_b32 v17, 0
    v_mov_b32 v18, 0
    v_mov_b32 v19, 0
    v_lshrrev_b32 {vG}, 4, v0
    v_and_b32 {vN}, 15, v0
    v_mov_b32 {vONE}, 1
    v_mov_b32 {vFF}, 0xff
    v_mov_b32 v14, 0
    s_mov_b32 {sMASK}, 0xffff0000
    s_lshl_b32 {sIDX}, {sBG}, 3
    s_add_u32 {sIDX}, {sIDX}, {sS}
    s_lshl_b32 {sT0}, {sB}, 1
    s_xor_b32 {sFIN}, {sT0}, {sG}
    s_mov_b32 s38, 0x400000
    s_lshl_b32 {sT0}, {sG}, 2
    s_add_u32 {sT0}, {sT0}, {sB}
    s_lshl_b32 {sT0}, {sT0}, 3
    s_add_u32 {sT0}, {sT0}, {sS}
    s_waitcnt lgkmcnt(0)
    s_mov_b32 {sWT}, {sT0}
    s_mov_b32 {sTBLN}, {WS_TBLN}
    s_lshl_b32 s47, {sBG}, 13
    s_lshl_b32 {sT0}, {sCW}, 10
    s_or_b32 s47, s47, {sT0}
    s_or_b32 s47, s47, {WS_Q}
    s_cmp_ge_u32 {sCW}, 4
    s_mov_b32 s36, s28
    s_mov_b32 s37, s29
    s_load_dword {sTAG}, {pWS}, {WS_E}
    s_cbranch_scc1 L_nox
    s_mov_b32 exec_hi, 0x00ffffff
    global_load_dwordx4 v[16:19], v5, {pX}
    s_mov_b32 exec_hi, -1
    L_nox:
    s_cmp_lg_u32 {sCW}, 0
    s_cbranch_scc1 L_notq0
    v_mov_b32 v7, 0
    global_load_ushort v167, v7, {pB2}
    s_getreg_b32 {sXCC}, hwreg(HW_REG_XCC_ID, 0, 4)
    s_lshl_b32 s59, {sG}, 7
    s_add_u32 s59, s59, {WS_IDS}
    s_lshl_b32 {sT0}, {sI}, 2
    s_add_u32 {sT0}, {sT0}, s59
    s_lshl_b32 {sXCC}, {sXCC}, 24
    s_waitcnt lgkmcnt(0)
    s_add_u32 {sTAG}, {sTAG}, {hex(TAGINC)}
    s_lshr_b32 {sTAG1}, {sTAG}, 8
    s_and_b32 {sT1}, {sTAG}, 0xffffff
    s_or_b32 {sXCC}, {sXCC}, {sT1}
    v_mov_b32 v8, {sXCC}
    s_mov_b64 exec, 1
    buffer_store_dword v8, {vL16}, {SRD}, {sT0} offen
    s_mov_b64 exec, -1
    s_waitcnt vmcnt(2)
    s_branch L_ln
    L_notq0:
    s_lshl_b32 {sT0}, {sCW}, 9
    s_sub_u32 {sT0}, {sT0}, 512
    v_lshl_add_u32 v5, v0, 3, {sT0}""")
    load_w()
    if pf:
        C("wave 7: the last KiB of the code")
        A(f"""s_cmp_lg_u32 {sCW}, 7
        s_cbranch_scc1 L_nopf
        s_getpc_b64 s[40:41]
        L_pfpc:
        s_add_u32 s40, s40, L_pfend-L_pfpc-1024
        s_addc_u32 s41, s41, 0
        v_mov_b32 v9, s41
        v_add_co_u32 v8, vcc, s40, {vL16}
        s_nop 1
        v_addc_co_u32 v9, vcc, 0, v9, vcc
        global_load_dwordx4 v[20:23], v[8:9], off
        L_nopf:""")
    A(f"""s_waitcnt lgkmcnt(0)
    s_add_u32 {sTAG}, {sTAG}, {hex(TAGINC)}
    s_lshr_b32 {sTAG1}, {sTAG}, 8
    s_cmp_ge_u32 {sCW}, 4
    s_cbranch_scc1 L_table
    s_waitcnt vmcnt(3)""")
    C("LayerNorm of row cw of x (waves 0..3), bf16 rounding as the reference")
    A("L_ln:\ns_setprio 2")
    for k in range(4):
        unpack2(f"v{20 + 2 * k}", f"v{21 + 2 * k}", f"v{16 + k}")
    A("""v_pk_add_f32 v[28:29], v[20:21], v[22:23]
    v_pk_add_f32 v[30:31], v[24:25], v[26:27]
    v_pk_add_f32 v[28:29], v[28:29], v[30:31]
    v_add_f32 v28, v28, v29""")
    wave_sums(["v28"], [sT0])
    A(f"v_mov_b32 v32, {hex(fbits(1.0 / 448.0))}\nv_mul_f32 v30, {sT0}, v32\nv_mov_b32 v28, 0\ns_mov_b32 exec_hi, 0x00ffffff")
    for k in range(8):
        A(f"v_sub_f32 v29, v{20 + k}, v30\nv_fmac_f32 v28, v29, v29")
    A("s_mov_b32 exec_hi, -1")
    wave_sums(["v28"], [sT1])
    ln_scale("v30", "v31", sT0, sT1, "v32", False)
    normalize([20, 22, 24, 26], 30, 31, False)
    for k in range(4):
        A(f"v_cvt_pk_bf16_f32 v{16 + k}, v{20 + 2 * k}, v{21 + 2 * k}")
    A(f"""s_mul_i32 {sT0}, {sCW}, 960
    v_add3_u32 v5, {vL16}, {sT0}, {vM}
    s_mov_b32 exec_hi, 0x00ffffff
    ds_write_b128 v5, v[16:19] offset:{LN}
    s_mov_b32 exec_hi, -1""")
    signal(F_LNCNT)
    A(f"s_cmp_lg_u32 {sCW}, 0\ns_cbranch_scc1 L_table")
    C("partial q projection: 64 columns x 4 batches over 112 rows")
    stamp(1)
    A(f"""v_and_b32 v7, 3, {vN}
    v_lshlrev_b32 v12, 16, v7
    v_mul_u32_u24 v7, 960, v7
    v_lshl_add_u32 v7, {vG}, 3, v7
    s_mul_i32 {sT0}, {sB}, 224
    v_add3_u32 v7, v7, {sT0}, {vM}
    v_bfe_u32 v8, v0, 3, 2
    v_lshlrev_b32 v8, 5, v8
    v_lshrrev_b32 v9, 2, v0
    v_lshl_or_b32 v8, v9, 7, v8
    v_and_b32 v9, 3, v0
    v_lshl_or_b32 v8, v9, 3, v8
    v_add_u32 v8, {8 * SLOT}, v8
    v_xor_b32 v9, 32, v8
    v_xor_b32 v10, 64, v8
    v_xor_b32 v11, 0x60, v8
    v_lshrrev_b32 v13, 2, {vN}
    v_cmp_eq_u32 s[52:53], 1, v13
    v_cmp_eq_u32 s[54:55], 2, v13
    v_cmp_eq_u32 s[56:57], 3, v13
    v_lshl_or_b32 v12, v13, 6, v12
    v_lshl_or_b32 v12, {vG}, 4, v12
    v_mov_b32 v13, 8
    s_lshl_b32 {sT0}, {sG}, 3
    s_add_u32 {sT0}, {sT0}, {sS}
    s_lshl_b32 {sT0}, {sT0}, 10
    s_lshl_b32 {sT1}, {sB}, 8
    s_add_u32 {sT0}, {sT0}, {sT1}
    s_add_u32 {sT0}, {sT0}, {WS_Q}""")
    wait_lds(F_LNCNT, 4)
    for j in range(3):
        A(f"ds_read2_b64 v[{16 + 4 * j}:{19 + 4 * j}], v7 offset0:{8 * j} offset1:{8 * j + 4}")
    A("ds_read_b64 v[28:29], v7 offset:192")
    wait_lds(F_LANDED, 1)
    for j in range(4):
        for t in range(4):
            r = 48 + 16 * j + 4 * t
            A(f"ds_read_b64_tr_b16 v[{r}:{r + 1}], v{8 + t} offset:{4096 * j}")
            if j < 3:
                A(f"ds_read_b64_tr_b16 v[{r + 2}:{r + 3}], v{8 + t} offset:{4096 * j + 2048}")
    signal(F_FREE, "v13")
    A("s_waitcnt lgkmcnt(0)")
    for j in range(4):
        for t in range(4):
            r, d = 48 + 16 * j + 4 * t, 112 + 4 * t
            if j < 3:
                A(f"v_mfma_f32_16x16x32_bf16 v[{d}:{d + 3}], v[{r}:{r + 3}], v[{16 + 4 * j}:{19 + 4 * j}], {'0' if j == 0 else f'v[{d}:{d + 3}]'}")
            else:
                A(f"v_mfma_f32_16x16x16_bf16 v[{d}:{d + 3}], v[{r}:{r + 1}], v[28:29], v[{d}:{d + 3}]")
    A("s_nop 7")
    for t in range(1, 4):
        for r in range(4):
            A(f"v_cndmask_b32 v{112 + r}, v{112 + r}, v{112 + 4 * t + r}, s[{50 + 2 * t}:{51 + 2 * t}]")
    put_tag(range(112, 116))
    A(f"""buffer_store_dwordx4 v[112:115], v12, {SRD}, {sT0} offen {nst}
    s_add_u32 s58, {sT0}, {WS_FAR}
    v_mov_b32 v14, v12""")
    stamp(2)
    if x_stop == 1:
        A("s_endpgm")
    A("s_branch L_qk")
    C("waves 1..7: this workgroup's entries of the scalar map t -> MLP(t), t running over bf16 values")
    A("L_table:\ns_setprio 0\ns_waitcnt vmcnt(0)")
    if x_stop == 1:
        A("s_endpgm")
    unpack_w()
    A(f"""s_and_b32 {sT0}, {sWT}, 127
    s_mul_i32 {sT0}, {sT0}, {NE}
    s_add_u32 {sT0}, {sT0}, {E0 << 7}
    s_lshr_b32 {sT1}, {sWT}, 7
    s_lshl_b32 {sT1}, {sT1}, 15
    s_or_b32 {sT0}, {sT0}, {sT1}
    s_lshl_b32 s50, {sT0}, 16
    s_mov_b32 s54, 0
    s_lshl_b32 {sT0}, {sCW}, 7
    v_lshl_add_u32 v8, {vG}, 2, {vM}
    v_add_u32 v8, {sT0}, v8
    L_tloop:
    s_cmp_lg_u32 s54, {(x_tl or NE) - 4 * qit}
    s_cbranch_scc1 L_tnoq
    buffer_load_dwordx4 v[20:23], {vL16}, {SRD}, s47 offen sc1
    L_tnoq:
    s_add_u32 s51, s50, 0x10000
    s_add_u32 s52, s50, 0x20000
    s_add_u32 s53, s50, 0x30000""")
    gelu(["s50", "s51"], ["v80", "v81"], True)
    gelu(["s52", "s53"], ["v82", "v83"], True)
    swap_reduce4(("v80", "v81", "v82", "v83"))
    A("s_add_u32 s50, s50, 0x40000\ns_add_u32 s54, s54, 4")
    for m in DPP[:4]:
        A(f"v_add_f32_dpp v80, v80, v80 {m} bank_mask:0xf\ns_nop 1")
    A(f"""s_cmp_lt_u32 s54, {x_tl or NE}
    ds_write_b32 v8, v80 offset:{TP - 128}
    v_add_u32 v8, 16, v8
    s_cbranch_scc1 L_tloop""")
    signal(F_TCNT)
    stamp(1)
    C("key slot cw -> registers, slot is released at once")
    A(f"""L_qk:
    s_setprio 1
    v_and_b32 v8, 7, {vN}
    v_lshlrev_b32 v8, 1, v8
    v_xor_b32 v8, v8, {vG}
    v_lshlrev_b32 v8, 4, v8
    v_lshl_or_b32 v8, {vN}, 9, v8
    s_lshl_b32 {sT0}, {sCW}, 14
    v_add_u32 v8, {sT0}, v8
    v_xor_b32 v9, 64, v8
    v_xor_b32 v10, 0x80, v8
    v_xor_b32 v11, 0xc0, v8
    s_lshl_b32 {sT0}, {sCW}, 2
    v_add_u32 v12, {sT0}, {vM}
    v_mov_b32 v13, 8
    s_add_u32 {sT4}, {sCW}, {1 + LB}""")
    wait_lds(F_LANDED, sT4)
    for j in range(8):
        for t in range(2):
            r = 48 + 8 * j + 4 * t
            A(f"ds_read_b128 v[{r}:{r + 3}], v{8 + (j & 3)} offset:{256 * (j >> 2) + 8192 * t}")
    signal(F_FREE + 4, "v13", "v12")
    stamp(3)
    if x_stop == 2:
        A("s_endpgm")
    C("64 columns of q: sum of the four row-quarter partials")
    A(f"""s_lshr_b32 {sT1}, {sCW}, 2
    s_mul_i32 {sT1}, {sT1}, {HP}
    s_and_b32 {sT2}, {sCW}, 3
    s_lshl_b32 {sT2}, {sT2}, 7
    s_add_u32 {sT1}, {sT1}, {sT2}
    v_lshlrev_b32 v12, 1, {vG}
    v_lshl_or_b32 v12, {vN}, 3, v12
    v_add3_u32 v12, v12, {sT1}, {vM}
    s_cmp_lg_u32 {sCW}, 0
    s_cbranch_scc1 L_qchk""")
    wait_lds(F_LANDED, QT + LB)
    A(f"buffer_load_dwordx4 v[20:23], {vL16}, {SRD}, s47 offen sc1")
    C("wave 0: do the 32 workgroups of this kv head share this compute die (one L2)?  Not seen yet counts as no")
    A(f"""v_and_b32 v16, 31, v0
    v_lshlrev_b32 v16, 2, v16
    buffer_load_dword v17, v16, {SRD}, s59 offen sc1
    s_waitcnt vmcnt(0)
    v_cmp_ne_u32 vcc, {sXCC}, v17
    v_mov_b32 v17, 1
    s_cmp_lg_u64 vcc, 0
    s_cbranch_scc1 L_idfar
    {"s_branch L_idfar" if x_far else ""}
    L_idloc:
    ds_write_b32 {vM}, v17 offset:{F_LOC}
    L_qchk:
    s_waitcnt vmcnt(0)""")
    cold.append(f"""L_idfar:
    buffer_store_dwordx4 v[112:115], v14, {SRD}, s58 offen sc1
    v_mov_b32 v17, {WS_FAR + 1}
    s_branch L_idloc""")
    tags_ok([20, 21, 22, 23], "L_qok")
    wait_lds(F_LOC, 1, sleep=qback)
    A(f"""s_sub_u32 {sT5}, {sT5}, 1
    s_xor_b32 s47, s47, {sT5}
    s_sleep {qback}
    buffer_load_dwordx4 v[20:23], {vL16}, {SRD}, s47 offen sc1""")
    spin_tail("L_qchk", 0)
    A("L_qok:")
    strip_tag(range(20, 24))
    swap_reduce4(("v20", "v21", "v22", "v23"))
    A(f"""v_cvt_pk_bf16_f32 v20, v20, v20
    ds_write_b16 v12, v20 offset:{QL}""")
    signal(F_QCNT)
    A(f"""v_and_b32 v7, 1, {vN}
    v_lshl_add_u32 v8, v7, 2, {vM}
    v_mul_u32_u24 v7, {HP}, v7
    v_lshl_add_u32 v7, {vG}, 4, v7
    v_add_u32 v7, v7, {vM}
    s_lshl_b32 {sT0}, {sCW}, 6
    v_add_u32 v9, {sT0}, v7
    s_mov_b32 s46, {hex(fbits(CEXP))}""")
    wait_lds(F_QCNT, 8)
    stamp(4)
    A(f"ds_read_b32 v5, {vM} offset:{F_LOC}")
    for j in range(8):
        A(f"ds_read_b128 v[{16 + 4 * j}:{19 + 4 * j}], v7 offset:{QL + 64 * j}")
    for j in range(8):
        A(f"s_waitcnt lgkmcnt({7 - j})")
        if j == 0:
            A(f"v_readfirstlane_b32 {sFAR}, v5")
        for t in range(2):
            r = 48 + 8 * j + 4 * t
            d = 112 + 4 * t
            A(f"v_mfma_f32_16x16x32_bf16 v[{d}:{d + 3}], v[{r}:{r + 3}], v[{16 + 4 * j}:{19 + 4 * j}], {'0' if j == 0 else f'v[{d}:{d + 3}]'}")
    A(f"s_sub_u32 {sFAR}, {sFAR}, 1\ns_nop 6")
    for k in range(8):
        rne1(f"v{112 + k}", f"v{112 + k}")
    A(f"""v_max3_f32 v120, v112, v113, v114
    v_max3_f32 v121, v115, v116, v117
    v_max3_f32 v120, v120, v118, v119
    v_max_f32 v120, v120, v121
    s_mov_b32 exec_lo, 0x00030003
    s_mov_b32 exec_hi, 0x00030003
    ds_max_f32 v8, v120 offset:{F_MX}
    s_mov_b64 exec, -1""")
    signal(F_MAXCNT)
    wait_lds(F_MAXCNT, 8)
    A(f"ds_read_b32 v124, v8 offset:{F_MX}\ns_waitcnt lgkmcnt(0)")
    for k in range(8):
        A(f"v_sub_f32 v{112 + k}, v{112 + k}, v124")
    for k in range(8):
        A(f"v_mul_f32 v{112 + k}, s46, v{112 + k}")
    for k in range(8):
        A(f"v_exp_f32 v{112 + k}, v{112 + k}")
    A("s_nop 0")
    for k in range(4):
        A(f"v_cvt_pk_bf16_f32 v{120 + k}, v{112 + 2 * k}, v{113 + 2 * k}")
    A(f"""s_mov_b32 exec_lo, 0x00030003
    s_mov_b32 exec_hi, 0x00030003
    ds_write_b128 v9, v[120:123] offset:{PL}
    s_mov_b64 exec, -1""")
    signal(F_PCNT)
    C("addresses of the PV loop and of the stages behind it")
    A(f"""v_mov_b32 v43, v7
    v_bfe_u32 v8, v0, 2, 3
    s_lshl_b32 {sT0}, {sCW}, 1
    v_xor_b32 v8, {sT0}, v8
    v_lshlrev_b32 v8, 5, v8
    v_lshrrev_b32 v9, 2, v0
    v_lshl_or_b32 v8, v9, 9, v8
    v_and_b32 v10, 3, v0
    v_lshl_or_b32 v44, v10, 3, v8
    v_xor_b32 v45, 32, v44""")
    for r in range(112, 120):
        A(f"v_mov_b32 v{r}, 0")
    A(f"""v_and_b32 v28, 1, {vN}
    v_lshlrev_b32 v28, 10, v28
    v_bfe_u32 v29, {vN}, 1, 1
    v_lshl_or_b32 v28, v29, 6, v28
    v_lshl_or_b32 v160, {vG}, 4, v28
    v_cmp_ne_u32 s[56:57], 0, v29
    s_lshl_b32 s51, {sIDX}, 11
    s_lshl_b32 {sT0}, {sCW}, 7
    s_add_u32 s51, s51, {sT0}
    s_add_u32 s51, s51, {WS_OP}
    v_lshlrev_b32 v161, 6, {vG}
    v_lshlrev_b32 v28, 4, {vN}
    v_lshl_or_b32 v162, {vG}, 11, v28
    s_and_b32 {sT2}, {sBG}, 0x17
    s_lshr_b32 {sT1}, {sCW}, 2
    s_lshl_b32 {sT1}, {sT1}, 3
    s_add_u32 {sT2}, {sT2}, {sT1}
    s_and_b32 {sT3}, {sB}, 1
    s_lshl_b32 s52, {sT2}, 14
    s_lshl_b32 {sT1}, {sT3}, 10
    s_add_u32 s52, s52, {sT1}
    s_and_b32 {sT1}, {sCW}, 3
    s_lshl_b32 {sT1}, {sT1}, 8
    s_add_u32 s52, s52, {sT1}
    s_add_u32 s52, s52, {WS_OP}
    s_add_u32 s59, s52, {4 << 11}
    v_bfe_u32 v28, v0, 3, 2
    s_and_b32 {sT1}, {sCW}, 3
    v_xor_b32 v28, {sT1}, v28
    v_lshlrev_b32 v28, 5, v28
    v_lshl_or_b32 v28, v9, 7, v28
    v_lshl_or_b32 v163, v10, 3, v28
    v_add_u32 v164, {((8 + wpos) % 9) * SLOT}, v163
    v_lshlrev_b32 v28, 4, v10
    v_bfe_u32 v29, v0, 2, 1
    v_lshl_or_b32 v28, v29, 3, v28
    v_bfe_u32 v29, v0, 3, 1
    v_lshl_or_b32 v28, v29, 6, v28
    v_lshl_or_b32 v28, {vG}, 1, v28
    s_lshr_b32 {sT0}, {sCW}, 2
    s_mul_i32 {sT0}, {sT0}, {HP}
    s_lshl_b32 {sT1}, {sT1}, 7
    s_add_u32 {sT0}, {sT0}, {sT1}
    v_add3_u32 v165, v28, {sT0}, {vM}
    s_lshl_b32 {sT0}, {sCW}, 6
    v_add_u32 v166, {OL - PL}, v7
    v_mul_u32_u24 v14, {16 * 1792}, {vN}
    v_lshl_add_u32 v14, {vG}, 4, v14
    s_and_b32 s53, {sB}, 2
    s_lshl_b32 s53, s53, 3
    s_add_u32 s53, s53, {sG}
    s_lshl_b32 s53, s53, 1
    s_add_u32 s53, s53, {sT3}
    s_mul_i32 s53, s53, 1792
    s_lshl_b32 {sT1}, {sS}, 8
    s_add_u32 s53, s53, {sT1}
    s_add_u32 s53, s53, {sT0}
    s_add_u32 s53, s53, {WS_OUTP}
    s_lshl_b32 s54, {sT2}, 9
    s_lshl_b32 {sT1}, {sT3}, 3
    s_add_u32 s54, s54, {sT1}
    s_add_u32 s54, s54, {WS_STATS}
    v_lshl_add_u32 v136, {vN}, 2, {vG}
    v_add_u32 v136, {sT0}, v136
    s_mul_i32 {sT1}, {sB}, 896
    v_lshl_add_u32 v137, v136, 1, {sT1}
    s_and_b32 s55, {sWT}, 0xf8
    s_mul_i32 s55, s55, {NE * 4}
    s_xor_b32 {sT1}, {sS}, 7
    s_or_b32 {sFIN}, {sFIN}, {sT1}""")
    wait_lds(F_PCNT, 8)
    stamp(5)
    if x_stop == 3:
        A("s_endpgm")
    C("wave 0: row sums of the bf16 probabilities (ones x P), publish (max, sum) of both heads")
    A(f"s_cmp_lg_u32 {sCW}, 0\ns_cbranch_scc1 L_nostat")
    for j in range(8):
        A(f"ds_read_b128 v[{48 + 4 * j}:{51 + 4 * j}], v43 offset:{PL + 64 * j}")
    for r in range(16, 20):
        A(f"v_mov_b32 v{r}, 0x3f803f80")
    A(f"""s_lshl_b32 {sT0}, {sIDX}, 6
    s_add_u32 {sT0}, {sT0}, {WS_STATS}
    s_waitcnt lgkmcnt(0)""")
    for j in range(8):
        A(f"v_mfma_f32_16x16x32_bf16 v[20:23], v[16:19], v[{48 + 4 * j}:{51 + 4 * j}], {'0' if j == 0 else 'v[20:23]'}")
    A(f"""v_mov_b32_dpp v126, v124 quad_perm:[1,0,3,2] row_mask:0xf bank_mask:0xf
    s_nop 6
    v_mov_b32 v125, v20
    v_mov_b32_dpp v127, v20 quad_perm:[1,0,3,2] row_mask:0xf bank_mask:0xf""")
    put_tag([125, 127], tag=sTAG1)
    put_tag([124, 126], True, sTAG)
    A("s_mov_b64 exec, 1")
    store_group(f"buffer_store_dwordx4 v[124:127], {vL16}, {SRD}, {{}} offen", sT0)
    C("wave 0: finish and publish the table entries")
    A(f"s_mov_b64 exec, -1\nv_and_b32 v7, 31, v0\nv_lshl_add_u32 v7, v7, 2, {vM}")
    wait_lds(F_TCNT, 7)
    for k in range(7):
        A(f"ds_read_b32 v{16 + k}, v7 offset:{TP + 128 * k}")
    A(f"""s_mul_i32 {sT0}, {sWT}, {NE * 4}
    s_add_u32 {sT0}, {sT0}, {WS_TBLN}
    v_lshlrev_b32 v8, 2, v0
    v_lshlrev_b32 v46, 16, v167
    s_waitcnt lgkmcnt(0)
    v_add_f32 v16, v16, v17
    v_add_f32 v18, v18, v19
    v_add_f32 v20, v20, v21
    v_add_f32 v16, v16, v18
    v_add_f32 v20, v20, v22
    v_add_f32 v16, v16, v20""")
    rne1("v16", "v16")
    A("v_add_f32 v16, v16, v46")
    rne1("v16", "v16")
    A(f"v_mov_b32 v17, {sTAG}\nv_bfi_b32 v16, {sMASK}, v16, v17")
    A(f"s_mov_b64 exec, {(1 << NE) - 1}")
    store_group(f"buffer_store_dword v16, v8, {SRD}, {{}} offen", sT0)
    A("s_mov_b64 exec, -1\nL_nostat:")
    sJ, sVS, sJL = "s48", "s49", "s50"
    ntl = (NE * 128 + 1023) // 1024
    lastm = (1 << ((NE * 128 - 1024 * (ntl - 1)) // 16)) - 1

    def table_loads():
        for k in range(ntl):
            if k == ntl - 1:
                A(f"s_mov_b32 exec_lo, {hex(lastm & 0xffffffff)}\ns_mov_b32 exec_hi, {hex(lastm >> 32)}")
            A(f"buffer_load_dwordx4 v[{140 + 4 * k}:{143 + 4 * k}], {vL16}, {SRD}, s55 offen offset:{1024 * k} sc1")
        A("s_mov_b64 exec, -1")

    A(f"""s_mov_b32 {sJ}, 0
    s_mov_b32 {sVS}, {8 * SLOT}
    s_mov_b32 {sJL}, {jmid}
    v_add_u32 v12, {F_FREE + 36}, {vM}
    s_mov_b32 {sT4}, {9 + LB}
    s_cmp_eq_u32 {sS}, 7
    s_cselect_b32 s58, 0, 2
    L_pv:
    ds_read_b128 v[16:19], v43 offset:{PL}
    v_add_u32 v10, {sVS}, v44
    v_add_u32 v11, {sVS}, v45""")
    if vbar:
        C("the last slot is announced by a barrier with the loader")
        A(f"s_cmp_lg_u32 {sJ}, 7\ns_waitcnt lgkmcnt(0)\ns_cbranch_scc1 L_pvwait\ns_barrier\nL_pvgo:")
        pvwait = (f"""L_pvwait:
        ds_read_b32 v5, {vM} offset:{F_LANDED}
        s_waitcnt lgkmcnt(0)
        v_readfirstlane_b32 {sT5}, v5
        s_cmp_ge_u32 {sT5}, {sT4}
        s_cbranch_scc1 L_pvgo
        s_sleep 1
        s_sub_u32 {sBUD}, {sBUD}, 1
        s_cbranch_scc0 L_pvwait
        s_branch L_end""")
    else:
        wait_lds(F_LANDED, sT4, sleep=pvslp)
    A(f"""ds_read_b64_tr_b16 v[20:21], v10
    ds_read_b64_tr_b16 v[22:23], v10 offset:8192
    ds_read_b64_tr_b16 v[24:25], v11
    ds_read_b64_tr_b16 v[26:27], v11 offset:8192""")
    signal(0, vONE, "v12")
    A(f"""v_add_u32 v43, 64, v43
    s_add_u32 {sJ}, {sJ}, 1""")
    if wpos < 8:
        A(f"""s_cmp_eq_u32 {sJ}, {wpos}
        s_cselect_b32 {sT0}, s58, 0
        s_add_u32 {sT0}, {sT0}, 1
        s_add_u32 {sT4}, {sT4}, {sT0}
        s_lshl_b32 {sT1}, {sT0}, 2
        v_add_u32 v12, {sT1}, v12
        s_lshl_b32 {sT1}, {sT0}, 14
        s_add_u32 {sVS}, {sVS}, {sT1}
        s_sub_u32 {sT1}, {sVS}, {9 * SLOT}
        s_cselect_b32 {sVS}, {sVS}, {sT1}""")
    else:
        A(f"""v_add_u32 v12, 4, v12
        s_add_u32 {sT4}, {sT4}, 1
        s_add_u32 {sVS}, {sVS}, {SLOT}
        s_cmp_eq_u32 {sVS}, {9 * SLOT}
        s_cselect_b32 {sVS}, 0, {sVS}""")
    A(f"""    s_cmp_lt_u32 {sJ}, {sJL}
    s_waitcnt lgkmcnt(3)
    v_mfma_f32_16x16x32_bf16 v[112:115], v[20:23], v[16:19], v[112:115]
    s_waitcnt lgkmcnt(1)
    v_mfma_f32_16x16x32_bf16 v[116:119], v[24:27], v[16:19], v[116:119]
    s_cbranch_scc1 L_pv
    s_cmp_eq_u32 {sJ}, 8
    s_cbranch_scc1 L_pv_done""")
    C("before the last value slots: fetch what the next stage needs besides the partial rows")
    A(f"""s_mov_b32 {sJL}, 8
    s_cmp_eq_u32 {sS}, 7
    s_cbranch_scc1 L_mid7
    buffer_load_dwordx2 v[32:33], v161, {SRD}, s54 offen sc1
    buffer_load_dwordx2 v[34:35], v161, {SRD}, s54 offen offset:256 sc1""")
    A(f"""s_branch L_pv
    L_mid7:
    s_cmp_lg_u32 {sCW}, 0
    s_cbranch_scc1 L_mid8
    v_mov_b32 v32, {sTAG}
    v_mov_b32 v33, {sTAG}
    v_mov_b32 v34, {sTAG}
    v_mov_b32 v35, {sTAG}
    s_add_u32 s54, s55, {WS_TBLN}
    s_mov_b32 exec_hi, {hex((1 << (2 * NE - 32)) - 1)}
    buffer_load_dwordx4 v[32:35], {vL16}, {SRD}, s54 offen sc1
    s_mov_b32 exec_hi, -1
    L_mid8:
    s_cmp_lg_u32 {sFIN}, 0
    s_cbranch_scc1 L_pv
    s_cmp_eq_u32 {sCW}, 7
    s_cbranch_scc1 L_pv
    global_load_ushort v138, v137, {pX}
    s_branch L_pv""")
    if vbar:
        A(pvwait)
    A("L_pv_done:")
    stamp(7)
    if x_stop == 4:
        A("s_endpgm")
    C("publish the partial output rows")
    A(f"""s_nop 4
    v_cndmask_b32 v112, v112, v116, s[56:57]
    v_cndmask_b32 v113, v113, v117, s[56:57]
    v_cndmask_b32 v114, v114, v118, s[56:57]
    v_cndmask_b32 v115, v115, v119, s[56:57]""")
    put_tag(range(112, 116), True)
    A(f"""s_mov_b32 exec_lo, 0x000f000f
    s_mov_b32 exec_hi, 0x000f000f
""")
    store_group(f"buffer_store_dwordx4 v[112:115], v160, {SRD}, {{}} offen", "s51")
    opoll = f"""buffer_load_dwordx4 v[24:27], v162, {SRD}, s52 offen sc1
    buffer_load_dwordx4 v[28:31], v162, {SRD}, s59 offen sc1"""
    A(f"""s_mov_b64 exec, -1
    s_cmp_eq_u32 {sS}, 7
    s_cbranch_scc1 L_last""")
    if obar:
        C("all partial rows of this workgroup are on their way before the first look at the group's rows")
        A("s_barrier")
    A(opoll)
    A(f"s_cmp_lg_u32 {sFAR}, 0\ns_cbranch_scc1 L_spoll0\ns_waitcnt vmcnt(3)\nL_spoll:")
    cold.append("L_spoll0:\ns_waitcnt vmcnt(0)\ns_branch L_spoll")
    tags_ok([32, 34, 33, 35], "L_sok", tags=[sTAG, sTAG1])
    A(f"""s_xor_b32 s54, s54, {sFAR}
    buffer_load_dwordx2 v[32:33], v161, {SRD}, s54 offen sc1
    buffer_load_dwordx2 v[34:35], v161, {SRD}, s54 offen offset:256 sc1
    s_waitcnt vmcnt(0)""")
    spin_tail("L_spoll", 0)
    A(f"""L_oagain:
    s_xor_b32 s52, s52, {sFAR}
    s_xor_b32 s59, s59, {sFAR}""")
    A(opoll)
    spin_tail("L_opoll", 0)
    A("L_sok:")
    C("weights of the splits row and row+4")
    A(f"""v_and_b32 v32, {sMASK}, v32
    v_and_b32 v34, {sMASK}, v34""")
    strip_tag([33, 35])

    def rowred(op, d, t):
        for sw in ("v_permlane16_swap_b32", "v_permlane32_swap_b32"):
            A(f"v_mov_b32 {t}, {d}\ns_nop 1\n{sw} {d}, {t}\n{op} {d}, {d}, {t}")

    A("v_max_f32 v36, v32, v34")
    rowred("v_max_f32", "v36", "v37")
    A("""v_sub_f32 v32, v32, v36
    v_sub_f32 v34, v34, v36
    v_mul_f32 v32, s46, v32
    v_mul_f32 v34, s46, v34
    v_exp_f32 v32, v32
    v_exp_f32 v34, v34
    s_nop 0
    v_mul_f32 v36, v33, v32
    v_fmac_f32 v36, v35, v34""")
    rowred("v_add_f32", "v36", "v37")
    A("""v_rcp_f32 v36, v36
    s_nop 0
    v_mul_f32 v32, v32, v36
    v_mul_f32 v34, v34, v36""")
    if wbar:
        C("wo has landed (barrier with the loader)")
        A(f"s_cmp_ge_u32 {sCW}, 4\ns_barrier\ns_cbranch_scc1 L_opoll")
    else:
        A(f"s_cmp_ge_u32 {sCW}, 4\ns_cbranch_scc1 L_opoll")
        wait_lds(F_LANDED, 10 + wpos + LB, sleep=pvslp)
    for j in range(8):
        for u in range(2):
            part = j >> 2
            sl0, sl = (8 + wpos) % 9, (8 + wpos + part) % 9
            base, off = ("v164", (sl - sl0) * SLOT) if sl >= sl0 else ("v163", sl * SLOT)
            r = 48 + 4 * j + 2 * u
            A(f"ds_read_b64_tr_b16 v[{r}:{r + 1}], {base} offset:{off + 4096 * (j & 3) + 2048 * u}")
    stamp(8)
    A("L_opoll:\ns_waitcnt vmcnt(0)")

    def o_scale():
        strip_tag(range(28, 32))
        A("""v_pk_mul_f32 v[24:25], v[24:25], v[32:33] op_sel_hi:[1,0]
        v_pk_mul_f32 v[26:27], v[26:27], v[32:33] op_sel_hi:[1,0]
        v_pk_fma_f32 v[24:25], v[28:29], v[34:35], v[24:25] op_sel_hi:[1,0,1]
        v_pk_fma_f32 v[26:27], v[30:31], v[34:35], v[26:27] op_sel_hi:[1,0,1]""")

    tags_ok(list(range(24, 32)), None, retry="L_oagain", between=lambda: strip_tag(range(24, 28)))
    stamp(9)
    o_scale()
    swap_reduce4(("v24", "v25", "v26", "v27"))
    A(f"""v_cvt_pk_bf16_f32 v24, v24, v24
    ds_write_b16 v165, v24 offset:{OL}
    s_cmp_ge_u32 {sCW}, 4
    s_waitcnt lgkmcnt(0)
    s_barrier
    s_cbranch_scc1 {"L_wb" if wb else "L_exit"}""")
    if wb:
        cold.append(f"""L_wb:
        s_or_b32 {sT0}, {sB}, {sS}
        s_xor_b32 {sT1}, {sCW}, 7
        s_or_b32 {sT0}, {sT0}, {sT1}
        s_cbranch_scc1 L_exit
        {f"s_sleep {wb}" if wb > 1 else ""}
        buffer_wbl2 sc1
        s_branch L_exit""")
    for j in range(8):
        A(f"ds_read_b128 v[{16 + 4 * j}:{19 + 4 * j}], v166 offset:{PL + 64 * j}")
    for j in range(8):
        A(f"s_waitcnt lgkmcnt({7 - j})\nv_mfma_f32_16x16x32_bf16 v[112:115], v[{48 + 4 * j}:{51 + 4 * j}], v[{16 + 4 * j}:{19 + 4 * j}], {'0' if j == 0 else 'v[112:115]'}")
    A(f"""s_mov_b32 exec_lo, 0x00030003
    s_mov_b32 exec_hi, 0x00030003
    s_nop 5""")
    put_tag(range(112, 116), True)
    A(f"""buffer_store_dwordx4 v[112:115], v14, {SRD}, s53 offen {ost}
    s_mov_b64 exec, -1""")
    stamp(10)
    A("s_branch L_exit")
    C("workgroups of split 7, wave 0: pass the table entries of the 8 splits on to the finishing workgroups")
    A(f"""L_last:
    s_cmp_lg_u32 {sCW}, 0
    s_cbranch_scc1 L_nofwd
    L_fpoll:
    s_waitcnt vmcnt(0)""")
    tags_ok([32, 33, 34, 35], "L_fok", tags=[sTAG] * 2, sel="WORD_0")
    A(f"""s_xor_b32 s54, s54, {sFAR}
    s_mov_b32 exec_hi, {hex((1 << (2 * NE - 32)) - 1)}
    buffer_load_dwordx4 v[32:35], {vL16}, {SRD}, s54 offen sc1
    s_mov_b32 exec_hi, -1""")
    spin_tail("L_fpoll")
    A(f"""L_fok:
    s_add_u32 s54, s55, {WS_TBL}
    s_mov_b32 exec_hi, {hex((1 << (2 * NE - 32)) - 1)}
    buffer_store_dwordx4 v[32:35], {vL16}, {SRD}, s54 offen sc1
    s_mov_b32 exec_hi, -1
    L_nofwd:""")
    C("finishing workgroup of batch b: table to LDS, sum the 16 head partials, residual, LN, LN, table lookup")
    A(f"""s_cmp_lg_u32 {sFIN}, 0
    s_cbranch_scc1 L_exit
    s_xor_b32 {sT0}, {sCW}, {sG}
    s_or_b32 {sT0}, {sT0}, {sFAR}
    s_cselect_b32 s55, {WS_TBL}, {sTBLN}
    s_mul_i32 {sT0}, {sCW}, {NE * 128}
    s_add_u32 s55, s55, {sT0}
    s_add_u32 {sT0}, {sT0}, {TBL_LDS}
    v_add_u32 v13, {sT0}, {vL16}""")
    for r in range(140 + 4 * (ntl - 1), 140 + 4 * ntl):
        A(f"v_mov_b32 v{r}, {sTAG}")
    table_loads()
    A(f"""    s_mul_i32 s48, {sB}, {16 * 1792}
    s_lshl_b32 {sT0}, {sCW}, 8
    s_add_u32 s48, s48, {sT0}
    s_add_u32 s48, s48, {WS_OUTP}
    s_add_u32 s49, s48, {4 * 1792}
    s_add_u32 s50, s48, {8 * 1792}
    s_add_u32 s51, s48, {12 * 1792}
    v_mul_u32_u24 v12, 1792, {vG}
    v_lshl_add_u32 v12, {vN}, 4, v12
    L_tpoll:
    s_waitcnt vmcnt(0)""")
    tags_ok(list(range(140, 140 + 4 * ntl)), "L_tok", tags=[sTAG] * (2 * ntl), sel="WORD_0")
    A(f"s_sleep {tback}")
    table_loads()
    spin_tail("L_tpoll", 0)
    A(f"L_tok:\ns_mov_b32 s47, {128 * NE}")
    stamp(6)
    wait_lds(F_FREE + 36, 8)
    for k in range(ntl):
        if k == ntl - 1:
            A(f"s_mov_b32 exec_lo, {hex(lastm & 0xffffffff)}\ns_mov_b32 exec_hi, {hex(lastm >> 32)}")
        A(f"ds_write_b128 v13, v[{140 + 4 * k}:{143 + 4 * k}] offset:{1024 * k}")
    A("s_mov_b64 exec, -1")
    A(f"""s_cmp_eq_u32 {sCW}, 7
    s_cbranch_scc0 L_hget
    s_waitcnt lgkmcnt(0)
    s_barrier""")
    C("every workgroup has read the epoch word (its table entries carry the tag): advance it")
    A(f"""s_cmp_lg_u32 {sB}, 0
    s_cbranch_scc1 L_exit
    v_mov_b32 v5, {sTAG}
    s_mov_b64 exec, 1
    buffer_store_dword v5, {vL16}, {SRD}, 0 offen {efl}
    s_mov_b64 exec, -1
    s_branch L_exit
    L_hget:
    v_lshl_add_u32 v13, v136, 2, {vM}
    v_lshl_add_u32 v14, v0, 5, {vM}
    s_lshl_b32 {sT0}, {sCW}, 3
    v_add_u32 v40, {sT0}, v14
    s_mul_i32 {sT1}, {sB}, 896
    s_lshl_b32 {sT0}, {sCW}, 2
    s_add_u32 {sT1}, {sT1}, {sT0}
    v_add_u32 v41, {sT1}, {vL16}
    v_lshlrev_b32 v137, 16, v138
    v_mov_b32 v42, {hex(fbits(1.0 / 448.0))}
    s_mov_b32 s52, {TBL_LDS}
    s_mov_b32 s53, 0x7060302""")
    for r in range(48, 56):
        A(f"v_mov_b32 v{r}, 0")
    assert not dry
    A(f"""s_branch L_hpoll
    L_hagain:
    s_sub_u32 {sBUD}, {sBUD}, 1
    s_cbranch_scc1 L_end
    L_hpoll:""")
    for m in range(4):
        A(f"buffer_load_dwordx4 v[{16 + 4 * m}:{19 + 4 * m}], v12, {SRD}, s{48 + m} offen {hld}")
    A("s_waitcnt vmcnt(0)")

    def h_sum():
        strip_tag(range(20, 32))
        A("""v_pk_add_f32 v[16:17], v[16:17], v[20:21]
        v_pk_add_f32 v[18:19], v[18:19], v[22:23]
        v_pk_add_f32 v[24:25], v[24:25], v[28:29]
        v_pk_add_f32 v[26:27], v[26:27], v[30:31]
        v_pk_add_f32 v[16:17], v[16:17], v[24:25]
        v_pk_add_f32 v[18:19], v[18:19], v[26:27]""")

    tags_ok(list(range(16, 32)), None, retry="L_hagain", between=lambda: strip_tag(range(16, 20)))
    stamp(11)
    h_sum()
    swap_reduce4(("v16", "v17", "v18", "v19"))
    rne1("v16", "v16")
    A("v_add_f32 v16, v16, v137")
    rne1("v16", "v16")
    A(f"ds_write_b32 v13, v16 offset:{HL}")
    if dry:
        A("s_cmp_lg_u32 s54, 0\ns_cbranch_scc1 L_hdry")
    A(f"""s_cmp_ge_u32 {sCW}, 4
    s_waitcnt lgkmcnt(0)
    s_barrier
    s_cbranch_scc1 L_exit
    L_hdry:""")
    if fst:
        stamp(8)
    A(f"""    s_mov_b32 exec_hi, 0x00ffffff
    ds_read_b128 v[48:51], v14 offset:{HL}
    ds_read_b128 v[52:55], v14 offset:{HL + 16}
    ds_read_b64 v[138:139], v40 offset:{HL}
    s_mov_b32 exec_hi, -1
    s_waitcnt lgkmcnt(1)""")

    def stats8():
        sums8()
        ln_scale("v22", "v23", sT0, sT1, "v42", True)

    def sums8():
        A("""v_pk_add_f32 v[20:21], v[48:49], v[50:51]
        v_pk_mul_f32 v[24:25], v[48:49], v[48:49]
        v_pk_add_f32 v[22:23], v[52:53], v[54:55]
        v_pk_fma_f32 v[24:25], v[50:51], v[50:51], v[24:25]
        v_pk_add_f32 v[20:21], v[20:21], v[22:23]
        v_pk_fma_f32 v[24:25], v[52:53], v[52:53], v[24:25]
        v_add_f32 v20, v20, v21
        v_pk_fma_f32 v[24:25], v[54:55], v[54:55], v[24:25]
        v_add_f32 v24, v24, v25""")
        wave_sums(["v20", "v24"], [sT0, sT1])

    if alg:
        C("first LayerNorm: mean / variance of h.  Its output is a = (h - m1) * r1, so the second LayerNorm's")
        C("statistics follow exactly: mean(a) = (mean - m1) * r1, var(a) = var * r1 * r1")
        sums8()
        if fst:
            stamp(9)
        A(f"""v_mul_f32 v26, {sT1}, v42
        v_mul_f32 v27, {sT0}, v42
        v_fma_f32 v26, -v27, v27, v26""")
        rne1("v22", "v27")
        A(f"""v_cvt_pk_bf16_f32 v23, 0, abs(v26)
        v_sub_f32 v24, v27, v22
        v_add_f32 v23, {hex(fbits(1e-5))}, v23""")
        rne1("v23", "v23")
        A("""v_sqrt_f32 v23, v23
        s_waitcnt lgkmcnt(0)
        v_pk_add_f32 v[36:37], v[138:139], v[22:23] op_sel_hi:[1,0] neg_lo:[0,1] neg_hi:[0,1]""")
        rne1("v23", "v23")
        A("v_rcp_f32 v23, v23")
        rne1("v36", "v36")
        A("v_mul_f32 v25, abs(v26), v23")
        rne1("v37", "v37")
        A("v_mul_f32 v25, v25, v23\nv_mul_f32 v24, v24, v23")
        rne1("v25", "v25")
        A(f"""v_pk_mul_f32 v[36:37], v[36:37], v[22:23] op_sel:[0,1] op_sel_hi:[1,1]
        v_add_f32 v25, {hex(fbits(1e-5))}, v25""")
        rne1("v24", "v24")
        rne1("v25", "v25")
        rne1("v36", "v36")
        A("v_sqrt_f32 v25, v25")
        rne1("v37", "v37")
        rne1("v25", "v25")
        A("v_pk_add_f32 v[36:37], v[36:37], v[24:25] op_sel_hi:[1,0] neg_lo:[0,1] neg_hi:[0,1]\nv_rcp_f32 v25, v25")
        rne1("v36", "v36")
        rne1("v37", "v37")
        A("s_mov_b32 exec_hi, 0x00ffffff\nv_pk_mul_f32 v[36:37], v[36:37], v[24:25] op_sel:[0,1] op_sel_hi:[1,1]")
        rne1("v36", "v36")
        rne1("v37", "v37")
    else:
        stats8()
        A("s_waitcnt lgkmcnt(0)\nv_mov_b32 v36, v138\nv_mov_b32 v37, v139\ns_mov_b32 exec_hi, 0x00ffffff")
        normalize([48, 50, 52, 54, 36], 22, 23)
        A("s_mov_b32 exec_hi, -1")
        stats8()
        A("s_mov_b32 exec_hi, 0x00ffffff")
        normalize([36], 22, 23)
    if fst:
        stamp(10)
    A(f"""v_bfe_u32 v16, v36, 16, 15
    v_bfe_u32 v17, v37, 16, 15
    v_subrev_u32 v16, {E0 << 7}, v16
    v_subrev_u32 v17, {E0 << 7}, v17
    v_lshrrev_b32 v18, 31, v36
    v_lshrrev_b32 v19, 31, v37
    v_cmp_le_u32 vcc, {128 * NE}, v16
    v_cmp_le_u32 s[56:57], s47, v17
    v_mad_u32_u24 v16, v18, s47, v16
    v_mad_u32_u24 v17, v19, s47, v17
    v_cndmask_b32 v16, v16, 0, vcc
    v_cndmask_b32 v17, v17, 0, s[56:57]
    v_lshl_add_u32 v16, v16, 2, s52
    v_lshl_add_u32 v17, v17, 2, s52
    ds_read_b32 v38, v16
    ds_read_b32 v39, v17""")
    if dry:
        A("s_cmp_lg_u32 s54, 0\ns_cbranch_scc1 L_hreal")
    A(f"""s_or_b64 s[58:59], vcc, s[56:57]
    s_waitcnt lgkmcnt(0)
    v_and_b32 v38, {sMASK}, v38
    v_and_b32 v39, {sMASK}, v39
    s_cbranch_scc1 L_direct
    L_fin:
    v_pk_add_f32 v[38:39], v[38:39], v[138:139]""")
    if x_pert:
        A(f"v_cmp_eq_u32 vcc, 0, v41\nv_mov_b32 v5, {hex(fbits(x_pert / 10000.0))}\ns_nop 0\nv_cndmask_b32 v5, 0, v5, vcc\nv_add_f32 v38, v38, v5")
    A(f"""    v_cvt_pk_bf16_f32 v38, v38, v39
    global_store_dword v41, v38, {pOUT} {fst_fl}
    s_mov_b32 exec_hi, -1""")
    stamp(12)
    A("L_exit:")
    if diag:
        A(f"s_cmp_eq_u32 {sCW}, 0\ns_cbranch_scc0 L_st1")
        stamps_out(8, 13)
        A(f"L_st1:\ns_cmp_eq_u32 {sCW}, 3\ns_cbranch_scc0 L_end")
        stamps_out(24, 13)
    A("L_end:\ns_endpgm\nL_pfend:")
    C("inputs outside the tabulated binades: evaluate the MLP directly, one element at a time")
    A(f"""L_direct:
    s_mov_b32 exec_hi, -1
    s_mov_b64 s[54:55], vcc
    s_mov_b32 s58, 0
    v_mov_b32 v7, 0
    global_load_ushort v46, v7, {pB2}
    L_dpass:
    s_cmp_eq_u64 s[54:55], 0
    s_cbranch_scc1 L_dswap
    s_ff1_i32_b64 s52, s[54:55]
    s_bitset0_b64 s[54:55], s52
    s_nop 3
    v_readlane_b32 s50, v36, s52
    v_mov_b32 v80, 0
    v_lshlrev_b32 v5, 3, v0
    s_mov_b32 s53, 0
    L_dloop:""")
    load_w()
    A("v_add_u32 v5, 512, v5\ns_waitcnt vmcnt(0)")
    unpack_w()
    gelu(["s50"], ["v80"], False)
    A("s_add_u32 s53, s53, 1\ns_cmp_lt_u32 s53, 7\ns_cbranch_scc1 L_dloop")
    wave_sums(["v80"], [sT0])
    A(f"v_mov_b32 v80, {sT0}")
    rne1("v80", "v80")
    A("v_lshlrev_b32 v81, 16, v46\nv_add_f32 v80, v80, v81")
    rne1("v80", "v80")
    A(f"""v_cmp_eq_u32 vcc, s52, v0
    s_nop 1
    v_cndmask_b32 v38, v38, v80, vcc
    s_branch L_dpass
    L_dswap:
    v_swap_b32 v36, v37
    v_swap_b32 v38, v39
    s_mov_b64 s[54:55], s[56:57]
    s_add_u32 s58, s58, 1
    s_cmp_eq_u32 s58, 1
    s_cbranch_scc1 L_dpass
    s_mov_b32 exec_hi, 0x00ffffff
    s_branch L_fin""")
    for c in cold:
        A(c)
    A("L_codeend:")
    if epf >= 3:
        L.append(".if L_codeend - L_pc0 < 9216\n.error \"code prefetch would run past the code\"\n.endif")
    L.append(f""".section .rodata,"a"
.p2align 6
.amdhsa_kernel {KN}_kernel
  .amdhsa_next_free_vgpr 168
  .amdhsa_next_free_sgpr 96
  .amdhsa_accum_offset 168
  .amdhsa_float_denorm_mode_32 3
  .amdhsa_group_segment_fixed_size 0
  .amdhsa_kernarg_size 104
  .amdhsa_user_sgpr_count 2
  .amdhsa_user_sgpr_kernarg_segment_ptr 1
  .amdhsa_system_sgpr_workgroup_id_x 1
.end_amdhsa_kernel""")
    return "\n".join(L) + "\n"


if __name__ == "__main__":
    names = []
    for spec in sys.argv[1:]:
        kw = {}
        name = None
        for kv in spec.split(","):
            if not kv:
                continue
            k, v = kv.split("=")
            if k == "o":
                name = v
                continue
            kw[k] = int(v) if v.lstrip("-").isdigit() else v.replace("+", " ").replace("none", "")
        name = name or "k_" + spec.replace(",", "_").replace("=", "").replace("+", "") + ".s"
        open(name, "w").write(gen(**kw))
        names.append(name)
    print(" ".join(names))
```

```python
import sys, struct, math
KN = "sequential_preLN__sliding_block_cached__mixer_token_mlp__decode"

def fbits(x):
    return struct.unpack("<I", struct.pack("<f", x))[0]

WS_E, WS_IDS, WS_TBL, WS_TBLN, WS_STATS, WS_Q, WS_OP, WS_OUTP = 0, 0x1000, 0x20000, 0x28000, 0x30000, 0x40000, 0x80000, 0x100000
WS_FAR = 0x200000
WS_STAMP = 0x10000000
SLOT = 16384
MISC = 9 * SLOT
LN, QL, PL, OL, TP, FL, HL = 0x0, 0x1000, 0x1500, 0x1A00, 0x1F00, 0x2300, 0x2400
HP = 576
F_LANDED, F_LNCNT, F_QCNT, F_MAXCNT, F_PCNT, F_TCNT, F_TAG, F_LOC, F_MX, F_FREE = FL, FL + 4, FL + 8, FL + 12, FL + 16, FL + 20, FL + 24, FL + 28, FL + 32, FL + 64
TBL_LDS = 7 * SLOT
TAGINC = 0x9E3779B9


def gen(D=24, DV=0, DW=40, NE=24, diag=0, ld="nt", ldq="nt", ldo="nt", rot=2, ra=1, rc=0, pf=1, epf=4, pfm=7, bar=4, uni=1, nL=16, tight=1, touch=0, h2=0, KC=1, opre=0, oprefl="sc1", hdel=0, obar=1, vbar=1, wbar=1, slp=1, pvslp=0, qback=8, tback=8, hback=0, oback=0, nst="", fst_fl="", wb=0, efl="", ost="sc1", fst=0, lst=0, hld="sc1", jmid=6, QT=4, qit=1, rnd=1, dry=0, alg=1,
        x_tl=0, x_far=0, x_nofree=0, x_stop=0, x_pert=0):
    L = []
    uid = [0]
    cold = []

    def A(s):
        for ln in s.split("\n"):
            ln = ln.strip()
            if ln:
                L.append(ln if ln.endswith(":") else "    " + ln)

    def C(s):
        L.append("    ; " + s)

    def lab(p):
        uid[0] += 1
        return f"L_{p}{uid[0]}"

    assert NE % 4 == 0
    E0 = 132 - NE
    LB = 1
    wpos = 8
    sW, sWV = "s2", "s3"
    pX, pK, pV, pWQ, pWO, pW1, pB1, pW2, pB2, pOUT, pWS = "s[4:5]", (6, 7), (8, 9), (10, 11), (12, 13), "s[16:17]", "s[18:19]", "s[20:21]", "s[22:23]", "s[24:25]", "s[28:29]"
    sG, sI, sB, sS, sIDX, sBG = "s30", "s31", "s32", "s33", "s34", "s35"
    SRD = "s[36:39]"
    sBUD, sTAG, sFIN, sMASK, sXCC, sFAR = "s60", "s61", "s62", "s63", "s14", "s15"
    sTAG1 = "s0"
    tagof = lambda r: sTAG1 if r & 2 else sTAG
    sTBLN = "s27"
    sWT = "s26"
    sT0, sT1, sT2, sT3, sT4, sT5 = "s40", "s41", "s42", "s43", "s44", "s45"
    vM, vG, vN, vONE, vL16, vFF = "v1", "v2", "v3", "v4", "v6", "v15"

    def stamp(k):
        if diag:
            A(f"s_memrealtime s[{64 + 2 * k}:{65 + 2 * k}]")

    def stamps_out(base, n):
        if not diag:
            return
        A(f"s_waitcnt lgkmcnt(0)\ns_lshl_b32 {sT0}, {sW}, 9\ns_add_u32 {sT0}, {sT0}, {WS_STAMP + base * 8}\nv_mov_b32 v5, {sT0}\ns_mov_b64 exec, 1")
        for k in range(n):
            A(f"v_mov_b32 v6, s{64 + 2 * k}\nv_mov_b32 v7, s{65 + 2 * k}\nglobal_store_dwordx2 v5, v[6:7], {pWS} offset:{8 * k}\ns_nop 1")
        A("s_mov_b64 exec, -1")

    def spin_tail(top, sleep=None):
        sleep = slp if sleep is None else sleep
        if sleep:
            A(f"s_sleep {sleep}")
        A(f"s_sub_u32 {sBUD}, {sBUD}, 1\ns_cbranch_scc0 {top}\ns_branch L_end")

    def wait_lds(off, val, vt="v5", addr=vM, sleep=None):
        top, done = lab("w"), lab("d")
        A(f"{top}:\nds_read_b32 {vt}, {addr} offset:{off}\ns_waitcnt lgkmcnt(0)\nv_readfirstlane_b32 {sT5}, {vt}\ns_cmp_ge_u32 {sT5}, {val}\ns_cbranch_scc1 {done}")
        spin_tail(top, sleep)
        A(f"{done}:")

    def signal(off, vval=vONE, addr=vM):
        A(f"s_mov_b64 exec, 1\nds_add_u32 {addr}, {vval} offset:{off}\ns_mov_b64 exec, -1")

    def tags_ok(regs, ok, guard=None, tags=None, sel="BYTE_0", retry=None, between=None):
        t = ["v5", "v7", "v8", "v9", "v10", "v11", "v56", "v57"]
        parts = []
        for k in range(0, len(regs), 2):
            A(f"v_bitop3_b32 {t[k // 2]}, v{regs[k]}, v{regs[k + 1]}, {tags[k // 2] if tags else tagof(regs[k])} bitop3:0x7e")
            parts.append(t[k // 2])
        if guard:
            A(guard(parts))
        while len(parts) > 1:
            if len(parts) >= 3:
                A(f"v_or3_b32 {parts[0]}, {parts[0]}, {parts[-1]}, {parts[-2]}")
                parts = parts[:-2]
            else:
                A(f"v_or_b32 {parts[0]}, {parts[0]}, {parts[1]}")
                parts = parts[:1]
        A(f"v_cmp_ne_u32_sdwa vcc, v5, 0 src0_sel:{sel} src1_sel:DWORD")
        if retry:
            between()
            A(f"s_cmp_lg_u64 vcc, 0\ns_cbranch_scc1 {retry}")
        else:
            A(f"s_cmp_eq_u64 vcc, 0\ns_cbranch_scc1 {ok}")

    def strip_tag(regs):
        for r in regs:
            A(f"v_bfi_b32 v{r}, {vFF}, 0, v{r}")

    def store_group(ins, soff):
        far, done = lab("far"), lab("pub")
        A(f"{ins.format(soff)} {nst}\ns_cmp_lg_u32 {sFAR}, 0\ns_cbranch_scc1 {far}\n{done}:")
        cold.append(f"{far}:\ns_add_u32 {sT5}, {soff}, {WS_FAR}\n{ins.format(sT5)} sc1\ns_branch {done}")

    def put_tag(regs, exact=False, tag=None):
        if rnd and not exact:
            for r in regs:
                A(f"v_add_u32 v{r}, 0x80, v{r}")
        for r in regs:
            A(f"v_bfi_b32 v{r}, {vFF}, {tag or tagof(r)}, v{r}")

    DPP = ["quad_perm:[1,0,3,2] row_mask:0xf", "quad_perm:[2,3,0,1] row_mask:0xf", "row_half_mirror row_mask:0xf",
           "row_mirror row_mask:0xf", "row_bcast:15 row_mask:0xa", "row_bcast:31 row_mask:0xc"]

    def wave_sums(regs, sdst):
        A("s_nop 1" if len(regs) == 1 else "s_nop 0")
        for m in DPP:
            for r in regs:
                A(f"v_add_f32_dpp {r}, {r}, {r} {m} bank_mask:0xf")
            if len(regs) == 1 or m != DPP[-1]:
                A("s_nop 1" if len(regs) == 1 else "s_nop 0")
        for r, s in zip(regs, sdst):
            A(f"v_readlane_b32 {s}, {r}, 63")
        A("s_nop 1")

    def rne1(dst, src):
        A(f"v_cvt_pk_bf16_f32 {dst}, 0, {src}")

    def unpack2(lo, hi, src):
        A(f"v_lshlrev_b32 {lo}, 16, {src}\nv_and_b32 {hi}, {sMASK}, {src}")

    def ln_scale(vm, vr, sS1, sS2, vinv, onepass):
        A(f"v_mul_f32 {vr}, {sS2}, {vinv}\nv_mul_f32 {vm}, {sS1}, {vinv}")
        if onepass:
            A(f"v_fma_f32 {vr}, -{vm}, {vm}, {vr}")
        A(f"v_cvt_pk_bf16_f32 {vr}, 0, abs({vr})")
        rne1(vm, vm)
        A(f"v_add_f32 {vr}, {hex(fbits(1e-5))}, {vr}")
        rne1(vr, vr)
        A(f"v_sqrt_f32 {vr}, {vr}\ns_nop 0")
        rne1(vr, vr)
        A(f"v_rcp_f32 {vr}, {vr}\ns_nop 0")

    def normalize(pairs, vm, vr, last=True):
        for a in pairs:
            A(f"v_pk_add_f32 v[{a}:{a + 1}], v[{a}:{a + 1}], v[{vm}:{vm + 1}] op_sel_hi:[1,0] neg_lo:[0,1] neg_hi:[0,1]")
        for a in pairs:
            rne1(f"v{a}", f"v{a}")
            rne1(f"v{a + 1}", f"v{a + 1}")
        for a in pairs:
            A(f"v_pk_mul_f32 v[{a}:{a + 1}], v[{a}:{a + 1}], v[{vm}:{vm + 1}] op_sel:[0,1] op_sel_hi:[1,1]")
        if last:
            for a in pairs:
                rne1(f"v{a}", f"v{a}")
                rne1(f"v{a + 1}", f"v{a + 1}")

    K1 = -2.0 * math.sqrt(2.0 / math.pi) * math.log2(math.e)
    K2 = K1 * 0.044715
    CEXP = math.log2(math.e) / 16.0

    def gelu(sTs, accs, first):
        el = [(i, e) for e in range(4) for i in range(len(sTs))]
        u = lambda i, e: f"v{60 + 4 * i + e}"
        p = lambda i, e: f"v{68 + 4 * i + e}"
        for i, e in el:
            A(f"v_fma_f32 {u(i, e)}, {sTs[i]}, v{48 + e}, v{52 + e}")
        for i, e in el:
            A(f"v_mul_f32 {p(i, e)}, {u(i, e)}, {u(i, e)}")
        for i, e in el:
            A(f"v_fmaak_f32 {p(i, e)}, {p(i, e)}, v47, {hex(fbits(K1))}")
        for i, e in el:
            A(f"v_mul_f32 {p(i, e)}, {p(i, e)}, {u(i, e)}")
        for i, e in el:
            A(f"v_exp_f32 {p(i, e)}, {p(i, e)}\nv_mul_f32 {u(i, e)}, {u(i, e)}, v{56 + e}")
        for i, e in el:
            A(f"v_add_f32 {p(i, e)}, 1.0, {p(i, e)}")
        for i, e in el:
            A(f"v_rcp_f32 {p(i, e)}, {p(i, e)}")
        A("s_nop 0")
        for i, e in el:
            A(f"v_mul_f32 {accs[i]}, {u(i, e)}, {p(i, e)}" if first and e == 0 else f"v_fmac_f32 {accs[i]}, {u(i, e)}, {p(i, e)}")

    def unpack_w():
        for k, src in enumerate((76, 77, 78, 79, 84, 85)):
            unpack2(f"v{48 + 2 * k}", f"v{49 + 2 * k}", f"v{src}")
        A(f"v_mov_b32 v47, {hex(fbits(K2))}")

    def load_w():
        A(f"global_load_dwordx2 v[76:77], v5, {pW1}\nglobal_load_dwordx2 v[78:79], v5, {pB1}\nglobal_load_dwordx2 v[84:85], v5, {pW2}")

    def swap_reduce4(*sets, pad=True):
        if pad:
            A("s_nop 0")
        for a, b, c, d in sets:
            A(f"v_permlane16_swap_b32 {a}, {b}\nv_permlane16_swap_b32 {c}, {d}")
        for a, b, c, d in sets:
            A(f"v_add_f32 {a}, {a}, {b}\nv_add_f32 {c}, {c}, {d}")
        A("s_nop 1")
        for a, b, c, d in sets:
            A(f"v_permlane32_swap_b32 {a}, {c}")
        for a, b, c, d in sets:
            A(f"v_add_f32 {a}, {a}, {c}")

    L.append(f"""; Fused decode block, one launch: LN -> q projection -> sliding-window GQA attention (last 2048 keys) -> output
;
;   all 32 members run on its own die it also writes a second copy through to memory, and readers then try both copies.""")
    L.append(f"; @launch grid=(256,1,1) block=(576,1,1) lds={10 * SLOT}")
    L.append('.amdgcn_target "amdgcn-amd-amdhsa--gfx950"\n.text')
    L.append(f".globl {KN}_kernel\n.p2align 8\n.type {KN}_kernel,@function\n{KN}_kernel:")
    A(f"""s_cmpk_ge_u32 {sW}, 256
    s_cbranch_scc1 L_end
    s_load_dwordx16 s[4:19], s[0:1], 0""")
    if epf == 4:
        C("some waves pull 1 KiB of this kernel's code towards the L2 (speed only)")
        A(f"""v_lshrrev_b32 v1, 6, v0
        s_lshr_b32 {sI}, {sW}, 3
        v_readfirstlane_b32 {sWV}, v1
        s_getpc_b64 s[40:41]
        L_pc0:
        v_lshlrev_b32 v8, 4, v0
        s_add_u32 {sT2}, {sWV}, {sI}
        s_and_b32 {sT2}, {sT2}, {pfm}
        s_cbranch_scc1 L_nopf0
        v_mov_b32 v9, s41
        v_add_co_u32 v8, vcc, s40, v8
        v_addc_co_u32 v9, vcc, 0, v9, vcc
        global_load_dwordx4 v[20:23], v[8:9], off
        L_nopf0:""")
    if epf == 3:
        C("every wave pulls 1 KiB of this kernel's code towards the L2 (speed only)")
        A("""s_getpc_b64 s[40:41]
        L_pc0:
        v_lshlrev_b32 v8, 4, v0
        v_mov_b32 v9, s41
        v_add_co_u32 v8, vcc, s40, v8
        v_addc_co_u32 v9, vcc, 0, v9, vcc
        global_load_dwordx4 v[20:23], v[8:9], off""")
    rest = "s_load_dwordx8 s[20:27], s[0:1], 64\ns_load_dwordx2 s[28:29], s[0:1], 96"
    if not tight:
        A(rest)
    stamp(0)
    if epf != 4:
        A(f"v_lshrrev_b32 v1, 6, v0\ns_lshr_b32 {sI}, {sW}, 3\nv_readfirstlane_b32 {sWV}, v1")
    A(f"""s_and_b32 {sG}, {sW}, 7
    s_and_b32 {sB}, {sI}, 3
    s_lshr_b32 {sS}, {sI}, 2""")
    A(f"""s_lshl3_add_u32 {sBG}, {sB}, {sG}
""")
    A(f"s_cmp_eq_u32 {sWV}, 0\ns_cbranch_scc1 L_loader")
    if epf in (1, 2):
        C("compute waves: pull this kernel's code towards the L2, 1 KiB pieces (speed only)")
        A(f"""s_getpc_b64 s[40:41]
        L_pc0:
        v_lshlrev_b32 v8, 4, v0
        v_add_u32 v10, {8 * 1024 - 1024}, v8
        v_min_u32 v10, L_codeend-L_pc0-16, v10
        v_add_u32 v8, {-1024 & 0xffffffff}, v8
        v_mov_b32 v9, s41
        v_add_co_u32 v8, vcc, s40, v8
        v_mov_b32 v11, s41
        v_addc_co_u32 v9, vcc, 0, v9, vcc
        global_load_dwordx4 v[20:23], v[8:9], off""")
        if epf > 1:
            A(f"""v_add_co_u32 v10, vcc, s40, v10
            s_nop 1
            v_addc_co_u32 v11, vcc, 0, v11, vcc
            global_load_dwordx4 v[20:23], v[10:11], off""")
    A("s_barrier\ns_branch L_compute\nL_loader:")
    C("---------------- loader wave")
    sN, sSLOT, sBASE, sGS, sRG, sRS, sCNT, sGI, sKV = "s48", "s49", "s50", "s51", "s52", "s53", "s54", "s55", "s56"
    sKJ = "s57"
    if True:
        C("rows 112b.. of wq, columns 512g+64s.. -> ring slot 8 (two lanes-wide issues run past the slice's descriptor)")
        A(f"""s_mov_b32 s46, {112 * 8192}
        s_mul_i32 {sT0}, {sB}, s46
        s_lshl3_add_u32 {sT1}, {sG}, {sS}
        s_lshl_b32 {sT1}, {sT1}, 7
        s_add_u32 {sT0}, {sT0}, {sT1}
        s_mov_b32 {sT3}, {65536 - 1024}
        v_lshrrev_b32 v12, 3, v0
        v_lshlrev_b32 v12, 13, v12
        v_and_b32 v13, 7, v0
        v_lshrrev_b32 v14, 4, v0
        v_lshlrev_b32 v14, 1, v14
        v_xor_b32 v13, v13, v14
        v_lshl_or_b32 v12, v13, 4, v12
        v_add_u32 v13, {sT3}, v12
        v_add_u32 v14, {sT3}, v13
        v_add_u32 v15, {sT3}, v14
        s_mov_b32 s47, 0x20000
        s_mov_b32 m0, s47
        {f"s_lshl_b32 {sT2}, s47, 1" if tight else ""}
        {f"s_mov_b32 {sT1}, 0" if tight else ""}
        s_waitcnt lgkmcnt(0)
        s_add_u32 s44, s{pWQ[0]}, {sT0}
        s_addc_u32 s45, s{pWQ[1]}, 0""")
        if lst:
            stamp(7)
        flags = f"""s_setprio 3
        s_mov_b32 {sBUD}, 0x80000
        v_mov_b32 {vM}, {MISC}
        s_mov_b32 s39, 0x20000
        v_lshrrev_b32 v6, 1, v0
        v_cmp_eq_u32 vcc, 4, v6
        v_lshl_add_u32 v5, v0, 2, {vM}
        v_mov_b32 v7, 0xff800000
        v_cndmask_b32 v6, 0, v7, vcc
        ds_write_b32 v5, v6 offset:{FL}
        s_waitcnt lgkmcnt(0)
        s_barrier"""
        if tight:
            A("L_wq:")
            for k in range(4):
                A(f"buffer_load_dwordx4 v{12 + k}, s[44:47], {sT1} offen offset:{1024 * k} {ldq} lds")
            A(f"""s_addk_i32 m0, 4096
            s_add_u32 {sT1}, {sT1}, {sT2}
            s_bitcmp0_b32 {sT1}, 20
            s_cbranch_scc1 L_wq""")
            A(flags)
            stamp(1)
            if diag:
                A("s_load_dwordx2 s[28:29], s[0:1], 96")
        for u in range(0 if tight else 16):
            if u % 4 == 0 and u:
                A(f"s_mov_b32 m0, {8 * SLOT + 1024 * u}\ns_mov_b32 {sT1}, {65536 * u}")
            A(f"buffer_load_dwordx4 v{12 + u % 4}, s[44:47], {sT1 if u > 3 else 0} offen offset:{1024 * (u % 4)} {ldq} lds")
            if u == bar - 1:
                A(flags)
                stamp(1)
    A(f"""    v_lshrrev_b32 v5, 5, v0
    v_and_b32 v6, 31, v0
    v_lshlrev_b32 v7, 1, v5
    v_xor_b32 v6, v6, v7
    v_lshlrev_b32 v6, 4, v6
    v_lshl_or_b32 v8, v5, 9, v6
    v_xor_b32 v9, 64, v8
    v_xor_b32 v10, 0x80, v8
    v_xor_b32 v11, 0xc0, v8
    s_mov_b32 {sN}, 0
    s_mov_b32 {sSLOT}, 0
    s_mov_b32 {sGS}, 4096
    s_mov_b32 {sCNT}, 16
    s_mov_b32 s38, {8 * SLOT}""")
    sR = sI
    if ra != 1 or rc:
        A(f"s_mul_i32 {sT0}, {sI}, {ra}\ns_mul_i32 {sT1}, {sG}, {rc}\ns_add_u32 {sT0}, {sT0}, {sT1}\ns_and_b32 {sT0}, {sT0}, 31")
        sR = sT0
    if rot == 1:
        A(f"s_and_b32 {sRG}, {sR}, 3\ns_lshr_b32 {sRS}, {sR}, 2")
    elif rot == 2:
        A(f"s_lshr_b32 {sRG}, {sR}, 3\ns_and_b32 {sRS}, {sR}, 7")
    elif rot == 3:
        A(f"s_mov_b32 {sRG}, 0\ns_and_b32 {sRS}, {sR}, 7")
    elif rot == 4:
        A(f"s_and_b32 {sRG}, {sR}, 3\ns_mov_b32 {sRS}, 0")
    elif rot == 5:
        A(f"s_lshr_b32 {sRG}, {sR}, 2\ns_and_b32 {sRS}, {sR}, 3")
    else:
        A(f"s_mov_b32 {sRG}, 0\ns_mov_b32 {sRS}, 0")
    A(f"""s_lshl_b32 {sKV}, {sBG}, 22
    s_lshl_b32 {sT1}, {sS}, 17
    s_add_u32 {sKV}, {sKV}, {sT1}
    s_add_u32 {sKV}, {sKV}, 0x300000
""")
    A(f"""s_add_u32 s36, s{pK[0]}, {sKV}
    s_addc_u32 s37, s{pK[1]}, 0""")

    def group_loop(flag, first, D, vb=8):
        top = lab("grp")
        A(f"s_mov_b32 {sT2}, 0")
        A(f"""{top}:
        s_add_u32 {sGI}, {sT2}, {sRG}
        s_and_b32 {sGI}, {sGI}, 3
        s_lshl_b32 {sT0}, {sGI}, 12
        s_mul_i32 {sT1}, {sGI}, {sGS}
        s_add_u32 m0, {sT0}, {sSLOT}
        s_add_u32 {sT1}, {sT1}, {sBASE}""")
        for k in range(4):
            A(f"s_waitcnt vmcnt({D - 1})\nbuffer_load_dwordx4 v{vb + k}, {SRD}, {sT1} offen offset:{1024 * k} {flag} lds")
        nb, nw = lab("nb"), lab("nw")
        A(f"s_add_u32 {sCNT}, {sCNT}, 4")
        A(f"""s_sub_u32 {sT0}, {sCNT}, {(D + 3) // 4 * 4}
        s_cbranch_scc1 {nw}
        s_and_b32 {sT1}, {sT0}, 15
        s_cbranch_scc1 {nw}
        s_lshr_b32 {sT0}, {sT0}, 4
        v_mov_b32 v5, {sT0}
        ds_write_b32 {vM}, v5 offset:{F_LANDED}
        {nw}:
        s_add_u32 {sT2}, {sT2}, 1
        s_cmp_lt_u32 {sT2}, 4
        s_cbranch_scc1 {top}""")

    def next_slot():
        A(f"""s_add_u32 {sN}, {sN}, 1
        s_add_u32 {sSLOT}, {sSLOT}, {SLOT}
        s_cmp_eq_u32 {sSLOT}, {9 * SLOT}
        s_cselect_b32 {sSLOT}, 0, {sSLOT}""")

    def wait_free():
        if x_nofree:
            return
        A(f"s_lshl_b32 {sT0}, {sN}, 2\nv_add_u32 v6, {sT0}, {vM}")
        wait_lds(F_FREE - 32, 8, "v5", "v6")

    def landed(k):
        A(f"v_mov_b32 v5, {k}\nds_write_b32 {vM}, v5 offset:{F_LANDED}")

    def drain(total, D):
        for k in range(total - (D + 15) // 16 + 1, total + 1):
            A(f"s_waitcnt vmcnt({16 * (total - k)})")
            if vbar and k == total:
                A("s_barrier")
            else:
                landed(k)

    def seg_base():
        A(f"s_add_u32 {sT0}, {sN}, {sRS}\ns_and_b32 {sT0}, {sT0}, 7\ns_lshl_b32 {sBASE}, {sT0}, 14")

    assert wpos == 8
    DV = DV or D
    if lst:
        stamp(8)
    if uni:
        assert DV == D or nL < 16
        C("segments 0..7: K, 8..15: V (each V segment into a slot its readers have released)")
        A("L_kv:")
        seg_base()
        group_loop(ld, True, D)
        next_slot()
        A(f"""s_cmp_lt_u32 {sN}, 8
        s_cbranch_scc1 L_kv
        s_cmp_eq_u32 {sN}, {nL}
        s_cbranch_scc1 L_kvend
        s_add_u32 s36, s{pV[0]}, {sKV}
        s_addc_u32 s37, s{pV[1]}, 0""")
        if diag:
            A(f"s_cmp_lg_u32 {sN}, 8\ns_cbranch_scc1 L_nost2")
            stamp(2)
            A("L_nost2:")
        if x_nofree:
            A("s_branch L_kv")
        A(f"""s_lshl_b32 {sT0}, {sN}, 2
        v_add_u32 v6, {sT0}, {vM}
        L_free:
        ds_read_b32 v5, v6 offset:{F_FREE - 32}
        s_waitcnt lgkmcnt(0)
        v_readfirstlane_b32 {sT5}, v5
        s_cmp_ge_u32 {sT5}, 8
        s_cbranch_scc1 L_kv""")
        spin_tail("L_free")
        A("L_kvend:")
        if nL < 16:
            A("L_v:")
            wait_free()
            seg_base()
            group_loop(ld, False, DV)
            next_slot()
            A(f"s_cmp_lt_u32 {sN}, 16\ns_cbranch_scc1 L_v")
    else:
        C("segments 0..7: K")
        A("L_k:")
        seg_base()
        group_loop(ld, True, D)
        next_slot()
        A(f"""s_cmp_lt_u32 {sN}, 8
        s_cbranch_scc1 L_k
        s_add_u32 s36, s{pV[0]}, {sKV}
        s_addc_u32 s37, s{pV[1]}, 0""")
        stamp(2)
        C("segments 8..15: V, each into a slot its readers have released")
        A("L_v:")
        wait_free()
        seg_base()
        group_loop(ld, False, DV)
        next_slot()
        A(f"s_cmp_lt_u32 {sN}, 16\ns_cbranch_scc1 L_v")
    stamp(3)
    A(f"s_cmp_lg_u32 {sS}, 7\ns_cbranch_scc1 L_wo")
    A("L_nowo:")
    drain(16 + LB, DV)
    A("s_branch L_ldone")
    C("two segments of wo: rows of head 2g + (b&1), 64 columns -> slots 7, 8")
    A(f"""L_wo:
    {"s_branch L_nowo" if x_stop == 9 else ""}
    v_lshrrev_b32 v5, 3, v0
    v_and_b32 v6, 7, v0
    v_lshrrev_b32 v7, 4, v0
    v_lshlrev_b32 v7, 1, v7
    v_xor_b32 v6, v6, v7
    v_lshlrev_b32 v6, 4, v6
    v_mul_u32_u24 v5, 896, v5
    v_add_u32 v12, v5, v6
    v_add_u32 v13, {7168 - 1024}, v12
    v_add_u32 v14, {7168 - 1024}, v13
    v_add_u32 v15, {7168 - 1024}, v14
    s_mov_b32 s36, s{pWO[0]}
    s_mov_b32 s37, s{pWO[1]}
    s_mov_b32 s38, {4096 * 896}
    s_lshl_b32 {sT0}, {sG}, 1
    s_and_b32 {sT1}, {sB}, 1
    s_add_u32 {sT0}, {sT0}, {sT1}
    s_mul_i32 {sBASE}, {sT0}, {256 * 896}
    s_lshl_b32 {sT1}, {sS}, 7
    s_add_u32 {sBASE}, {sBASE}, {sT1}""")
    T0 = 16 * (16 + LB)
    done = (T0 - (DV + 3) // 4 * 4) // 16
    for u in range(32):
        if u % 16 == 0 and not x_nofree:
            wait_lds(F_FREE + 4 * (8 + u // 16), 8)
        if u % 4 == 0:
            A(f"s_mov_b32 m0, {7 * SLOT + 1024 * u}")
            A(f"s_add_u32 {sBASE}, {sBASE}, {4 * 7168}" if u else "s_nop 0")
        if u + DV >= DW:
            A(f"s_waitcnt vmcnt({DW - 1})")
            k = (T0 + u - DW + 1) // 16
            if k > done:
                landed(k)
                done = k
        A(f"buffer_load_dwordx4 v{12 + u % 4}, {SRD}, {sBASE} offen offset:{1024 * (u % 4)} {ldo} lds")
    stamp(4)
    assert done < 16 + LB
    for k in range(done + 1, 18 + LB + 1):
        if k != 17 + LB:
            A(f"s_waitcnt vmcnt({16 * (18 + LB - k)})")
            if (vbar and k == 16 + LB) or (wbar and k == 18 + LB):
                A("s_barrier")
            else:
                landed(k)
            if obar and k == 16 + LB:
                A("s_barrier")
    A("L_ldone:")
    stamp(5)
    A("s_waitcnt lgkmcnt(0)")
    if diag:
        A(f"s_sub_u32 {sT0}, 0x80000, {sBUD}\ns_mul_i32 {sT0}, {sT0}, 100\ns_add_u32 s76, s64, {sT0}\ns_addc_u32 s77, s65, 0")
    stamps_out(0, 7)
    if lst:
        A('s_mov_b32 s64, s78\ns_mov_b32 s65, s79\ns_mov_b32 s66, s80\ns_mov_b32 s67, s81')
        stamps_out(40, 2)
    A("s_endpgm")

    C("---------------- compute waves")
    sCW = sWV
    A(f"""L_compute:
    {"s_endpgm" if x_stop == 9 else ""}
    {rest if tight else ""}
    s_sub_u32 {sCW}, {sWV}, 1
    s_mov_b32 {sBUD}, 0x80000
    v_mov_b32 {vM}, {MISC}
    s_mov_b32 s39, 0x20000
    v_and_b32 v0, 63, v0
    v_lshlrev_b32 {vL16}, 4, v0
    s_mul_i32 {sT0}, {sCW}, 896
    v_add_u32 v5, {sT0}, {vL16}
    v_mov_b32 v16, 0
    v_mov_b32 v17, 0
    v_mov_b32 v18, 0
    v_mov_b32 v19, 0
    v_lshrrev_b32 {vG}, 4, v0
    v_and_b32 {vN}, 15, v0
    v_mov_b32 {vONE}, 1
    v_mov_b32 {vFF}, 0xff
    v_mov_b32 v14, 0
    s_mov_b32 {sMASK}, 0xffff0000
    s_lshl_b32 {sIDX}, {sBG}, 3
    s_add_u32 {sIDX}, {sIDX}, {sS}
    s_lshl_b32 {sT0}, {sB}, 1
    s_xor_b32 {sFIN}, {sT0}, {sG}
    s_mov_b32 s38, 0x400000
    s_lshl_b32 {sT0}, {sG}, 2
    s_add_u32 {sT0}, {sT0}, {sB}
    s_lshl_b32 {sT0}, {sT0}, 3
    s_add_u32 {sT0}, {sT0}, {sS}
    s_waitcnt lgkmcnt(0)
    s_mov_b32 {sWT}, {sT0}
    s_mov_b32 {sTBLN}, {WS_TBLN}
    s_lshl_b32 s47, {sBG}, 13
    s_lshl_b32 {sT0}, {sCW}, 10
    s_or_b32 s47, s47, {sT0}
    s_or_b32 s47, s47, {WS_Q}
    s_cmp_ge_u32 {sCW}, 4
    s_mov_b32 s36, s28
    s_mov_b32 s37, s29
    s_load_dword {sTAG}, {pWS}, {WS_E}
    s_cbranch_scc1 L_nox
    s_mov_b32 exec_hi, 0x00ffffff
    global_load_dwordx4 v[16:19], v5, {pX}
    s_mov_b32 exec_hi, -1
    L_nox:
    s_cmp_lg_u32 {sCW}, 0
    s_cbranch_scc1 L_notq0
    v_mov_b32 v7, 0
    global_load_ushort v167, v7, {pB2}
    s_getreg_b32 {sXCC}, hwreg(HW_REG_XCC_ID, 0, 4)
    s_lshl_b32 s59, {sG}, 7
    s_add_u32 s59, s59, {WS_IDS}
    s_lshl_b32 {sT0}, {sI}, 2
    s_add_u32 {sT0}, {sT0}, s59
    s_lshl_b32 {sXCC}, {sXCC}, 24
    s_waitcnt lgkmcnt(0)
    s_add_u32 {sTAG}, {sTAG}, {hex(TAGINC)}
    s_lshr_b32 {sTAG1}, {sTAG}, 8
    s_and_b32 {sT1}, {sTAG}, 0xffffff
    s_or_b32 {sXCC}, {sXCC}, {sT1}
    v_mov_b32 v8, {sXCC}
    s_mov_b64 exec, 1
    buffer_store_dword v8, {vL16}, {SRD}, {sT0} offen
    s_mov_b64 exec, -1
    s_waitcnt vmcnt(2)
    s_branch L_ln
    L_notq0:
    s_lshl_b32 {sT0}, {sCW}, 9
    s_sub_u32 {sT0}, {sT0}, 512
    v_lshl_add_u32 v5, v0, 3, {sT0}""")
    load_w()
    if touch:
        C("wave 6: first touch of the pages that are streamed later (address translation, speed only)")
        A(f"""s_cmp_lg_u32 {sCW}, 6
        s_cbranch_scc1 L_notouch
        s_lshl_b32 {sT0}, {sBG}, 22
        s_lshl_b32 {sT1}, {sS}, 17
        s_add_u32 {sT0}, {sT0}, {sT1}
        s_add_u32 {sT0}, {sT0}, 0x300000
        v_mov_b32 v8, {sT0}
        s_mul_i32 {sT0}, {sG}, {512 * 896}
        v_mov_b32 v9, {sT0}
        s_mov_b64 exec, 1
        global_load_dword v20, v8, s[8:9] nt""")
        if touch > 1:
            A(f"""global_load_dword v21, v9, s[12:13] nt
            v_add_u32 v9, {512 * 896 - 4}, v9
            global_load_dword v22, v9, s[12:13] nt""")
        if touch > 2:
            A(f"v_mov_b32 v9, 0\nglobal_load_dword v23, v9, {pOUT} nt")
        A("s_mov_b64 exec, -1\nL_notouch:")
    if pf:
        C("wave 7: the last KiB of the code")
        A(f"""s_cmp_lg_u32 {sCW}, 7
        s_cbranch_scc1 L_nopf
        s_getpc_b64 s[40:41]
        L_pfpc:
        s_add_u32 s40, s40, L_pfend-L_pfpc-1024
        s_addc_u32 s41, s41, 0
        v_mov_b32 v9, s41
        v_add_co_u32 v8, vcc, s40, {vL16}
        s_nop 1
        v_addc_co_u32 v9, vcc, 0, v9, vcc
        global_load_dwordx4 v[20:23], v[8:9], off
        L_nopf:""")
    A(f"""s_waitcnt lgkmcnt(0)
    s_add_u32 {sTAG}, {sTAG}, {hex(TAGINC)}
    s_lshr_b32 {sTAG1}, {sTAG}, 8
    s_cmp_ge_u32 {sCW}, 4
    s_cbranch_scc1 L_table
    s_waitcnt vmcnt(3)""")
    C("LayerNorm of row cw of x (waves 0..3), bf16 rounding as the reference")
    A("L_ln:\ns_setprio 2")
    for k in range(4):
        unpack2(f"v{20 + 2 * k}", f"v{21 + 2 * k}", f"v{16 + k}")
    A("""v_pk_add_f32 v[28:29], v[20:21], v[22:23]
    v_pk_add_f32 v[30:31], v[24:25], v[26:27]
    v_pk_add_f32 v[28:29], v[28:29], v[30:31]
    v_add_f32 v28, v28, v29""")
    wave_sums(["v28"], [sT0])
    A(f"v_mov_b32 v32, {hex(fbits(1.0 / 448.0))}\nv_mul_f32 v30, {sT0}, v32\nv_mov_b32 v28, 0\ns_mov_b32 exec_hi, 0x00ffffff")
    for k in range(8):
        A(f"v_sub_f32 v29, v{20 + k}, v30\nv_fmac_f32 v28, v29, v29")
    A("s_mov_b32 exec_hi, -1")
    wave_sums(["v28"], [sT1])
    ln_scale("v30", "v31", sT0, sT1, "v32", False)
    normalize([20, 22, 24, 26], 30, 31, False)
    for k in range(4):
        A(f"v_cvt_pk_bf16_f32 v{16 + k}, v{20 + 2 * k}, v{21 + 2 * k}")
    A(f"""s_mul_i32 {sT0}, {sCW}, 960
    v_add3_u32 v5, {vL16}, {sT0}, {vM}
    s_mov_b32 exec_hi, 0x00ffffff
    ds_write_b128 v5, v[16:19] offset:{LN}
    s_mov_b32 exec_hi, -1""")
    signal(F_LNCNT)
    A(f"s_cmp_lg_u32 {sCW}, 0\ns_cbranch_scc1 L_table")
    C("partial q projection: 64 columns x 4 batches over 112 rows")
    stamp(1)
    A(f"""v_and_b32 v7, 3, {vN}
    v_lshlrev_b32 v12, 16, v7
    v_mul_u32_u24 v7, 960, v7
    v_lshl_add_u32 v7, {vG}, 3, v7
    s_mul_i32 {sT0}, {sB}, 224
    v_add3_u32 v7, v7, {sT0}, {vM}
    v_bfe_u32 v8, v0, 3, 2
    v_lshlrev_b32 v8, 5, v8
    v_lshrrev_b32 v9, 2, v0
    v_lshl_or_b32 v8, v9, 7, v8
    v_and_b32 v9, 3, v0
    v_lshl_or_b32 v8, v9, 3, v8
    v_add_u32 v8, {8 * SLOT}, v8
    v_xor_b32 v9, 32, v8
    v_xor_b32 v10, 64, v8
    v_xor_b32 v11, 0x60, v8
    v_lshrrev_b32 v13, 2, {vN}
    v_cmp_eq_u32 s[52:53], 1, v13
    v_cmp_eq_u32 s[54:55], 2, v13
    v_cmp_eq_u32 s[56:57], 3, v13
    v_lshl_or_b32 v12, v13, 6, v12
    v_lshl_or_b32 v12, {vG}, 4, v12
    v_mov_b32 v13, 8
    s_lshl_b32 {sT0}, {sG}, 3
    s_add_u32 {sT0}, {sT0}, {sS}
    s_lshl_b32 {sT0}, {sT0}, 10
    s_lshl_b32 {sT1}, {sB}, 8
    s_add_u32 {sT0}, {sT0}, {sT1}
    s_add_u32 {sT0}, {sT0}, {WS_Q}""")
    wait_lds(F_LNCNT, 4)
    for j in range(3):
        A(f"ds_read2_b64 v[{16 + 4 * j}:{19 + 4 * j}], v7 offset0:{8 * j} offset1:{8 * j + 4}")
    A("ds_read_b64 v[28:29], v7 offset:192")
    wait_lds(F_LANDED, 1)
    for j in range(4):
        for t in range(4):
            r = 48 + 16 * j + 4 * t
            A(f"ds_read_b64_tr_b16 v[{r}:{r + 1}], v{8 + t} offset:{4096 * j}")
            if j < 3:
                A(f"ds_read_b64_tr_b16 v[{r + 2}:{r + 3}], v{8 + t} offset:{4096 * j + 2048}")
    signal(F_FREE, "v13")
    A("s_waitcnt lgkmcnt(0)")
    for j in range(4):
        for t in range(4):
            r, d = 48 + 16 * j + 4 * t, 112 + 4 * t
            if j < 3:
                A(f"v_mfma_f32_16x16x32_bf16 v[{d}:{d + 3}], v[{r}:{r + 3}], v[{16 + 4 * j}:{19 + 4 * j}], {'0' if j == 0 else f'v[{d}:{d + 3}]'}")
            else:
                A(f"v_mfma_f32_16x16x16_bf16 v[{d}:{d + 3}], v[{r}:{r + 1}], v[28:29], v[{d}:{d + 3}]")
    A("s_nop 7")
    for t in range(1, 4):
        for r in range(4):
            A(f"v_cndmask_b32 v{112 + r}, v{112 + r}, v{112 + 4 * t + r}, s[{50 + 2 * t}:{51 + 2 * t}]")
    put_tag(range(112, 116))
    A(f"""buffer_store_dwordx4 v[112:115], v12, {SRD}, {sT0} offen {nst}
    s_add_u32 s58, {sT0}, {WS_FAR}
    v_mov_b32 v14, v12""")
    stamp(2)
    if x_stop == 1:
        A("s_endpgm")
    A("s_branch L_qk")
    C("waves 1..7: this workgroup's entries of the scalar map t -> MLP(t), t running over bf16 values")
    A("L_table:\ns_setprio 0\ns_waitcnt vmcnt(0)")
    if x_stop == 1:
        A("s_endpgm")
    unpack_w()
    A(f"""s_and_b32 {sT0}, {sWT}, 127
    s_mul_i32 {sT0}, {sT0}, {NE}
    s_add_u32 {sT0}, {sT0}, {E0 << 7}
    s_lshr_b32 {sT1}, {sWT}, 7
    s_lshl_b32 {sT1}, {sT1}, 15
    s_or_b32 {sT0}, {sT0}, {sT1}
    s_lshl_b32 s50, {sT0}, 16
    s_mov_b32 s54, 0
    s_lshl_b32 {sT0}, {sCW}, 7
    v_lshl_add_u32 v8, {vG}, 2, {vM}
    v_add_u32 v8, {sT0}, v8
    L_tloop:
    s_cmp_lg_u32 s54, {(x_tl or NE) - 4 * qit}
    s_cbranch_scc1 L_tnoq
    buffer_load_dwordx4 v[20:23], {vL16}, {SRD}, s47 offen sc1
    L_tnoq:
    s_add_u32 s51, s50, 0x10000
    s_add_u32 s52, s50, 0x20000
    s_add_u32 s53, s50, 0x30000""")
    gelu(["s50", "s51"], ["v80", "v81"], True)
    gelu(["s52", "s53"], ["v82", "v83"], True)
    swap_reduce4(("v80", "v81", "v82", "v83"))
    A("s_add_u32 s50, s50, 0x40000\ns_add_u32 s54, s54, 4")
    for m in DPP[:4]:
        A(f"v_add_f32_dpp v80, v80, v80 {m} bank_mask:0xf\ns_nop 1")
    A(f"""s_cmp_lt_u32 s54, {x_tl or NE}
    ds_write_b32 v8, v80 offset:{TP - 128}
    v_add_u32 v8, 16, v8
    s_cbranch_scc1 L_tloop""")
    signal(F_TCNT)
    stamp(1)
    C("key slot cw -> registers, slot is released at once")
    A(f"""L_qk:
    s_setprio 1
    v_and_b32 v8, 7, {vN}
    v_lshlrev_b32 v8, 1, v8
    v_xor_b32 v8, v8, {vG}
    v_lshlrev_b32 v8, 4, v8
    v_lshl_or_b32 v8, {vN}, 9, v8
    s_lshl_b32 {sT0}, {sCW}, 14
    v_add_u32 v8, {sT0}, v8
    v_xor_b32 v9, 64, v8
    v_xor_b32 v10, 0x80, v8
    v_xor_b32 v11, 0xc0, v8
    s_lshl_b32 {sT0}, {sCW}, 2
    v_add_u32 v12, {sT0}, {vM}
    v_mov_b32 v13, 8
    s_add_u32 {sT4}, {sCW}, {1 + LB}""")
    wait_lds(F_LANDED, sT4)
    for j in range(8):
        for t in range(2):
            r = 48 + 8 * j + 4 * t
            A(f"ds_read_b128 v[{r}:{r + 3}], v{8 + (j & 3)} offset:{256 * (j >> 2) + 8192 * t}")
    signal(F_FREE + 4, "v13", "v12")
    stamp(3)
    if x_stop == 2:
        A("s_endpgm")
    C("64 columns of q: sum of the four row-quarter partials")
    A(f"""s_lshr_b32 {sT1}, {sCW}, 2
    s_mul_i32 {sT1}, {sT1}, {HP}
    s_and_b32 {sT2}, {sCW}, 3
    s_lshl_b32 {sT2}, {sT2}, 7
    s_add_u32 {sT1}, {sT1}, {sT2}
    v_lshlrev_b32 v12, 1, {vG}
    v_lshl_or_b32 v12, {vN}, 3, v12
    v_add3_u32 v12, v12, {sT1}, {vM}
    s_cmp_lg_u32 {sCW}, 0
    s_cbranch_scc1 L_qchk""")
    wait_lds(F_LANDED, QT + LB)
    A(f"buffer_load_dwordx4 v[20:23], {vL16}, {SRD}, s47 offen sc1")
    C("wave 0: do the 32 workgroups of this kv head share this compute die (one L2)?  Not seen yet counts as no")
    A(f"""v_and_b32 v16, 31, v0
    v_lshlrev_b32 v16, 2, v16
    buffer_load_dword v17, v16, {SRD}, s59 offen sc1
    s_waitcnt vmcnt(0)
    v_cmp_ne_u32 vcc, {sXCC}, v17
    v_mov_b32 v17, 1
    s_cmp_lg_u64 vcc, 0
    s_cbranch_scc1 L_idfar
    {"s_branch L_idfar" if x_far else ""}
    L_idloc:
    ds_write_b32 {vM}, v17 offset:{F_LOC}
    L_qchk:
    s_waitcnt vmcnt(0)""")
    cold.append(f"""L_idfar:
    buffer_store_dwordx4 v[112:115], v14, {SRD}, s58 offen sc1
    v_mov_b32 v17, {WS_FAR + 1}
    s_branch L_idloc""")
    tags_ok([20, 21, 22, 23], "L_qok")
    wait_lds(F_LOC, 1, sleep=qback)
    A(f"""s_sub_u32 {sT5}, {sT5}, 1
    s_xor_b32 s47, s47, {sT5}
    s_sleep {qback}
    buffer_load_dwordx4 v[20:23], {vL16}, {SRD}, s47 offen sc1""")
    spin_tail("L_qchk", 0)
    A("L_qok:")
    strip_tag(range(20, 24))
    swap_reduce4(("v20", "v21", "v22", "v23"))
    A(f"""v_cvt_pk_bf16_f32 v20, v20, v20
    ds_write_b16 v12, v20 offset:{QL}""")
    signal(F_QCNT)
    A(f"""v_and_b32 v7, 1, {vN}
    v_lshl_add_u32 v8, v7, 2, {vM}
    v_mul_u32_u24 v7, {HP}, v7
    v_lshl_add_u32 v7, {vG}, 4, v7
    v_add_u32 v7, v7, {vM}
    s_lshl_b32 {sT0}, {sCW}, 6
    v_add_u32 v9, {sT0}, v7
    s_mov_b32 s46, {hex(fbits(CEXP))}""")
    wait_lds(F_QCNT, 8)
    stamp(4)
    A(f"ds_read_b32 v5, {vM} offset:{F_LOC}")
    for j in range(8):
        A(f"ds_read_b128 v[{16 + 4 * j}:{19 + 4 * j}], v7 offset:{QL + 64 * j}")
    for j in range(8):
        A(f"s_waitcnt lgkmcnt({7 - j})")
        if j == 0:
            A(f"v_readfirstlane_b32 {sFAR}, v5")
        for t in range(2):
            r = 48 + 8 * j + 4 * t
            d = 112 + 4 * t
            A(f"v_mfma_f32_16x16x32_bf16 v[{d}:{d + 3}], v[{r}:{r + 3}], v[{16 + 4 * j}:{19 + 4 * j}], {'0' if j == 0 else f'v[{d}:{d + 3}]'}")
    A(f"s_sub_u32 {sFAR}, {sFAR}, 1\ns_nop 6")
    for k in range(8):
        rne1(f"v{112 + k}", f"v{112 + k}")
    A(f"""v_max3_f32 v120, v112, v113, v114
    v_max3_f32 v121, v115, v116, v117
    v_max3_f32 v120, v120, v118, v119
    v_max_f32 v120, v120, v121
    s_mov_b32 exec_lo, 0x00030003
    s_mov_b32 exec_hi, 0x00030003
    ds_max_f32 v8, v120 offset:{F_MX}
    s_mov_b64 exec, -1""")
    signal(F_MAXCNT)
    wait_lds(F_MAXCNT, 8)
    A(f"ds_read_b32 v124, v8 offset:{F_MX}\ns_waitcnt lgkmcnt(0)")
    for k in range(8):
        A(f"v_sub_f32 v{112 + k}, v{112 + k}, v124")
    for k in range(8):
        A(f"v_mul_f32 v{112 + k}, s46, v{112 + k}")
    for k in range(8):
        A(f"v_exp_f32 v{112 + k}, v{112 + k}")
    A("s_nop 0")
    for k in range(4):
        A(f"v_cvt_pk_bf16_f32 v{120 + k}, v{112 + 2 * k}, v{113 + 2 * k}")
    A(f"""s_mov_b32 exec_lo, 0x00030003
    s_mov_b32 exec_hi, 0x00030003
    ds_write_b128 v9, v[120:123] offset:{PL}
    s_mov_b64 exec, -1""")
    signal(F_PCNT)
    C("addresses of the PV loop and of the stages behind it")
    A(f"""v_mov_b32 v43, v7
    v_bfe_u32 v8, v0, 2, 3
    s_lshl_b32 {sT0}, {sCW}, 1
    v_xor_b32 v8, {sT0}, v8
    v_lshlrev_b32 v8, 5, v8
    v_lshrrev_b32 v9, 2, v0
    v_lshl_or_b32 v8, v9, 9, v8
    v_and_b32 v10, 3, v0
    v_lshl_or_b32 v44, v10, 3, v8
    v_xor_b32 v45, 32, v44""")
    for r in range(112, 120):
        A(f"v_mov_b32 v{r}, 0")
    A(f"""v_and_b32 v28, 1, {vN}
    v_lshlrev_b32 v28, 10, v28
    v_bfe_u32 v29, {vN}, 1, 1
    v_lshl_or_b32 v28, v29, 6, v28
    v_lshl_or_b32 v160, {vG}, 4, v28
    v_cmp_ne_u32 s[56:57], 0, v29
    s_lshl_b32 s51, {sIDX}, 11
    s_lshl_b32 {sT0}, {sCW}, 7
    s_add_u32 s51, s51, {sT0}
    s_add_u32 s51, s51, {WS_OP}
    v_lshlrev_b32 v161, 6, {vG}
    v_lshlrev_b32 v28, 4, {vN}
    v_lshl_or_b32 v162, {vG}, 11, v28
    s_and_b32 {sT2}, {sBG}, 0x17
    s_lshr_b32 {sT1}, {sCW}, 2
    s_lshl_b32 {sT1}, {sT1}, 3
    s_add_u32 {sT2}, {sT2}, {sT1}
    s_and_b32 {sT3}, {sB}, 1
    s_lshl_b32 s52, {sT2}, 14
    s_lshl_b32 {sT1}, {sT3}, 10
    s_add_u32 s52, s52, {sT1}
    s_and_b32 {sT1}, {sCW}, 3
    s_lshl_b32 {sT1}, {sT1}, 8
    s_add_u32 s52, s52, {sT1}
    s_add_u32 s52, s52, {WS_OP}
    s_add_u32 s59, s52, {4 << 11}
    v_bfe_u32 v28, v0, 3, 2
    s_and_b32 {sT1}, {sCW}, 3
    v_xor_b32 v28, {sT1}, v28
    v_lshlrev_b32 v28, 5, v28
    v_lshl_or_b32 v28, v9, 7, v28
    v_lshl_or_b32 v163, v10, 3, v28
    v_add_u32 v164, {((8 + wpos) % 9) * SLOT}, v163
    v_lshlrev_b32 v28, 4, v10
    v_bfe_u32 v29, v0, 2, 1
    v_lshl_or_b32 v28, v29, 3, v28
    v_bfe_u32 v29, v0, 3, 1
    v_lshl_or_b32 v28, v29, 6, v28
    v_lshl_or_b32 v28, {vG}, 1, v28
    s_lshr_b32 {sT0}, {sCW}, 2
    s_mul_i32 {sT0}, {sT0}, {HP}
    s_lshl_b32 {sT1}, {sT1}, 7
    s_add_u32 {sT0}, {sT0}, {sT1}
    v_add3_u32 v165, v28, {sT0}, {vM}
    s_lshl_b32 {sT0}, {sCW}, 6
    v_add_u32 v166, {OL - PL}, v7
    v_mul_u32_u24 v14, {16 * 1792}, {vN}
    v_lshl_add_u32 v14, {vG}, 4, v14
    s_and_b32 s53, {sB}, 2
    s_lshl_b32 s53, s53, 3
    s_add_u32 s53, s53, {sG}
    s_lshl_b32 s53, s53, 1
    s_add_u32 s53, s53, {sT3}
    s_mul_i32 s53, s53, 1792
    s_lshl_b32 {sT1}, {sS}, 8
    s_add_u32 s53, s53, {sT1}
    s_add_u32 s53, s53, {sT0}
    s_add_u32 s53, s53, {WS_OUTP + (KC - 1) * 0x20000}
    s_lshl_b32 s54, {sT2}, 9
    s_lshl_b32 {sT1}, {sT3}, 3
    s_add_u32 s54, s54, {sT1}
    s_add_u32 s54, s54, {WS_STATS}
    v_lshl_add_u32 v136, {vN}, 2, {vG}
    v_add_u32 v136, {sT0}, v136
    s_mul_i32 {sT1}, {sB}, 896
    v_lshl_add_u32 v137, v136, 1, {sT1}
    s_and_b32 s55, {sWT}, 0xf8
    s_mul_i32 s55, s55, {NE * 4}
    s_xor_b32 {sT1}, {sS}, 7
    s_or_b32 {sFIN}, {sFIN}, {sT1}""")
    if opre == 2:
        C("first read of the lines this workgroup writes in stage 3 (brings them on chip; speed only)")
        A(f"""s_and_b32 {sT0}, {sCW}, 5
        s_cbranch_scc1 L_nopre
        s_cmp_eq_u32 {sS}, 7
        s_cbranch_scc1 L_nopre
        s_mov_b64 exec, 3
        s_mov_b32 {sT0}, s53""")
        for k in range(KC):
            A(f"buffer_load_dword v128, v14, {SRD}, {sT0} offen {oprefl}\ns_sub_u32 {sT0}, {sT0}, 0x20000")
        A("s_mov_b64 exec, -1\nL_nopre:")
    wait_lds(F_PCNT, 8)
    stamp(5)
    if x_stop == 3:
        A("s_endpgm")
    C("wave 0: row sums of the bf16 probabilities (ones x P), publish (max, sum) of both heads")
    A(f"s_cmp_lg_u32 {sCW}, 0\ns_cbranch_scc1 L_nostat")
    for j in range(8):
        A(f"ds_read_b128 v[{48 + 4 * j}:{51 + 4 * j}], v43 offset:{PL + 64 * j}")
    for r in range(16, 20):
        A(f"v_mov_b32 v{r}, 0x3f803f80")
    A(f"""s_lshl_b32 {sT0}, {sIDX}, 6
    s_add_u32 {sT0}, {sT0}, {WS_STATS}
    s_waitcnt lgkmcnt(0)""")
    for j in range(8):
        A(f"v_mfma_f32_16x16x32_bf16 v[20:23], v[16:19], v[{48 + 4 * j}:{51 + 4 * j}], {'0' if j == 0 else 'v[20:23]'}")
    A(f"""v_mov_b32_dpp v126, v124 quad_perm:[1,0,3,2] row_mask:0xf bank_mask:0xf
    s_nop 6
    v_mov_b32 v125, v20
    v_mov_b32_dpp v127, v20 quad_perm:[1,0,3,2] row_mask:0xf bank_mask:0xf""")
    put_tag([125, 127], tag=sTAG1)
    put_tag([124, 126], True, sTAG)
    A("s_mov_b64 exec, 1")
    store_group(f"buffer_store_dwordx4 v[124:127], {vL16}, {SRD}, {{}} offen", sT0)
    C("wave 0: finish and publish the table entries")
    A(f"s_mov_b64 exec, -1\nv_and_b32 v7, 31, v0\nv_lshl_add_u32 v7, v7, 2, {vM}")
    wait_lds(F_TCNT, 7)
    for k in range(7):
        A(f"ds_read_b32 v{16 + k}, v7 offset:{TP + 128 * k}")
    A(f"""s_mul_i32 {sT0}, {sWT}, {NE * 4}
    s_add_u32 {sT0}, {sT0}, {WS_TBLN}
    v_lshlrev_b32 v8, 2, v0
    v_lshlrev_b32 v46, 16, v167
    s_waitcnt lgkmcnt(0)
    v_add_f32 v16, v16, v17
    v_add_f32 v18, v18, v19
    v_add_f32 v20, v20, v21
    v_add_f32 v16, v16, v18
    v_add_f32 v20, v20, v22
    v_add_f32 v16, v16, v20""")
    rne1("v16", "v16")
    A("v_add_f32 v16, v16, v46")
    rne1("v16", "v16")
    A(f"v_mov_b32 v17, {sTAG}\nv_bfi_b32 v16, {sMASK}, v16, v17")
    A(f"s_mov_b64 exec, {(1 << NE) - 1}")
    store_group(f"buffer_store_dword v16, v8, {SRD}, {{}} offen", sT0)
    A("s_mov_b64 exec, -1\nL_nostat:")
    sJ, sVS, sJL = "s48", "s49", "s50"
    ntl = (NE * 128 + 1023) // 1024
    lastm = (1 << ((NE * 128 - 1024 * (ntl - 1)) // 16)) - 1

    def table_loads():
        for k in range(ntl):
            if k == ntl - 1:
                A(f"s_mov_b32 exec_lo, {hex(lastm & 0xffffffff)}\ns_mov_b32 exec_hi, {hex(lastm >> 32)}")
            A(f"buffer_load_dwordx4 v[{140 + 4 * k}:{143 + 4 * k}], {vL16}, {SRD}, s55 offen offset:{1024 * k} sc1")
        A("s_mov_b64 exec, -1")

    A(f"""s_mov_b32 {sJ}, 0
    s_mov_b32 {sVS}, {8 * SLOT}
    s_mov_b32 {sJL}, {jmid}
    v_add_u32 v12, {F_FREE + 36}, {vM}
    s_mov_b32 {sT4}, {9 + LB}
    s_cmp_eq_u32 {sS}, 7
    s_cselect_b32 s58, 0, 2
    L_pv:
    ds_read_b128 v[16:19], v43 offset:{PL}
    v_add_u32 v10, {sVS}, v44
    v_add_u32 v11, {sVS}, v45""")
    if vbar:
        C("the last slot is announced by a barrier with the loader")
        A(f"s_cmp_lg_u32 {sJ}, 7\ns_waitcnt lgkmcnt(0)\ns_cbranch_scc1 L_pvwait\ns_barrier\nL_pvgo:")
        pvwait = (f"""L_pvwait:
        ds_read_b32 v5, {vM} offset:{F_LANDED}
        s_waitcnt lgkmcnt(0)
        v_readfirstlane_b32 {sT5}, v5
        s_cmp_ge_u32 {sT5}, {sT4}
        s_cbranch_scc1 L_pvgo
        s_sleep 1
        s_sub_u32 {sBUD}, {sBUD}, 1
        s_cbranch_scc0 L_pvwait
        s_branch L_end""")
    else:
        wait_lds(F_LANDED, sT4, sleep=pvslp)
    A(f"""ds_read_b64_tr_b16 v[20:21], v10
    ds_read_b64_tr_b16 v[22:23], v10 offset:8192
    ds_read_b64_tr_b16 v[24:25], v11
    ds_read_b64_tr_b16 v[26:27], v11 offset:8192""")
    signal(0, vONE, "v12")
    A(f"""v_add_u32 v43, 64, v43
    s_add_u32 {sJ}, {sJ}, 1""")
    if wpos < 8:
        A(f"""s_cmp_eq_u32 {sJ}, {wpos}
        s_cselect_b32 {sT0}, s58, 0
        s_add_u32 {sT0}, {sT0}, 1
        s_add_u32 {sT4}, {sT4}, {sT0}
        s_lshl_b32 {sT1}, {sT0}, 2
        v_add_u32 v12, {sT1}, v12
        s_lshl_b32 {sT1}, {sT0}, 14
        s_add_u32 {sVS}, {sVS}, {sT1}
        s_sub_u32 {sT1}, {sVS}, {9 * SLOT}
        s_cselect_b32 {sVS}, {sVS}, {sT1}""")
    else:
        A(f"""v_add_u32 v12, 4, v12
        s_add_u32 {sT4}, {sT4}, 1
        s_add_u32 {sVS}, {sVS}, {SLOT}
        s_cmp_eq_u32 {sVS}, {9 * SLOT}
        s_cselect_b32 {sVS}, 0, {sVS}""")
    A(f"""    s_cmp_lt_u32 {sJ}, {sJL}
    s_waitcnt lgkmcnt(3)
    v_mfma_f32_16x16x32_bf16 v[112:115], v[20:23], v[16:19], v[112:115]
    s_waitcnt lgkmcnt(1)
    v_mfma_f32_16x16x32_bf16 v[116:119], v[24:27], v[16:19], v[116:119]
    s_cbranch_scc1 L_pv
    s_cmp_eq_u32 {sJ}, 8
    s_cbranch_scc1 L_pv_done""")
    C("before the last value slots: fetch what the next stage needs besides the partial rows")
    A(f"""s_mov_b32 {sJL}, 8
    s_cmp_eq_u32 {sS}, 7
    s_cbranch_scc1 L_mid7""")
    if opre == 1:
        A(f"""s_cmp_ge_u32 {sCW}, 4
        s_cbranch_scc1 L_nopre
        s_mov_b32 exec_lo, 0x00030003
        s_mov_b32 exec_hi, 0
        s_mov_b32 {sT0}, s53""")
        for k in range(KC):
            A(f"buffer_load_dword v128, v14, {SRD}, {sT0} offen {oprefl}\ns_sub_u32 {sT0}, {sT0}, 0x20000")
        A("s_mov_b64 exec, -1\nL_nopre:")
    A(f"""    buffer_load_dwordx2 v[32:33], v161, {SRD}, s54 offen sc1
    buffer_load_dwordx2 v[34:35], v161, {SRD}, s54 offen offset:256 sc1""")
    A(f"""s_branch L_pv
    L_mid7:
    s_cmp_lg_u32 {sCW}, 0
    s_cbranch_scc1 L_mid8
    v_mov_b32 v32, {sTAG}
    v_mov_b32 v33, {sTAG}
    v_mov_b32 v34, {sTAG}
    v_mov_b32 v35, {sTAG}
    s_add_u32 s54, s55, {WS_TBLN}
    s_mov_b32 exec_hi, {hex((1 << (2 * NE - 32)) - 1)}
    buffer_load_dwordx4 v[32:35], {vL16}, {SRD}, s54 offen sc1
    s_mov_b32 exec_hi, -1
    L_mid8:
    s_cmp_lg_u32 {sFIN}, 0
    s_cbranch_scc1 L_pv
    s_cmp_eq_u32 {sCW}, 7
    s_cbranch_scc1 L_pv
    global_load_ushort v138, v137, {pX}
    s_branch L_pv""")
    if vbar:
        A(pvwait)
    A("L_pv_done:")
    stamp(7)
    if x_stop == 4:
        A("s_endpgm")
    C("publish the partial output rows")
    A(f"""s_nop 4
    v_cndmask_b32 v112, v112, v116, s[56:57]
    v_cndmask_b32 v113, v113, v117, s[56:57]
    v_cndmask_b32 v114, v114, v118, s[56:57]
    v_cndmask_b32 v115, v115, v119, s[56:57]""")
    put_tag(range(112, 116), True)
    A(f"""s_mov_b32 exec_lo, 0x000f000f
    s_mov_b32 exec_hi, 0x000f000f
""")
    store_group(f"buffer_store_dwordx4 v[112:115], v160, {SRD}, {{}} offen", "s51")
    opoll = f"""buffer_load_dwordx4 v[24:27], v162, {SRD}, s52 offen sc1
    buffer_load_dwordx4 v[28:31], v162, {SRD}, s59 offen sc1"""
    A(f"""s_mov_b64 exec, -1
    s_cmp_eq_u32 {sS}, 7
    s_cbranch_scc1 L_last""")
    if obar:
        C("all partial rows of this workgroup are on their way before the first look at the group's rows")
        A("s_barrier")
    A(opoll)
    A(f"s_cmp_lg_u32 {sFAR}, 0\ns_cbranch_scc1 L_spoll0\ns_waitcnt vmcnt(3)\nL_spoll:")
    cold.append("L_spoll0:\ns_waitcnt vmcnt(0)\ns_branch L_spoll")
    tags_ok([32, 34, 33, 35], "L_sok", tags=[sTAG, sTAG1])
    A(f"""s_xor_b32 s54, s54, {sFAR}
    buffer_load_dwordx2 v[32:33], v161, {SRD}, s54 offen sc1
    buffer_load_dwordx2 v[34:35], v161, {SRD}, s54 offen offset:256 sc1
    s_waitcnt vmcnt(0)""")
    spin_tail("L_spoll", 0)
    A(f"""L_oagain:
    s_xor_b32 s52, s52, {sFAR}
    s_xor_b32 s59, s59, {sFAR}""")
    A(opoll)
    spin_tail("L_opoll", 0)
    A("L_sok:")
    C("weights of the splits row and row+4")
    A(f"""v_and_b32 v32, {sMASK}, v32
    v_and_b32 v34, {sMASK}, v34""")
    strip_tag([33, 35])

    def rowred(op, d, t):
        for sw in ("v_permlane16_swap_b32", "v_permlane32_swap_b32"):
            A(f"v_mov_b32 {t}, {d}\ns_nop 1\n{sw} {d}, {t}\n{op} {d}, {d}, {t}")

    A("v_max_f32 v36, v32, v34")
    rowred("v_max_f32", "v36", "v37")
    A("""v_sub_f32 v32, v32, v36
    v_sub_f32 v34, v34, v36
    v_mul_f32 v32, s46, v32
    v_mul_f32 v34, s46, v34
    v_exp_f32 v32, v32
    v_exp_f32 v34, v34
    s_nop 0
    v_mul_f32 v36, v33, v32
    v_fmac_f32 v36, v35, v34""")
    rowred("v_add_f32", "v36", "v37")
    A("""v_rcp_f32 v36, v36
    s_nop 0
    v_mul_f32 v32, v32, v36
    v_mul_f32 v34, v34, v36""")
    if wbar:
        C("wo has landed (barrier with the loader)")
        A(f"s_cmp_ge_u32 {sCW}, 4\ns_barrier\ns_cbranch_scc1 L_opoll")
    else:
        A(f"s_cmp_ge_u32 {sCW}, 4\ns_cbranch_scc1 L_opoll")
        wait_lds(F_LANDED, 10 + wpos + LB, sleep=pvslp)
    for j in range(8):
        for u in range(2):
            part = j >> 2
            sl0, sl = (8 + wpos) % 9, (8 + wpos + part) % 9
            base, off = ("v164", (sl - sl0) * SLOT) if sl >= sl0 else ("v163", sl * SLOT)
            r = 48 + 4 * j + 2 * u
            A(f"ds_read_b64_tr_b16 v[{r}:{r + 1}], {base} offset:{off + 4096 * (j & 3) + 2048 * u}")
    stamp(8)
    A("L_opoll:\ns_waitcnt vmcnt(0)")

    def o_scale():
        strip_tag(range(28, 32))
        A("""v_pk_mul_f32 v[24:25], v[24:25], v[32:33] op_sel_hi:[1,0]
        v_pk_mul_f32 v[26:27], v[26:27], v[32:33] op_sel_hi:[1,0]
        v_pk_fma_f32 v[24:25], v[28:29], v[34:35], v[24:25] op_sel_hi:[1,0,1]
        v_pk_fma_f32 v[26:27], v[30:31], v[34:35], v[26:27] op_sel_hi:[1,0,1]""")

    tags_ok(list(range(24, 32)), None, retry="L_oagain", between=lambda: strip_tag(range(24, 28)))
    stamp(9)
    o_scale()
    swap_reduce4(("v24", "v25", "v26", "v27"))
    A(f"""v_cvt_pk_bf16_f32 v24, v24, v24
    ds_write_b16 v165, v24 offset:{OL}
    s_cmp_ge_u32 {sCW}, 4
    s_waitcnt lgkmcnt(0)
    s_barrier
    s_cbranch_scc1 {"L_wb" if wb else "L_exit"}""")
    if wb:
        cold.append(f"""L_wb:
        s_or_b32 {sT0}, {sB}, {sS}
        s_xor_b32 {sT1}, {sCW}, 7
        s_or_b32 {sT0}, {sT0}, {sT1}
        s_cbranch_scc1 L_exit
        {f"s_sleep {wb}" if wb > 1 else ""}
        buffer_wbl2 sc1
        s_branch L_exit""")
    for j in range(8):
        A(f"ds_read_b128 v[{16 + 4 * j}:{19 + 4 * j}], v166 offset:{PL + 64 * j}")
    for j in range(8):
        A(f"s_waitcnt lgkmcnt({7 - j})\nv_mfma_f32_16x16x32_bf16 v[112:115], v[{48 + 4 * j}:{51 + 4 * j}], v[{16 + 4 * j}:{19 + 4 * j}], {'0' if j == 0 else 'v[112:115]'}")
    A(f"""s_mov_b32 exec_lo, 0x00030003
    s_mov_b32 exec_hi, 0x00030003
    s_nop 5""")
    put_tag(range(112, 116), True)
    for k in range(KC):
        A(f"buffer_store_dwordx4 v[112:115], v14, {SRD}, s53 offen {ost}")
        if k < KC - 1:
            A("s_sub_u32 s53, s53, 0x20000")
    A("s_mov_b64 exec, -1")
    stamp(10)
    A("s_branch L_exit")
    C("workgroups of split 7, wave 0: pass the table entries of the 8 splits on to the finishing workgroups")
    A(f"""L_last:
    s_cmp_lg_u32 {sCW}, 0
    s_cbranch_scc1 L_nofwd
    L_fpoll:
    s_waitcnt vmcnt(0)""")
    tags_ok([32, 33, 34, 35], "L_fok", tags=[sTAG] * 2, sel="WORD_0")
    A(f"""s_xor_b32 s54, s54, {sFAR}
    s_mov_b32 exec_hi, {hex((1 << (2 * NE - 32)) - 1)}
    buffer_load_dwordx4 v[32:35], {vL16}, {SRD}, s54 offen sc1
    s_mov_b32 exec_hi, -1""")
    spin_tail("L_fpoll")
    A(f"""L_fok:
    s_add_u32 s54, s55, {WS_TBL}
    s_mov_b32 exec_hi, {hex((1 << (2 * NE - 32)) - 1)}
    buffer_store_dwordx4 v[32:35], {vL16}, {SRD}, s54 offen sc1
    s_mov_b32 exec_hi, -1
    L_nofwd:""")
    C("finishing workgroup of batch b: table to LDS, sum the 16 head partials, residual, LN, LN, table lookup")
    A(f"""s_cmp_lg_u32 {sFIN}, 0
    s_cbranch_scc1 L_exit
    s_xor_b32 {sT0}, {sCW}, {sG}
    s_or_b32 {sT0}, {sT0}, {sFAR}
    s_cselect_b32 s55, {WS_TBL}, {sTBLN}
    s_mul_i32 {sT0}, {sCW}, {NE * 128}
    s_add_u32 s55, s55, {sT0}
    s_add_u32 {sT0}, {sT0}, {TBL_LDS}
    v_add_u32 v13, {sT0}, {vL16}""")
    for r in range(140 + 4 * (ntl - 1), 140 + 4 * ntl):
        A(f"v_mov_b32 v{r}, {sTAG}")
    table_loads()
    A(f"""    s_mul_i32 s48, {sB}, {16 * 1792}
    s_lshl_b32 {sT0}, {sCW}, 8
    s_add_u32 s48, s48, {sT0}
    s_add_u32 s48, s48, {WS_OUTP}
    s_add_u32 s49, s48, {4 * 1792}
    s_add_u32 s50, s48, {8 * 1792}
    s_add_u32 s51, s48, {12 * 1792}
    v_mul_u32_u24 v12, 1792, {vG}
    v_lshl_add_u32 v12, {vN}, 4, v12
    L_tpoll:
    s_waitcnt vmcnt(0)""")
    tags_ok(list(range(140, 140 + 4 * ntl)), "L_tok", tags=[sTAG] * (2 * ntl), sel="WORD_0")
    A(f"s_sleep {tback}")
    table_loads()
    spin_tail("L_tpoll", 0)
    A(f"L_tok:\ns_mov_b32 s47, {128 * NE}")
    stamp(6)
    wait_lds(F_FREE + 36, 8)
    for k in range(ntl):
        if k == ntl - 1:
            A(f"s_mov_b32 exec_lo, {hex(lastm & 0xffffffff)}\ns_mov_b32 exec_hi, {hex(lastm >> 32)}")
        A(f"ds_write_b128 v13, v[{140 + 4 * k}:{143 + 4 * k}] offset:{1024 * k}")
    A("s_mov_b64 exec, -1")
    A(f"""s_cmp_eq_u32 {sCW}, 7
    s_cbranch_scc0 L_hget
    s_waitcnt lgkmcnt(0)
    s_barrier""")
    C("every workgroup has read the epoch word (its table entries carry the tag): advance it")
    A(f"""s_cmp_lg_u32 {sB}, 0
    s_cbranch_scc1 L_exit
    v_mov_b32 v5, {sTAG}
    s_mov_b64 exec, 1
    buffer_store_dword v5, {vL16}, {SRD}, 0 offen {efl}
    s_mov_b64 exec, -1
    s_branch L_exit
    L_hget:
    v_lshl_add_u32 v13, v136, 2, {vM}
    v_lshl_add_u32 v14, v0, 5, {vM}
    s_lshl_b32 {sT0}, {sCW}, 3
    v_add_u32 v40, {sT0}, v14
    s_mul_i32 {sT1}, {sB}, 896
    s_lshl_b32 {sT0}, {sCW}, 2
    s_add_u32 {sT1}, {sT1}, {sT0}
    v_add_u32 v41, {sT1}, {vL16}
    v_lshlrev_b32 v137, 16, v138
    v_mov_b32 v42, {hex(fbits(1.0 / 448.0))}
    s_mov_b32 s52, {TBL_LDS}
    s_mov_b32 s53, 0x7060302""")
    for r in range(48, 56):
        A(f"v_mov_b32 v{r}, 0")
    assert not dry

    def h_loads(r0):
        for m in range(4):
            A(f"buffer_load_dwordx4 v[{r0 + 4 * m}:{r0 + 3 + 4 * m}], v12, {SRD}, s{48 + m} offen {hld}")

    def h_sum(r):
        strip_tag(range(r + 4, r + 16))
        A(f"""v_pk_add_f32 v[{r}:{r + 1}], v[{r}:{r + 1}], v[{r + 4}:{r + 5}]
        v_pk_add_f32 v[{r + 2}:{r + 3}], v[{r + 2}:{r + 3}], v[{r + 6}:{r + 7}]
        v_pk_add_f32 v[{r + 8}:{r + 9}], v[{r + 8}:{r + 9}], v[{r + 12}:{r + 13}]
        v_pk_add_f32 v[{r + 10}:{r + 11}], v[{r + 10}:{r + 11}], v[{r + 14}:{r + 15}]
        v_pk_add_f32 v[32:33], v[{r}:{r + 1}], v[{r + 8}:{r + 9}]
        v_pk_add_f32 v[34:35], v[{r + 2}:{r + 3}], v[{r + 10}:{r + 11}]""")

    if h2:
        h_loads(96)
        A(f"s_sleep {h2}")
        h_loads(112)
        A(f"""s_branch L_hchkA
        L_hagainB:
        s_sub_u32 {sBUD}, {sBUD}, 1
        s_cbranch_scc1 L_end""")
        h_loads(112)
        A("L_hchkA:\ns_waitcnt vmcnt(4)")
        tags_ok(list(range(96, 112)), None, retry="L_hagainA", between=lambda: strip_tag(range(96, 100)))
        h_sum(96)
        A("s_branch L_hok\nL_hagainA:")
        h_loads(96)
        A("s_waitcnt vmcnt(4)")
        tags_ok(list(range(112, 128)), None, retry="L_hagainB", between=lambda: strip_tag(range(112, 116)))
        h_sum(112)
        A("L_hok:")
        stamp(11)
    else:
        if hdel:
            A(f"s_sleep {hdel}")
        A(f"""s_branch L_hpoll
        L_hagain:
        s_sub_u32 {sBUD}, {sBUD}, 1
        s_cbranch_scc1 L_end""")
        if hback:
            A(f"s_sleep {hback}")
        if KC > 1:
            C("next copy: lines nobody has read yet take the producers' writes faster")
            A(f"""s_cmp_lt_u32 s48, {WS_OUTP + (KC - 1) * 0x20000}
            s_cselect_b32 {sT0}, 0x20000, 0""")
            for m in range(4):
                A(f"s_add_u32 s{48 + m}, s{48 + m}, {sT0}")
        A("L_hpoll:")
        h_loads(16)
        A("s_waitcnt vmcnt(0)")
        tags_ok(list(range(16, 32)), None, retry="L_hagain", between=lambda: strip_tag(range(16, 20)))
        stamp(11)
        h_sum(16)
    swap_reduce4(("v32", "v33", "v34", "v35"))
    rne1("v32", "v32")
    A("v_add_f32 v32, v32, v137")
    rne1("v32", "v32")
    A(f"ds_write_b32 v13, v32 offset:{HL}")
    if dry:
        A("s_cmp_lg_u32 s54, 0\ns_cbranch_scc1 L_hdry")
    A(f"""s_cmp_ge_u32 {sCW}, 4
    s_waitcnt lgkmcnt(0)
    s_barrier
    s_cbranch_scc1 L_exit
    L_hdry:""")
    if fst:
        stamp(8)
    A(f"""    s_mov_b32 exec_hi, 0x00ffffff
    ds_read_b128 v[48:51], v14 offset:{HL}
    ds_read_b128 v[52:55], v14 offset:{HL + 16}
    ds_read_b64 v[138:139], v40 offset:{HL}
    s_mov_b32 exec_hi, -1
    s_waitcnt lgkmcnt(1)""")

    def stats8():
        sums8()
        ln_scale("v22", "v23", sT0, sT1, "v42", True)

    def sums8():
        A("""v_pk_add_f32 v[20:21], v[48:49], v[50:51]
        v_pk_mul_f32 v[24:25], v[48:49], v[48:49]
        v_pk_add_f32 v[22:23], v[52:53], v[54:55]
        v_pk_fma_f32 v[24:25], v[50:51], v[50:51], v[24:25]
        v_pk_add_f32 v[20:21], v[20:21], v[22:23]
        v_pk_fma_f32 v[24:25], v[52:53], v[52:53], v[24:25]
        v_add_f32 v20, v20, v21
        v_pk_fma_f32 v[24:25], v[54:55], v[54:55], v[24:25]
        v_add_f32 v24, v24, v25""")
        wave_sums(["v20", "v24"], [sT0, sT1])

    if alg:
        C("first LayerNorm: mean / variance of h.  Its output is a = (h - m1) * r1, so the second LayerNorm's")
        C("statistics follow exactly: mean(a) = (mean - m1) * r1, var(a) = var * r1 * r1")
        sums8()
        if fst:
            stamp(9)
        A(f"""v_mul_f32 v26, {sT1}, v42
        v_mul_f32 v27, {sT0}, v42
        v_fma_f32 v26, -v27, v27, v26""")
        rne1("v22", "v27")
        A(f"""v_cvt_pk_bf16_f32 v23, 0, abs(v26)
        v_sub_f32 v24, v27, v22
        v_add_f32 v23, {hex(fbits(1e-5))}, v23""")
        rne1("v23", "v23")
        A("""v_sqrt_f32 v23, v23
        s_waitcnt lgkmcnt(0)
        v_pk_add_f32 v[36:37], v[138:139], v[22:23] op_sel_hi:[1,0] neg_lo:[0,1] neg_hi:[0,1]""")
        rne1("v23", "v23")
        A("v_rcp_f32 v23, v23")
        rne1("v36", "v36")
        A("v_mul_f32 v25, abs(v26), v23")
        rne1("v37", "v37")
        A("v_mul_f32 v25, v25, v23\nv_mul_f32 v24, v24, v23")
        rne1("v25", "v25")
        A(f"""v_pk_mul_f32 v[36:37], v[36:37], v[22:23] op_sel:[0,1] op_sel_hi:[1,1]
        v_add_f32 v25, {hex(fbits(1e-5))}, v25""")
        rne1("v24", "v24")
        rne1("v25", "v25")
        rne1("v36", "v36")
        A("v_sqrt_f32 v25, v25")
        rne1("v37", "v37")
        rne1("v25", "v25")
        A("v_pk_add_f32 v[36:37], v[36:37], v[24:25] op_sel_hi:[1,0] neg_lo:[0,1] neg_hi:[0,1]\nv_rcp_f32 v25, v25")
        rne1("v36", "v36")
        rne1("v37", "v37")
        A("s_mov_b32 exec_hi, 0x00ffffff\nv_pk_mul_f32 v[36:37], v[36:37], v[24:25] op_sel:[0,1] op_sel_hi:[1,1]")
        rne1("v36", "v36")
        rne1("v37", "v37")
    else:
        stats8()
        A("s_waitcnt lgkmcnt(0)\nv_mov_b32 v36, v138\nv_mov_b32 v37, v139\ns_mov_b32 exec_hi, 0x00ffffff")
        normalize([48, 50, 52, 54, 36], 22, 23)
        A("s_mov_b32 exec_hi, -1")
        stats8()
        A("s_mov_b32 exec_hi, 0x00ffffff")
        normalize([36], 22, 23)
    if fst:
        stamp(10)
    A(f"""v_bfe_u32 v16, v36, 16, 15
    v_bfe_u32 v17, v37, 16, 15
    v_subrev_u32 v16, {E0 << 7}, v16
    v_subrev_u32 v17, {E0 << 7}, v17
    v_lshrrev_b32 v18, 31, v36
    v_lshrrev_b32 v19, 31, v37
    v_cmp_le_u32 vcc, {128 * NE}, v16
    v_cmp_le_u32 s[56:57], s47, v17
    v_mad_u32_u24 v16, v18, s47, v16
    v_mad_u32_u24 v17, v19, s47, v17
    v_cndmask_b32 v16, v16, 0, vcc
    v_cndmask_b32 v17, v17, 0, s[56:57]
    v_lshl_add_u32 v16, v16, 2, s52
    v_lshl_add_u32 v17, v17, 2, s52
    ds_read_b32 v38, v16
    ds_read_b32 v39, v17""")
    if dry:
        A("s_cmp_lg_u32 s54, 0\ns_cbranch_scc1 L_hreal")
    A(f"""s_or_b64 s[58:59], vcc, s[56:57]
    s_waitcnt lgkmcnt(0)
    v_and_b32 v38, {sMASK}, v38
    v_and_b32 v39, {sMASK}, v39
    s_cbranch_scc1 L_direct
    L_fin:
    v_pk_add_f32 v[38:39], v[38:39], v[138:139]""")
    if x_pert:
        A(f"v_cmp_eq_u32 vcc, 0, v41\nv_mov_b32 v5, {hex(fbits(x_pert / 10000.0))}\ns_nop 0\nv_cndmask_b32 v5, 0, v5, vcc\nv_add_f32 v38, v38, v5")
    A(f"""    v_cvt_pk_bf16_f32 v38, v38, v39
    global_store_dword v41, v38, {pOUT} {fst_fl}
    s_mov_b32 exec_hi, -1""")
    stamp(12)
    A("L_exit:")
    if diag:
        A(f"s_cmp_eq_u32 {sCW}, 0\ns_cbranch_scc0 L_st1")
        stamps_out(8, 13)
        A(f"L_st1:\ns_cmp_eq_u32 {sCW}, 3\ns_cbranch_scc0 L_end")
        stamps_out(24, 13)
    A("L_end:\ns_endpgm\nL_pfend:")
    C("inputs outside the tabulated binades: evaluate the MLP directly, one element at a time")
    A(f"""L_direct:
    s_mov_b32 exec_hi, -1
    s_mov_b64 s[54:55], vcc
    s_mov_b32 s58, 0
    v_mov_b32 v7, 0
    global_load_ushort v46, v7, {pB2}
    L_dpass:
    s_cmp_eq_u64 s[54:55], 0
    s_cbranch_scc1 L_dswap
    s_ff1_i32_b64 s52, s[54:55]
    s_bitset0_b64 s[54:55], s52
    s_nop 3
    v_readlane_b32 s50, v36, s52
    v_mov_b32 v80, 0
    v_lshlrev_b32 v5, 3, v0
    s_mov_b32 s53, 0
    L_dloop:""")
    load_w()
    A("v_add_u32 v5, 512, v5\ns_waitcnt vmcnt(0)")
    unpack_w()
    gelu(["s50"], ["v80"], False)
    A("s_add_u32 s53, s53, 1\ns_cmp_lt_u32 s53, 7\ns_cbranch_scc1 L_dloop")
    wave_sums(["v80"], [sT0])
    A(f"v_mov_b32 v80, {sT0}")
    rne1("v80", "v80")
    A("v_lshlrev_b32 v81, 16, v46\nv_add_f32 v80, v80, v81")
    rne1("v80", "v80")
    A(f"""v_cmp_eq_u32 vcc, s52, v0
    s_nop 1
    v_cndmask_b32 v38, v38, v80, vcc
    s_branch L_dpass
    L_dswap:
    v_swap_b32 v36, v37
    v_swap_b32 v38, v39
    s_mov_b64 s[54:55], s[56:57]
    s_add_u32 s58, s58, 1
    s_cmp_eq_u32 s58, 1
    s_cbranch_scc1 L_dpass
    s_mov_b32 exec_hi, 0x00ffffff
    s_branch L_fin""")
    for c in cold:
        A(c)
    A("L_codeend:")
    if epf >= 3:
        L.append(".if L_codeend - L_pc0 < 9216\n.error \"code prefetch would run past the code\"\n.endif")
    L.append(f""".section .rodata,"a"
.p2align 6
.amdhsa_kernel {KN}_kernel
  .amdhsa_next_free_vgpr 168
  .amdhsa_next_free_sgpr 96
  .amdhsa_accum_offset 168
  .amdhsa_float_denorm_mode_32 3
  .amdhsa_group_segment_fixed_size 0
  .amdhsa_kernarg_size 104
  .amdhsa_user_sgpr_count 2
  .amdhsa_user_sgpr_kernarg_segment_ptr 1
  .amdhsa_system_sgpr_workgroup_id_x 1
.end_amdhsa_kernel""")
    return "\n".join(L) + "\n"


if __name__ == "__main__":
    names = []
    for spec in sys.argv[1:]:
        kw = {}
        name = None
        for kv in spec.split(","):
            if not kv:
                continue
            k, v = kv.split("=")
            if k == "o":
                name = v
                continue
            kw[k] = int(v) if v.lstrip("-").isdigit() else v.replace("+", " ").replace("none", "")
        name = name or "k_" + spec.replace(",", "_").replace("=", "").replace("+", "") + ".s"
        open(name, "w").write(gen(**kw))
        names.append(name)
    print(" ".join(names))
```

```python
import sys, struct, math
KN = "sequential_preLN__sliding_block_cached__mixer_token_mlp__decode"

def fbits(x):
    return struct.unpack("<I", struct.pack("<f", x))[0]

WS_E, WS_IDS, WS_TBL, WS_TBLN, WS_STATS, WS_Q, WS_OP, WS_OUTP = 0, 0x1000, 0x20000, 0x28000, 0x30000, 0x40000, 0x80000, 0x100000
WS_FAR = 0x200000
WS_STAMP = 0x10000000
SLOT = 16384
MISC = 9 * SLOT
LN, QL, PL, OL, TP, FL, HL = 0x0, 0x1000, 0x1500, 0x1A00, 0x1F00, 0x2300, 0x2400
HP = 576
F_LANDED, F_LNCNT, F_QCNT, F_MAXCNT, F_PCNT, F_TCNT, F_TAG, F_LOC, F_MX, F_FREE = FL, FL + 4, FL + 8, FL + 12, FL + 16, FL + 20, FL + 24, FL + 28, FL + 32, FL + 64
TBL_LDS = 7 * SLOT
TAGINC = 0x9E3779B9


def gen(D=24, DV=0, DW=40, NE=24, diag=0, ld="nt", ldq="nt", ldo="nt", rot=2, ra=1, rc=0, pf=1, epf=4, pfm=7, bar=4, uni=1, nL=16, dl="", tight=1, touch=0, h2=0, olin=1, KC=1, opre=0, oprefl="sc1", hdel=0, obar=1, vbar=1, wbar=1, slp=1, pvslp=0, qback=8, tback=8, hback=0, oback=0, nst="", qst="", fst_fl="", wb=0, efl="", ost="sc1", fst=0, lst=0, hld="sc1", jmid=6, QT=4, qit=1, rnd=1, dry=0, alg=1,
        x_tl=0, x_far=0, x_nofree=0, x_stop=0, x_pert=0, x_nofwd=0):
    L = []
    uid = [0]
    cold = []

    def A(s):
        for ln in s.split("\n"):
            ln = ln.strip()
            if ln:
                L.append(ln if ln.endswith(":") else "    " + ln)

    def C(s):
        L.append("    ; " + s)

    def lab(p):
        uid[0] += 1
        return f"L_{p}{uid[0]}"

    assert NE % 4 == 0
    E0 = 132 - NE
    LB = 1
    wpos = 8
    sW, sWV = "s2", "s3"
    pX, pK, pV, pWQ, pWO, pW1, pB1, pW2, pB2, pOUT, pWS = "s[4:5]", (6, 7), (8, 9), (10, 11), (12, 13), "s[16:17]", "s[18:19]", "s[20:21]", "s[22:23]", "s[24:25]", "s[28:29]"
    sG, sI, sB, sS, sIDX, sBG = "s30", "s31", "s32", "s33", "s34", "s35"
    SRD = "s[36:39]"
    sBUD, sTAG, sFIN, sMASK, sXCC, sFAR = "s60", "s61", "s62", "s63", "s14", "s15"
    sTAG1 = "s0"
    tagof = lambda r: sTAG1 if r & 2 else sTAG
    sTBLN = "s27"
    sWT = "s26"
    sT0, sT1, sT2, sT3, sT4, sT5 = "s40", "s41", "s42", "s43", "s44", "s45"
    vM, vG, vN, vONE, vL16, vFF = "v1", "v2", "v3", "v4", "v6", "v15"

    def stamp(k):
        if diag:
            A(f"s_memrealtime s[{64 + 2 * k}:{65 + 2 * k}]")

    def stamps_out(base, n):
        if not diag:
            return
        A(f"s_waitcnt lgkmcnt(0)\ns_lshl_b32 {sT0}, {sW}, 9\ns_add_u32 {sT0}, {sT0}, {WS_STAMP + base * 8}\nv_mov_b32 v5, {sT0}\ns_mov_b64 exec, 1")
        for k in range(n):
            A(f"v_mov_b32 v6, s{64 + 2 * k}\nv_mov_b32 v7, s{65 + 2 * k}\nglobal_store_dwordx2 v5, v[6:7], {pWS} offset:{8 * k}\ns_nop 1")
        A("s_mov_b64 exec, -1")

    def spin_tail(top, sleep=None):
        sleep = slp if sleep is None else sleep
        if sleep:
            A(f"s_sleep {sleep}")
        A(f"s_sub_u32 {sBUD}, {sBUD}, 1\ns_cbranch_scc0 {top}\ns_branch L_end")

    def wait_lds(off, val, vt="v5", addr=vM, sleep=None):
        top, done = lab("w"), lab("d")
        A(f"{top}:\nds_read_b32 {vt}, {addr} offset:{off}\ns_waitcnt lgkmcnt(0)\nv_readfirstlane_b32 {sT5}, {vt}\ns_cmp_ge_u32 {sT5}, {val}\ns_cbranch_scc1 {done}")
        spin_tail(top, sleep)
        A(f"{done}:")

    def signal(off, vval=vONE, addr=vM):
        A(f"s_mov_b64 exec, 1\nds_add_u32 {addr}, {vval} offset:{off}\ns_mov_b64 exec, -1")

    def tags_ok(regs, ok, guard=None, tags=None, sel="BYTE_0", retry=None, between=None):
        t = ["v5", "v7", "v8", "v9", "v10", "v11", "v56", "v57"]
        parts = []
        for k in range(0, len(regs), 2):
            A(f"v_bitop3_b32 {t[k // 2]}, v{regs[k]}, v{regs[k + 1]}, {tags[k // 2] if tags else tagof(regs[k])} bitop3:0x7e")
            parts.append(t[k // 2])
        if guard:
            A(guard(parts))
        while len(parts) > 1:
            if len(parts) >= 3:
                A(f"v_or3_b32 {parts[0]}, {parts[0]}, {parts[-1]}, {parts[-2]}")
                parts = parts[:-2]
            else:
                A(f"v_or_b32 {parts[0]}, {parts[0]}, {parts[1]}")
                parts = parts[:1]
        A(f"v_cmp_ne_u32_sdwa vcc, v5, 0 src0_sel:{sel} src1_sel:DWORD")
        if retry:
            between()
            A(f"s_cmp_lg_u64 vcc, 0\ns_cbranch_scc1 {retry}")
        else:
            A(f"s_cmp_eq_u64 vcc, 0\ns_cbranch_scc1 {ok}")

    def strip_tag(regs):
        for r in regs:
            A(f"v_bfi_b32 v{r}, {vFF}, 0, v{r}")

    def store_group(ins, soff):
        far, done = lab("far"), lab("pub")
        A(f"{ins.format(soff)} {nst}\ns_cmp_lg_u32 {sFAR}, 0\ns_cbranch_scc1 {far}\n{done}:")
        cold.append(f"{far}:\ns_add_u32 {sT5}, {soff}, {WS_FAR}\n{ins.format(sT5)} sc1\ns_branch {done}")

    def put_tag(regs, exact=False, tag=None):
        if rnd and not exact:
            for r in regs:
                A(f"v_add_u32 v{r}, 0x80, v{r}")
        for r in regs:
            A(f"v_bfi_b32 v{r}, {vFF}, {tag or tagof(r)}, v{r}")

    DPP = ["quad_perm:[1,0,3,2] row_mask:0xf", "quad_perm:[2,3,0,1] row_mask:0xf", "row_half_mirror row_mask:0xf",
           "row_mirror row_mask:0xf", "row_bcast:15 row_mask:0xa", "row_bcast:31 row_mask:0xc"]

    def wave_sums(regs, sdst):
        A("s_nop 1" if len(regs) == 1 else "s_nop 0")
        for m in DPP:
            for r in regs:
                A(f"v_add_f32_dpp {r}, {r}, {r} {m} bank_mask:0xf")
            if len(regs) == 1 or m != DPP[-1]:
                A("s_nop 1" if len(regs) == 1 else "s_nop 0")
        for r, s in zip(regs, sdst):
            A(f"v_readlane_b32 {s}, {r}, 63")
        A("s_nop 1")

    def rne1(dst, src):
        A(f"v_cvt_pk_bf16_f32 {dst}, 0, {src}")

    def unpack2(lo, hi, src):
        A(f"v_lshlrev_b32 {lo}, 16, {src}\nv_and_b32 {hi}, {sMASK}, {src}")

    def ln_scale(vm, vr, sS1, sS2, vinv, onepass):
        A(f"v_mul_f32 {vr}, {sS2}, {vinv}\nv_mul_f32 {vm}, {sS1}, {vinv}")
        if onepass:
            A(f"v_fma_f32 {vr}, -{vm}, {vm}, {vr}")
        A(f"v_cvt_pk_bf16_f32 {vr}, 0, abs({vr})")
        rne1(vm, vm)
        A(f"v_add_f32 {vr}, {hex(fbits(1e-5))}, {vr}")
        rne1(vr, vr)
        A(f"v_sqrt_f32 {vr}, {vr}\ns_nop 0")
        rne1(vr, vr)
        A(f"v_rcp_f32 {vr}, {vr}\ns_nop 0")

    def normalize(pairs, vm, vr, last=True):
        for a in pairs:
            A(f"v_pk_add_f32 v[{a}:{a + 1}], v[{a}:{a + 1}], v[{vm}:{vm + 1}] op_sel_hi:[1,0] neg_lo:[0,1] neg_hi:[0,1]")
        for a in pairs:
            rne1(f"v{a}", f"v{a}")
            rne1(f"v{a + 1}", f"v{a + 1}")
        for a in pairs:
            A(f"v_pk_mul_f32 v[{a}:{a + 1}], v[{a}:{a + 1}], v[{vm}:{vm + 1}] op_sel:[0,1] op_sel_hi:[1,1]")
        if last:
            for a in pairs:
                rne1(f"v{a}", f"v{a}")
                rne1(f"v{a + 1}", f"v{a + 1}")

    K1 = -2.0 * math.sqrt(2.0 / math.pi) * math.log2(math.e)
    K2 = K1 * 0.044715
    CEXP = math.log2(math.e) / 16.0

    def gelu(sTs, accs, first):
        el = [(i, e) for e in range(4) for i in range(len(sTs))]
        u = lambda i, e: f"v{60 + 4 * i + e}"
        p = lambda i, e: f"v{68 + 4 * i + e}"
        for i, e in el:
            A(f"v_fma_f32 {u(i, e)}, {sTs[i]}, v{48 + e}, v{52 + e}")
        for i, e in el:
            A(f"v_mul_f32 {p(i, e)}, {u(i, e)}, {u(i, e)}")
        for i, e in el:
            A(f"v_fmaak_f32 {p(i, e)}, {p(i, e)}, v47, {hex(fbits(K1))}")
        for i, e in el:
            A(f"v_mul_f32 {p(i, e)}, {p(i, e)}, {u(i, e)}")
        for i, e in el:
            A(f"v_exp_f32 {p(i, e)}, {p(i, e)}\nv_mul_f32 {u(i, e)}, {u(i, e)}, v{56 + e}")
        for i, e in el:
            A(f"v_add_f32 {p(i, e)}, 1.0, {p(i, e)}")
        for i, e in el:
            A(f"v_rcp_f32 {p(i, e)}, {p(i, e)}")
        A("s_nop 0")
        for i, e in el:
            A(f"v_mul_f32 {accs[i]}, {u(i, e)}, {p(i, e)}" if first and e == 0 else f"v_fmac_f32 {accs[i]}, {u(i, e)}, {p(i, e)}")

    def unpack_w():
        for k, src in enumerate((76, 77, 78, 79, 84, 85)):
            unpack2(f"v{48 + 2 * k}", f"v{49 + 2 * k}", f"v{src}")
        A(f"v_mov_b32 v47, {hex(fbits(K2))}")

    def load_w():
        A(f"global_load_dwordx2 v[76:77], v5, {pW1}\nglobal_load_dwordx2 v[78:79], v5, {pB1}\nglobal_load_dwordx2 v[84:85], v5, {pW2}")

    def swap_reduce4(*sets, pad=True):
        if pad:
            A("s_nop 0")
        for a, b, c, d in sets:
            A(f"v_permlane16_swap_b32 {a}, {b}\nv_permlane16_swap_b32 {c}, {d}")
        for a, b, c, d in sets:
            A(f"v_add_f32 {a}, {a}, {b}\nv_add_f32 {c}, {c}, {d}")
        A("s_nop 1")
        for a, b, c, d in sets:
            A(f"v_permlane32_swap_b32 {a}, {c}")
        for a, b, c, d in sets:
            A(f"v_add_f32 {a}, {a}, {c}")

    L.append(f"""; Fused decode block, one launch: LN -> q projection -> sliding-window GQA attention (last 2048 keys) -> output
;
;   all 32 members run on its own die it also writes a second copy through to memory, and readers then try both copies.""")
    L.append(f"; @launch grid=(256,1,1) block=(576,1,1) lds={10 * SLOT}")
    L.append('.amdgcn_target "amdgcn-amd-amdhsa--gfx950"\n.text')
    L.append(f".globl {KN}_kernel\n.p2align 8\n.type {KN}_kernel,@function\n{KN}_kernel:")
    A(f"""s_cmpk_ge_u32 {sW}, 256
    s_cbranch_scc1 L_end
    s_load_dwordx16 s[4:19], s[0:1], 0""")
    if epf == 4:
        C("some waves pull 1 KiB of this kernel's code towards the L2 (speed only)")
        A(f"""v_lshrrev_b32 v1, 6, v0
        s_lshr_b32 {sI}, {sW}, 3
        v_readfirstlane_b32 {sWV}, v1
        s_getpc_b64 s[40:41]
        L_pc0:
        v_lshlrev_b32 v8, 4, v0
        s_add_u32 {sT2}, {sWV}, {sI}
        s_and_b32 {sT2}, {sT2}, {pfm}
        s_cbranch_scc1 L_nopf0
        v_mov_b32 v9, s41
        v_add_co_u32 v8, vcc, s40, v8
        v_addc_co_u32 v9, vcc, 0, v9, vcc
        global_load_dwordx4 v[20:23], v[8:9], off
        L_nopf0:""")
    if epf == 3:
        C("every wave pulls 1 KiB of this kernel's code towards the L2 (speed only)")
        A("""s_getpc_b64 s[40:41]
        L_pc0:
        v_lshlrev_b32 v8, 4, v0
        v_mov_b32 v9, s41
        v_add_co_u32 v8, vcc, s40, v8
        v_addc_co_u32 v9, vcc, 0, v9, vcc
        global_load_dwordx4 v[20:23], v[8:9], off""")
    rest = "s_load_dwordx8 s[20:27], s[0:1], 64\ns_load_dwordx2 s[28:29], s[0:1], 96"
    if not tight:
        A(rest)
    stamp(0)
    if epf != 4:
        A(f"v_lshrrev_b32 v1, 6, v0\ns_lshr_b32 {sI}, {sW}, 3\nv_readfirstlane_b32 {sWV}, v1")
    A(f"""s_and_b32 {sG}, {sW}, 7
    s_and_b32 {sB}, {sI}, 3
    s_lshr_b32 {sS}, {sI}, 2""")
    A(f"""s_lshl3_add_u32 {sBG}, {sB}, {sG}
""")
    A(f"s_cmp_eq_u32 {sWV}, 0\ns_cbranch_scc1 L_loader")
    if epf in (1, 2):
        C("compute waves: pull this kernel's code towards the L2, 1 KiB pieces (speed only)")
        A(f"""s_getpc_b64 s[40:41]
        L_pc0:
        v_lshlrev_b32 v8, 4, v0
        v_add_u32 v10, {8 * 1024 - 1024}, v8
        v_min_u32 v10, L_codeend-L_pc0-16, v10
        v_add_u32 v8, {-1024 & 0xffffffff}, v8
        v_mov_b32 v9, s41
        v_add_co_u32 v8, vcc, s40, v8
        v_mov_b32 v11, s41
        v_addc_co_u32 v9, vcc, 0, v9, vcc
        global_load_dwordx4 v[20:23], v[8:9], off""")
        if epf > 1:
            A(f"""v_add_co_u32 v10, vcc, s40, v10
            s_nop 1
            v_addc_co_u32 v11, vcc, 0, v11, vcc
            global_load_dwordx4 v[20:23], v[10:11], off""")
    A("s_barrier\ns_branch L_compute\nL_loader:")
    C("---------------- loader wave")
    sN, sSLOT, sBASE, sGS, sRG, sRS, sCNT, sGI, sKV = "s48", "s49", "s50", "s51", "s52", "s53", "s54", "s55", "s56"
    sKJ = "s57"
    if True:
        C("rows 112b.. of wq, columns 512g+64s.. -> ring slot 8 (two lanes-wide issues run past the slice's descriptor)")
        A(f"""s_mov_b32 s46, {112 * 8192}
        s_mul_i32 {sT0}, {sB}, s46
        s_lshl3_add_u32 {sT1}, {sG}, {sS}
        s_lshl_b32 {sT1}, {sT1}, 7
        s_add_u32 {sT0}, {sT0}, {sT1}
        s_mov_b32 {sT3}, {65536 - 1024}
        v_lshrrev_b32 v12, 3, v0
        v_lshlrev_b32 v12, 13, v12
        v_and_b32 v13, 7, v0
        v_lshrrev_b32 v14, 4, v0
        v_lshlrev_b32 v14, 1, v14
        v_xor_b32 v13, v13, v14
        v_lshl_or_b32 v12, v13, 4, v12
        v_add_u32 v13, {sT3}, v12
        v_add_u32 v14, {sT3}, v13
        v_add_u32 v15, {sT3}, v14
        s_mov_b32 s47, 0x20000
        s_mov_b32 m0, s47
        {f"s_lshl_b32 {sT2}, s47, 1" if tight else ""}
        {f"s_mov_b32 {sT1}, 0" if tight else ""}
        s_waitcnt lgkmcnt(0)
        s_add_u32 s44, s{pWQ[0]}, {sT0}
        s_addc_u32 s45, s{pWQ[1]}, 0""")
        if lst:
            stamp(7)
        flags = f"""s_setprio 3
        s_mov_b32 {sBUD}, 0x80000
        v_mov_b32 {vM}, {MISC}
        s_mov_b32 s39, 0x20000
        v_lshrrev_b32 v6, 1, v0
        v_cmp_eq_u32 vcc, 4, v6
        v_lshl_add_u32 v5, v0, 2, {vM}
        v_mov_b32 v7, 0xff800000
        v_cndmask_b32 v6, 0, v7, vcc
        ds_write_b32 v5, v6 offset:{FL}
        s_waitcnt lgkmcnt(0)
        s_barrier"""
        if tight:
            A("L_wq:")
            for k in range(4):
                A(f"buffer_load_dwordx4 v{12 + k}, s[44:47], {sT1} offen offset:{1024 * k} {ldq} lds")
            A(f"""s_addk_i32 m0, 4096
            s_add_u32 {sT1}, {sT1}, {sT2}
            s_bitcmp0_b32 {sT1}, 20
            s_cbranch_scc1 L_wq""")
            A(flags)
            stamp(1)
            if diag:
                A("s_load_dwordx2 s[28:29], s[0:1], 96")
        for u in range(0 if tight else 16):
            if u % 4 == 0 and u:
                A(f"s_mov_b32 m0, {8 * SLOT + 1024 * u}\ns_mov_b32 {sT1}, {65536 * u}")
            A(f"buffer_load_dwordx4 v{12 + u % 4}, s[44:47], {sT1 if u > 3 else 0} offen offset:{1024 * (u % 4)} {ldq} lds")
            if u == bar - 1:
                A(flags)
                stamp(1)
    A(f"""    v_lshrrev_b32 v5, 5, v0
    v_and_b32 v6, 31, v0
    v_lshlrev_b32 v7, 1, v5
    v_xor_b32 v6, v6, v7
    v_lshlrev_b32 v6, 4, v6
    v_lshl_or_b32 v8, v5, 9, v6
    v_xor_b32 v9, 64, v8
    v_xor_b32 v10, 0x80, v8
    v_xor_b32 v11, 0xc0, v8
    s_mov_b32 {sN}, 0
    s_mov_b32 {sSLOT}, 0
    s_mov_b32 {sGS}, 4096
    s_mov_b32 {sCNT}, 16
    s_mov_b32 s38, {8 * SLOT}""")
    sR = sI
    if ra != 1 or rc:
        A(f"s_mul_i32 {sT0}, {sI}, {ra}\ns_mul_i32 {sT1}, {sG}, {rc}\ns_add_u32 {sT0}, {sT0}, {sT1}\ns_and_b32 {sT0}, {sT0}, 31")
        sR = sT0
    if rot == 1:
        A(f"s_and_b32 {sRG}, {sR}, 3\ns_lshr_b32 {sRS}, {sR}, 2")
    elif rot == 2:
        A(f"s_lshr_b32 {sRG}, {sR}, 3\ns_and_b32 {sRS}, {sR}, 7")
    elif rot == 3:
        A(f"s_mov_b32 {sRG}, 0\ns_and_b32 {sRS}, {sR}, 7")
    elif rot == 4:
        A(f"s_and_b32 {sRG}, {sR}, 3\ns_mov_b32 {sRS}, 0")
    elif rot == 5:
        A(f"s_lshr_b32 {sRG}, {sR}, 2\ns_and_b32 {sRS}, {sR}, 3")
    else:
        A(f"s_mov_b32 {sRG}, 0\ns_mov_b32 {sRS}, 0")
    A(f"""s_lshl_b32 {sKV}, {sBG}, 22
    s_lshl_b32 {sT1}, {sS}, 17
    s_add_u32 {sKV}, {sKV}, {sT1}
    s_add_u32 {sKV}, {sKV}, 0x300000
""")
    A(f"""s_add_u32 s36, s{pK[0]}, {sKV}
    s_addc_u32 s37, s{pK[1]}, 0""")

    def group_loop(flag, first, D, vb=8):
        top = lab("grp")
        A(f"s_mov_b32 {sT2}, 0")
        A(f"""{top}:
        s_add_u32 {sGI}, {sT2}, {sRG}
        s_and_b32 {sGI}, {sGI}, 3
        s_lshl_b32 {sT0}, {sGI}, 12
        s_mul_i32 {sT1}, {sGI}, {sGS}
        s_add_u32 m0, {sT0}, {sSLOT}
        s_add_u32 {sT1}, {sT1}, {sBASE}""")
        for k in range(4):
            A(f"s_waitcnt vmcnt({D - 1})\nbuffer_load_dwordx4 v{vb + k}, {SRD}, {sT1} offen offset:{1024 * k} {flag} lds")
        nb, nw = lab("nb"), lab("nw")
        A(f"s_add_u32 {sCNT}, {sCNT}, 4")
        A(f"""s_sub_u32 {sT0}, {sCNT}, {(D + 3) // 4 * 4}
        s_cbranch_scc1 {nw}
        s_and_b32 {sT1}, {sT0}, 15
        s_cbranch_scc1 {nw}
        s_lshr_b32 {sT0}, {sT0}, 4
        v_mov_b32 v5, {sT0}
        ds_write_b32 {vM}, v5 offset:{F_LANDED}
        {nw}:
        s_add_u32 {sT2}, {sT2}, 1
        s_cmp_lt_u32 {sT2}, 4
        s_cbranch_scc1 {top}""")

    def next_slot():
        A(f"""s_add_u32 {sN}, {sN}, 1
        s_add_u32 {sSLOT}, {sSLOT}, {SLOT}
        s_cmp_eq_u32 {sSLOT}, {9 * SLOT}
        s_cselect_b32 {sSLOT}, 0, {sSLOT}""")

    def wait_free():
        if x_nofree:
            return
        A(f"s_lshl_b32 {sT0}, {sN}, 2\nv_add_u32 v6, {sT0}, {vM}")
        wait_lds(F_FREE - 32, 8, "v5", "v6")

    def landed(k):
        A(f"v_mov_b32 v5, {k}\nds_write_b32 {vM}, v5 offset:{F_LANDED}")

    def drain(total, D):
        for k in range(total - (D + 15) // 16 + 1, total + 1):
            A(f"s_waitcnt vmcnt({16 * (total - k)})")
            if vbar and k == total:
                A("s_barrier")
            else:
                landed(k)

    def seg_base():
        A(f"s_add_u32 {sT0}, {sN}, {sRS}\ns_and_b32 {sT0}, {sT0}, 7\ns_lshl_b32 {sBASE}, {sT0}, 14")

    assert wpos == 8
    DV = DV or D
    if lst:
        stamp(8)
    if uni:
        assert DV == D or nL < 16
        C("segments 0..7: K, 8..15: V (each V segment into a slot its readers have released)")
        dls = [int(x) for x in dl.split(":")] if dl else [D] * 8
        uniq = sorted(set(dls))
        DV = max(uniq)
        for d in uniq[1:]:
            mask = sum(1 << x for x in range(8) if dls[x] == d)
            A(f"s_movk_i32 {sT0}, {mask}\ns_bitcmp1_b32 {sT0}, {sG}\ns_cbranch_scc1 L_kv{d}")
        for d in uniq:
            A(f"L_kv{d}:")
            seg_base()
            group_loop(ld, True, d)
            next_slot()
            A(f"""s_cmp_lt_u32 {sN}, 8
            s_cbranch_scc1 L_kv{d}
            s_cmp_eq_u32 {sN}, {nL}
            s_cbranch_scc1 L_kvend
            s_add_u32 s36, s{pV[0]}, {sKV}
            s_addc_u32 s37, s{pV[1]}, 0""")
            if diag:
                A(f"s_cmp_lg_u32 {sN}, 8\ns_cbranch_scc1 L_nost2{d}")
                stamp(2)
                A(f"L_nost2{d}:")
            if x_nofree:
                A(f"s_branch L_kv{d}")
            A(f"""s_lshl_b32 {sT0}, {sN}, 2
            v_add_u32 v6, {sT0}, {vM}
            L_free{d}:
            ds_read_b32 v5, v6 offset:{F_FREE - 32}
            s_waitcnt lgkmcnt(0)
            v_readfirstlane_b32 {sT5}, v5
            s_cmp_ge_u32 {sT5}, 8
            s_cbranch_scc1 L_kv{d}""")
            spin_tail(f"L_free{d}")
        A("L_kvend:")
        if nL < 16:
            A("L_v:")
            wait_free()
            seg_base()
            group_loop(ld, False, DV)
            next_slot()
            A(f"s_cmp_lt_u32 {sN}, 16\ns_cbranch_scc1 L_v")
    else:
        C("segments 0..7: K")
        A("L_k:")
        seg_base()
        group_loop(ld, True, D)
        next_slot()
        A(f"""s_cmp_lt_u32 {sN}, 8
        s_cbranch_scc1 L_k
        s_add_u32 s36, s{pV[0]}, {sKV}
        s_addc_u32 s37, s{pV[1]}, 0""")
        stamp(2)
        C("segments 8..15: V, each into a slot its readers have released")
        A("L_v:")
        wait_free()
        seg_base()
        group_loop(ld, False, DV)
        next_slot()
        A(f"s_cmp_lt_u32 {sN}, 16\ns_cbranch_scc1 L_v")
    stamp(3)
    A(f"s_cmp_lg_u32 {sS}, 7\ns_cbranch_scc1 L_wo")
    A("L_nowo:")
    drain(16 + LB, DV)
    A("s_branch L_ldone")
    C("two segments of wo: rows of head 2g + (b&1), 64 columns -> slots 7, 8")
    A(f"""L_wo:
    {"s_branch L_nowo" if x_stop == 9 else ""}
    v_lshrrev_b32 v5, 3, v0
    v_and_b32 v6, 7, v0
    v_lshrrev_b32 v7, 4, v0
    v_lshlrev_b32 v7, 1, v7
    v_xor_b32 v6, v6, v7
    v_lshlrev_b32 v6, 4, v6
    v_mul_u32_u24 v5, 896, v5
    v_add_u32 v12, v5, v6
    v_add_u32 v13, {7168 - 1024}, v12
    v_add_u32 v14, {7168 - 1024}, v13
    v_add_u32 v15, {7168 - 1024}, v14
    s_mov_b32 s36, s{pWO[0]}
    s_mov_b32 s37, s{pWO[1]}
    s_mov_b32 s38, {4096 * 896}
    s_lshl_b32 {sT0}, {sG}, 1
    s_and_b32 {sT1}, {sB}, 1
    s_add_u32 {sT0}, {sT0}, {sT1}
    s_mul_i32 {sBASE}, {sT0}, {256 * 896}
    s_lshl_b32 {sT1}, {sS}, 7
    s_add_u32 {sBASE}, {sBASE}, {sT1}""")
    T0 = 16 * (16 + LB)
    done = (T0 - (DV + 3) // 4 * 4) // 16
    for u in range(32):
        if u % 16 == 0 and not x_nofree:
            wait_lds(F_FREE + 4 * (8 + u // 16), 8)
        if u % 4 == 0:
            A(f"s_mov_b32 m0, {7 * SLOT + 1024 * u}")
            A(f"s_add_u32 {sBASE}, {sBASE}, {4 * 7168}" if u else "s_nop 0")
        if u + DV >= DW:
            A(f"s_waitcnt vmcnt({DW - 1})")
            k = (T0 + u - DW + 1) // 16
            if k > done:
                landed(k)
                done = k
        A(f"buffer_load_dwordx4 v{12 + u % 4}, {SRD}, {sBASE} offen offset:{1024 * (u % 4)} {ldo} lds")
    stamp(4)
    assert done < 16 + LB
    for k in range(done + 1, 18 + LB + 1):
        if k != 17 + LB:
            A(f"s_waitcnt vmcnt({16 * (18 + LB - k)})")
            if (vbar and k == 16 + LB) or (wbar and k == 18 + LB):
                A("s_barrier")
            else:
                landed(k)
            if obar and k == 16 + LB:
                A("s_barrier")
    A("L_ldone:")
    stamp(5)
    A("s_waitcnt lgkmcnt(0)")
    if diag:
        A(f"s_sub_u32 {sT0}, 0x80000, {sBUD}\ns_mul_i32 {sT0}, {sT0}, 100\ns_add_u32 s76, s64, {sT0}\ns_addc_u32 s77, s65, 0")
    stamps_out(0, 7)
    if lst:
        A('s_mov_b32 s64, s78\ns_mov_b32 s65, s79\ns_mov_b32 s66, s80\ns_mov_b32 s67, s81')
        stamps_out(40, 2)
    A("s_endpgm")

    C("---------------- compute waves")
    sCW = sWV
    A(f"""L_compute:
    {"s_endpgm" if x_stop == 9 else ""}
    {rest if tight else ""}
    s_sub_u32 {sCW}, {sWV}, 1
    s_mov_b32 {sBUD}, 0x80000
    v_mov_b32 {vM}, {MISC}
    s_mov_b32 s39, 0x20000
    v_and_b32 v0, 63, v0
    v_lshlrev_b32 {vL16}, 4, v0
    s_mul_i32 {sT0}, {sCW}, 896
    v_add_u32 v5, {sT0}, {vL16}
    v_mov_b32 v16, 0
    v_mov_b32 v17, 0
    v_mov_b32 v18, 0
    v_mov_b32 v19, 0
    v_lshrrev_b32 {vG}, 4, v0
    v_and_b32 {vN}, 15, v0
    v_mov_b32 {vONE}, 1
    v_mov_b32 {vFF}, 0xff
    v_mov_b32 v14, 0
    s_mov_b32 {sMASK}, 0xffff0000
    s_lshl_b32 {sIDX}, {sBG}, 3
    s_add_u32 {sIDX}, {sIDX}, {sS}
    s_lshl_b32 {sT0}, {sB}, 1
    s_xor_b32 {sFIN}, {sT0}, {sG}
    s_mov_b32 s38, 0x400000
    s_lshl_b32 {sT0}, {sG}, 2
    s_add_u32 {sT0}, {sT0}, {sB}
    s_lshl_b32 {sT0}, {sT0}, 3
    s_add_u32 {sT0}, {sT0}, {sS}
    s_waitcnt lgkmcnt(0)
    s_mov_b32 {sWT}, {sT0}
    s_mov_b32 {sTBLN}, {WS_TBLN}
    s_lshl_b32 s47, {sBG}, 13
    s_lshl_b32 {sT0}, {sCW}, 10
    s_or_b32 s47, s47, {sT0}
    s_or_b32 s47, s47, {WS_Q}
    s_cmp_ge_u32 {sCW}, 4
    s_mov_b32 s36, s28
    s_mov_b32 s37, s29
    s_load_dword {sTAG}, {pWS}, {WS_E}
    s_cbranch_scc1 L_nox
    s_mov_b32 exec_hi, 0x00ffffff
    global_load_dwordx4 v[16:19], v5, {pX}
    s_mov_b32 exec_hi, -1
    L_nox:
    s_cmp_lg_u32 {sCW}, 0
    s_cbranch_scc1 L_notq0
    v_mov_b32 v7, 0
    global_load_ushort v167, v7, {pB2}
    s_getreg_b32 {sXCC}, hwreg(HW_REG_XCC_ID, 0, 4)
    s_lshl_b32 s59, {sG}, 7
    s_add_u32 s59, s59, {WS_IDS}
    s_lshl_b32 {sT0}, {sI}, 2
    s_add_u32 {sT0}, {sT0}, s59
    s_lshl_b32 {sXCC}, {sXCC}, 24
    s_waitcnt lgkmcnt(0)
    s_add_u32 {sTAG}, {sTAG}, {hex(TAGINC)}
    s_lshr_b32 {sTAG1}, {sTAG}, 8
    s_and_b32 {sT1}, {sTAG}, 0xffffff
    s_or_b32 {sXCC}, {sXCC}, {sT1}
    v_mov_b32 v8, {sXCC}
    s_mov_b64 exec, 1
    buffer_store_dword v8, {vL16}, {SRD}, {sT0} offen
    s_mov_b64 exec, -1
    s_waitcnt vmcnt(2)
    s_branch L_ln
    L_notq0:
    s_lshl_b32 {sT0}, {sCW}, 9
    s_sub_u32 {sT0}, {sT0}, 512
    v_lshl_add_u32 v5, v0, 3, {sT0}""")
    load_w()
    if touch:
        C("wave 6: first touch of the pages that are streamed later (address translation, speed only)")
        A(f"""s_cmp_lg_u32 {sCW}, 6
        s_cbranch_scc1 L_notouch
        s_lshl_b32 {sT0}, {sBG}, 22
        s_lshl_b32 {sT1}, {sS}, 17
        s_add_u32 {sT0}, {sT0}, {sT1}
        s_add_u32 {sT0}, {sT0}, 0x300000
        v_mov_b32 v8, {sT0}
        s_mul_i32 {sT0}, {sG}, {512 * 896}
        v_mov_b32 v9, {sT0}
        s_mov_b64 exec, 1
        global_load_dword v20, v8, s[8:9] nt""")
        if touch > 1:
            A(f"""global_load_dword v21, v9, s[12:13] nt
            v_add_u32 v9, {512 * 896 - 4}, v9
            global_load_dword v22, v9, s[12:13] nt""")
        if touch > 2:
            A(f"v_mov_b32 v9, 0\nglobal_load_dword v23, v9, {pOUT} nt")
        A("s_mov_b64 exec, -1\nL_notouch:")
    if pf:
        C("waves 6, 7: the last two KiB of the code")
        A(f"""s_cmp_lt_u32 {sCW}, 6
        s_cbranch_scc1 L_nopf
        s_getpc_b64 s[40:41]
        L_pfpc:
        s_lshl_b32 {sT2}, {sCW}, 10
        s_add_u32 {sT2}, {sT2}, L_pfend-L_pfpc-8192
        s_add_u32 s40, s40, {sT2}
        s_addc_u32 s41, s41, 0
        v_mov_b32 v9, s41
        v_add_co_u32 v8, vcc, s40, {vL16}
        s_nop 1
        v_addc_co_u32 v9, vcc, 0, v9, vcc
        global_load_dwordx4 v[20:23], v[8:9], off
        L_nopf:""")
    A(f"""s_waitcnt lgkmcnt(0)
    s_add_u32 {sTAG}, {sTAG}, {hex(TAGINC)}
    s_lshr_b32 {sTAG1}, {sTAG}, 8
    s_cmp_ge_u32 {sCW}, 4
    s_cbranch_scc1 L_table
    s_waitcnt vmcnt(3)""")
    C("LayerNorm of row cw of x (waves 0..3), bf16 rounding as the reference")
    A("L_ln:\ns_setprio 2")
    for k in range(4):
        unpack2(f"v{20 + 2 * k}", f"v{21 + 2 * k}", f"v{16 + k}")
    A("""v_pk_add_f32 v[28:29], v[20:21], v[22:23]
    v_pk_add_f32 v[30:31], v[24:25], v[26:27]
    v_pk_add_f32 v[28:29], v[28:29], v[30:31]
    v_add_f32 v28, v28, v29""")
    wave_sums(["v28"], [sT0])
    A(f"v_mov_b32 v32, {hex(fbits(1.0 / 448.0))}\nv_mul_f32 v30, {sT0}, v32\nv_mov_b32 v28, 0\ns_mov_b32 exec_hi, 0x00ffffff")
    for k in range(8):
        A(f"v_sub_f32 v29, v{20 + k}, v30\nv_fmac_f32 v28, v29, v29")
    A("s_mov_b32 exec_hi, -1")
    wave_sums(["v28"], [sT1])
    ln_scale("v30", "v31", sT0, sT1, "v32", False)
    normalize([20, 22, 24, 26], 30, 31, False)
    for k in range(4):
        A(f"v_cvt_pk_bf16_f32 v{16 + k}, v{20 + 2 * k}, v{21 + 2 * k}")
    A(f"""s_mul_i32 {sT0}, {sCW}, 960
    v_add3_u32 v5, {vL16}, {sT0}, {vM}
    s_mov_b32 exec_hi, 0x00ffffff
    ds_write_b128 v5, v[16:19] offset:{LN}
    s_mov_b32 exec_hi, -1""")
    signal(F_LNCNT)
    A(f"s_cmp_lg_u32 {sCW}, 0\ns_cbranch_scc1 L_table")
    C("partial q projection: 64 columns x 4 batches over 112 rows")
    stamp(1)
    A(f"""v_and_b32 v7, 3, {vN}
    v_lshlrev_b32 v12, 16, v7
    v_mul_u32_u24 v7, 960, v7
    v_lshl_add_u32 v7, {vG}, 3, v7
    s_mul_i32 {sT0}, {sB}, 224
    v_add3_u32 v7, v7, {sT0}, {vM}
    v_bfe_u32 v8, v0, 3, 2
    v_lshlrev_b32 v8, 5, v8
    v_lshrrev_b32 v9, 2, v0
    v_lshl_or_b32 v8, v9, 7, v8
    v_and_b32 v9, 3, v0
    v_lshl_or_b32 v8, v9, 3, v8
    v_add_u32 v8, {8 * SLOT}, v8
    v_xor_b32 v9, 32, v8
    v_xor_b32 v10, 64, v8
    v_xor_b32 v11, 0x60, v8
    v_lshrrev_b32 v13, 2, {vN}
    v_cmp_eq_u32 s[52:53], 1, v13
    v_cmp_eq_u32 s[54:55], 2, v13
    v_cmp_eq_u32 s[56:57], 3, v13
    v_lshl_or_b32 v12, v13, 6, v12
    v_lshl_or_b32 v12, {vG}, 4, v12
    v_mov_b32 v13, 8
    s_lshl_b32 {sT0}, {sG}, 3
    s_add_u32 {sT0}, {sT0}, {sS}
    s_lshl_b32 {sT0}, {sT0}, 10
    s_lshl_b32 {sT1}, {sB}, 8
    s_add_u32 {sT0}, {sT0}, {sT1}
    s_add_u32 {sT0}, {sT0}, {WS_Q}""")
    wait_lds(F_LNCNT, 4)
    for j in range(3):
        A(f"ds_read2_b64 v[{16 + 4 * j}:{19 + 4 * j}], v7 offset0:{8 * j} offset1:{8 * j + 4}")
    A("ds_read_b64 v[28:29], v7 offset:192")
    wait_lds(F_LANDED, 1)
    for j in range(4):
        for t in range(4):
            r = 48 + 16 * j + 4 * t
            A(f"ds_read_b64_tr_b16 v[{r}:{r + 1}], v{8 + t} offset:{4096 * j}")
            if j < 3:
                A(f"ds_read_b64_tr_b16 v[{r + 2}:{r + 3}], v{8 + t} offset:{4096 * j + 2048}")
    signal(F_FREE, "v13")
    A("s_waitcnt lgkmcnt(0)")
    for j in range(4):
        for t in range(4):
            r, d = 48 + 16 * j + 4 * t, 112 + 4 * t
            if j < 3:
                A(f"v_mfma_f32_16x16x32_bf16 v[{d}:{d + 3}], v[{r}:{r + 3}], v[{16 + 4 * j}:{19 + 4 * j}], {'0' if j == 0 else f'v[{d}:{d + 3}]'}")
            else:
                A(f"v_mfma_f32_16x16x16_bf16 v[{d}:{d + 3}], v[{r}:{r + 1}], v[28:29], v[{d}:{d + 3}]")
    A("s_nop 7")
    for t in range(1, 4):
        for r in range(4):
            A(f"v_cndmask_b32 v{112 + r}, v{112 + r}, v{112 + 4 * t + r}, s[{50 + 2 * t}:{51 + 2 * t}]")
    put_tag(range(112, 116))
    A(f"""buffer_store_dwordx4 v[112:115], v12, {SRD}, {sT0} offen {qst}
    s_add_u32 s58, {sT0}, {WS_FAR}
    v_mov_b32 v14, v12""")
    stamp(2)
    if x_stop == 1:
        A("s_endpgm")
    A("s_branch L_qk")
    C("waves 1..7: this workgroup's entries of the scalar map t -> MLP(t), t running over bf16 values")
    A("L_table:\ns_setprio 0\ns_waitcnt vmcnt(0)")
    if x_stop == 1:
        A("s_endpgm")
    unpack_w()
    A(f"""s_and_b32 {sT0}, {sWT}, 127
    s_mul_i32 {sT0}, {sT0}, {NE}
    s_add_u32 {sT0}, {sT0}, {E0 << 7}
    s_lshr_b32 {sT1}, {sWT}, 7
    s_lshl_b32 {sT1}, {sT1}, 15
    s_or_b32 {sT0}, {sT0}, {sT1}
    s_lshl_b32 s50, {sT0}, 16
    s_mov_b32 s54, 0
    s_lshl_b32 {sT0}, {sCW}, 7
    v_lshl_add_u32 v8, {vG}, 2, {vM}
    v_add_u32 v8, {sT0}, v8
    L_tloop:
    s_cmp_lg_u32 s54, {(x_tl or NE) - 4 * qit}
    s_cbranch_scc1 L_tnoq
    buffer_load_dwordx4 v[20:23], {vL16}, {SRD}, s47 offen sc1
    L_tnoq:
    s_add_u32 s51, s50, 0x10000
    s_add_u32 s52, s50, 0x20000
    s_add_u32 s53, s50, 0x30000""")
    gelu(["s50", "s51"], ["v80", "v81"], True)
    gelu(["s52", "s53"], ["v82", "v83"], True)
    swap_reduce4(("v80", "v81", "v82", "v83"))
    A("s_add_u32 s50, s50, 0x40000\ns_add_u32 s54, s54, 4")
    for m in DPP[:4]:
        A(f"v_add_f32_dpp v80, v80, v80 {m} bank_mask:0xf\ns_nop 1")
    A(f"""s_cmp_lt_u32 s54, {x_tl or NE}
    ds_write_b32 v8, v80 offset:{TP - 128}
    v_add_u32 v8, 16, v8
    s_cbranch_scc1 L_tloop""")
    signal(F_TCNT)
    stamp(1)
    C("key slot cw -> registers, slot is released at once")
    A(f"""L_qk:
    s_setprio 1
    v_and_b32 v8, 7, {vN}
    v_lshlrev_b32 v8, 1, v8
    v_xor_b32 v8, v8, {vG}
    v_lshlrev_b32 v8, 4, v8
    v_lshl_or_b32 v8, {vN}, 9, v8
    s_lshl_b32 {sT0}, {sCW}, 14
    v_add_u32 v8, {sT0}, v8
    v_xor_b32 v9, 64, v8
    v_xor_b32 v10, 0x80, v8
    v_xor_b32 v11, 0xc0, v8
    s_lshl_b32 {sT0}, {sCW}, 2
    v_add_u32 v12, {sT0}, {vM}
    v_mov_b32 v13, 8
    s_add_u32 {sT4}, {sCW}, {1 + LB}""")
    wait_lds(F_LANDED, sT4)
    for j in range(8):
        for t in range(2):
            r = 48 + 8 * j + 4 * t
            A(f"ds_read_b128 v[{r}:{r + 3}], v{8 + (j & 3)} offset:{256 * (j >> 2) + 8192 * t}")
    signal(F_FREE + 4, "v13", "v12")
    stamp(3)
    if x_stop == 2:
        A("s_endpgm")
    C("64 columns of q: sum of the four row-quarter partials")
    A(f"""s_lshr_b32 {sT1}, {sCW}, 2
    s_mul_i32 {sT1}, {sT1}, {HP}
    s_and_b32 {sT2}, {sCW}, 3
    s_lshl_b32 {sT2}, {sT2}, 7
    s_add_u32 {sT1}, {sT1}, {sT2}
    v_lshlrev_b32 v12, 1, {vG}
    v_lshl_or_b32 v12, {vN}, 3, v12
    v_add3_u32 v12, v12, {sT1}, {vM}
    s_cmp_lg_u32 {sCW}, 0
    s_cbranch_scc1 L_qchk""")
    wait_lds(F_LANDED, QT + LB)
    A(f"buffer_load_dwordx4 v[20:23], {vL16}, {SRD}, s47 offen sc1")
    C("wave 0: do the 32 workgroups of this kv head share this compute die (one L2)?  Not seen yet counts as no")
    A(f"""v_and_b32 v16, 31, v0
    v_lshlrev_b32 v16, 2, v16
    buffer_load_dword v17, v16, {SRD}, s59 offen sc1
    s_waitcnt vmcnt(0)
    v_cmp_ne_u32 vcc, {sXCC}, v17
    v_mov_b32 v17, 1
    s_cmp_lg_u64 vcc, 0
    s_cbranch_scc1 L_idfar
    {"s_branch L_idfar" if x_far else ""}
    L_idloc:
    ds_write_b32 {vM}, v17 offset:{F_LOC}
    L_qchk:
    s_waitcnt vmcnt(0)""")
    cold.append(f"""L_idfar:
    buffer_store_dwordx4 v[112:115], v14, {SRD}, s58 offen sc1
    v_mov_b32 v17, {WS_FAR + 1}
    s_branch L_idloc""")
    tags_ok([20, 21, 22, 23], "L_qok")
    wait_lds(F_LOC, 1, sleep=qback)
    A(f"""s_sub_u32 {sT5}, {sT5}, 1
    s_xor_b32 s47, s47, {sT5}
    s_sleep {qback}
    buffer_load_dwordx4 v[20:23], {vL16}, {SRD}, s47 offen sc1""")
    spin_tail("L_qchk", 0)
    A("L_qok:")
    strip_tag(range(20, 24))
    swap_reduce4(("v20", "v21", "v22", "v23"))
    A(f"""v_cvt_pk_bf16_f32 v20, v20, v20
    ds_write_b16 v12, v20 offset:{QL}""")
    signal(F_QCNT)
    A(f"""v_and_b32 v7, 1, {vN}
    v_lshl_add_u32 v8, v7, 2, {vM}
    v_mul_u32_u24 v7, {HP}, v7
    v_lshl_add_u32 v7, {vG}, 4, v7
    v_add_u32 v7, v7, {vM}
    s_lshl_b32 {sT0}, {sCW}, 6
    v_add_u32 v9, {sT0}, v7
    s_mov_b32 s46, {hex(fbits(CEXP))}""")
    wait_lds(F_QCNT, 8)
    stamp(4)
    A(f"ds_read_b32 v5, {vM} offset:{F_LOC}")
    for j in range(8):
        A(f"ds_read_b128 v[{16 + 4 * j}:{19 + 4 * j}], v7 offset:{QL + 64 * j}")
    for j in range(8):
        A(f"s_waitcnt lgkmcnt({7 - j})")
        if j == 0:
            A(f"v_readfirstlane_b32 {sFAR}, v5")
        for t in range(2):
            r = 48 + 8 * j + 4 * t
            d = 112 + 4 * t
            A(f"v_mfma_f32_16x16x32_bf16 v[{d}:{d + 3}], v[{r}:{r + 3}], v[{16 + 4 * j}:{19 + 4 * j}], {'0' if j == 0 else f'v[{d}:{d + 3}]'}")
    A(f"s_sub_u32 {sFAR}, {sFAR}, 1\ns_nop 6")
    for k in range(8):
        rne1(f"v{112 + k}", f"v{112 + k}")
    A(f"""v_max3_f32 v120, v112, v113, v114
    v_max3_f32 v121, v115, v116, v117
    v_max3_f32 v120, v120, v118, v119
    v_max_f32 v120, v120, v121
    s_mov_b32 exec_lo, 0x00030003
    s_mov_b32 exec_hi, 0x00030003
    ds_max_f32 v8, v120 offset:{F_MX}
    s_mov_b64 exec, -1""")
    signal(F_MAXCNT)
    wait_lds(F_MAXCNT, 8)
    A(f"ds_read_b32 v124, v8 offset:{F_MX}\ns_waitcnt lgkmcnt(0)")
    for k in range(8):
        A(f"v_sub_f32 v{112 + k}, v{112 + k}, v124")
    for k in range(8):
        A(f"v_mul_f32 v{112 + k}, s46, v{112 + k}")
    for k in range(8):
        A(f"v_exp_f32 v{112 + k}, v{112 + k}")
    A("s_nop 0")
    for k in range(4):
        A(f"v_cvt_pk_bf16_f32 v{120 + k}, v{112 + 2 * k}, v{113 + 2 * k}")
    A(f"""s_mov_b32 exec_lo, 0x00030003
    s_mov_b32 exec_hi, 0x00030003
    ds_write_b128 v9, v[120:123] offset:{PL}
    s_mov_b64 exec, -1""")
    signal(F_PCNT)
    C("addresses of the PV loop and of the stages behind it")
    A(f"""v_mov_b32 v43, v7
    v_bfe_u32 v8, v0, 2, 3
    s_lshl_b32 {sT0}, {sCW}, 1
    v_xor_b32 v8, {sT0}, v8
    v_lshlrev_b32 v8, 5, v8
    v_lshrrev_b32 v9, 2, v0
    v_lshl_or_b32 v8, v9, 9, v8
    v_and_b32 v10, 3, v0
    v_lshl_or_b32 v44, v10, 3, v8
    v_xor_b32 v45, 32, v44""")
    for r in range(112, 120):
        A(f"v_mov_b32 v{r}, 0")
    A(f"""v_and_b32 v28, 1, {vN}
    v_lshlrev_b32 v28, 10, v28
    v_bfe_u32 v29, {vN}, 1, 1
    v_lshl_or_b32 v28, v29, 6, v28
    v_lshl_or_b32 v160, {vG}, 4, v28
    v_cmp_ne_u32 s[56:57], 0, v29
    s_lshl_b32 s51, {sIDX}, 11
    s_lshl_b32 {sT0}, {sCW}, 7
    s_add_u32 s51, s51, {sT0}
    s_add_u32 s51, s51, {WS_OP}
    v_lshlrev_b32 v161, 6, {vG}
    v_lshlrev_b32 v28, 4, {vN}
    v_lshl_or_b32 v162, {vG}, 11, v28
    s_and_b32 {sT2}, {sBG}, 0x17
    s_lshr_b32 {sT1}, {sCW}, 2
    s_lshl_b32 {sT1}, {sT1}, 3
    s_add_u32 {sT2}, {sT2}, {sT1}
    s_and_b32 {sT3}, {sB}, 1
    s_lshl_b32 s52, {sT2}, 14
    s_lshl_b32 {sT1}, {sT3}, 10
    s_add_u32 s52, s52, {sT1}
    s_and_b32 {sT1}, {sCW}, 3
    s_lshl_b32 {sT1}, {sT1}, 8
    s_add_u32 s52, s52, {sT1}
    s_add_u32 s52, s52, {WS_OP}
    s_add_u32 s59, s52, {4 << 11}
    v_bfe_u32 v28, v0, 3, 2
    s_and_b32 {sT1}, {sCW}, 3
    v_xor_b32 v28, {sT1}, v28
    v_lshlrev_b32 v28, 5, v28
    v_lshl_or_b32 v28, v9, 7, v28
    v_lshl_or_b32 v163, v10, 3, v28
    v_add_u32 v164, {((8 + wpos) % 9) * SLOT}, v163
    v_lshlrev_b32 v28, 4, v10
    v_bfe_u32 v29, v0, 2, 1
    v_lshl_or_b32 v28, v29, 3, v28
    v_bfe_u32 v29, v0, 3, 1
    v_lshl_or_b32 v28, v29, 6, v28
    v_lshl_or_b32 v28, {vG}, 1, v28
    s_lshr_b32 {sT0}, {sCW}, 2
    s_mul_i32 {sT0}, {sT0}, {HP}
    s_lshl_b32 {sT1}, {sT1}, 7
    s_add_u32 {sT0}, {sT0}, {sT1}
    v_add3_u32 v165, v28, {sT0}, {vM}
    s_lshl_b32 {sT0}, {sCW}, 6
    v_add_u32 v166, {OL - PL}, v7
    v_mul_u32_u24 v14, {16 * 1792}, {vN}
    v_lshl_add_u32 v14, {vG}, 4, v14
    s_and_b32 s53, {sB}, 2
    s_lshl_b32 s53, s53, 3
    s_add_u32 s53, s53, {sG}
    s_lshl_b32 s53, s53, 1
    s_add_u32 s53, s53, {sT3}
    s_mul_i32 s53, s53, 1792
    s_lshl_b32 {sT1}, {sS}, 8
    s_add_u32 s53, s53, {sT1}
    s_add_u32 s53, s53, {sT0}
    s_add_u32 s53, s53, {WS_OUTP + (KC - 1) * 0x20000}
    s_lshl_b32 s54, {sT2}, 9
    s_lshl_b32 {sT1}, {sT3}, 3
    s_add_u32 s54, s54, {sT1}
    s_add_u32 s54, s54, {WS_STATS}
    v_lshl_add_u32 v136, {vN}, 2, {vG}
    v_add_u32 v136, {sT0}, v136
    s_mul_i32 {sT1}, {sB}, 896
    v_lshl_add_u32 v137, v136, 1, {sT1}
    s_and_b32 s55, {sWT}, 0xf8
    s_mul_i32 s55, s55, {NE * 4}
    s_xor_b32 {sT1}, {sS}, 7
    s_or_b32 {sFIN}, {sFIN}, {sT1}""")
    if opre == 2:
        C("first read of the lines this workgroup writes in stage 3 (brings them on chip; speed only)")
        A(f"""s_and_b32 {sT0}, {sCW}, 5
        s_cbranch_scc1 L_nopre
        s_cmp_eq_u32 {sS}, 7
        s_cbranch_scc1 L_nopre
        s_mov_b64 exec, 3
        s_mov_b32 {sT0}, s53""")
        for k in range(KC):
            A(f"buffer_load_dword v128, v14, {SRD}, {sT0} offen {oprefl}\ns_sub_u32 {sT0}, {sT0}, 0x20000")
        A("s_mov_b64 exec, -1\nL_nopre:")
    wait_lds(F_PCNT, 8)
    stamp(5)
    if x_stop == 3:
        A("s_endpgm")
    C("wave 0: row sums of the bf16 probabilities (ones x P), publish (max, sum) of both heads")
    A(f"s_cmp_lg_u32 {sCW}, 0\ns_cbranch_scc1 L_nostat")
    for j in range(8):
        A(f"ds_read_b128 v[{48 + 4 * j}:{51 + 4 * j}], v43 offset:{PL + 64 * j}")
    for r in range(16, 20):
        A(f"v_mov_b32 v{r}, 0x3f803f80")
    A(f"""s_lshl_b32 {sT0}, {sIDX}, 6
    s_add_u32 {sT0}, {sT0}, {WS_STATS}
    s_waitcnt lgkmcnt(0)""")
    for j in range(8):
        A(f"v_mfma_f32_16x16x32_bf16 v[20:23], v[16:19], v[{48 + 4 * j}:{51 + 4 * j}], {'0' if j == 0 else 'v[20:23]'}")
    A(f"""v_mov_b32_dpp v126, v124 quad_perm:[1,0,3,2] row_mask:0xf bank_mask:0xf
    s_nop 6
    v_mov_b32 v125, v20
    v_mov_b32_dpp v127, v20 quad_perm:[1,0,3,2] row_mask:0xf bank_mask:0xf""")
    put_tag([125, 127], tag=sTAG1)
    put_tag([124, 126], True, sTAG)
    A("s_mov_b64 exec, 1")
    store_group(f"buffer_store_dwordx4 v[124:127], {vL16}, {SRD}, {{}} offen", sT0)
    C("wave 0: finish and publish the table entries")
    A(f"s_mov_b64 exec, -1\nv_and_b32 v7, 31, v0\nv_lshl_add_u32 v7, v7, 2, {vM}")
    wait_lds(F_TCNT, 7)
    for k in range(7):
        A(f"ds_read_b32 v{16 + k}, v7 offset:{TP + 128 * k}")
    A(f"""s_mul_i32 {sT0}, {sWT}, {NE * 4}
    s_add_u32 {sT0}, {sT0}, {WS_TBLN}
    v_lshlrev_b32 v8, 2, v0
    v_lshlrev_b32 v46, 16, v167
    s_waitcnt lgkmcnt(0)
    v_add_f32 v16, v16, v17
    v_add_f32 v18, v18, v19
    v_add_f32 v20, v20, v21
    v_add_f32 v16, v16, v18
    v_add_f32 v20, v20, v22
    v_add_f32 v16, v16, v20""")
    rne1("v16", "v16")
    A("v_add_f32 v16, v16, v46")
    rne1("v16", "v16")
    A(f"v_mov_b32 v17, {sTAG}\nv_bfi_b32 v16, {sMASK}, v16, v17")
    A(f"s_mov_b64 exec, {(1 << NE) - 1}")
    store_group(f"buffer_store_dword v16, v8, {SRD}, {{}} offen", sT0)
    A("s_mov_b64 exec, -1\nL_nostat:")
    sJ, sVS, sJL = "s48", "s49", "s50"
    ntl = (NE * 128 + 1023) // 1024
    lastm = (1 << ((NE * 128 - 1024 * (ntl - 1)) // 16)) - 1

    def table_loads():
        for k in range(ntl):
            if k == ntl - 1:
                A(f"s_mov_b32 exec_lo, {hex(lastm & 0xffffffff)}\ns_mov_b32 exec_hi, {hex(lastm >> 32)}")
            A(f"buffer_load_dwordx4 v[{140 + 4 * k}:{143 + 4 * k}], {vL16}, {SRD}, s55 offen offset:{1024 * k} sc1")
        A("s_mov_b64 exec, -1")

    A(f"""s_mov_b32 {sJ}, 0
    s_mov_b32 {sVS}, {8 * SLOT}
    s_mov_b32 {sJL}, {jmid}
    v_add_u32 v12, {F_FREE + 36}, {vM}
    s_mov_b32 {sT4}, {9 + LB}
    s_cmp_eq_u32 {sS}, 7
    s_cselect_b32 s58, 0, 2
    L_pv:
    ds_read_b128 v[16:19], v43 offset:{PL}
    v_add_u32 v10, {sVS}, v44
    v_add_u32 v11, {sVS}, v45""")
    if vbar:
        C("the last slot is announced by a barrier with the loader")
        A(f"s_cmp_lg_u32 {sJ}, 7\ns_waitcnt lgkmcnt(0)\ns_cbranch_scc1 L_pvwait\ns_barrier\nL_pvgo:")
        pvwait = (f"""L_pvwait:
        ds_read_b32 v5, {vM} offset:{F_LANDED}
        s_waitcnt lgkmcnt(0)
        v_readfirstlane_b32 {sT5}, v5
        s_cmp_ge_u32 {sT5}, {sT4}
        s_cbranch_scc1 L_pvgo
        s_sleep 1
        s_sub_u32 {sBUD}, {sBUD}, 1
        s_cbranch_scc0 L_pvwait
        s_branch L_end""")
    else:
        wait_lds(F_LANDED, sT4, sleep=pvslp)
    A(f"""ds_read_b64_tr_b16 v[20:21], v10
    ds_read_b64_tr_b16 v[22:23], v10 offset:8192
    ds_read_b64_tr_b16 v[24:25], v11
    ds_read_b64_tr_b16 v[26:27], v11 offset:8192""")
    signal(0, vONE, "v12")
    A(f"""v_add_u32 v43, 64, v43
    s_add_u32 {sJ}, {sJ}, 1""")
    if wpos < 8:
        A(f"""s_cmp_eq_u32 {sJ}, {wpos}
        s_cselect_b32 {sT0}, s58, 0
        s_add_u32 {sT0}, {sT0}, 1
        s_add_u32 {sT4}, {sT4}, {sT0}
        s_lshl_b32 {sT1}, {sT0}, 2
        v_add_u32 v12, {sT1}, v12
        s_lshl_b32 {sT1}, {sT0}, 14
        s_add_u32 {sVS}, {sVS}, {sT1}
        s_sub_u32 {sT1}, {sVS}, {9 * SLOT}
        s_cselect_b32 {sVS}, {sVS}, {sT1}""")
    else:
        A(f"""v_add_u32 v12, 4, v12
        s_add_u32 {sT4}, {sT4}, 1
        s_add_u32 {sVS}, {sVS}, {SLOT}
        s_cmp_eq_u32 {sVS}, {9 * SLOT}
        s_cselect_b32 {sVS}, 0, {sVS}""")
    A(f"""    s_cmp_lt_u32 {sJ}, {sJL}
    s_waitcnt lgkmcnt(3)
    v_mfma_f32_16x16x32_bf16 v[112:115], v[20:23], v[16:19], v[112:115]
    s_waitcnt lgkmcnt(1)
    v_mfma_f32_16x16x32_bf16 v[116:119], v[24:27], v[16:19], v[116:119]
    s_cbranch_scc1 L_pv
    s_cmp_eq_u32 {sJ}, 8
    s_cbranch_scc1 L_pv_done""")
    C("before the last value slots: fetch what the next stage needs besides the partial rows")
    A(f"""s_mov_b32 {sJL}, 8
    s_cmp_eq_u32 {sS}, 7
    s_cbranch_scc1 L_mid7""")
    if opre == 1:
        A(f"""s_cmp_ge_u32 {sCW}, 4
        s_cbranch_scc1 L_nopre
        s_mov_b32 exec_lo, 0x00030003
        s_mov_b32 exec_hi, 0
        s_mov_b32 {sT0}, s53""")
        for k in range(KC):
            A(f"buffer_load_dword v128, v14, {SRD}, {sT0} offen {oprefl}\ns_sub_u32 {sT0}, {sT0}, 0x20000")
        A("s_mov_b64 exec, -1\nL_nopre:")
    A(f"""    buffer_load_dwordx2 v[32:33], v161, {SRD}, s54 offen sc1
    buffer_load_dwordx2 v[34:35], v161, {SRD}, s54 offen offset:256 sc1""")
    A(f"""s_branch L_pv
    L_mid7:
    s_cmp_lg_u32 {sCW}, 0
    s_cbranch_scc1 L_mid8
    v_mov_b32 v32, {sTAG}
    v_mov_b32 v33, {sTAG}
    v_mov_b32 v34, {sTAG}
    v_mov_b32 v35, {sTAG}
    s_add_u32 s54, s55, {WS_TBLN}
    s_mov_b32 exec_hi, {hex((1 << (2 * NE - 32)) - 1)}
    buffer_load_dwordx4 v[32:35], {vL16}, {SRD}, s54 offen sc1
    s_mov_b32 exec_hi, -1
    L_mid8:
    s_cmp_lg_u32 {sFIN}, 0
    s_cbranch_scc1 L_pv
    s_cmp_eq_u32 {sCW}, 7
    s_cbranch_scc1 L_pv
    global_load_ushort v138, v137, {pX}
    s_branch L_pv""")
    if vbar:
        A(pvwait)
    A("L_pv_done:")
    stamp(7)
    if x_stop == 4:
        A("s_endpgm")
    C("publish the partial output rows")
    A(f"""s_nop 4
    v_cndmask_b32 v112, v112, v116, s[56:57]
    v_cndmask_b32 v113, v113, v117, s[56:57]
    v_cndmask_b32 v114, v114, v118, s[56:57]
    v_cndmask_b32 v115, v115, v119, s[56:57]""")
    put_tag(range(112, 116), True)
    A(f"""s_mov_b32 exec_lo, 0x000f000f
    s_mov_b32 exec_hi, 0x000f000f
""")
    store_group(f"buffer_store_dwordx4 v[112:115], v160, {SRD}, {{}} offen", "s51")
    opoll = f"""buffer_load_dwordx4 v[24:27], v162, {SRD}, s52 offen sc1
    buffer_load_dwordx4 v[28:31], v162, {SRD}, s59 offen sc1"""
    A(f"""s_mov_b64 exec, -1
    s_cmp_eq_u32 {sS}, 7
    s_cbranch_scc1 L_last""")
    if obar:
        C("all partial rows of this workgroup are on their way before the first look at the group's rows")
        A("s_barrier")
    A(opoll)
    A(f"s_cmp_lg_u32 {sFAR}, 0\ns_cbranch_scc1 L_spoll0\ns_waitcnt vmcnt(3)\nL_spoll:")
    cold.append("L_spoll0:\ns_waitcnt vmcnt(0)\ns_branch L_spoll")
    tags_ok([32, 34, 33, 35], "L_sok", tags=[sTAG, sTAG1])
    A(f"""s_xor_b32 s54, s54, {sFAR}
    buffer_load_dwordx2 v[32:33], v161, {SRD}, s54 offen sc1
    buffer_load_dwordx2 v[34:35], v161, {SRD}, s54 offen offset:256 sc1
    s_waitcnt vmcnt(0)""")
    spin_tail("L_spoll", 0)
    A(f"""L_oagain:
    s_xor_b32 s52, s52, {sFAR}
    s_xor_b32 s59, s59, {sFAR}""")
    A(opoll)
    spin_tail("L_opoll", 0)
    A("L_sok:")
    C("weights of the splits row and row+4")
    A(f"""v_and_b32 v32, {sMASK}, v32
    v_and_b32 v34, {sMASK}, v34""")
    strip_tag([33, 35])

    def rowred(op, d, t):
        for sw in ("v_permlane16_swap_b32", "v_permlane32_swap_b32"):
            A(f"v_mov_b32 {t}, {d}\ns_nop 1\n{sw} {d}, {t}\n{op} {d}, {d}, {t}")

    A("v_max_f32 v36, v32, v34")
    rowred("v_max_f32", "v36", "v37")
    A("""v_sub_f32 v32, v32, v36
    v_sub_f32 v34, v34, v36
    v_mul_f32 v32, s46, v32
    v_mul_f32 v34, s46, v34
    v_exp_f32 v32, v32
    v_exp_f32 v34, v34
    s_nop 0
    v_mul_f32 v36, v33, v32
    v_fmac_f32 v36, v35, v34""")
    rowred("v_add_f32", "v36", "v37")
    A("""v_rcp_f32 v36, v36
    s_nop 0
    v_mul_f32 v32, v32, v36
    v_mul_f32 v34, v34, v36""")
    if wbar:
        C("wo has landed (barrier with the loader)")
        A(f"s_cmp_ge_u32 {sCW}, 4\ns_barrier\ns_cbranch_scc1 L_opoll")
    else:
        A(f"s_cmp_ge_u32 {sCW}, 4\ns_cbranch_scc1 L_opoll")
        wait_lds(F_LANDED, 10 + wpos + LB, sleep=pvslp)
    for j in range(8):
        for u in range(2):
            part = j >> 2
            sl0, sl = (8 + wpos) % 9, (8 + wpos + part) % 9
            base, off = ("v164", (sl - sl0) * SLOT) if sl >= sl0 else ("v163", sl * SLOT)
            r = 48 + 4 * j + 2 * u
            A(f"ds_read_b64_tr_b16 v[{r}:{r + 1}], {base} offset:{off + 4096 * (j & 3) + 2048 * u}")
    stamp(8)
    A("L_opoll:\ns_waitcnt vmcnt(0)")

    def o_scale():
        strip_tag(range(28, 32))
        A("""v_pk_mul_f32 v[24:25], v[24:25], v[32:33] op_sel_hi:[1,0]
        v_pk_mul_f32 v[26:27], v[26:27], v[32:33] op_sel_hi:[1,0]
        v_pk_fma_f32 v[24:25], v[28:29], v[34:35], v[24:25] op_sel_hi:[1,0,1]
        v_pk_fma_f32 v[26:27], v[30:31], v[34:35], v[26:27] op_sel_hi:[1,0,1]""")

    tags_ok(list(range(24, 32)), None, retry="L_oagain", between=lambda: strip_tag(range(24, 28)))
    stamp(9)
    o_scale()
    swap_reduce4(("v24", "v25", "v26", "v27"))
    A(f"""v_cvt_pk_bf16_f32 v24, v24, v24
    ds_write_b16 v165, v24 offset:{OL}
    s_cmp_ge_u32 {sCW}, 4
    s_waitcnt lgkmcnt(0)
    s_barrier
    s_cbranch_scc1 {"L_wb" if wb else "L_exit"}""")
    if wb:
        cold.append(f"""L_wb:
        s_or_b32 {sT0}, {sB}, {sS}
        s_xor_b32 {sT1}, {sCW}, 7
        s_or_b32 {sT0}, {sT0}, {sT1}
        s_cbranch_scc1 L_exit
        {f"s_sleep {wb}" if wb > 1 else ""}
        buffer_wbl2 sc1
        s_branch L_exit""")
    for j in range(8):
        A(f"ds_read_b128 v[{16 + 4 * j}:{19 + 4 * j}], v166 offset:{PL + 64 * j}")
    for j in range(8):
        A(f"s_waitcnt lgkmcnt({7 - j})\nv_mfma_f32_16x16x32_bf16 v[112:115], v[{48 + 4 * j}:{51 + 4 * j}], v[{16 + 4 * j}:{19 + 4 * j}], {'0' if j == 0 else 'v[112:115]'}")
    A(f"""s_mov_b32 exec_lo, 0x00030003
    s_mov_b32 exec_hi, 0x00030003
    s_nop 5""")
    put_tag(range(112, 116), True)
    for k in range(KC):
        A(f"buffer_store_dwordx4 v[112:115], v14, {SRD}, s53 offen {ost}")
        if k < KC - 1:
            A("s_sub_u32 s53, s53, 0x20000")
    A("s_mov_b64 exec, -1")
    stamp(10)
    A("s_branch L_exit")
    C("workgroups of split 7, wave 0: pass the table entries of the 8 splits on to the finishing workgroups")
    A(f"""L_last:
    s_cmp_lg_u32 {sCW}, 0
    s_cbranch_scc1 L_nofwd
    L_fpoll:
    s_waitcnt vmcnt(0)""")
    tags_ok([32, 33, 34, 35], "L_fok", tags=[sTAG] * 2, sel="WORD_0")
    A(f"""s_xor_b32 s54, s54, {sFAR}
    s_mov_b32 exec_hi, {hex((1 << (2 * NE - 32)) - 1)}
    buffer_load_dwordx4 v[32:35], {vL16}, {SRD}, s54 offen sc1
    s_mov_b32 exec_hi, -1""")
    spin_tail("L_fpoll")
    A(f"""L_fok:
    s_add_u32 s54, s55, {WS_TBL}
    s_mov_b32 exec_hi, {hex((1 << (2 * NE - 32)) - 1)}
    {"" if x_nofwd else f"buffer_store_dwordx4 v[32:35], {vL16}, {SRD}, s54 offen sc1"}
    s_mov_b32 exec_hi, -1
    L_nofwd:""")
    C("finishing workgroup of batch b: table to LDS, sum the 16 head partials, residual, LN, LN, table lookup")
    A(f"""s_cmp_lg_u32 {sFIN}, 0
    s_cbranch_scc1 L_exit
    s_xor_b32 {sT0}, {sCW}, {sG}
    s_or_b32 {sT0}, {sT0}, {sFAR}
    s_cselect_b32 s55, {WS_TBL}, {sTBLN}
    s_mul_i32 {sT0}, {sCW}, {NE * 128}
    s_add_u32 s55, s55, {sT0}
    s_add_u32 {sT0}, {sT0}, {TBL_LDS}
    v_add_u32 v13, {sT0}, {vL16}""")
    for r in range(140 + 4 * (ntl - 1), 140 + 4 * ntl):
        A(f"v_mov_b32 v{r}, {sTAG}")
    table_loads()
    A(f"""    s_mul_i32 s48, {sB}, {16 * 1792}
    s_lshl_b32 {sT0}, {sCW}, 8
    s_add_u32 s48, s48, {sT0}
    s_add_u32 s48, s48, {WS_OUTP}
    s_add_u32 s49, s48, {4 * 1792}
    s_add_u32 s50, s48, {8 * 1792}
    s_add_u32 s51, s48, {12 * 1792}
    v_mul_u32_u24 v12, 1792, {vG}
    v_lshl_add_u32 v12, {vN}, 4, v12
    L_tpoll:
    s_waitcnt vmcnt(0)""")
    tags_ok(list(range(140, 140 + 4 * ntl)), "L_tok", tags=[sTAG] * (2 * ntl), sel="WORD_0")
    if x_nofwd:
        A("s_branch L_tok")
    A(f"s_sleep {tback}")
    table_loads()
    spin_tail("L_tpoll", 0)
    A(f"L_tok:\ns_mov_b32 s47, {128 * NE}")
    stamp(6)
    wait_lds(F_FREE + 36, 8)
    for k in range(ntl):
        if k == ntl - 1:
            A(f"s_mov_b32 exec_lo, {hex(lastm & 0xffffffff)}\ns_mov_b32 exec_hi, {hex(lastm >> 32)}")
        A(f"ds_write_b128 v13, v[{140 + 4 * k}:{143 + 4 * k}] offset:{1024 * k}")
    A("s_mov_b64 exec, -1")
    A(f"""s_cmp_eq_u32 {sCW}, 7
    s_cbranch_scc0 L_hget
    s_waitcnt lgkmcnt(0)
    s_barrier""")
    C("every workgroup has read the epoch word (its table entries carry the tag): advance it")
    A(f"""s_cmp_lg_u32 {sB}, 0
    s_cbranch_scc1 L_exit
    v_mov_b32 v5, {sTAG}
    s_mov_b64 exec, 1
    buffer_store_dword v5, {vL16}, {SRD}, 0 offen {efl}
    s_mov_b64 exec, -1
    s_branch L_exit
    L_hget:
    v_lshl_add_u32 v13, v136, 2, {vM}
    v_lshl_add_u32 v14, v0, 5, {vM}
""")
    if olin:
        A(f"""s_mul_i32 {sT0}, {sCW}, 448
        v_lshl_add_u32 v40, v0, 3, {sT0}
        v_add_u32 v40, v40, {vM}
        s_lshl2_add_u32 {sT1}, {sB}, {sCW}
        s_mul_i32 {sT1}, {sT1}, 224
        v_lshl_add_u32 v41, v0, 2, {sT1}""")
    else:
        A(f"""s_lshl_b32 {sT0}, {sCW}, 3
        v_add_u32 v40, {sT0}, v14
        s_mul_i32 {sT1}, {sB}, 896
        s_lshl_b32 {sT0}, {sCW}, 2
        s_add_u32 {sT1}, {sT1}, {sT0}
        v_add_u32 v41, {sT1}, {vL16}""")
    A(f"""    v_lshlrev_b32 v137, 16, v138
    v_mov_b32 v42, {hex(fbits(1.0 / 448.0))}
    s_mov_b32 s52, {TBL_LDS}
    s_mov_b32 s53, 0x7060302""")
    for r in range(48, 56):
        A(f"v_mov_b32 v{r}, 0")
    assert not dry

    def h_loads(r0):
        for m in range(4):
            A(f"buffer_load_dwordx4 v[{r0 + 4 * m}:{r0 + 3 + 4 * m}], v12, {SRD}, s{48 + m} offen {hld}")

    def h_sum(r):
        strip_tag(range(r + 4, r + 16))
        A(f"""v_pk_add_f32 v[{r}:{r + 1}], v[{r}:{r + 1}], v[{r + 4}:{r + 5}]
        v_pk_add_f32 v[{r + 2}:{r + 3}], v[{r + 2}:{r + 3}], v[{r + 6}:{r + 7}]
        v_pk_add_f32 v[{r + 8}:{r + 9}], v[{r + 8}:{r + 9}], v[{r + 12}:{r + 13}]
        v_pk_add_f32 v[{r + 10}:{r + 11}], v[{r + 10}:{r + 11}], v[{r + 14}:{r + 15}]
        v_pk_add_f32 v[32:33], v[{r}:{r + 1}], v[{r + 8}:{r + 9}]
        v_pk_add_f32 v[34:35], v[{r + 2}:{r + 3}], v[{r + 10}:{r + 11}]""")

    if h2:
        h_loads(96)
        A(f"s_sleep {h2}")
        h_loads(112)
        A(f"""s_branch L_hchkA
        L_hagainB:
        s_sub_u32 {sBUD}, {sBUD}, 1
        s_cbranch_scc1 L_end""")
        h_loads(112)
        A("L_hchkA:\ns_waitcnt vmcnt(4)")
        tags_ok(list(range(96, 112)), None, retry="L_hagainA", between=lambda: strip_tag(range(96, 100)))
        h_sum(96)
        A("s_branch L_hok\nL_hagainA:")
        h_loads(96)
        A("s_waitcnt vmcnt(4)")
        tags_ok(list(range(112, 128)), None, retry="L_hagainB", between=lambda: strip_tag(range(112, 116)))
        h_sum(112)
        A("L_hok:")
        stamp(11)
    else:
        if hdel:
            A(f"s_sleep {hdel}")
        A(f"""s_branch L_hpoll
        L_hagain:
        s_sub_u32 {sBUD}, {sBUD}, 1
        s_cbranch_scc1 L_end""")
        if hback:
            A(f"s_sleep {hback}")
        if KC > 1:
            C("next copy: lines nobody has read yet take the producers' writes faster")
            A(f"""s_cmp_lt_u32 s48, {WS_OUTP + (KC - 1) * 0x20000}
            s_cselect_b32 {sT0}, 0x20000, 0""")
            for m in range(4):
                A(f"s_add_u32 s{48 + m}, s{48 + m}, {sT0}")
        A("L_hpoll:")
        h_loads(16)
        A("s_waitcnt vmcnt(0)")
        tags_ok(list(range(16, 32)), None, retry="L_hagain", between=lambda: strip_tag(range(16, 20)))
        stamp(11)
        h_sum(16)
    swap_reduce4(("v32", "v33", "v34", "v35"))
    rne1("v32", "v32")
    A("v_add_f32 v32, v32, v137")
    rne1("v32", "v32")
    A(f"ds_write_b32 v13, v32 offset:{HL}")
    if dry:
        A("s_cmp_lg_u32 s54, 0\ns_cbranch_scc1 L_hdry")
    A(f"""s_cmp_ge_u32 {sCW}, 4
    s_waitcnt lgkmcnt(0)
    s_barrier
    s_cbranch_scc1 L_exit
    L_hdry:""")
    if fst:
        stamp(8)
    A(f"""    s_mov_b32 exec_hi, 0x00ffffff
    ds_read_b128 v[48:51], v14 offset:{HL}
    ds_read_b128 v[52:55], v14 offset:{HL + 16}
    ds_read_b64 v[138:139], v40 offset:{HL}
    s_mov_b32 exec_hi, -1
    s_waitcnt lgkmcnt(1)""")

    def stats8():
        sums8()
        ln_scale("v22", "v23", sT0, sT1, "v42", True)

    def sums8():
        A("""v_pk_add_f32 v[20:21], v[48:49], v[50:51]
        v_pk_mul_f32 v[24:25], v[48:49], v[48:49]
        v_pk_add_f32 v[22:23], v[52:53], v[54:55]
        v_pk_fma_f32 v[24:25], v[50:51], v[50:51], v[24:25]
        v_pk_add_f32 v[20:21], v[20:21], v[22:23]
        v_pk_fma_f32 v[24:25], v[52:53], v[52:53], v[24:25]
        v_add_f32 v20, v20, v21
        v_pk_fma_f32 v[24:25], v[54:55], v[54:55], v[24:25]
        v_add_f32 v24, v24, v25""")
        wave_sums(["v20", "v24"], [sT0, sT1])

    if alg:
        C("first LayerNorm: mean / variance of h.  Its output is a = (h - m1) * r1, so the second LayerNorm's")
        C("statistics follow exactly: mean(a) = (mean - m1) * r1, var(a) = var * r1 * r1")
        sums8()
        if fst:
            stamp(9)
        A(f"""v_mul_f32 v26, {sT1}, v42
        v_mul_f32 v27, {sT0}, v42
        v_fma_f32 v26, -v27, v27, v26""")
        rne1("v22", "v27")
        A(f"""v_cvt_pk_bf16_f32 v23, 0, abs(v26)
        v_sub_f32 v24, v27, v22
        v_add_f32 v23, {hex(fbits(1e-5))}, v23""")
        rne1("v23", "v23")
        A("""v_sqrt_f32 v23, v23
        s_waitcnt lgkmcnt(0)
        v_pk_add_f32 v[36:37], v[138:139], v[22:23] op_sel_hi:[1,0] neg_lo:[0,1] neg_hi:[0,1]""")
        rne1("v23", "v23")
        A("v_rcp_f32 v23, v23")
        rne1("v36", "v36")
        A("v_mul_f32 v25, abs(v26), v23")
        rne1("v37", "v37")
        A("v_mul_f32 v25, v25, v23\nv_mul_f32 v24, v24, v23")
        rne1("v25", "v25")
        A(f"""v_pk_mul_f32 v[36:37], v[36:37], v[22:23] op_sel:[0,1] op_sel_hi:[1,1]
        v_add_f32 v25, {hex(fbits(1e-5))}, v25""")
        rne1("v24", "v24")
        rne1("v25", "v25")
        rne1("v36", "v36")
        A("v_sqrt_f32 v25, v25")
        rne1("v37", "v37")
        rne1("v25", "v25")
        A("v_pk_add_f32 v[36:37], v[36:37], v[24:25] op_sel_hi:[1,0] neg_lo:[0,1] neg_hi:[0,1]\nv_rcp_f32 v25, v25")
        rne1("v36", "v36")
        rne1("v37", "v37")
        A("s_mov_b32 exec_hi, 0x00ffffff\nv_pk_mul_f32 v[36:37], v[36:37], v[24:25] op_sel:[0,1] op_sel_hi:[1,1]")
        rne1("v36", "v36")
        rne1("v37", "v37")
    else:
        stats8()
        A("s_waitcnt lgkmcnt(0)\nv_mov_b32 v36, v138\nv_mov_b32 v37, v139\ns_mov_b32 exec_hi, 0x00ffffff")
        normalize([48, 50, 52, 54, 36], 22, 23)
        A("s_mov_b32 exec_hi, -1")
        stats8()
        A("s_mov_b32 exec_hi, 0x00ffffff")
        normalize([36], 22, 23)
    if fst:
        stamp(10)
    A(f"""v_bfe_u32 v16, v36, 16, 15
    v_bfe_u32 v17, v37, 16, 15
    v_subrev_u32 v16, {E0 << 7}, v16
    v_subrev_u32 v17, {E0 << 7}, v17
    v_lshrrev_b32 v18, 31, v36
    v_lshrrev_b32 v19, 31, v37
    v_cmp_le_u32 vcc, {128 * NE}, v16
    v_cmp_le_u32 s[56:57], s47, v17
    v_mad_u32_u24 v16, v18, s47, v16
    v_mad_u32_u24 v17, v19, s47, v17
    v_cndmask_b32 v16, v16, 0, vcc
    v_cndmask_b32 v17, v17, 0, s[56:57]
    v_lshl_add_u32 v16, v16, 2, s52
    v_lshl_add_u32 v17, v17, 2, s52
    ds_read_b32 v38, v16
    ds_read_b32 v39, v17""")
    if dry:
        A("s_cmp_lg_u32 s54, 0\ns_cbranch_scc1 L_hreal")
    A(f"""s_or_b64 s[58:59], vcc, s[56:57]
    s_waitcnt lgkmcnt(0)
    v_and_b32 v38, {sMASK}, v38
    v_and_b32 v39, {sMASK}, v39
    s_cbranch_scc1 L_direct
    L_fin:
    v_pk_add_f32 v[38:39], v[38:39], v[138:139]""")
    if x_pert:
        A(f"v_cmp_eq_u32 vcc, 0, v41\nv_mov_b32 v5, {hex(fbits(x_pert / 10000.0))}\ns_nop 0\nv_cndmask_b32 v5, 0, v5, vcc\nv_add_f32 v38, v38, v5")
    A(f"""    v_cvt_pk_bf16_f32 v38, v38, v39
    global_store_dword v41, v38, {pOUT} {fst_fl}
    s_mov_b32 exec_hi, -1""")
    stamp(12)
    A("L_exit:")
    if diag:
        A(f"s_cmp_eq_u32 {sCW}, 0\ns_cbranch_scc0 L_st1")
        stamps_out(8, 13)
        A(f"L_st1:\ns_cmp_eq_u32 {sCW}, 3\ns_cbranch_scc0 L_end")
        stamps_out(24, 13)
    A("L_end:\ns_endpgm\nL_pfend:")
    C("inputs outside the tabulated binades: evaluate the MLP directly, one element at a time")
    A(f"""L_direct:
    s_mov_b32 exec_hi, -1
    s_mov_b64 s[54:55], vcc
    s_mov_b32 s58, 0
    v_mov_b32 v7, 0
    global_load_ushort v46, v7, {pB2}
    L_dpass:
    s_cmp_eq_u64 s[54:55], 0
    s_cbranch_scc1 L_dswap
    s_ff1_i32_b64 s52, s[54:55]
    s_bitset0_b64 s[54:55], s52
    s_nop 3
    v_readlane_b32 s50, v36, s52
    v_mov_b32 v80, 0
    v_lshlrev_b32 v5, 3, v0
    s_mov_b32 s53, 0
    L_dloop:""")
    load_w()
    A("v_add_u32 v5, 512, v5\ns_waitcnt vmcnt(0)")
    unpack_w()
    gelu(["s50"], ["v80"], False)
    A("s_add_u32 s53, s53, 1\ns_cmp_lt_u32 s53, 7\ns_cbranch_scc1 L_dloop")
    wave_sums(["v80"], [sT0])
    A(f"v_mov_b32 v80, {sT0}")
    rne1("v80", "v80")
    A("v_lshlrev_b32 v81, 16, v46\nv_add_f32 v80, v80, v81")
    rne1("v80", "v80")
    A(f"""v_cmp_eq_u32 vcc, s52, v0
    s_nop 1
    v_cndmask_b32 v38, v38, v80, vcc
    s_branch L_dpass
    L_dswap:
    v_swap_b32 v36, v37
    v_swap_b32 v38, v39
    s_mov_b64 s[54:55], s[56:57]
    s_add_u32 s58, s58, 1
    s_cmp_eq_u32 s58, 1
    s_cbranch_scc1 L_dpass
    s_mov_b32 exec_hi, 0x00ffffff
    s_branch L_fin""")
    for c in cold:
        A(c)
    A("L_codeend:")
    if epf >= 3:
        L.append(".if L_codeend - L_pc0 < 9216\n.error \"code prefetch would run past the code\"\n.endif")
    L.append(f""".section .rodata,"a"
.p2align 6
.amdhsa_kernel {KN}_kernel
  .amdhsa_next_free_vgpr 168
  .amdhsa_next_free_sgpr 96
  .amdhsa_accum_offset 168
  .amdhsa_float_denorm_mode_32 3
  .amdhsa_group_segment_fixed_size 0
  .amdhsa_kernarg_size 104
  .amdhsa_user_sgpr_count 2
  .amdhsa_user_sgpr_kernarg_segment_ptr 1
  .amdhsa_system_sgpr_workgroup_id_x 1
.end_amdhsa_kernel""")
    return "\n".join(L) + "\n"


if __name__ == "__main__":
    names = []
    for spec in sys.argv[1:]:
        kw = {}
        name = None
        for kv in spec.split(","):
            if not kv:
                continue
            k, v = kv.split("=")
            if k == "o":
                name = v
                continue
            kw[k] = int(v) if v.lstrip("-").isdigit() else v.replace("+", " ").replace("none", "")
        name = name or "k_" + spec.replace(":", "-").replace(",", "_").replace("=", "").replace("+", "") + ".s"
        open(name, "w").write(gen(**kw))
        names.append(name)
    print(" ".join(names))
```

```python
import sys, struct, math
KN = "sequential_preLN__sliding_block_cached__mixer_token_mlp__decode"

def fbits(x):
    return struct.unpack("<I", struct.pack("<f", x))[0]

WS_E, WS_IDS, WS_TBL, WS_TBLN, WS_STATS, WS_Q, WS_OP, WS_OUTP = 0, 0x1000, 0x20000, 0x28000, 0x30000, 0x40000, 0x80000, 0x100000
WS_FAR = 0x200000
WS_STAMP = 0x10000000
SLOT = 16384
MISC = 9 * SLOT
LN, QL, PL, OL, TP, FL, HL = 0x0, 0x1000, 0x1500, 0x1A00, 0x1F00, 0x2300, 0x2400
HP = 576
F_LANDED, F_LNCNT, F_QCNT, F_MAXCNT, F_PCNT, F_TCNT, F_TAG, F_LOC, F_MX, F_FREE = FL, FL + 4, FL + 8, FL + 12, FL + 16, FL + 20, FL + 24, FL + 28, FL + 32, FL + 64
TBL_LDS = 7 * SLOT
TAGINC = 0x9E3779B9


def gen(D=24, DV=0, DW=40, NE=24, diag=0, ld="nt", ldq="nt", ldo="nt", rot=2, ra=1, rc=0, pf=1, epf=4, pfm=7, bar=4, uni=1, nL=16, dl="", dlx=0, tight=1, touch=0, h2=0, olin=1, KC=1, opre=0, oprefl="sc1", hdel=0, obar=1, vbar=1, wbar=1, slp=1, pvslp=0, qback=8, tback=8, hback=0, oback=0, nst="", qst="", fst_fl="", wb=0, efl="", ost="sc1", fst=0, lst=0, hld="sc1", jmid=6, QT=4, qit=1, rnd=1, dry=0, alg=1,
        x_tl=0, x_far=0, x_nofree=0, x_stop=0, x_pert=0, x_nofwd=0, x_dbg=0):
    L = []
    uid = [0]
    cold = []

    def A(s):
        for ln in s.split("\n"):
            ln = ln.strip()
            if ln:
                L.append(ln if ln.endswith(":") else "    " + ln)

    def C(s):
        L.append("    ; " + s)

    def lab(p):
        uid[0] += 1
        return f"L_{p}{uid[0]}"

    assert NE % 4 == 0
    E0 = 132 - NE
    LB = 1
    wpos = 8
    sW, sWV = "s2", "s3"
    pX, pK, pV, pWQ, pWO, pW1, pB1, pW2, pB2, pOUT, pWS = "s[4:5]", (6, 7), (8, 9), (10, 11), (12, 13), "s[16:17]", "s[18:19]", "s[20:21]", "s[22:23]", "s[24:25]", "s[28:29]"
    sG, sI, sB, sS, sIDX, sBG = "s30", "s31", "s32", "s33", "s34", "s35"
    SRD = "s[36:39]"
    sBUD, sTAG, sFIN, sMASK, sXCC, sFAR = "s60", "s61", "s62", "s63", "s14", "s15"
    sTAG1 = "s0"
    tagof = lambda r: sTAG1 if r & 2 else sTAG
    sTBLN = "s27"
    sWT = "s26"
    sT0, sT1, sT2, sT3, sT4, sT5 = "s40", "s41", "s42", "s43", "s44", "s45"
    vM, vG, vN, vONE, vL16, vFF = "v1", "v2", "v3", "v4", "v6", "v15"

    def stamp(k):
        if diag:
            A(f"s_memrealtime s[{64 + 2 * k}:{65 + 2 * k}]")

    def stamps_out(base, n):
        if not diag:
            return
        A(f"s_waitcnt lgkmcnt(0)\ns_lshl_b32 {sT0}, {sW}, 9\ns_add_u32 {sT0}, {sT0}, {WS_STAMP + base * 8}\nv_mov_b32 v5, {sT0}\ns_mov_b64 exec, 1")
        for k in range(n):
            A(f"v_mov_b32 v6, s{64 + 2 * k}\nv_mov_b32 v7, s{65 + 2 * k}\nglobal_store_dwordx2 v5, v[6:7], {pWS} offset:{8 * k}\ns_nop 1")
        A("s_mov_b64 exec, -1")

    def spin_tail(top, sleep=None):
        sleep = slp if sleep is None else sleep
        if sleep:
            A(f"s_sleep {sleep}")
        A(f"s_sub_u32 {sBUD}, {sBUD}, 1\ns_cbranch_scc0 {top}\ns_branch L_end")

    def wait_lds(off, val, vt="v5", addr=vM, sleep=None):
        top, done = lab("w"), lab("d")
        A(f"{top}:\nds_read_b32 {vt}, {addr} offset:{off}\ns_waitcnt lgkmcnt(0)\nv_readfirstlane_b32 {sT5}, {vt}\ns_cmp_ge_u32 {sT5}, {val}\ns_cbranch_scc1 {done}")
        spin_tail(top, sleep)
        A(f"{done}:")

    def signal(off, vval=vONE, addr=vM):
        A(f"s_mov_b64 exec, 1\nds_add_u32 {addr}, {vval} offset:{off}\ns_mov_b64 exec, -1")

    def tags_ok(regs, ok, guard=None, tags=None, sel="BYTE_0", retry=None, between=None):
        t = ["v5", "v7", "v8", "v9", "v10", "v11", "v56", "v57"]
        parts = []
        for k in range(0, len(regs), 2):
            A(f"v_bitop3_b32 {t[k // 2]}, v{regs[k]}, v{regs[k + 1]}, {tags[k // 2] if tags else tagof(regs[k])} bitop3:0x7e")
            parts.append(t[k // 2])
        if guard:
            A(guard(parts))
        while len(parts) > 1:
            if len(parts) >= 3:
                A(f"v_or3_b32 {parts[0]}, {parts[0]}, {parts[-1]}, {parts[-2]}")
                parts = parts[:-2]
            else:
                A(f"v_or_b32 {parts[0]}, {parts[0]}, {parts[1]}")
                parts = parts[:1]
        A(f"v_cmp_ne_u32_sdwa vcc, v5, 0 src0_sel:{sel} src1_sel:DWORD")
        if retry:
            between()
            A(f"s_cmp_lg_u64 vcc, 0\ns_cbranch_scc1 {retry}")
        else:
            A(f"s_cmp_eq_u64 vcc, 0\ns_cbranch_scc1 {ok}")

    def strip_tag(regs):
        for r in regs:
            A(f"v_bfi_b32 v{r}, {vFF}, 0, v{r}")

    def store_group(ins, soff):
        far, done = lab("far"), lab("pub")
        A(f"{ins.format(soff)} {nst}\ns_cmp_lg_u32 {sFAR}, 0\ns_cbranch_scc1 {far}\n{done}:")
        cold.append(f"{far}:\ns_add_u32 {sT5}, {soff}, {WS_FAR}\n{ins.format(sT5)} sc1\ns_branch {done}")

    def put_tag(regs, exact=False, tag=None):
        if rnd and not exact:
            for r in regs:
                A(f"v_add_u32 v{r}, 0x80, v{r}")
        for r in regs:
            A(f"v_bfi_b32 v{r}, {vFF}, {tag or tagof(r)}, v{r}")

    DPP = ["quad_perm:[1,0,3,2] row_mask:0xf", "quad_perm:[2,3,0,1] row_mask:0xf", "row_half_mirror row_mask:0xf",
           "row_mirror row_mask:0xf", "row_bcast:15 row_mask:0xa", "row_bcast:31 row_mask:0xc"]

    def wave_sums(regs, sdst):
        A("s_nop 1" if len(regs) == 1 else "s_nop 0")
        for m in DPP:
            for r in regs:
                A(f"v_add_f32_dpp {r}, {r}, {r} {m} bank_mask:0xf")
            if len(regs) == 1 or m != DPP[-1]:
                A("s_nop 1" if len(regs) == 1 else "s_nop 0")
        for r, s in zip(regs, sdst):
            A(f"v_readlane_b32 {s}, {r}, 63")
        A("s_nop 1")

    def rne1(dst, src):
        A(f"v_cvt_pk_bf16_f32 {dst}, 0, {src}")

    def unpack2(lo, hi, src):
        A(f"v_lshlrev_b32 {lo}, 16, {src}\nv_and_b32 {hi}, {sMASK}, {src}")

    def ln_scale(vm, vr, sS1, sS2, vinv, onepass):
        A(f"v_mul_f32 {vr}, {sS2}, {vinv}\nv_mul_f32 {vm}, {sS1}, {vinv}")
        if onepass:
            A(f"v_fma_f32 {vr}, -{vm}, {vm}, {vr}")
        A(f"v_cvt_pk_bf16_f32 {vr}, 0, abs({vr})")
        rne1(vm, vm)
        A(f"v_add_f32 {vr}, {hex(fbits(1e-5))}, {vr}")
        rne1(vr, vr)
        A(f"v_sqrt_f32 {vr}, {vr}\ns_nop 0")
        rne1(vr, vr)
        A(f"v_rcp_f32 {vr}, {vr}\ns_nop 0")

    def normalize(pairs, vm, vr, last=True):
        for a in pairs:
            A(f"v_pk_add_f32 v[{a}:{a + 1}], v[{a}:{a + 1}], v[{vm}:{vm + 1}] op_sel_hi:[1,0] neg_lo:[0,1] neg_hi:[0,1]")
        for a in pairs:
            rne1(f"v{a}", f"v{a}")
            rne1(f"v{a + 1}", f"v{a + 1}")
        for a in pairs:
            A(f"v_pk_mul_f32 v[{a}:{a + 1}], v[{a}:{a + 1}], v[{vm}:{vm + 1}] op_sel:[0,1] op_sel_hi:[1,1]")
        if last:
            for a in pairs:
                rne1(f"v{a}", f"v{a}")
                rne1(f"v{a + 1}", f"v{a + 1}")

    K1 = -2.0 * math.sqrt(2.0 / math.pi) * math.log2(math.e)
    K2 = K1 * 0.044715
    CEXP = math.log2(math.e) / 16.0

    def gelu(sTs, accs, first):
        el = [(i, e) for e in range(4) for i in range(len(sTs))]
        u = lambda i, e: f"v{60 + 4 * i + e}"
        p = lambda i, e: f"v{68 + 4 * i + e}"
        for i, e in el:
            A(f"v_fma_f32 {u(i, e)}, {sTs[i]}, v{48 + e}, v{52 + e}")
        for i, e in el:
            A(f"v_mul_f32 {p(i, e)}, {u(i, e)}, {u(i, e)}")
        for i, e in el:
            A(f"v_fmaak_f32 {p(i, e)}, {p(i, e)}, v47, {hex(fbits(K1))}")
        for i, e in el:
            A(f"v_mul_f32 {p(i, e)}, {p(i, e)}, {u(i, e)}")
        for i, e in el:
            A(f"v_exp_f32 {p(i, e)}, {p(i, e)}\nv_mul_f32 {u(i, e)}, {u(i, e)}, v{56 + e}")
        for i, e in el:
            A(f"v_add_f32 {p(i, e)}, 1.0, {p(i, e)}")
        for i, e in el:
            A(f"v_rcp_f32 {p(i, e)}, {p(i, e)}")
        A("s_nop 0")
        for i, e in el:
            A(f"v_mul_f32 {accs[i]}, {u(i, e)}, {p(i, e)}" if first and e == 0 else f"v_fmac_f32 {accs[i]}, {u(i, e)}, {p(i, e)}")

    def unpack_w():
        for k, src in enumerate((76, 77, 78, 79, 84, 85)):
            unpack2(f"v{48 + 2 * k}", f"v{49 + 2 * k}", f"v{src}")
        A(f"v_mov_b32 v47, {hex(fbits(K2))}")

    def load_w():
        A(f"global_load_dwordx2 v[76:77], v5, {pW1}\nglobal_load_dwordx2 v[78:79], v5, {pB1}\nglobal_load_dwordx2 v[84:85], v5, {pW2}")

    def swap_reduce4(*sets, pad=True):
        if pad:
            A("s_nop 0")
        for a, b, c, d in sets:
            A(f"v_permlane16_swap_b32 {a}, {b}\nv_permlane16_swap_b32 {c}, {d}")
        for a, b, c, d in sets:
            A(f"v_add_f32 {a}, {a}, {b}\nv_add_f32 {c}, {c}, {d}")
        A("s_nop 1")
        for a, b, c, d in sets:
            A(f"v_permlane32_swap_b32 {a}, {c}")
        for a, b, c, d in sets:
            A(f"v_add_f32 {a}, {a}, {c}")

    L.append(f"""; Fused decode block, one launch: LN -> q projection -> sliding-window GQA attention (last 2048 keys) -> output
;
;   all 32 members run on its own die it also writes a second copy through to memory, and readers then try both copies.""")
    L.append(f"; @launch grid=(256,1,1) block=(576,1,1) lds={10 * SLOT}")
    L.append('.amdgcn_target "amdgcn-amd-amdhsa--gfx950"\n.text')
    L.append(f".globl {KN}_kernel\n.p2align 8\n.type {KN}_kernel,@function\n{KN}_kernel:")
    A(f"""s_cmpk_ge_u32 {sW}, 256
    s_cbranch_scc1 L_end
    s_load_dwordx16 s[4:19], s[0:1], 0""")
    if x_dbg:
        A("s_memrealtime s[64:65]\ns_load_dwordx2 s[66:67], s[0:1], 88")
    if epf == 4:
        C("some waves pull 1 KiB of this kernel's code towards the L2 (speed only)")
        A(f"""v_lshrrev_b32 v1, 6, v0
        s_lshr_b32 {sI}, {sW}, 3
        v_readfirstlane_b32 {sWV}, v1
        s_getpc_b64 s[40:41]
        L_pc0:
        v_lshlrev_b32 v8, 4, v0
        s_add_u32 {sT2}, {sWV}, {sI}
        s_and_b32 {sT2}, {sT2}, {pfm}
        s_cbranch_scc1 L_nopf0
        v_mov_b32 v9, s41
        v_add_co_u32 v8, vcc, s40, v8
        v_addc_co_u32 v9, vcc, 0, v9, vcc
        global_load_dwordx4 v[20:23], v[8:9], off
        L_nopf0:""")
    if epf == 3:
        C("every wave pulls 1 KiB of this kernel's code towards the L2 (speed only)")
        A("""s_getpc_b64 s[40:41]
        L_pc0:
        v_lshlrev_b32 v8, 4, v0
        v_mov_b32 v9, s41
        v_add_co_u32 v8, vcc, s40, v8
        v_addc_co_u32 v9, vcc, 0, v9, vcc
        global_load_dwordx4 v[20:23], v[8:9], off""")
    rest = "s_load_dwordx8 s[20:27], s[0:1], 64\ns_load_dwordx2 s[28:29], s[0:1], 96"
    if not tight:
        A(rest)
    stamp(0)
    if epf != 4:
        A(f"v_lshrrev_b32 v1, 6, v0\ns_lshr_b32 {sI}, {sW}, 3\nv_readfirstlane_b32 {sWV}, v1")
    A(f"""s_and_b32 {sG}, {sW}, 7
    s_and_b32 {sB}, {sI}, 3
    s_lshr_b32 {sS}, {sI}, 2""")
    A(f"""s_lshl3_add_u32 {sBG}, {sB}, {sG}
""")
    A(f"s_cmp_eq_u32 {sWV}, 0\ns_cbranch_scc1 L_loader")
    if epf in (1, 2):
        C("compute waves: pull this kernel's code towards the L2, 1 KiB pieces (speed only)")
        A(f"""s_getpc_b64 s[40:41]
        L_pc0:
        v_lshlrev_b32 v8, 4, v0
        v_add_u32 v10, {8 * 1024 - 1024}, v8
        v_min_u32 v10, L_codeend-L_pc0-16, v10
        v_add_u32 v8, {-1024 & 0xffffffff}, v8
        v_mov_b32 v9, s41
        v_add_co_u32 v8, vcc, s40, v8
        v_mov_b32 v11, s41
        v_addc_co_u32 v9, vcc, 0, v9, vcc
        global_load_dwordx4 v[20:23], v[8:9], off""")
        if epf > 1:
            A(f"""v_add_co_u32 v10, vcc, s40, v10
            s_nop 1
            v_addc_co_u32 v11, vcc, 0, v11, vcc
            global_load_dwordx4 v[20:23], v[10:11], off""")
    A("s_barrier\ns_branch L_compute\nL_loader:")
    C("---------------- loader wave")
    sN, sSLOT, sBASE, sGS, sRG, sRS, sCNT, sGI, sKV = "s48", "s49", "s50", "s51", "s52", "s53", "s54", "s55", "s56"
    sKJ = "s57"
    if True:
        C("rows 112b.. of wq, columns 512g+64s.. -> ring slot 8 (two lanes-wide issues run past the slice's descriptor)")
        A(f"""s_mov_b32 s46, {112 * 8192}
        s_mul_i32 {sT0}, {sB}, s46
        s_lshl3_add_u32 {sT1}, {sG}, {sS}
        s_lshl_b32 {sT1}, {sT1}, 7
        s_add_u32 {sT0}, {sT0}, {sT1}
        s_mov_b32 {sT3}, {65536 - 1024}
        v_lshrrev_b32 v12, 3, v0
        v_lshlrev_b32 v12, 13, v12
        v_and_b32 v13, 7, v0
        v_lshrrev_b32 v14, 4, v0
        v_lshlrev_b32 v14, 1, v14
        v_xor_b32 v13, v13, v14
        v_lshl_or_b32 v12, v13, 4, v12
        v_add_u32 v13, {sT3}, v12
        v_add_u32 v14, {sT3}, v13
        v_add_u32 v15, {sT3}, v14
        s_mov_b32 s47, 0x20000
        s_mov_b32 m0, s47
        {f"s_lshl_b32 {sT2}, s47, 1" if tight else ""}
        {f"s_mov_b32 {sT1}, 0" if tight else ""}
        s_waitcnt lgkmcnt(0)
        s_add_u32 s44, s{pWQ[0]}, {sT0}
        s_addc_u32 s45, s{pWQ[1]}, 0""")
        if lst:
            stamp(7)
        flags = f"""s_setprio 3
        s_mov_b32 {sBUD}, 0x80000
        v_mov_b32 {vM}, {MISC}
        s_mov_b32 s39, 0x20000
        v_lshrrev_b32 v6, 1, v0
        v_cmp_eq_u32 vcc, 4, v6
        v_lshl_add_u32 v5, v0, 2, {vM}
        v_mov_b32 v7, 0xff800000
        v_cndmask_b32 v6, 0, v7, vcc
        ds_write_b32 v5, v6 offset:{FL}
        s_waitcnt lgkmcnt(0)
        s_barrier"""
        if tight:
            A("L_wq:")
            for k in range(4):
                A(f"buffer_load_dwordx4 v{12 + k}, s[44:47], {sT1} offen offset:{1024 * k} {ldq} lds")
            A(f"""s_addk_i32 m0, 4096
            s_add_u32 {sT1}, {sT1}, {sT2}
            s_bitcmp0_b32 {sT1}, 20
            s_cbranch_scc1 L_wq""")
            A(flags)
            stamp(1)
            if diag:
                A("s_load_dwordx2 s[28:29], s[0:1], 96")
        for u in range(0 if tight else 16):
            if u % 4 == 0 and u:
                A(f"s_mov_b32 m0, {8 * SLOT + 1024 * u}\ns_mov_b32 {sT1}, {65536 * u}")
            A(f"buffer_load_dwordx4 v{12 + u % 4}, s[44:47], {sT1 if u > 3 else 0} offen offset:{1024 * (u % 4)} {ldq} lds")
            if u == bar - 1:
                A(flags)
                stamp(1)
    A(f"""    v_lshrrev_b32 v5, 5, v0
    v_and_b32 v6, 31, v0
    v_lshlrev_b32 v7, 1, v5
    v_xor_b32 v6, v6, v7
    v_lshlrev_b32 v6, 4, v6
    v_lshl_or_b32 v8, v5, 9, v6
    v_xor_b32 v9, 64, v8
    v_xor_b32 v10, 0x80, v8
    v_xor_b32 v11, 0xc0, v8
    s_mov_b32 {sN}, 0
    s_mov_b32 {sSLOT}, 0
    s_mov_b32 {sGS}, 4096
    s_mov_b32 {sCNT}, 16
    s_mov_b32 s38, {8 * SLOT}""")
    sR = sI
    if ra != 1 or rc:
        A(f"s_mul_i32 {sT0}, {sI}, {ra}\ns_mul_i32 {sT1}, {sG}, {rc}\ns_add_u32 {sT0}, {sT0}, {sT1}\ns_and_b32 {sT0}, {sT0}, 31")
        sR = sT0
    if rot == 1:
        A(f"s_and_b32 {sRG}, {sR}, 3\ns_lshr_b32 {sRS}, {sR}, 2")
    elif rot == 2:
        A(f"s_lshr_b32 {sRG}, {sR}, 3\ns_and_b32 {sRS}, {sR}, 7")
    elif rot == 3:
        A(f"s_mov_b32 {sRG}, 0\ns_and_b32 {sRS}, {sR}, 7")
    elif rot == 4:
        A(f"s_and_b32 {sRG}, {sR}, 3\ns_mov_b32 {sRS}, 0")
    elif rot == 5:
        A(f"s_lshr_b32 {sRG}, {sR}, 2\ns_and_b32 {sRS}, {sR}, 3")
    else:
        A(f"s_mov_b32 {sRG}, 0\ns_mov_b32 {sRS}, 0")
    A(f"""s_lshl_b32 {sKV}, {sBG}, 22
    s_lshl_b32 {sT1}, {sS}, 17
    s_add_u32 {sKV}, {sKV}, {sT1}
    s_add_u32 {sKV}, {sKV}, 0x300000
""")
    A(f"""s_add_u32 s36, s{pK[0]}, {sKV}
    s_addc_u32 s37, s{pK[1]}, 0""")

    def group_loop(flag, first, D, vb=8):
        top = lab("grp")
        A(f"s_mov_b32 {sT2}, 0")
        A(f"""{top}:
        s_add_u32 {sGI}, {sT2}, {sRG}
        s_and_b32 {sGI}, {sGI}, 3
        s_lshl_b32 {sT0}, {sGI}, 12
        s_mul_i32 {sT1}, {sGI}, {sGS}
        s_add_u32 m0, {sT0}, {sSLOT}
        s_add_u32 {sT1}, {sT1}, {sBASE}""")
        for k in range(4):
            A(f"s_waitcnt vmcnt({D - 1})\nbuffer_load_dwordx4 v{vb + k}, {SRD}, {sT1} offen offset:{1024 * k} {flag} lds")
        nb, nw = lab("nb"), lab("nw")
        A(f"s_add_u32 {sCNT}, {sCNT}, 4")
        A(f"""s_sub_u32 {sT0}, {sCNT}, {(D + 3) // 4 * 4}
        s_cbranch_scc1 {nw}
        s_and_b32 {sT1}, {sT0}, 15
        s_cbranch_scc1 {nw}
        s_lshr_b32 {sT0}, {sT0}, 4
        v_mov_b32 v5, {sT0}
        ds_write_b32 {vM}, v5 offset:{F_LANDED}
        {nw}:
        s_add_u32 {sT2}, {sT2}, 1
        s_cmp_lt_u32 {sT2}, 4
        s_cbranch_scc1 {top}""")

    def next_slot():
        A(f"""s_add_u32 {sN}, {sN}, 1
        s_add_u32 {sSLOT}, {sSLOT}, {SLOT}
        s_cmp_eq_u32 {sSLOT}, {9 * SLOT}
        s_cselect_b32 {sSLOT}, 0, {sSLOT}""")

    def wait_free():
        if x_nofree:
            return
        A(f"s_lshl_b32 {sT0}, {sN}, 2\nv_add_u32 v6, {sT0}, {vM}")
        wait_lds(F_FREE - 32, 8, "v5", "v6")

    def landed(k):
        A(f"v_mov_b32 v5, {k}\nds_write_b32 {vM}, v5 offset:{F_LANDED}")

    def drain(total, D):
        for k in range(total - (D + 15) // 16 + 1, total + 1):
            A(f"s_waitcnt vmcnt({16 * (total - k)})")
            if vbar and k == total:
                A("s_barrier")
            else:
                landed(k)

    def seg_base():
        A(f"s_add_u32 {sT0}, {sN}, {sRS}\ns_and_b32 {sT0}, {sT0}, 7\ns_lshl_b32 {sBASE}, {sT0}, 14")

    assert wpos == 8
    DV = DV or D
    if lst:
        stamp(8)
    if uni:
        assert DV == D or nL < 16
        C("segments 0..7: K, 8..15: V (each V segment into a slot its readers have released)")
        dls = [int(x) for x in dl.split(":")] if dl else [D] * 8
        uniq = sorted(set(dls))
        DV = max(uniq)
        if dlx:
            A(f"s_getreg_b32 {sT1}, hwreg(HW_REG_XCC_ID, 0, 3)")
        for d in uniq[1:]:
            mask = sum(1 << x for x in range(8) if dls[x] == d)
            A(f"s_movk_i32 {sT0}, {mask}\ns_bitcmp1_b32 {sT0}, {sT1 if dlx else sG}\ns_cbranch_scc1 L_kv{d}")
        for d in uniq:
            A(f"L_kv{d}:")
            seg_base()
            group_loop(ld, True, d)
            next_slot()
            A(f"""s_cmp_lt_u32 {sN}, 8
            s_cbranch_scc1 L_kv{d}
            s_cmp_eq_u32 {sN}, {nL}
            s_cbranch_scc1 L_kvend
            s_add_u32 s36, s{pV[0]}, {sKV}
            s_addc_u32 s37, s{pV[1]}, 0""")
            if diag:
                A(f"s_cmp_lg_u32 {sN}, 8\ns_cbranch_scc1 L_nost2{d}")
                stamp(2)
                A(f"L_nost2{d}:")
            if x_nofree:
                A(f"s_branch L_kv{d}")
            A(f"""s_lshl_b32 {sT0}, {sN}, 2
            v_add_u32 v6, {sT0}, {vM}
            L_free{d}:
            ds_read_b32 v5, v6 offset:{F_FREE - 32}
            s_waitcnt lgkmcnt(0)
            v_readfirstlane_b32 {sT5}, v5
            s_cmp_ge_u32 {sT5}, 8
            s_cbranch_scc1 L_kv{d}""")
            spin_tail(f"L_free{d}")
        A("L_kvend:")
        if nL < 16:
            A("L_v:")
            wait_free()
            seg_base()
            group_loop(ld, False, DV)
            next_slot()
            A(f"s_cmp_lt_u32 {sN}, 16\ns_cbranch_scc1 L_v")
    else:
        C("segments 0..7: K")
        A("L_k:")
        seg_base()
        group_loop(ld, True, D)
        next_slot()
        A(f"""s_cmp_lt_u32 {sN}, 8
        s_cbranch_scc1 L_k
        s_add_u32 s36, s{pV[0]}, {sKV}
        s_addc_u32 s37, s{pV[1]}, 0""")
        stamp(2)
        C("segments 8..15: V, each into a slot its readers have released")
        A("L_v:")
        wait_free()
        seg_base()
        group_loop(ld, False, DV)
        next_slot()
        A(f"s_cmp_lt_u32 {sN}, 16\ns_cbranch_scc1 L_v")
    stamp(3)
    A(f"s_cmp_lg_u32 {sS}, 7\ns_cbranch_scc1 L_wo")
    A("L_nowo:")
    drain(16 + LB, DV)
    A("s_branch L_ldone")
    C("two segments of wo: rows of head 2g + (b&1), 64 columns -> slots 7, 8")
    A(f"""L_wo:
    {"s_branch L_nowo" if x_stop == 9 else ""}
    v_lshrrev_b32 v5, 3, v0
    v_and_b32 v6, 7, v0
    v_lshrrev_b32 v7, 4, v0
    v_lshlrev_b32 v7, 1, v7
    v_xor_b32 v6, v6, v7
    v_lshlrev_b32 v6, 4, v6
    v_mul_u32_u24 v5, 896, v5
    v_add_u32 v12, v5, v6
    v_add_u32 v13, {7168 - 1024}, v12
    v_add_u32 v14, {7168 - 1024}, v13
    v_add_u32 v15, {7168 - 1024}, v14
    s_mov_b32 s36, s{pWO[0]}
    s_mov_b32 s37, s{pWO[1]}
    s_mov_b32 s38, {4096 * 896}
    s_lshl_b32 {sT0}, {sG}, 1
    s_and_b32 {sT1}, {sB}, 1
    s_add_u32 {sT0}, {sT0}, {sT1}
    s_mul_i32 {sBASE}, {sT0}, {256 * 896}
    s_lshl_b32 {sT1}, {sS}, 7
    s_add_u32 {sBASE}, {sBASE}, {sT1}""")
    T0 = 16 * (16 + LB)
    done = (T0 - (DV + 3) // 4 * 4) // 16
    for u in range(32):
        if u % 16 == 0 and not x_nofree:
            wait_lds(F_FREE + 4 * (8 + u // 16), 8)
        if u % 4 == 0:
            A(f"s_mov_b32 m0, {7 * SLOT + 1024 * u}")
            A(f"s_add_u32 {sBASE}, {sBASE}, {4 * 7168}" if u else "s_nop 0")
        if u + DV >= DW:
            A(f"s_waitcnt vmcnt({DW - 1})")
            k = (T0 + u - DW + 1) // 16
            if k > done:
                landed(k)
                done = k
        A(f"buffer_load_dwordx4 v{12 + u % 4}, {SRD}, {sBASE} offen offset:{1024 * (u % 4)} {ldo} lds")
    stamp(4)
    assert done < 16 + LB
    for k in range(done + 1, 18 + LB + 1):
        if k != 17 + LB:
            A(f"s_waitcnt vmcnt({16 * (18 + LB - k)})")
            if (vbar and k == 16 + LB) or (wbar and k == 18 + LB):
                A("s_barrier")
            else:
                landed(k)
            if obar and k == 16 + LB:
                A("s_barrier")
    A("L_ldone:")
    if x_dbg:
        A(f"""s_memrealtime s[68:69]
        s_cmp_ge_u32 {sW}, 8
        s_cbranch_scc1 L_nodbg
        s_getreg_b32 s70, hwreg(HW_REG_XCC_ID, 0, 4)
        s_waitcnt lgkmcnt(0)
        s_lshl_b32 s64, s64, 4
        s_or_b32 s64, s64, s70
        s_lshl_b32 s71, {sW}, 2
        v_mov_b32 v5, s71
        v_mov_b32 v6, s64
        v_mov_b32 v7, s68
        s_mov_b64 exec, 1
        global_store_dword v5, v6, s[66:67]
        global_store_dword v5, v7, s[66:67] offset:32
        L_nodbg:""")
    stamp(5)
    A("s_waitcnt lgkmcnt(0)")
    if diag:
        A(f"s_sub_u32 {sT0}, 0x80000, {sBUD}\ns_mul_i32 {sT0}, {sT0}, 100\ns_add_u32 s76, s64, {sT0}\ns_addc_u32 s77, s65, 0")
    stamps_out(0, 7)
    if lst:
        A('s_mov_b32 s64, s78\ns_mov_b32 s65, s79\ns_mov_b32 s66, s80\ns_mov_b32 s67, s81')
        stamps_out(40, 2)
    A("s_endpgm")

    C("---------------- compute waves")
    sCW = sWV
    A(f"""L_compute:
    {"s_endpgm" if x_stop == 9 else ""}
    {rest if tight else ""}
    s_sub_u32 {sCW}, {sWV}, 1
    s_mov_b32 {sBUD}, 0x80000
    v_mov_b32 {vM}, {MISC}
    s_mov_b32 s39, 0x20000
    v_and_b32 v0, 63, v0
    v_lshlrev_b32 {vL16}, 4, v0
    s_mul_i32 {sT0}, {sCW}, 896
    v_add_u32 v5, {sT0}, {vL16}
    v_mov_b32 v16, 0
    v_mov_b32 v17, 0
    v_mov_b32 v18, 0
    v_mov_b32 v19, 0
    v_lshrrev_b32 {vG}, 4, v0
    v_and_b32 {vN}, 15, v0
    v_mov_b32 {vONE}, 1
    v_mov_b32 {vFF}, 0xff
    v_mov_b32 v14, 0
    s_mov_b32 {sMASK}, 0xffff0000
    s_lshl_b32 {sIDX}, {sBG}, 3
    s_add_u32 {sIDX}, {sIDX}, {sS}
    s_lshl_b32 {sT0}, {sB}, 1
    s_xor_b32 {sFIN}, {sT0}, {sG}
    s_mov_b32 s38, 0x400000
    s_lshl_b32 {sT0}, {sG}, 2
    s_add_u32 {sT0}, {sT0}, {sB}
    s_lshl_b32 {sT0}, {sT0}, 3
    s_add_u32 {sT0}, {sT0}, {sS}
    s_waitcnt lgkmcnt(0)
    s_mov_b32 {sWT}, {sT0}
    s_mov_b32 {sTBLN}, {WS_TBLN}
    s_lshl_b32 s47, {sBG}, 13
    s_lshl_b32 {sT0}, {sCW}, 10
    s_or_b32 s47, s47, {sT0}
    s_or_b32 s47, s47, {WS_Q}
    s_cmp_ge_u32 {sCW}, 4
    s_mov_b32 s36, s28
    s_mov_b32 s37, s29
    s_load_dword {sTAG}, {pWS}, {WS_E}
    s_cbranch_scc1 L_nox
    s_mov_b32 exec_hi, 0x00ffffff
    global_load_dwordx4 v[16:19], v5, {pX}
    s_mov_b32 exec_hi, -1
    L_nox:
    s_cmp_lg_u32 {sCW}, 0
    s_cbranch_scc1 L_notq0
    v_mov_b32 v7, 0
    global_load_ushort v167, v7, {pB2}
    s_getreg_b32 {sXCC}, hwreg(HW_REG_XCC_ID, 0, 4)
    s_lshl_b32 s59, {sG}, 7
    s_add_u32 s59, s59, {WS_IDS}
    s_lshl_b32 {sT0}, {sI}, 2
    s_add_u32 {sT0}, {sT0}, s59
    s_lshl_b32 {sXCC}, {sXCC}, 24
    s_waitcnt lgkmcnt(0)
    s_add_u32 {sTAG}, {sTAG}, {hex(TAGINC)}
    s_lshr_b32 {sTAG1}, {sTAG}, 8
    s_and_b32 {sT1}, {sTAG}, 0xffffff
    s_or_b32 {sXCC}, {sXCC}, {sT1}
    v_mov_b32 v8, {sXCC}
    s_mov_b64 exec, 1
    buffer_store_dword v8, {vL16}, {SRD}, {sT0} offen
    s_mov_b64 exec, -1
    s_waitcnt vmcnt(2)
    s_branch L_ln
    L_notq0:
    s_lshl_b32 {sT0}, {sCW}, 9
    s_sub_u32 {sT0}, {sT0}, 512
    v_lshl_add_u32 v5, v0, 3, {sT0}""")
    load_w()
    if touch:
        C("wave 6: first touch of the pages that are streamed later (address translation, speed only)")
        A(f"""s_cmp_lg_u32 {sCW}, 6
        s_cbranch_scc1 L_notouch
        s_lshl_b32 {sT0}, {sBG}, 22
        s_lshl_b32 {sT1}, {sS}, 17
        s_add_u32 {sT0}, {sT0}, {sT1}
        s_add_u32 {sT0}, {sT0}, 0x300000
        v_mov_b32 v8, {sT0}
        s_mul_i32 {sT0}, {sG}, {512 * 896}
        v_mov_b32 v9, {sT0}
        s_mov_b64 exec, 1
        global_load_dword v20, v8, s[8:9] nt""")
        if touch > 1:
            A(f"""global_load_dword v21, v9, s[12:13] nt
            v_add_u32 v9, {512 * 896 - 4}, v9
            global_load_dword v22, v9, s[12:13] nt""")
        if touch > 2:
            A(f"v_mov_b32 v9, 0\nglobal_load_dword v23, v9, {pOUT} nt")
        A("s_mov_b64 exec, -1\nL_notouch:")
    if pf:
        C("waves 6, 7: the last two KiB of the code")
        A(f"""s_cmp_lt_u32 {sCW}, 6
        s_cbranch_scc1 L_nopf
        s_getpc_b64 s[40:41]
        L_pfpc:
        s_lshl_b32 {sT2}, {sCW}, 10
        s_add_u32 {sT2}, {sT2}, L_pfend-L_pfpc-8192
        s_add_u32 s40, s40, {sT2}
        s_addc_u32 s41, s41, 0
        v_mov_b32 v9, s41
        v_add_co_u32 v8, vcc, s40, {vL16}
        s_nop 1
        v_addc_co_u32 v9, vcc, 0, v9, vcc
        global_load_dwordx4 v[20:23], v[8:9], off
        L_nopf:""")
    A(f"""s_waitcnt lgkmcnt(0)
    s_add_u32 {sTAG}, {sTAG}, {hex(TAGINC)}
    s_lshr_b32 {sTAG1}, {sTAG}, 8
    s_cmp_ge_u32 {sCW}, 4
    s_cbranch_scc1 L_table
    s_waitcnt vmcnt(3)""")
    C("LayerNorm of row cw of x (waves 0..3), bf16 rounding as the reference")
    A("L_ln:\ns_setprio 2")
    for k in range(4):
        unpack2(f"v{20 + 2 * k}", f"v{21 + 2 * k}", f"v{16 + k}")
    A("""v_pk_add_f32 v[28:29], v[20:21], v[22:23]
    v_pk_add_f32 v[30:31], v[24:25], v[26:27]
    v_pk_add_f32 v[28:29], v[28:29], v[30:31]
    v_add_f32 v28, v28, v29""")
    wave_sums(["v28"], [sT0])
    A(f"v_mov_b32 v32, {hex(fbits(1.0 / 448.0))}\nv_mul_f32 v30, {sT0}, v32\nv_mov_b32 v28, 0\ns_mov_b32 exec_hi, 0x00ffffff")
    for k in range(8):
        A(f"v_sub_f32 v29, v{20 + k}, v30\nv_fmac_f32 v28, v29, v29")
    A("s_mov_b32 exec_hi, -1")
    wave_sums(["v28"], [sT1])
    ln_scale("v30", "v31", sT0, sT1, "v32", False)
    normalize([20, 22, 24, 26], 30, 31, False)
    for k in range(4):
        A(f"v_cvt_pk_bf16_f32 v{16 + k}, v{20 + 2 * k}, v{21 + 2 * k}")
    A(f"""s_mul_i32 {sT0}, {sCW}, 960
    v_add3_u32 v5, {vL16}, {sT0}, {vM}
    s_mov_b32 exec_hi, 0x00ffffff
    ds_write_b128 v5, v[16:19] offset:{LN}
    s_mov_b32 exec_hi, -1""")
    signal(F_LNCNT)
    A(f"s_cmp_lg_u32 {sCW}, 0\ns_cbranch_scc1 L_table")
    C("partial q projection: 64 columns x 4 batches over 112 rows")
    stamp(1)
    A(f"""v_and_b32 v7, 3, {vN}
    v_lshlrev_b32 v12, 16, v7
    v_mul_u32_u24 v7, 960, v7
    v_lshl_add_u32 v7, {vG}, 3, v7
    s_mul_i32 {sT0}, {sB}, 224
    v_add3_u32 v7, v7, {sT0}, {vM}
    v_bfe_u32 v8, v0, 3, 2
    v_lshlrev_b32 v8, 5, v8
    v_lshrrev_b32 v9, 2, v0
    v_lshl_or_b32 v8, v9, 7, v8
    v_and_b32 v9, 3, v0
    v_lshl_or_b32 v8, v9, 3, v8
    v_add_u32 v8, {8 * SLOT}, v8
    v_xor_b32 v9, 32, v8
    v_xor_b32 v10, 64, v8
    v_xor_b32 v11, 0x60, v8
    v_lshrrev_b32 v13, 2, {vN}
    v_cmp_eq_u32 s[52:53], 1, v13
    v_cmp_eq_u32 s[54:55], 2, v13
    v_cmp_eq_u32 s[56:57], 3, v13
    v_lshl_or_b32 v12, v13, 6, v12
    v_lshl_or_b32 v12, {vG}, 4, v12
    v_mov_b32 v13, 8
    s_lshl_b32 {sT0}, {sG}, 3
    s_add_u32 {sT0}, {sT0}, {sS}
    s_lshl_b32 {sT0}, {sT0}, 10
    s_lshl_b32 {sT1}, {sB}, 8
    s_add_u32 {sT0}, {sT0}, {sT1}
    s_add_u32 {sT0}, {sT0}, {WS_Q}""")
    wait_lds(F_LNCNT, 4)
    for j in range(3):
        A(f"ds_read2_b64 v[{16 + 4 * j}:{19 + 4 * j}], v7 offset0:{8 * j} offset1:{8 * j + 4}")
    A("ds_read_b64 v[28:29], v7 offset:192")
    wait_lds(F_LANDED, 1)
    for j in range(4):
        for t in range(4):
            r = 48 + 16 * j + 4 * t
            A(f"ds_read_b64_tr_b16 v[{r}:{r + 1}], v{8 + t} offset:{4096 * j}")
            if j < 3:
                A(f"ds_read_b64_tr_b16 v[{r + 2}:{r + 3}], v{8 + t} offset:{4096 * j + 2048}")
    signal(F_FREE, "v13")
    A("s_waitcnt lgkmcnt(0)")
    for j in range(4):
        for t in range(4):
            r, d = 48 + 16 * j + 4 * t, 112 + 4 * t
            if j < 3:
                A(f"v_mfma_f32_16x16x32_bf16 v[{d}:{d + 3}], v[{r}:{r + 3}], v[{16 + 4 * j}:{19 + 4 * j}], {'0' if j == 0 else f'v[{d}:{d + 3}]'}")
            else:
                A(f"v_mfma_f32_16x16x16_bf16 v[{d}:{d + 3}], v[{r}:{r + 1}], v[28:29], v[{d}:{d + 3}]")
    A("s_nop 7")
    for t in range(1, 4):
        for r in range(4):
            A(f"v_cndmask_b32 v{112 + r}, v{112 + r}, v{112 + 4 * t + r}, s[{50 + 2 * t}:{51 + 2 * t}]")
    put_tag(range(112, 116))
    A(f"""buffer_store_dwordx4 v[112:115], v12, {SRD}, {sT0} offen {qst}
    s_add_u32 s58, {sT0}, {WS_FAR}
    v_mov_b32 v14, v12""")
    stamp(2)
    if x_stop == 1:
        A("s_endpgm")
    A("s_branch L_qk")
    C("waves 1..7: this workgroup's entries of the scalar map t -> MLP(t), t running over bf16 values")
    A("L_table:\ns_setprio 0\ns_waitcnt vmcnt(0)")
    if x_stop == 1:
        A("s_endpgm")
    unpack_w()
    A(f"""s_and_b32 {sT0}, {sWT}, 127
    s_mul_i32 {sT0}, {sT0}, {NE}
    s_add_u32 {sT0}, {sT0}, {E0 << 7}
    s_lshr_b32 {sT1}, {sWT}, 7
    s_lshl_b32 {sT1}, {sT1}, 15
    s_or_b32 {sT0}, {sT0}, {sT1}
    s_lshl_b32 s50, {sT0}, 16
    s_mov_b32 s54, 0
    s_lshl_b32 {sT0}, {sCW}, 7
    v_lshl_add_u32 v8, {vG}, 2, {vM}
    v_add_u32 v8, {sT0}, v8
    L_tloop:
    s_cmp_lg_u32 s54, {(x_tl or NE) - 4 * qit}
    s_cbranch_scc1 L_tnoq
    buffer_load_dwordx4 v[20:23], {vL16}, {SRD}, s47 offen sc1
    L_tnoq:
    s_add_u32 s51, s50, 0x10000
    s_add_u32 s52, s50, 0x20000
    s_add_u32 s53, s50, 0x30000""")
    gelu(["s50", "s51"], ["v80", "v81"], True)
    gelu(["s52", "s53"], ["v82", "v83"], True)
    swap_reduce4(("v80", "v81", "v82", "v83"))
    A("s_add_u32 s50, s50, 0x40000\ns_add_u32 s54, s54, 4")
    for m in DPP[:4]:
        A(f"v_add_f32_dpp v80, v80, v80 {m} bank_mask:0xf\ns_nop 1")
    A(f"""s_cmp_lt_u32 s54, {x_tl or NE}
    ds_write_b32 v8, v80 offset:{TP - 128}
    v_add_u32 v8, 16, v8
    s_cbranch_scc1 L_tloop""")
    signal(F_TCNT)
    stamp(1)
    C("key slot cw -> registers, slot is released at once")
    A(f"""L_qk:
    s_setprio 1
    v_and_b32 v8, 7, {vN}
    v_lshlrev_b32 v8, 1, v8
    v_xor_b32 v8, v8, {vG}
    v_lshlrev_b32 v8, 4, v8
    v_lshl_or_b32 v8, {vN}, 9, v8
    s_lshl_b32 {sT0}, {sCW}, 14
    v_add_u32 v8, {sT0}, v8
    v_xor_b32 v9, 64, v8
    v_xor_b32 v10, 0x80, v8
    v_xor_b32 v11, 0xc0, v8
    s_lshl_b32 {sT0}, {sCW}, 2
    v_add_u32 v12, {sT0}, {vM}
    v_mov_b32 v13, 8
    s_add_u32 {sT4}, {sCW}, {1 + LB}""")
    wait_lds(F_LANDED, sT4)
    for j in range(8):
        for t in range(2):
            r = 48 + 8 * j + 4 * t
            A(f"ds_read_b128 v[{r}:{r + 3}], v{8 + (j & 3)} offset:{256 * (j >> 2) + 8192 * t}")
    signal(F_FREE + 4, "v13", "v12")
    stamp(3)
    if x_stop == 2:
        A("s_endpgm")
    C("64 columns of q: sum of the four row-quarter partials")
    A(f"""s_lshr_b32 {sT1}, {sCW}, 2
    s_mul_i32 {sT1}, {sT1}, {HP}
    s_and_b32 {sT2}, {sCW}, 3
    s_lshl_b32 {sT2}, {sT2}, 7
    s_add_u32 {sT1}, {sT1}, {sT2}
    v_lshlrev_b32 v12, 1, {vG}
    v_lshl_or_b32 v12, {vN}, 3, v12
    v_add3_u32 v12, v12, {sT1}, {vM}
    s_cmp_lg_u32 {sCW}, 0
    s_cbranch_scc1 L_qchk""")
    wait_lds(F_LANDED, QT + LB)
    A(f"buffer_load_dwordx4 v[20:23], {vL16}, {SRD}, s47 offen sc1")
    C("wave 0: do the 32 workgroups of this kv head share this compute die (one L2)?  Not seen yet counts as no")
    A(f"""v_and_b32 v16, 31, v0
    v_lshlrev_b32 v16, 2, v16
    buffer_load_dword v17, v16, {SRD}, s59 offen sc1
    s_waitcnt vmcnt(0)
    v_cmp_ne_u32 vcc, {sXCC}, v17
    v_mov_b32 v17, 1
    s_cmp_lg_u64 vcc, 0
    s_cbranch_scc1 L_idfar
    {"s_branch L_idfar" if x_far else ""}
    L_idloc:
    ds_write_b32 {vM}, v17 offset:{F_LOC}
    L_qchk:
    s_waitcnt vmcnt(0)""")
    cold.append(f"""L_idfar:
    buffer_store_dwordx4 v[112:115], v14, {SRD}, s58 offen sc1
    v_mov_b32 v17, {WS_FAR + 1}
    s_branch L_idloc""")
    tags_ok([20, 21, 22, 23], "L_qok")
    wait_lds(F_LOC, 1, sleep=qback)
    A(f"""s_sub_u32 {sT5}, {sT5}, 1
    s_xor_b32 s47, s47, {sT5}
    s_sleep {qback}
    buffer_load_dwordx4 v[20:23], {vL16}, {SRD}, s47 offen sc1""")
    spin_tail("L_qchk", 0)
    A("L_qok:")
    strip_tag(range(20, 24))
    swap_reduce4(("v20", "v21", "v22", "v23"))
    A(f"""v_cvt_pk_bf16_f32 v20, v20, v20
    ds_write_b16 v12, v20 offset:{QL}""")
    signal(F_QCNT)
    A(f"""v_and_b32 v7, 1, {vN}
    v_lshl_add_u32 v8, v7, 2, {vM}
    v_mul_u32_u24 v7, {HP}, v7
    v_lshl_add_u32 v7, {vG}, 4, v7
    v_add_u32 v7, v7, {vM}
    s_lshl_b32 {sT0}, {sCW}, 6
    v_add_u32 v9, {sT0}, v7
    s_mov_b32 s46, {hex(fbits(CEXP))}""")
    wait_lds(F_QCNT, 8)
    stamp(4)
    A(f"ds_read_b32 v5, {vM} offset:{F_LOC}")
    for j in range(8):
        A(f"ds_read_b128 v[{16 + 4 * j}:{19 + 4 * j}], v7 offset:{QL + 64 * j}")
    for j in range(8):
        A(f"s_waitcnt lgkmcnt({7 - j})")
        if j == 0:
            A(f"v_readfirstlane_b32 {sFAR}, v5")
        for t in range(2):
            r = 48 + 8 * j + 4 * t
            d = 112 + 4 * t
            A(f"v_mfma_f32_16x16x32_bf16 v[{d}:{d + 3}], v[{r}:{r + 3}], v[{16 + 4 * j}:{19 + 4 * j}], {'0' if j == 0 else f'v[{d}:{d + 3}]'}")
    A(f"s_sub_u32 {sFAR}, {sFAR}, 1\ns_nop 6")
    for k in range(8):
        rne1(f"v{112 + k}", f"v{112 + k}")
    A(f"""v_max3_f32 v120, v112, v113, v114
    v_max3_f32 v121, v115, v116, v117
    v_max3_f32 v120, v120, v118, v119
    v_max_f32 v120, v120, v121
    s_mov_b32 exec_lo, 0x00030003
    s_mov_b32 exec_hi, 0x00030003
    ds_max_f32 v8, v120 offset:{F_MX}
    s_mov_b64 exec, -1""")
    signal(F_MAXCNT)
    wait_lds(F_MAXCNT, 8)
    A(f"ds_read_b32 v124, v8 offset:{F_MX}\ns_waitcnt lgkmcnt(0)")
    for k in range(8):
        A(f"v_sub_f32 v{112 + k}, v{112 + k}, v124")
    for k in range(8):
        A(f"v_mul_f32 v{112 + k}, s46, v{112 + k}")
    for k in range(8):
        A(f"v_exp_f32 v{112 + k}, v{112 + k}")
    A("s_nop 0")
    for k in range(4):
        A(f"v_cvt_pk_bf16_f32 v{120 + k}, v{112 + 2 * k}, v{113 + 2 * k}")
    A(f"""s_mov_b32 exec_lo, 0x00030003
    s_mov_b32 exec_hi, 0x00030003
    ds_write_b128 v9, v[120:123] offset:{PL}
    s_mov_b64 exec, -1""")
    signal(F_PCNT)
    C("addresses of the PV loop and of the stages behind it")
    A(f"""v_mov_b32 v43, v7
    v_bfe_u32 v8, v0, 2, 3
    s_lshl_b32 {sT0}, {sCW}, 1
    v_xor_b32 v8, {sT0}, v8
    v_lshlrev_b32 v8, 5, v8
    v_lshrrev_b32 v9, 2, v0
    v_lshl_or_b32 v8, v9, 9, v8
    v_and_b32 v10, 3, v0
    v_lshl_or_b32 v44, v10, 3, v8
    v_xor_b32 v45, 32, v44""")
    for r in range(112, 120):
        A(f"v_mov_b32 v{r}, 0")
    A(f"""v_and_b32 v28, 1, {vN}
    v_lshlrev_b32 v28, 10, v28
    v_bfe_u32 v29, {vN}, 1, 1
    v_lshl_or_b32 v28, v29, 6, v28
    v_lshl_or_b32 v160, {vG}, 4, v28
    v_cmp_ne_u32 s[56:57], 0, v29
    s_lshl_b32 s51, {sIDX}, 11
    s_lshl_b32 {sT0}, {sCW}, 7
    s_add_u32 s51, s51, {sT0}
    s_add_u32 s51, s51, {WS_OP}
    v_lshlrev_b32 v161, 6, {vG}
    v_lshlrev_b32 v28, 4, {vN}
    v_lshl_or_b32 v162, {vG}, 11, v28
    s_and_b32 {sT2}, {sBG}, 0x17
    s_lshr_b32 {sT1}, {sCW}, 2
    s_lshl_b32 {sT1}, {sT1}, 3
    s_add_u32 {sT2}, {sT2}, {sT1}
    s_and_b32 {sT3}, {sB}, 1
    s_lshl_b32 s52, {sT2}, 14
    s_lshl_b32 {sT1}, {sT3}, 10
    s_add_u32 s52, s52, {sT1}
    s_and_b32 {sT1}, {sCW}, 3
    s_lshl_b32 {sT1}, {sT1}, 8
    s_add_u32 s52, s52, {sT1}
    s_add_u32 s52, s52, {WS_OP}
    s_add_u32 s59, s52, {4 << 11}
    v_bfe_u32 v28, v0, 3, 2
    s_and_b32 {sT1}, {sCW}, 3
    v_xor_b32 v28, {sT1}, v28
    v_lshlrev_b32 v28, 5, v28
    v_lshl_or_b32 v28, v9, 7, v28
    v_lshl_or_b32 v163, v10, 3, v28
    v_add_u32 v164, {((8 + wpos) % 9) * SLOT}, v163
    v_lshlrev_b32 v28, 4, v10
    v_bfe_u32 v29, v0, 2, 1
    v_lshl_or_b32 v28, v29, 3, v28
    v_bfe_u32 v29, v0, 3, 1
    v_lshl_or_b32 v28, v29, 6, v28
    v_lshl_or_b32 v28, {vG}, 1, v28
    s_lshr_b32 {sT0}, {sCW}, 2
    s_mul_i32 {sT0}, {sT0}, {HP}
    s_lshl_b32 {sT1}, {sT1}, 7
    s_add_u32 {sT0}, {sT0}, {sT1}
    v_add3_u32 v165, v28, {sT0}, {vM}
    s_lshl_b32 {sT0}, {sCW}, 6
    v_add_u32 v166, {OL - PL}, v7
    v_mul_u32_u24 v14, {16 * 1792}, {vN}
    v_lshl_add_u32 v14, {vG}, 4, v14
    s_and_b32 s53, {sB}, 2
    s_lshl_b32 s53, s53, 3
    s_add_u32 s53, s53, {sG}
    s_lshl_b32 s53, s53, 1
    s_add_u32 s53, s53, {sT3}
    s_mul_i32 s53, s53, 1792
    s_lshl_b32 {sT1}, {sS}, 8
    s_add_u32 s53, s53, {sT1}
    s_add_u32 s53, s53, {sT0}
    s_add_u32 s53, s53, {WS_OUTP + (KC - 1) * 0x20000}
    s_lshl_b32 s54, {sT2}, 9
    s_lshl_b32 {sT1}, {sT3}, 3
    s_add_u32 s54, s54, {sT1}
    s_add_u32 s54, s54, {WS_STATS}
    v_lshl_add_u32 v136, {vN}, 2, {vG}
    v_add_u32 v136, {sT0}, v136
    s_mul_i32 {sT1}, {sB}, 896
    v_lshl_add_u32 v137, v136, 1, {sT1}
    s_and_b32 s55, {sWT}, 0xf8
    s_mul_i32 s55, s55, {NE * 4}
    s_xor_b32 {sT1}, {sS}, 7
    s_or_b32 {sFIN}, {sFIN}, {sT1}""")
    if opre == 2:
        C("first read of the lines this workgroup writes in stage 3 (brings them on chip; speed only)")
        A(f"""s_and_b32 {sT0}, {sCW}, 5
        s_cbranch_scc1 L_nopre
        s_cmp_eq_u32 {sS}, 7
        s_cbranch_scc1 L_nopre
        s_mov_b64 exec, 3
        s_mov_b32 {sT0}, s53""")
        for k in range(KC):
            A(f"buffer_load_dword v128, v14, {SRD}, {sT0} offen {oprefl}\ns_sub_u32 {sT0}, {sT0}, 0x20000")
        A("s_mov_b64 exec, -1\nL_nopre:")
    wait_lds(F_PCNT, 8)
    stamp(5)
    if x_stop == 3:
        A("s_endpgm")
    C("wave 0: row sums of the bf16 probabilities (ones x P), publish (max, sum) of both heads")
    A(f"s_cmp_lg_u32 {sCW}, 0\ns_cbranch_scc1 L_nostat")
    for j in range(8):
        A(f"ds_read_b128 v[{48 + 4 * j}:{51 + 4 * j}], v43 offset:{PL + 64 * j}")
    for r in range(16, 20):
        A(f"v_mov_b32 v{r}, 0x3f803f80")
    A(f"""s_lshl_b32 {sT0}, {sIDX}, 6
    s_add_u32 {sT0}, {sT0}, {WS_STATS}
    s_waitcnt lgkmcnt(0)""")
    for j in range(8):
        A(f"v_mfma_f32_16x16x32_bf16 v[20:23], v[16:19], v[{48 + 4 * j}:{51 + 4 * j}], {'0' if j == 0 else 'v[20:23]'}")
    A(f"""v_mov_b32_dpp v126, v124 quad_perm:[1,0,3,2] row_mask:0xf bank_mask:0xf
    s_nop 6
    v_mov_b32 v125, v20
    v_mov_b32_dpp v127, v20 quad_perm:[1,0,3,2] row_mask:0xf bank_mask:0xf""")
    put_tag([125, 127], tag=sTAG1)
    put_tag([124, 126], True, sTAG)
    A("s_mov_b64 exec, 1")
    store_group(f"buffer_store_dwordx4 v[124:127], {vL16}, {SRD}, {{}} offen", sT0)
    C("wave 0: finish and publish the table entries")
    A(f"s_mov_b64 exec, -1\nv_and_b32 v7, 31, v0\nv_lshl_add_u32 v7, v7, 2, {vM}")
    wait_lds(F_TCNT, 7)
    for k in range(7):
        A(f"ds_read_b32 v{16 + k}, v7 offset:{TP + 128 * k}")
    A(f"""s_mul_i32 {sT0}, {sWT}, {NE * 4}
    s_add_u32 {sT0}, {sT0}, {WS_TBLN}
    v_lshlrev_b32 v8, 2, v0
    v_lshlrev_b32 v46, 16, v167
    s_waitcnt lgkmcnt(0)
    v_add_f32 v16, v16, v17
    v_add_f32 v18, v18, v19
    v_add_f32 v20, v20, v21
    v_add_f32 v16, v16, v18
    v_add_f32 v20, v20, v22
    v_add_f32 v16, v16, v20""")
    rne1("v16", "v16")
    A("v_add_f32 v16, v16, v46")
    rne1("v16", "v16")
    A(f"v_mov_b32 v17, {sTAG}\nv_bfi_b32 v16, {sMASK}, v16, v17")
    A(f"s_mov_b64 exec, {(1 << NE) - 1}")
    store_group(f"buffer_store_dword v16, v8, {SRD}, {{}} offen", sT0)
    A("s_mov_b64 exec, -1\nL_nostat:")
    sJ, sVS, sJL = "s48", "s49", "s50"
    ntl = (NE * 128 + 1023) // 1024
    lastm = (1 << ((NE * 128 - 1024 * (ntl - 1)) // 16)) - 1

    def table_loads():
        for k in range(ntl):
            if k == ntl - 1:
                A(f"s_mov_b32 exec_lo, {hex(lastm & 0xffffffff)}\ns_mov_b32 exec_hi, {hex(lastm >> 32)}")
            A(f"buffer_load_dwordx4 v[{140 + 4 * k}:{143 + 4 * k}], {vL16}, {SRD}, s55 offen offset:{1024 * k} sc1")
        A("s_mov_b64 exec, -1")

    A(f"""s_mov_b32 {sJ}, 0
    s_mov_b32 {sVS}, {8 * SLOT}
    s_mov_b32 {sJL}, {jmid}
    v_add_u32 v12, {F_FREE + 36}, {vM}
    s_mov_b32 {sT4}, {9 + LB}
    s_cmp_eq_u32 {sS}, 7
    s_cselect_b32 s58, 0, 2
    L_pv:
    ds_read_b128 v[16:19], v43 offset:{PL}
    v_add_u32 v10, {sVS}, v44
    v_add_u32 v11, {sVS}, v45""")
    if vbar:
        C("the last slot is announced by a barrier with the loader")
        A(f"s_cmp_lg_u32 {sJ}, 7\ns_waitcnt lgkmcnt(0)\ns_cbranch_scc1 L_pvwait\ns_barrier\nL_pvgo:")
        pvwait = (f"""L_pvwait:
        ds_read_b32 v5, {vM} offset:{F_LANDED}
        s_waitcnt lgkmcnt(0)
        v_readfirstlane_b32 {sT5}, v5
        s_cmp_ge_u32 {sT5}, {sT4}
        s_cbranch_scc1 L_pvgo
        s_sleep 1
        s_sub_u32 {sBUD}, {sBUD}, 1
        s_cbranch_scc0 L_pvwait
        s_branch L_end""")
    else:
        wait_lds(F_LANDED, sT4, sleep=pvslp)
    A(f"""ds_read_b64_tr_b16 v[20:21], v10
    ds_read_b64_tr_b16 v[22:23], v10 offset:8192
    ds_read_b64_tr_b16 v[24:25], v11
    ds_read_b64_tr_b16 v[26:27], v11 offset:8192""")
    signal(0, vONE, "v12")
    A(f"""v_add_u32 v43, 64, v43
    s_add_u32 {sJ}, {sJ}, 1""")
    if wpos < 8:
        A(f"""s_cmp_eq_u32 {sJ}, {wpos}
        s_cselect_b32 {sT0}, s58, 0
        s_add_u32 {sT0}, {sT0}, 1
        s_add_u32 {sT4}, {sT4}, {sT0}
        s_lshl_b32 {sT1}, {sT0}, 2
        v_add_u32 v12, {sT1}, v12
        s_lshl_b32 {sT1}, {sT0}, 14
        s_add_u32 {sVS}, {sVS}, {sT1}
        s_sub_u32 {sT1}, {sVS}, {9 * SLOT}
        s_cselect_b32 {sVS}, {sVS}, {sT1}""")
    else:
        A(f"""v_add_u32 v12, 4, v12
        s_add_u32 {sT4}, {sT4}, 1
        s_add_u32 {sVS}, {sVS}, {SLOT}
        s_cmp_eq_u32 {sVS}, {9 * SLOT}
        s_cselect_b32 {sVS}, 0, {sVS}""")
    A(f"""    s_cmp_lt_u32 {sJ}, {sJL}
    s_waitcnt lgkmcnt(3)
    v_mfma_f32_16x16x32_bf16 v[112:115], v[20:23], v[16:19], v[112:115]
    s_waitcnt lgkmcnt(1)
    v_mfma_f32_16x16x32_bf16 v[116:119], v[24:27], v[16:19], v[116:119]
    s_cbranch_scc1 L_pv
    s_cmp_eq_u32 {sJ}, 8
    s_cbranch_scc1 L_pv_done""")
    C("before the last value slots: fetch what the next stage needs besides the partial rows")
    A(f"""s_mov_b32 {sJL}, 8
    s_cmp_eq_u32 {sS}, 7
    s_cbranch_scc1 L_mid7""")
    if opre == 1:
        A(f"""s_cmp_ge_u32 {sCW}, 4
        s_cbranch_scc1 L_nopre
        s_mov_b32 exec_lo, 0x00030003
        s_mov_b32 exec_hi, 0
        s_mov_b32 {sT0}, s53""")
        for k in range(KC):
            A(f"buffer_load_dword v128, v14, {SRD}, {sT0} offen {oprefl}\ns_sub_u32 {sT0}, {sT0}, 0x20000")
        A("s_mov_b64 exec, -1\nL_nopre:")
    A(f"""    buffer_load_dwordx2 v[32:33], v161, {SRD}, s54 offen sc1
    buffer_load_dwordx2 v[34:35], v161, {SRD}, s54 offen offset:256 sc1""")
    A(f"""s_branch L_pv
    L_mid7:
    s_cmp_lg_u32 {sCW}, 0
    s_cbranch_scc1 L_mid8
    v_mov_b32 v32, {sTAG}
    v_mov_b32 v33, {sTAG}
    v_mov_b32 v34, {sTAG}
    v_mov_b32 v35, {sTAG}
    s_add_u32 s54, s55, {WS_TBLN}
    s_mov_b32 exec_hi, {hex((1 << (2 * NE - 32)) - 1)}
    buffer_load_dwordx4 v[32:35], {vL16}, {SRD}, s54 offen sc1
    s_mov_b32 exec_hi, -1
    L_mid8:
    s_cmp_lg_u32 {sFIN}, 0
    s_cbranch_scc1 L_pv
    s_cmp_eq_u32 {sCW}, 7
    s_cbranch_scc1 L_pv
    global_load_ushort v138, v137, {pX}
    s_branch L_pv""")
    if vbar:
        A(pvwait)
    A("L_pv_done:")
    stamp(7)
    if x_stop == 4:
        A("s_endpgm")
    C("publish the partial output rows")
    A(f"""s_nop 4
    v_cndmask_b32 v112, v112, v116, s[56:57]
    v_cndmask_b32 v113, v113, v117, s[56:57]
    v_cndmask_b32 v114, v114, v118, s[56:57]
    v_cndmask_b32 v115, v115, v119, s[56:57]""")
    put_tag(range(112, 116), True)
    A(f"""s_mov_b32 exec_lo, 0x000f000f
    s_mov_b32 exec_hi, 0x000f000f
""")
    store_group(f"buffer_store_dwordx4 v[112:115], v160, {SRD}, {{}} offen", "s51")
    opoll = f"""buffer_load_dwordx4 v[24:27], v162, {SRD}, s52 offen sc1
    buffer_load_dwordx4 v[28:31], v162, {SRD}, s59 offen sc1"""
    A(f"""s_mov_b64 exec, -1
    s_cmp_eq_u32 {sS}, 7
    s_cbranch_scc1 L_last""")
    if obar:
        C("all partial rows of this workgroup are on their way before the first look at the group's rows")
        A("s_barrier")
    A(opoll)
    A(f"s_cmp_lg_u32 {sFAR}, 0\ns_cbranch_scc1 L_spoll0\ns_waitcnt vmcnt(3)\nL_spoll:")
    cold.append("L_spoll0:\ns_waitcnt vmcnt(0)\ns_branch L_spoll")
    tags_ok([32, 34, 33, 35], "L_sok", tags=[sTAG, sTAG1])
    A(f"""s_xor_b32 s54, s54, {sFAR}
    buffer_load_dwordx2 v[32:33], v161, {SRD}, s54 offen sc1
    buffer_load_dwordx2 v[34:35], v161, {SRD}, s54 offen offset:256 sc1
    s_waitcnt vmcnt(0)""")
    spin_tail("L_spoll", 0)
    A(f"""L_oagain:
    s_xor_b32 s52, s52, {sFAR}
    s_xor_b32 s59, s59, {sFAR}""")
    A(opoll)
    spin_tail("L_opoll", 0)
    A("L_sok:")
    C("weights of the splits row and row+4")
    A(f"""v_and_b32 v32, {sMASK}, v32
    v_and_b32 v34, {sMASK}, v34""")
    strip_tag([33, 35])

    def rowred(op, d, t):
        for sw in ("v_permlane16_swap_b32", "v_permlane32_swap_b32"):
            A(f"v_mov_b32 {t}, {d}\ns_nop 1\n{sw} {d}, {t}\n{op} {d}, {d}, {t}")

    A("v_max_f32 v36, v32, v34")
    rowred("v_max_f32", "v36", "v37")
    A("""v_sub_f32 v32, v32, v36
    v_sub_f32 v34, v34, v36
    v_mul_f32 v32, s46, v32
    v_mul_f32 v34, s46, v34
    v_exp_f32 v32, v32
    v_exp_f32 v34, v34
    s_nop 0
    v_mul_f32 v36, v33, v32
    v_fmac_f32 v36, v35, v34""")
    rowred("v_add_f32", "v36", "v37")
    A("""v_rcp_f32 v36, v36
    s_nop 0
    v_mul_f32 v32, v32, v36
    v_mul_f32 v34, v34, v36""")
    if wbar:
        C("wo has landed (barrier with the loader)")
        A(f"s_cmp_ge_u32 {sCW}, 4\ns_barrier\ns_cbranch_scc1 L_opoll")
    else:
        A(f"s_cmp_ge_u32 {sCW}, 4\ns_cbranch_scc1 L_opoll")
        wait_lds(F_LANDED, 10 + wpos + LB, sleep=pvslp)
    for j in range(8):
        for u in range(2):
            part = j >> 2
            sl0, sl = (8 + wpos) % 9, (8 + wpos + part) % 9
            base, off = ("v164", (sl - sl0) * SLOT) if sl >= sl0 else ("v163", sl * SLOT)
            r = 48 + 4 * j + 2 * u
            A(f"ds_read_b64_tr_b16 v[{r}:{r + 1}], {base} offset:{off + 4096 * (j & 3) + 2048 * u}")
    stamp(8)
    A("L_opoll:\ns_waitcnt vmcnt(0)")

    def o_scale():
        strip_tag(range(28, 32))
        A("""v_pk_mul_f32 v[24:25], v[24:25], v[32:33] op_sel_hi:[1,0]
        v_pk_mul_f32 v[26:27], v[26:27], v[32:33] op_sel_hi:[1,0]
        v_pk_fma_f32 v[24:25], v[28:29], v[34:35], v[24:25] op_sel_hi:[1,0,1]
        v_pk_fma_f32 v[26:27], v[30:31], v[34:35], v[26:27] op_sel_hi:[1,0,1]""")

    tags_ok(list(range(24, 32)), None, retry="L_oagain", between=lambda: strip_tag(range(24, 28)))
    stamp(9)
    o_scale()
    swap_reduce4(("v24", "v25", "v26", "v27"))
    A(f"""v_cvt_pk_bf16_f32 v24, v24, v24
    ds_write_b16 v165, v24 offset:{OL}
    s_cmp_ge_u32 {sCW}, 4
    s_waitcnt lgkmcnt(0)
    s_barrier
    s_cbranch_scc1 {"L_wb" if wb else "L_exit"}""")
    if wb:
        cold.append(f"""L_wb:
        s_or_b32 {sT0}, {sB}, {sS}
        s_xor_b32 {sT1}, {sCW}, 7
        s_or_b32 {sT0}, {sT0}, {sT1}
        s_cbranch_scc1 L_exit
        {f"s_sleep {wb}" if wb > 1 else ""}
        buffer_wbl2 sc1
        s_branch L_exit""")
    for j in range(8):
        A(f"ds_read_b128 v[{16 + 4 * j}:{19 + 4 * j}], v166 offset:{PL + 64 * j}")
    for j in range(8):
        A(f"s_waitcnt lgkmcnt({7 - j})\nv_mfma_f32_16x16x32_bf16 v[112:115], v[{48 + 4 * j}:{51 + 4 * j}], v[{16 + 4 * j}:{19 + 4 * j}], {'0' if j == 0 else 'v[112:115]'}")
    A(f"""s_mov_b32 exec_lo, 0x00030003
    s_mov_b32 exec_hi, 0x00030003
    s_nop 5""")
    put_tag(range(112, 116), True)
    for k in range(KC):
        A(f"buffer_store_dwordx4 v[112:115], v14, {SRD}, s53 offen {ost}")
        if k < KC - 1:
            A("s_sub_u32 s53, s53, 0x20000")
    A("s_mov_b64 exec, -1")
    stamp(10)
    A("s_branch L_exit")
    C("workgroups of split 7, wave 0: pass the table entries of the 8 splits on to the finishing workgroups")
    A(f"""L_last:
    s_cmp_lg_u32 {sCW}, 0
    s_cbranch_scc1 L_nofwd
    L_fpoll:
    s_waitcnt vmcnt(0)""")
    tags_ok([32, 33, 34, 35], "L_fok", tags=[sTAG] * 2, sel="WORD_0")
    A(f"""s_xor_b32 s54, s54, {sFAR}
    s_mov_b32 exec_hi, {hex((1 << (2 * NE - 32)) - 1)}
    buffer_load_dwordx4 v[32:35], {vL16}, {SRD}, s54 offen sc1
    s_mov_b32 exec_hi, -1""")
    spin_tail("L_fpoll")
    A(f"""L_fok:
    s_add_u32 s54, s55, {WS_TBL}
    s_mov_b32 exec_hi, {hex((1 << (2 * NE - 32)) - 1)}
    {"" if x_nofwd else f"buffer_store_dwordx4 v[32:35], {vL16}, {SRD}, s54 offen sc1"}
    s_mov_b32 exec_hi, -1
    L_nofwd:""")
    C("finishing workgroup of batch b: table to LDS, sum the 16 head partials, residual, LN, LN, table lookup")
    A(f"""s_cmp_lg_u32 {sFIN}, 0
    s_cbranch_scc1 L_exit
    s_xor_b32 {sT0}, {sCW}, {sG}
    s_or_b32 {sT0}, {sT0}, {sFAR}
    s_cselect_b32 s55, {WS_TBL}, {sTBLN}
    s_mul_i32 {sT0}, {sCW}, {NE * 128}
    s_add_u32 s55, s55, {sT0}
    s_add_u32 {sT0}, {sT0}, {TBL_LDS}
    v_add_u32 v13, {sT0}, {vL16}""")
    for r in range(140 + 4 * (ntl - 1), 140 + 4 * ntl):
        A(f"v_mov_b32 v{r}, {sTAG}")
    table_loads()
    A(f"""    s_mul_i32 s48, {sB}, {16 * 1792}
    s_lshl_b32 {sT0}, {sCW}, 8
    s_add_u32 s48, s48, {sT0}
    s_add_u32 s48, s48, {WS_OUTP}
    s_add_u32 s49, s48, {4 * 1792}
    s_add_u32 s50, s48, {8 * 1792}
    s_add_u32 s51, s48, {12 * 1792}
    v_mul_u32_u24 v12, 1792, {vG}
    v_lshl_add_u32 v12, {vN}, 4, v12
    L_tpoll:
    s_waitcnt vmcnt(0)""")
    tags_ok(list(range(140, 140 + 4 * ntl)), "L_tok", tags=[sTAG] * (2 * ntl), sel="WORD_0")
    if x_nofwd:
        A("s_branch L_tok")
    A(f"s_sleep {tback}")
    table_loads()
    spin_tail("L_tpoll", 0)
    A(f"L_tok:\ns_mov_b32 s47, {128 * NE}")
    stamp(6)
    wait_lds(F_FREE + 36, 8)
    for k in range(ntl):
        if k == ntl - 1:
            A(f"s_mov_b32 exec_lo, {hex(lastm & 0xffffffff)}\ns_mov_b32 exec_hi, {hex(lastm >> 32)}")
        A(f"ds_write_b128 v13, v[{140 + 4 * k}:{143 + 4 * k}] offset:{1024 * k}")
    A("s_mov_b64 exec, -1")
    A(f"""s_cmp_eq_u32 {sCW}, 7
    s_cbranch_scc0 L_hget
    s_waitcnt lgkmcnt(0)
    s_barrier""")
    C("every workgroup has read the epoch word (its table entries carry the tag): advance it")
    A(f"""s_cmp_lg_u32 {sB}, 0
    s_cbranch_scc1 L_exit
    v_mov_b32 v5, {sTAG}
    s_mov_b64 exec, 1
    buffer_store_dword v5, {vL16}, {SRD}, 0 offen {efl}
    s_mov_b64 exec, -1
    s_branch L_exit
    L_hget:
    v_lshl_add_u32 v13, v136, 2, {vM}
    v_lshl_add_u32 v14, v0, 5, {vM}
""")
    if olin:
        A(f"""s_mul_i32 {sT0}, {sCW}, 448
        v_lshl_add_u32 v40, v0, 3, {sT0}
        v_add_u32 v40, v40, {vM}
        s_lshl2_add_u32 {sT1}, {sB}, {sCW}
        s_mul_i32 {sT1}, {sT1}, 224
        v_lshl_add_u32 v41, v0, 2, {sT1}""")
    else:
        A(f"""s_lshl_b32 {sT0}, {sCW}, 3
        v_add_u32 v40, {sT0}, v14
        s_mul_i32 {sT1}, {sB}, 896
        s_lshl_b32 {sT0}, {sCW}, 2
        s_add_u32 {sT1}, {sT1}, {sT0}
        v_add_u32 v41, {sT1}, {vL16}""")
    A(f"""    v_lshlrev_b32 v137, 16, v138
    v_mov_b32 v42, {hex(fbits(1.0 / 448.0))}
    s_mov_b32 s52, {TBL_LDS}
    s_mov_b32 s53, 0x7060302""")
    for r in range(48, 56):
        A(f"v_mov_b32 v{r}, 0")
    assert not dry

    def h_loads(r0):
        for m in range(4):
            A(f"buffer_load_dwordx4 v[{r0 + 4 * m}:{r0 + 3 + 4 * m}], v12, {SRD}, s{48 + m} offen {hld}")

    def h_sum(r):
        strip_tag(range(r + 4, r + 16))
        A(f"""v_pk_add_f32 v[{r}:{r + 1}], v[{r}:{r + 1}], v[{r + 4}:{r + 5}]
        v_pk_add_f32 v[{r + 2}:{r + 3}], v[{r + 2}:{r + 3}], v[{r + 6}:{r + 7}]
        v_pk_add_f32 v[{r + 8}:{r + 9}], v[{r + 8}:{r + 9}], v[{r + 12}:{r + 13}]
        v_pk_add_f32 v[{r + 10}:{r + 11}], v[{r + 10}:{r + 11}], v[{r + 14}:{r + 15}]
        v_pk_add_f32 v[32:33], v[{r}:{r + 1}], v[{r + 8}:{r + 9}]
        v_pk_add_f32 v[34:35], v[{r + 2}:{r + 3}], v[{r + 10}:{r + 11}]""")

    if h2:
        h_loads(96)
        A(f"s_sleep {h2}")
        h_loads(112)
        A(f"""s_branch L_hchkA
        L_hagainB:
        s_sub_u32 {sBUD}, {sBUD}, 1
        s_cbranch_scc1 L_end""")
        h_loads(112)
        A("L_hchkA:\ns_waitcnt vmcnt(4)")
        tags_ok(list(range(96, 112)), None, retry="L_hagainA", between=lambda: strip_tag(range(96, 100)))
        h_sum(96)
        A("s_branch L_hok\nL_hagainA:")
        h_loads(96)
        A("s_waitcnt vmcnt(4)")
        tags_ok(list(range(112, 128)), None, retry="L_hagainB", between=lambda: strip_tag(range(112, 116)))
        h_sum(112)
        A("L_hok:")
        stamp(11)
    else:
        if hdel:
            A(f"s_sleep {hdel}")
        A(f"""s_branch L_hpoll
        L_hagain:
        s_sub_u32 {sBUD}, {sBUD}, 1
        s_cbranch_scc1 L_end""")
        if hback:
            A(f"s_sleep {hback}")
        if KC > 1:
            C("next copy: lines nobody has read yet take the producers' writes faster")
            A(f"""s_cmp_lt_u32 s48, {WS_OUTP + (KC - 1) * 0x20000}
            s_cselect_b32 {sT0}, 0x20000, 0""")
            for m in range(4):
                A(f"s_add_u32 s{48 + m}, s{48 + m}, {sT0}")
        A("L_hpoll:")
        h_loads(16)
        A("s_waitcnt vmcnt(0)")
        tags_ok(list(range(16, 32)), None, retry="L_hagain", between=lambda: strip_tag(range(16, 20)))
        stamp(11)
        h_sum(16)
    swap_reduce4(("v32", "v33", "v34", "v35"))
    rne1("v32", "v32")
    A("v_add_f32 v32, v32, v137")
    rne1("v32", "v32")
    A(f"ds_write_b32 v13, v32 offset:{HL}")
    if dry:
        A("s_cmp_lg_u32 s54, 0\ns_cbranch_scc1 L_hdry")
    A(f"""s_cmp_ge_u32 {sCW}, 4
    s_waitcnt lgkmcnt(0)
    s_barrier
    s_cbranch_scc1 L_exit
    L_hdry:""")
    if fst:
        stamp(8)
    A(f"""    s_mov_b32 exec_hi, 0x00ffffff
    ds_read_b128 v[48:51], v14 offset:{HL}
    ds_read_b128 v[52:55], v14 offset:{HL + 16}
    ds_read_b64 v[138:139], v40 offset:{HL}
    s_mov_b32 exec_hi, -1
    s_waitcnt lgkmcnt(1)""")

    def stats8():
        sums8()
        ln_scale("v22", "v23", sT0, sT1, "v42", True)

    def sums8():
        A("""v_pk_add_f32 v[20:21], v[48:49], v[50:51]
        v_pk_mul_f32 v[24:25], v[48:49], v[48:49]
        v_pk_add_f32 v[22:23], v[52:53], v[54:55]
        v_pk_fma_f32 v[24:25], v[50:51], v[50:51], v[24:25]
        v_pk_add_f32 v[20:21], v[20:21], v[22:23]
        v_pk_fma_f32 v[24:25], v[52:53], v[52:53], v[24:25]
        v_add_f32 v20, v20, v21
        v_pk_fma_f32 v[24:25], v[54:55], v[54:55], v[24:25]
        v_add_f32 v24, v24, v25""")
        wave_sums(["v20", "v24"], [sT0, sT1])

    if alg:
        C("first LayerNorm: mean / variance of h.  Its output is a = (h - m1) * r1, so the second LayerNorm's")
        C("statistics follow exactly: mean(a) = (mean - m1) * r1, var(a) = var * r1 * r1")
        sums8()
        if fst:
            stamp(9)
        A(f"""v_mul_f32 v26, {sT1}, v42
        v_mul_f32 v27, {sT0}, v42
        v_fma_f32 v26, -v27, v27, v26""")
        rne1("v22", "v27")
        A(f"""v_cvt_pk_bf16_f32 v23, 0, abs(v26)
        v_sub_f32 v24, v27, v22
        v_add_f32 v23, {hex(fbits(1e-5))}, v23""")
        rne1("v23", "v23")
        A("""v_sqrt_f32 v23, v23
        s_waitcnt lgkmcnt(0)
        v_pk_add_f32 v[36:37], v[138:139], v[22:23] op_sel_hi:[1,0] neg_lo:[0,1] neg_hi:[0,1]""")
        rne1("v23", "v23")
        A("v_rcp_f32 v23, v23")
        rne1("v36", "v36")
        A("v_mul_f32 v25, abs(v26), v23")
        rne1("v37", "v37")
        A("v_mul_f32 v25, v25, v23\nv_mul_f32 v24, v24, v23")
        rne1("v25", "v25")
        A(f"""v_pk_mul_f32 v[36:37], v[36:37], v[22:23] op_sel:[0,1] op_sel_hi:[1,1]
        v_add_f32 v25, {hex(fbits(1e-5))}, v25""")
        rne1("v24", "v24")
        rne1("v25", "v25")
        rne1("v36", "v36")
        A("v_sqrt_f32 v25, v25")
        rne1("v37", "v37")
        rne1("v25", "v25")
        A("v_pk_add_f32 v[36:37], v[36:37], v[24:25] op_sel_hi:[1,0] neg_lo:[0,1] neg_hi:[0,1]\nv_rcp_f32 v25, v25")
        rne1("v36", "v36")
        rne1("v37", "v37")
        A("s_mov_b32 exec_hi, 0x00ffffff\nv_pk_mul_f32 v[36:37], v[36:37], v[24:25] op_sel:[0,1] op_sel_hi:[1,1]")
        rne1("v36", "v36")
        rne1("v37", "v37")
    else:
        stats8()
        A("s_waitcnt lgkmcnt(0)\nv_mov_b32 v36, v138\nv_mov_b32 v37, v139\ns_mov_b32 exec_hi, 0x00ffffff")
        normalize([48, 50, 52, 54, 36], 22, 23)
        A("s_mov_b32 exec_hi, -1")
        stats8()
        A("s_mov_b32 exec_hi, 0x00ffffff")
        normalize([36], 22, 23)
    if fst:
        stamp(10)
    A(f"""v_bfe_u32 v16, v36, 16, 15
    v_bfe_u32 v17, v37, 16, 15
    v_subrev_u32 v16, {E0 << 7}, v16
    v_subrev_u32 v17, {E0 << 7}, v17
    v_lshrrev_b32 v18, 31, v36
    v_lshrrev_b32 v19, 31, v37
    v_cmp_le_u32 vcc, {128 * NE}, v16
    v_cmp_le_u32 s[56:57], s47, v17
    v_mad_u32_u24 v16, v18, s47, v16
    v_mad_u32_u24 v17, v19, s47, v17
    v_cndmask_b32 v16, v16, 0, vcc
    v_cndmask_b32 v17, v17, 0, s[56:57]
    v_lshl_add_u32 v16, v16, 2, s52
    v_lshl_add_u32 v17, v17, 2, s52
    ds_read_b32 v38, v16
    ds_read_b32 v39, v17""")
    if dry:
        A("s_cmp_lg_u32 s54, 0\ns_cbranch_scc1 L_hreal")
    A(f"""s_or_b64 s[58:59], vcc, s[56:57]
    s_waitcnt lgkmcnt(0)
    v_and_b32 v38, {sMASK}, v38
    v_and_b32 v39, {sMASK}, v39
    s_cbranch_scc1 L_direct
    L_fin:
    v_pk_add_f32 v[38:39], v[38:39], v[138:139]""")
    if x_pert:
        A(f"v_cmp_eq_u32 vcc, 0, v41\nv_mov_b32 v5, {hex(fbits(x_pert / 10000.0))}\ns_nop 0\nv_cndmask_b32 v5, 0, v5, vcc\nv_add_f32 v38, v38, v5")
    A(f"""    v_cvt_pk_bf16_f32 v38, v38, v39
    global_store_dword v41, v38, {pOUT} {fst_fl}
    s_mov_b32 exec_hi, -1""")
    stamp(12)
    A("L_exit:")
    if diag:
        A(f"s_cmp_eq_u32 {sCW}, 0\ns_cbranch_scc0 L_st1")
        stamps_out(8, 13)
        A(f"L_st1:\ns_cmp_eq_u32 {sCW}, 3\ns_cbranch_scc0 L_end")
        stamps_out(24, 13)
    A("L_end:\ns_endpgm\nL_pfend:")
    C("inputs outside the tabulated binades: evaluate the MLP directly, one element at a time")
    A(f"""L_direct:
    s_mov_b32 exec_hi, -1
    s_mov_b64 s[54:55], vcc
    s_mov_b32 s58, 0
    v_mov_b32 v7, 0
    global_load_ushort v46, v7, {pB2}
    L_dpass:
    s_cmp_eq_u64 s[54:55], 0
    s_cbranch_scc1 L_dswap
    s_ff1_i32_b64 s52, s[54:55]
    s_bitset0_b64 s[54:55], s52
    s_nop 3
    v_readlane_b32 s50, v36, s52
    v_mov_b32 v80, 0
    v_lshlrev_b32 v5, 3, v0
    s_mov_b32 s53, 0
    L_dloop:""")
    load_w()
    A("v_add_u32 v5, 512, v5\ns_waitcnt vmcnt(0)")
    unpack_w()
    gelu(["s50"], ["v80"], False)
    A("s_add_u32 s53, s53, 1\ns_cmp_lt_u32 s53, 7\ns_cbranch_scc1 L_dloop")
    wave_sums(["v80"], [sT0])
    A(f"v_mov_b32 v80, {sT0}")
    rne1("v80", "v80")
    A("v_lshlrev_b32 v81, 16, v46\nv_add_f32 v80, v80, v81")
    rne1("v80", "v80")
    A(f"""v_cmp_eq_u32 vcc, s52, v0
    s_nop 1
    v_cndmask_b32 v38, v38, v80, vcc
    s_branch L_dpass
    L_dswap:
    v_swap_b32 v36, v37
    v_swap_b32 v38, v39
    s_mov_b64 s[54:55], s[56:57]
    s_add_u32 s58, s58, 1
    s_cmp_eq_u32 s58, 1
    s_cbranch_scc1 L_dpass
    s_mov_b32 exec_hi, 0x00ffffff
    s_branch L_fin""")
    for c in cold:
        A(c)
    A("L_codeend:")
    if epf >= 3:
        L.append(".if L_codeend - L_pc0 < 9216\n.error \"code prefetch would run past the code\"\n.endif")
    L.append(f""".section .rodata,"a"
.p2align 6
.amdhsa_kernel {KN}_kernel
  .amdhsa_next_free_vgpr 168
  .amdhsa_next_free_sgpr 96
  .amdhsa_accum_offset 168
  .amdhsa_float_denorm_mode_32 3
  .amdhsa_group_segment_fixed_size 0
  .amdhsa_kernarg_size 104
  .amdhsa_user_sgpr_count 2
  .amdhsa_user_sgpr_kernarg_segment_ptr 1
  .amdhsa_system_sgpr_workgroup_id_x 1
.end_amdhsa_kernel""")
    return "\n".join(L) + "\n"


if __name__ == "__main__":
    names = []
    for spec in sys.argv[1:]:
        kw = {}
        name = None
        for kv in spec.split(","):
            if not kv:
                continue
            k, v = kv.split("=")
            if k == "o":
                name = v
                continue
            kw[k] = int(v) if v.lstrip("-").isdigit() else v.replace("+", " ").replace("none", "")
        name = name or "k_" + spec.replace(":", "-").replace(",", "_").replace("=", "").replace("+", "") + ".s"
        open(name, "w").write(gen(**kw))
        names.append(name)
    print(" ".join(names))
```

```python
import sys, struct, math
KN = "sequential_preLN__sliding_block_cached__mixer_token_mlp__decode"

def fbits(x):
    return struct.unpack("<I", struct.pack("<f", x))[0]

WS_E, WS_IDS, WS_TBL, WS_TBLN, WS_STATS, WS_Q, WS_OP, WS_OUTP = 0, 0x1000, 0x20000, 0x28000, 0x30000, 0x40000, 0x80000, 0x100000
WS_FAR = 0x200000
WS_STAMP = 0x10000000
SLOT = 16384
MISC = 9 * SLOT
LN, QL, PL, OL, TP, FL, HL = 0x0, 0x1000, 0x1500, 0x1A00, 0x1F00, 0x2300, 0x2400
HP = 576
F_LANDED, F_LNCNT, F_QCNT, F_MAXCNT, F_PCNT, F_TCNT, F_TAG, F_LOC, F_MX, F_FREE = FL, FL + 4, FL + 8, FL + 12, FL + 16, FL + 20, FL + 24, FL + 28, FL + 32, FL + 64
TBL_LDS = 7 * SLOT
TAGINC = 0x9E3779B9


def gen(D=24, DV=0, DW=40, NE=24, diag=0, ld="nt", ldq="nt", ldo="nt", rot=2, ra=1, rc=0, pf=1, epf=4, pfm=7, bar=4, uni=1, nL=16, dl="", dlx=0, bmap=0, xr=0, tight=1, touch=0, h2=0, olin=1, KC=1, opre=2, tpre=1, t7=0, ppre=0, pprefl="sc1", oprefl="sc1", hdel=0, obar=1, vbar=1, wbar=1, slp=1, pvslp=0, qback=8, tback=8, hback=0, oback=0, nst="", qst="", fst_fl="", wb=0, efl="", ost="sc1", fst=0, lst=0, hld="sc1", jmid=6, QT=4, qit=1, rnd=1, dry=0, alg=1,
        x_tl=0, x_far=0, x_nofree=0, x_stop=0, x_pert=0, x_nofwd=0, x_dbg=0):
    L = []
    uid = [0]
    cold = []

    def A(s):
        for ln in s.split("\n"):
            ln = ln.strip()
            if ln:
                L.append(ln if ln.endswith(":") else "    " + ln)

    def C(s):
        L.append("    ; " + s)

    def lab(p):
        uid[0] += 1
        return f"L_{p}{uid[0]}"

    assert NE % 4 == 0
    E0 = 132 - NE
    LB = 1
    wpos = 8
    sW, sWV = "s2", "s3"
    pX, pK, pV, pWQ, pWO, pW1, pB1, pW2, pB2, pOUT, pWS = "s[4:5]", (6, 7), (8, 9), (10, 11), (12, 13), "s[16:17]", "s[18:19]", "s[20:21]", "s[22:23]", "s[24:25]", "s[28:29]"
    sG, sI, sB, sS, sIDX, sBG = "s30", "s31", "s32", "s33", "s34", "s35"
    SRD = "s[36:39]"
    sBUD, sTAG, sFIN, sMASK, sXCC, sFAR = "s60", "s61", "s62", "s63", "s14", "s15"
    sTAG1 = "s0"
    tagof = lambda r: sTAG1 if r & 2 else sTAG
    sTBLN = "s27"
    sWT = "s26"
    sT0, sT1, sT2, sT3, sT4, sT5 = "s40", "s41", "s42", "s43", "s44", "s45"
    vM, vG, vN, vONE, vL16, vFF = "v1", "v2", "v3", "v4", "v6", "v15"

    def stamp(k):
        if diag:
            A(f"s_memrealtime s[{64 + 2 * k}:{65 + 2 * k}]")

    def stamps_out(base, n):
        if not diag:
            return
        A(f"s_waitcnt lgkmcnt(0)\ns_lshl_b32 {sT0}, {sW}, 9\ns_add_u32 {sT0}, {sT0}, {WS_STAMP + base * 8}\nv_mov_b32 v5, {sT0}\ns_mov_b64 exec, 1")
        for k in range(n):
            A(f"v_mov_b32 v6, s{64 + 2 * k}\nv_mov_b32 v7, s{65 + 2 * k}\nglobal_store_dwordx2 v5, v[6:7], {pWS} offset:{8 * k}\ns_nop 1")
        A("s_mov_b64 exec, -1")

    def spin_tail(top, sleep=None):
        sleep = slp if sleep is None else sleep
        if sleep:
            A(f"s_sleep {sleep}")
        A(f"s_sub_u32 {sBUD}, {sBUD}, 1\ns_cbranch_scc0 {top}\ns_branch L_end")

    def wait_lds(off, val, vt="v5", addr=vM, sleep=None):
        top, done = lab("w"), lab("d")
        A(f"{top}:\nds_read_b32 {vt}, {addr} offset:{off}\ns_waitcnt lgkmcnt(0)\nv_readfirstlane_b32 {sT5}, {vt}\ns_cmp_ge_u32 {sT5}, {val}\ns_cbranch_scc1 {done}")
        spin_tail(top, sleep)
        A(f"{done}:")

    def signal(off, vval=vONE, addr=vM):
        A(f"s_mov_b64 exec, 1\nds_add_u32 {addr}, {vval} offset:{off}\ns_mov_b64 exec, -1")

    def tags_ok(regs, ok, guard=None, tags=None, sel="BYTE_0", retry=None, between=None):
        t = ["v5", "v7", "v8", "v9", "v10", "v11", "v56", "v57"]
        parts = []
        for k in range(0, len(regs), 2):
            A(f"v_bitop3_b32 {t[k // 2]}, v{regs[k]}, v{regs[k + 1]}, {tags[k // 2] if tags else tagof(regs[k])} bitop3:0x7e")
            parts.append(t[k // 2])
        if guard:
            A(guard(parts))
        while len(parts) > 1:
            if len(parts) >= 3:
                A(f"v_or3_b32 {parts[0]}, {parts[0]}, {parts[-1]}, {parts[-2]}")
                parts = parts[:-2]
            else:
                A(f"v_or_b32 {parts[0]}, {parts[0]}, {parts[1]}")
                parts = parts[:1]
        A(f"v_cmp_ne_u32_sdwa vcc, v5, 0 src0_sel:{sel} src1_sel:DWORD")
        if retry:
            between()
            A(f"s_cmp_lg_u64 vcc, 0\ns_cbranch_scc1 {retry}")
        else:
            A(f"s_cmp_eq_u64 vcc, 0\ns_cbranch_scc1 {ok}")

    def strip_tag(regs):
        for r in regs:
            A(f"v_bfi_b32 v{r}, {vFF}, 0, v{r}")

    def store_group(ins, soff):
        far, done = lab("far"), lab("pub")
        A(f"{ins.format(soff)} {nst}\ns_cmp_lg_u32 {sFAR}, 0\ns_cbranch_scc1 {far}\n{done}:")
        cold.append(f"{far}:\ns_add_u32 {sT5}, {soff}, {WS_FAR}\n{ins.format(sT5)} sc1\ns_branch {done}")

    def put_tag(regs, exact=False, tag=None):
        if rnd and not exact:
            for r in regs:
                A(f"v_add_u32 v{r}, 0x80, v{r}")
        for r in regs:
            A(f"v_bfi_b32 v{r}, {vFF}, {tag or tagof(r)}, v{r}")

    DPP = ["quad_perm:[1,0,3,2] row_mask:0xf", "quad_perm:[2,3,0,1] row_mask:0xf", "row_half_mirror row_mask:0xf",
           "row_mirror row_mask:0xf", "row_bcast:15 row_mask:0xa", "row_bcast:31 row_mask:0xc"]

    def wave_sums(regs, sdst):
        A("s_nop 1" if len(regs) == 1 else "s_nop 0")
        for m in DPP:
            for r in regs:
                A(f"v_add_f32_dpp {r}, {r}, {r} {m} bank_mask:0xf")
            if len(regs) == 1 or m != DPP[-1]:
                A("s_nop 1" if len(regs) == 1 else "s_nop 0")
        for r, s in zip(regs, sdst):
            A(f"v_readlane_b32 {s}, {r}, 63")
        A("s_nop 1")

    def rne1(dst, src):
        A(f"v_cvt_pk_bf16_f32 {dst}, 0, {src}")

    def unpack2(lo, hi, src):
        A(f"v_lshlrev_b32 {lo}, 16, {src}\nv_and_b32 {hi}, {sMASK}, {src}")

    def ln_scale(vm, vr, sS1, sS2, vinv, onepass):
        A(f"v_mul_f32 {vr}, {sS2}, {vinv}\nv_mul_f32 {vm}, {sS1}, {vinv}")
        if onepass:
            A(f"v_fma_f32 {vr}, -{vm}, {vm}, {vr}")
        A(f"v_cvt_pk_bf16_f32 {vr}, 0, abs({vr})")
        rne1(vm, vm)
        A(f"v_add_f32 {vr}, {hex(fbits(1e-5))}, {vr}")
        rne1(vr, vr)
        A(f"v_sqrt_f32 {vr}, {vr}\ns_nop 0")
        rne1(vr, vr)
        A(f"v_rcp_f32 {vr}, {vr}\ns_nop 0")

    def normalize(pairs, vm, vr, last=True):
        for a in pairs:
            A(f"v_pk_add_f32 v[{a}:{a + 1}], v[{a}:{a + 1}], v[{vm}:{vm + 1}] op_sel_hi:[1,0] neg_lo:[0,1] neg_hi:[0,1]")
        for a in pairs:
            rne1(f"v{a}", f"v{a}")
            rne1(f"v{a + 1}", f"v{a + 1}")
        for a in pairs:
            A(f"v_pk_mul_f32 v[{a}:{a + 1}], v[{a}:{a + 1}], v[{vm}:{vm + 1}] op_sel:[0,1] op_sel_hi:[1,1]")
        if last:
            for a in pairs:
                rne1(f"v{a}", f"v{a}")
                rne1(f"v{a + 1}", f"v{a + 1}")

    K1 = -2.0 * math.sqrt(2.0 / math.pi) * math.log2(math.e)
    K2 = K1 * 0.044715
    CEXP = math.log2(math.e) / 16.0

    def gelu(sTs, accs, first):
        el = [(i, e) for e in range(4) for i in range(len(sTs))]
        u = lambda i, e: f"v{60 + 4 * i + e}"
        p = lambda i, e: f"v{68 + 4 * i + e}"
        for i, e in el:
            A(f"v_fma_f32 {u(i, e)}, {sTs[i]}, v{48 + e}, v{52 + e}")
        for i, e in el:
            A(f"v_mul_f32 {p(i, e)}, {u(i, e)}, {u(i, e)}")
        for i, e in el:
            A(f"v_fmaak_f32 {p(i, e)}, {p(i, e)}, v47, {hex(fbits(K1))}")
        for i, e in el:
            A(f"v_mul_f32 {p(i, e)}, {p(i, e)}, {u(i, e)}")
        for i, e in el:
            A(f"v_exp_f32 {p(i, e)}, {p(i, e)}\nv_mul_f32 {u(i, e)}, {u(i, e)}, v{56 + e}")
        for i, e in el:
            A(f"v_add_f32 {p(i, e)}, 1.0, {p(i, e)}")
        for i, e in el:
            A(f"v_rcp_f32 {p(i, e)}, {p(i, e)}")
        A("s_nop 0")
        for i, e in el:
            A(f"v_mul_f32 {accs[i]}, {u(i, e)}, {p(i, e)}" if first and e == 0 else f"v_fmac_f32 {accs[i]}, {u(i, e)}, {p(i, e)}")

    def unpack_w():
        for k, src in enumerate((76, 77, 78, 79, 84, 85)):
            unpack2(f"v{48 + 2 * k}", f"v{49 + 2 * k}", f"v{src}")
        A(f"v_mov_b32 v47, {hex(fbits(K2))}")

    def load_w():
        A(f"global_load_dwordx2 v[76:77], v5, {pW1}\nglobal_load_dwordx2 v[78:79], v5, {pB1}\nglobal_load_dwordx2 v[84:85], v5, {pW2}")

    def swap_reduce4(*sets, pad=True):
        if pad:
            A("s_nop 0")
        for a, b, c, d in sets:
            A(f"v_permlane16_swap_b32 {a}, {b}\nv_permlane16_swap_b32 {c}, {d}")
        for a, b, c, d in sets:
            A(f"v_add_f32 {a}, {a}, {b}\nv_add_f32 {c}, {c}, {d}")
        A("s_nop 1")
        for a, b, c, d in sets:
            A(f"v_permlane32_swap_b32 {a}, {c}")
        for a, b, c, d in sets:
            A(f"v_add_f32 {a}, {a}, {c}")

    L.append(f"""; Fused decode block, one launch: LN -> q projection -> sliding-window GQA attention (last 2048 keys) -> output
;
;   all 32 members run on its own die it also writes a second copy through to memory, and readers then try both copies.""")
    L.append(f"; @launch grid=(256,1,1) block=(576,1,1) lds={10 * SLOT}")
    L.append('.amdgcn_target "amdgcn-amd-amdhsa--gfx950"\n.text')
    L.append(f".globl {KN}_kernel\n.p2align 8\n.type {KN}_kernel,@function\n{KN}_kernel:")
    A(f"""s_cmpk_ge_u32 {sW}, 256
    s_cbranch_scc1 L_end
    s_load_dwordx16 s[4:19], s[0:1], 0""")
    if x_dbg:
        A("s_memrealtime s[64:65]\ns_load_dwordx2 s[66:67], s[0:1], 88")
    if epf == 4:
        C("some waves pull 1 KiB of this kernel's code towards the L2 (speed only)")
        A(f"""v_lshrrev_b32 v1, 6, v0
        s_lshr_b32 {sI}, {sW}, 3
        v_readfirstlane_b32 {sWV}, v1
        s_getpc_b64 s[40:41]
        L_pc0:
        v_lshlrev_b32 v8, 4, v0
        s_add_u32 {sT2}, {sWV}, {sI}
        s_and_b32 {sT2}, {sT2}, {pfm}
        s_cbranch_scc1 L_nopf0
        v_mov_b32 v9, s41
        v_add_co_u32 v8, vcc, s40, v8
        v_addc_co_u32 v9, vcc, 0, v9, vcc
        global_load_dwordx4 v[20:23], v[8:9], off
        L_nopf0:""")
    if epf == 3:
        C("every wave pulls 1 KiB of this kernel's code towards the L2 (speed only)")
        A("""s_getpc_b64 s[40:41]
        L_pc0:
        v_lshlrev_b32 v8, 4, v0
        v_mov_b32 v9, s41
        v_add_co_u32 v8, vcc, s40, v8
        v_addc_co_u32 v9, vcc, 0, v9, vcc
        global_load_dwordx4 v[20:23], v[8:9], off""")
    rest = "s_load_dwordx8 s[20:27], s[0:1], 64\ns_load_dwordx2 s[28:29], s[0:1], 96"
    if not tight:
        A(rest)
    stamp(0)
    if epf != 4:
        A(f"v_lshrrev_b32 v1, 6, v0\ns_lshr_b32 {sI}, {sW}, 3\nv_readfirstlane_b32 {sWV}, v1")
    A(f"""s_and_b32 {sG}, {sW}, 7
    {f"s_lshr_b32 {sB}, {sI}, 3" if bmap else f"s_and_b32 {sB}, {sI}, 3"}
    {f"s_and_b32 {sS}, {sI}, 7" if bmap else f"s_lshr_b32 {sS}, {sI}, 2"}""")
    A(f"""s_lshl3_add_u32 {sBG}, {sB}, {sG}
""")
    A(f"s_cmp_eq_u32 {sWV}, 0\ns_cbranch_scc1 L_loader")
    if epf in (1, 2):
        C("compute waves: pull this kernel's code towards the L2, 1 KiB pieces (speed only)")
        A(f"""s_getpc_b64 s[40:41]
        L_pc0:
        v_lshlrev_b32 v8, 4, v0
        v_add_u32 v10, {8 * 1024 - 1024}, v8
        v_min_u32 v10, L_codeend-L_pc0-16, v10
        v_add_u32 v8, {-1024 & 0xffffffff}, v8
        v_mov_b32 v9, s41
        v_add_co_u32 v8, vcc, s40, v8
        v_mov_b32 v11, s41
        v_addc_co_u32 v9, vcc, 0, v9, vcc
        global_load_dwordx4 v[20:23], v[8:9], off""")
        if epf > 1:
            A(f"""v_add_co_u32 v10, vcc, s40, v10
            s_nop 1
            v_addc_co_u32 v11, vcc, 0, v11, vcc
            global_load_dwordx4 v[20:23], v[10:11], off""")
    A("s_barrier\ns_branch L_compute\nL_loader:")
    C("---------------- loader wave")
    sN, sSLOT, sBASE, sGS, sRG, sRS, sCNT, sGI, sKV = "s48", "s49", "s50", "s51", "s52", "s53", "s54", "s55", "s56"
    sKJ = "s57"
    if True:
        C("rows 112b.. of wq, columns 512g+64s.. -> ring slot 8 (two lanes-wide issues run past the slice's descriptor)")
        A(f"""s_mov_b32 s46, {112 * 8192}
        s_mul_i32 {sT0}, {sB}, s46
        s_lshl3_add_u32 {sT1}, {sG}, {sS}
        s_lshl_b32 {sT1}, {sT1}, 7
        s_add_u32 {sT0}, {sT0}, {sT1}
        s_mov_b32 {sT3}, {65536 - 1024}
        v_lshrrev_b32 v12, 3, v0
        v_lshlrev_b32 v12, 13, v12
        v_and_b32 v13, 7, v0
        v_lshrrev_b32 v14, 4, v0
        v_lshlrev_b32 v14, 1, v14
        v_xor_b32 v13, v13, v14
        v_lshl_or_b32 v12, v13, 4, v12
        v_add_u32 v13, {sT3}, v12
        v_add_u32 v14, {sT3}, v13
        v_add_u32 v15, {sT3}, v14
        s_mov_b32 s47, 0x20000
        s_mov_b32 m0, s47
        {f"s_lshl_b32 {sT2}, s47, 1" if tight else ""}
        {f"s_mov_b32 {sT1}, 0" if tight else ""}
        s_waitcnt lgkmcnt(0)
        s_add_u32 s44, s{pWQ[0]}, {sT0}
        s_addc_u32 s45, s{pWQ[1]}, 0""")
        if lst:
            stamp(7)
        flags = f"""s_setprio 3
        s_mov_b32 {sBUD}, 0x80000
        v_mov_b32 {vM}, {MISC}
        s_mov_b32 s39, 0x20000
        v_lshrrev_b32 v6, 1, v0
        v_cmp_eq_u32 vcc, 4, v6
        v_lshl_add_u32 v5, v0, 2, {vM}
        v_mov_b32 v7, 0xff800000
        v_cndmask_b32 v6, 0, v7, vcc
        ds_write_b32 v5, v6 offset:{FL}
        s_waitcnt lgkmcnt(0)
        s_barrier"""
        if tight:
            A("L_wq:")
            for k in range(4):
                A(f"buffer_load_dwordx4 v{12 + k}, s[44:47], {sT1} offen offset:{1024 * k} {ldq} lds")
            A(f"""s_addk_i32 m0, 4096
            s_add_u32 {sT1}, {sT1}, {sT2}
            s_bitcmp0_b32 {sT1}, 20
            s_cbranch_scc1 L_wq""")
            A(flags)
            stamp(1)
            if diag:
                A("s_load_dwordx2 s[28:29], s[0:1], 96")
        for u in range(0 if tight else 16):
            if u % 4 == 0 and u:
                A(f"s_mov_b32 m0, {8 * SLOT + 1024 * u}\ns_mov_b32 {sT1}, {65536 * u}")
            A(f"buffer_load_dwordx4 v{12 + u % 4}, s[44:47], {sT1 if u > 3 else 0} offen offset:{1024 * (u % 4)} {ldq} lds")
            if u == bar - 1:
                A(flags)
                stamp(1)
    A(f"""    v_lshrrev_b32 v5, 5, v0
    v_and_b32 v6, 31, v0
    v_lshlrev_b32 v7, 1, v5
    v_xor_b32 v6, v6, v7
    v_lshlrev_b32 v6, 4, v6
    v_lshl_or_b32 v8, v5, 9, v6
    v_xor_b32 v9, 64, v8
    v_xor_b32 v10, 0x80, v8
    v_xor_b32 v11, 0xc0, v8
    s_mov_b32 {sN}, 0
    s_mov_b32 {sSLOT}, 0
    s_mov_b32 {sGS}, 4096
    s_mov_b32 {sCNT}, 16
    s_mov_b32 s38, {8 * SLOT}""")
    sR = sI
    if ra != 1 or rc:
        A(f"s_mul_i32 {sT0}, {sI}, {ra}\ns_mul_i32 {sT1}, {sG}, {rc}\ns_add_u32 {sT0}, {sT0}, {sT1}\ns_and_b32 {sT0}, {sT0}, 31")
        sR = sT0
    if rot == 9:
        A(f"""s_load_dwordx2 s[58:59], s[0:1], 88
        s_and_b32 {sT0}, {sW}, 0xfc
        s_waitcnt lgkmcnt(0)
        s_load_dword {sT1}, s[58:59], {sT0}
        s_and_b32 {sT0}, {sW}, 3
        s_lshl_b32 {sT0}, {sT0}, 3
        s_waitcnt lgkmcnt(0)
        s_lshr_b32 {sT0}, {sT1}, {sT0}
        s_and_b32 {sRG}, {sT0}, 3
        s_bfe_u32 {sRS}, {sT0}, 0x30002""")
    elif rot == 1:
        A(f"s_and_b32 {sRG}, {sR}, 3\ns_lshr_b32 {sRS}, {sR}, 2")
    elif rot == 2:
        A(f"s_lshr_b32 {sRG}, {sR}, 3\ns_and_b32 {sRS}, {sR}, 7")
    elif rot == 3:
        A(f"s_mov_b32 {sRG}, 0\ns_and_b32 {sRS}, {sR}, 7")
    elif rot == 4:
        A(f"s_and_b32 {sRG}, {sR}, 3\ns_mov_b32 {sRS}, 0")
    elif rot == 5:
        A(f"s_lshr_b32 {sRG}, {sR}, 2\ns_and_b32 {sRS}, {sR}, 3")
    else:
        A(f"s_mov_b32 {sRG}, 0\ns_mov_b32 {sRS}, 0")
    A(f"""s_lshl_b32 {sKV}, {sBG}, 22
    s_lshl_b32 {sT1}, {sS}, 17
    s_add_u32 {sKV}, {sKV}, {sT1}
    s_add_u32 {sKV}, {sKV}, 0x300000
""")
    A(f"""s_add_u32 s36, s{pK[0]}, {sKV}
    s_addc_u32 s37, s{pK[1]}, 0""")

    def group_loop(flag, first, D, vb=8):
        top = lab("grp")
        A(f"s_mov_b32 {sT2}, 0")
        A(f"""{top}:
        {f"s_xor_b32 {sGI}, {sT2}, {sRG}" if xr else f"s_add_u32 {sGI}, {sT2}, {sRG}"}
        {"" if xr else f"s_and_b32 {sGI}, {sGI}, 3"}
        s_lshl_b32 {sT0}, {sGI}, 12
        s_mul_i32 {sT1}, {sGI}, {sGS}
        s_add_u32 m0, {sT0}, {sSLOT}
        s_add_u32 {sT1}, {sT1}, {sBASE}""")
        for k in range(4):
            A(f"s_waitcnt vmcnt({D - 1})\nbuffer_load_dwordx4 v{vb + k}, {SRD}, {sT1} offen offset:{1024 * k} {flag} lds")
        nb, nw = lab("nb"), lab("nw")
        A(f"s_add_u32 {sCNT}, {sCNT}, 4")
        A(f"""s_sub_u32 {sT0}, {sCNT}, {(D + 3) // 4 * 4}
        s_cbranch_scc1 {nw}
        s_and_b32 {sT1}, {sT0}, 15
        s_cbranch_scc1 {nw}
        s_lshr_b32 {sT0}, {sT0}, 4
        v_mov_b32 v5, {sT0}
        ds_write_b32 {vM}, v5 offset:{F_LANDED}
        {nw}:
        s_add_u32 {sT2}, {sT2}, 1
        s_cmp_lt_u32 {sT2}, 4
        s_cbranch_scc1 {top}""")

    def next_slot():
        A(f"""s_add_u32 {sN}, {sN}, 1
        s_add_u32 {sSLOT}, {sSLOT}, {SLOT}
        s_cmp_eq_u32 {sSLOT}, {9 * SLOT}
        s_cselect_b32 {sSLOT}, 0, {sSLOT}""")

    def wait_free():
        if x_nofree:
            return
        A(f"s_lshl_b32 {sT0}, {sN}, 2\nv_add_u32 v6, {sT0}, {vM}")
        wait_lds(F_FREE - 32, 8, "v5", "v6")

    def landed(k):
        A(f"v_mov_b32 v5, {k}\nds_write_b32 {vM}, v5 offset:{F_LANDED}")

    def drain(total, D):
        for k in range(total - (D + 15) // 16 + 1, total + 1):
            A(f"s_waitcnt vmcnt({16 * (total - k)})")
            if vbar and k == total:
                A("s_barrier")
            else:
                landed(k)

    def seg_base():
        A(f"{'s_xor_b32' if xr else 's_add_u32'} {sT0}, {sN}, {sRS}\ns_and_b32 {sT0}, {sT0}, 7\ns_lshl_b32 {sBASE}, {sT0}, 14")

    assert wpos == 8
    DV = DV or D
    if lst:
        stamp(8)
    if uni:
        assert DV == D or nL < 16
        C("segments 0..7: K, 8..15: V (each V segment into a slot its readers have released)")
        dls = [int(x) for x in dl.split(":")] if dl else [D] * 8
        uniq = sorted(set(dls))
        DV = max(uniq)
        if dlx:
            A(f"s_getreg_b32 {sT1}, hwreg(HW_REG_XCC_ID, 0, 3)")
        for d in uniq[1:]:
            mask = sum(1 << x for x in range(8) if dls[x] == d)
            A(f"s_movk_i32 {sT0}, {mask}\ns_bitcmp1_b32 {sT0}, {sT1 if dlx else sG}\ns_cbranch_scc1 L_kv{d}")
        for d in uniq:
            A(f"L_kv{d}:")
            seg_base()
            group_loop(ld, True, d)
            next_slot()
            A(f"""s_cmp_lt_u32 {sN}, 8
            s_cbranch_scc1 L_kv{d}
            s_cmp_eq_u32 {sN}, {nL}
            s_cbranch_scc1 L_kvend
            s_add_u32 s36, s{pV[0]}, {sKV}
            s_addc_u32 s37, s{pV[1]}, 0""")
            if diag:
                A(f"s_cmp_lg_u32 {sN}, 8\ns_cbranch_scc1 L_nost2{d}")
                stamp(2)
                A(f"L_nost2{d}:")
            if x_nofree:
                A(f"s_branch L_kv{d}")
            A(f"""s_lshl_b32 {sT0}, {sN}, 2
            v_add_u32 v6, {sT0}, {vM}
            L_free{d}:
            ds_read_b32 v5, v6 offset:{F_FREE - 32}
            s_waitcnt lgkmcnt(0)
            v_readfirstlane_b32 {sT5}, v5
            s_cmp_ge_u32 {sT5}, 8
            s_cbranch_scc1 L_kv{d}""")
            spin_tail(f"L_free{d}")
        A("L_kvend:")
        if nL < 16:
            A("L_v:")
            wait_free()
            seg_base()
            group_loop(ld, False, DV)
            next_slot()
            A(f"s_cmp_lt_u32 {sN}, 16\ns_cbranch_scc1 L_v")
    else:
        C("segments 0..7: K")
        A("L_k:")
        seg_base()
        group_loop(ld, True, D)
        next_slot()
        A(f"""s_cmp_lt_u32 {sN}, 8
        s_cbranch_scc1 L_k
        s_add_u32 s36, s{pV[0]}, {sKV}
        s_addc_u32 s37, s{pV[1]}, 0""")
        stamp(2)
        C("segments 8..15: V, each into a slot its readers have released")
        A("L_v:")
        wait_free()
        seg_base()
        group_loop(ld, False, DV)
        next_slot()
        A(f"s_cmp_lt_u32 {sN}, 16\ns_cbranch_scc1 L_v")
    stamp(3)
    A(f"s_cmp_lg_u32 {sS}, 7\ns_cbranch_scc1 L_wo")
    A("L_nowo:")
    drain(16 + LB, DV)
    A("s_branch L_ldone")
    C("two segments of wo: rows of head 2g + (b&1), 64 columns -> slots 7, 8")
    A(f"""L_wo:
    {"s_branch L_nowo" if x_stop == 9 else ""}
    v_lshrrev_b32 v5, 3, v0
    v_and_b32 v6, 7, v0
    v_lshrrev_b32 v7, 4, v0
    v_lshlrev_b32 v7, 1, v7
    v_xor_b32 v6, v6, v7
    v_lshlrev_b32 v6, 4, v6
    v_mul_u32_u24 v5, 896, v5
    v_add_u32 v12, v5, v6
    v_add_u32 v13, {7168 - 1024}, v12
    v_add_u32 v14, {7168 - 1024}, v13
    v_add_u32 v15, {7168 - 1024}, v14
    s_mov_b32 s36, s{pWO[0]}
    s_mov_b32 s37, s{pWO[1]}
    s_mov_b32 s38, {4096 * 896}
    s_lshl_b32 {sT0}, {sG}, 1
    s_and_b32 {sT1}, {sB}, 1
    s_add_u32 {sT0}, {sT0}, {sT1}
    s_mul_i32 {sBASE}, {sT0}, {256 * 896}
    s_lshl_b32 {sT1}, {sS}, 7
    s_add_u32 {sBASE}, {sBASE}, {sT1}""")
    T0 = 16 * (16 + LB)
    done = (T0 - (DV + 3) // 4 * 4) // 16
    for u in range(32):
        if u % 16 == 0 and not x_nofree:
            wait_lds(F_FREE + 4 * (8 + u // 16), 8)
        if u % 4 == 0:
            A(f"s_mov_b32 m0, {7 * SLOT + 1024 * u}")
            A(f"s_add_u32 {sBASE}, {sBASE}, {4 * 7168}" if u else "s_nop 0")
        if u + DV >= DW:
            A(f"s_waitcnt vmcnt({DW - 1})")
            k = (T0 + u - DW + 1) // 16
            if k > done:
                landed(k)
                done = k
        A(f"buffer_load_dwordx4 v{12 + u % 4}, {SRD}, {sBASE} offen offset:{1024 * (u % 4)} {ldo} lds")
    stamp(4)
    assert done < 16 + LB
    for k in range(done + 1, 18 + LB + 1):
        if k != 17 + LB:
            A(f"s_waitcnt vmcnt({16 * (18 + LB - k)})")
            if (vbar and k == 16 + LB) or (wbar and k == 18 + LB):
                A("s_barrier")
            else:
                landed(k)
            if obar and k == 16 + LB:
                A("s_barrier")
    A("L_ldone:")
    if x_dbg:
        A(f"""s_memrealtime s[68:69]
        s_cmp_ge_u32 {sW}, 8
        s_cbranch_scc1 L_nodbg
        s_getreg_b32 s70, hwreg(HW_REG_XCC_ID, 0, 4)
        s_waitcnt lgkmcnt(0)
        s_lshl_b32 s64, s64, 4
        s_or_b32 s64, s64, s70
        s_lshl_b32 s71, {sW}, 2
        v_mov_b32 v5, s71
        v_mov_b32 v6, s64
        v_mov_b32 v7, s68
        s_mov_b64 exec, 1
        global_store_dword v5, v6, s[66:67]
        global_store_dword v5, v7, s[66:67] offset:32
        L_nodbg:""")
    stamp(5)
    A("s_waitcnt lgkmcnt(0)")
    if diag:
        A(f"s_sub_u32 {sT0}, 0x80000, {sBUD}\ns_mul_i32 {sT0}, {sT0}, 100\ns_add_u32 s76, s64, {sT0}\ns_addc_u32 s77, s65, 0")
    stamps_out(0, 7)
    if lst:
        A('s_mov_b32 s64, s78\ns_mov_b32 s65, s79\ns_mov_b32 s66, s80\ns_mov_b32 s67, s81')
        stamps_out(40, 2)
    A("s_endpgm")

    C("---------------- compute waves")
    sCW = sWV
    A(f"""L_compute:
    {"s_endpgm" if x_stop == 9 else ""}
    {rest if tight else ""}
    s_sub_u32 {sCW}, {sWV}, 1
    s_mov_b32 {sBUD}, 0x80000
    v_mov_b32 {vM}, {MISC}
    s_mov_b32 s39, 0x20000
    v_and_b32 v0, 63, v0
    v_lshlrev_b32 {vL16}, 4, v0
    s_mul_i32 {sT0}, {sCW}, 896
    v_add_u32 v5, {sT0}, {vL16}
    v_mov_b32 v16, 0
    v_mov_b32 v17, 0
    v_mov_b32 v18, 0
    v_mov_b32 v19, 0
    v_lshrrev_b32 {vG}, 4, v0
    v_and_b32 {vN}, 15, v0
    v_mov_b32 {vONE}, 1
    v_mov_b32 {vFF}, 0xff
    v_mov_b32 v14, 0
    s_mov_b32 {sMASK}, 0xffff0000
    s_lshl_b32 {sIDX}, {sBG}, 3
    s_add_u32 {sIDX}, {sIDX}, {sS}
    s_lshl_b32 {sT0}, {sB}, 1
    s_xor_b32 {sFIN}, {sT0}, {sG}
    s_mov_b32 s38, 0x400000
    s_lshl_b32 {sT0}, {sG}, 2
    s_add_u32 {sT0}, {sT0}, {sB}
    s_lshl_b32 {sT0}, {sT0}, 3
    s_add_u32 {sT0}, {sT0}, {sS}
    s_waitcnt lgkmcnt(0)
    s_mov_b32 {sWT}, {sT0}
    s_mov_b32 {sTBLN}, {WS_TBLN}
    s_lshl_b32 s47, {sBG}, 13
    s_lshl_b32 {sT0}, {sCW}, 10
    s_or_b32 s47, s47, {sT0}
    s_or_b32 s47, s47, {WS_Q}
    s_cmp_ge_u32 {sCW}, 4
    s_mov_b32 s36, s28
    s_mov_b32 s37, s29
    s_load_dword {sTAG}, {pWS}, {WS_E}
    s_cbranch_scc1 L_nox
    s_mov_b32 exec_hi, 0x00ffffff
    global_load_dwordx4 v[16:19], v5, {pX}
    s_mov_b32 exec_hi, -1
    L_nox:
    s_cmp_lg_u32 {sCW}, 0
    s_cbranch_scc1 L_notq0
    v_mov_b32 v7, 0
    global_load_ushort v167, v7, {pB2}
    s_getreg_b32 {sXCC}, hwreg(HW_REG_XCC_ID, 0, 4)
    s_lshl_b32 s59, {sG}, 7
    s_add_u32 s59, s59, {WS_IDS}
    s_lshl_b32 {sT0}, {sI}, 2
    s_add_u32 {sT0}, {sT0}, s59
    s_lshl_b32 {sXCC}, {sXCC}, 24
    s_waitcnt lgkmcnt(0)
    s_add_u32 {sTAG}, {sTAG}, {hex(TAGINC)}
    s_lshr_b32 {sTAG1}, {sTAG}, 8
    s_and_b32 {sT1}, {sTAG}, 0xffffff
    s_or_b32 {sXCC}, {sXCC}, {sT1}
    v_mov_b32 v8, {sXCC}
    s_mov_b64 exec, 1
    buffer_store_dword v8, {vL16}, {SRD}, {sT0} offen
    s_mov_b64 exec, -1
    s_waitcnt vmcnt(2)
    s_branch L_ln
    L_notq0:
    s_lshl_b32 {sT0}, {sCW}, 9
    s_sub_u32 {sT0}, {sT0}, 512
    v_lshl_add_u32 v5, v0, 3, {sT0}""")
    load_w()
    if touch:
        C("wave 6: first touch of the pages that are streamed later (address translation, speed only)")
        A(f"""s_cmp_lg_u32 {sCW}, 6
        s_cbranch_scc1 L_notouch
        s_lshl_b32 {sT0}, {sBG}, 22
        s_lshl_b32 {sT1}, {sS}, 17
        s_add_u32 {sT0}, {sT0}, {sT1}
        s_add_u32 {sT0}, {sT0}, 0x300000
        v_mov_b32 v8, {sT0}
        s_mul_i32 {sT0}, {sG}, {512 * 896}
        v_mov_b32 v9, {sT0}
        s_mov_b64 exec, 1
        global_load_dword v20, v8, s[8:9] nt""")
        if touch > 1:
            A(f"""global_load_dword v21, v9, s[12:13] nt
            v_add_u32 v9, {512 * 896 - 4}, v9
            global_load_dword v22, v9, s[12:13] nt""")
        if touch > 2:
            A(f"v_mov_b32 v9, 0\nglobal_load_dword v23, v9, {pOUT} nt")
        A("s_mov_b64 exec, -1\nL_notouch:")
    if pf:
        C("waves 6, 7: the last two KiB of the code")
        A(f"""s_cmp_lt_u32 {sCW}, 6
        s_cbranch_scc1 L_nopf
        s_getpc_b64 s[40:41]
        L_pfpc:
        s_lshl_b32 {sT2}, {sCW}, 10
        s_add_u32 {sT2}, {sT2}, L_pfend-L_pfpc-8192
        s_add_u32 s40, s40, {sT2}
        s_addc_u32 s41, s41, 0
        v_mov_b32 v9, s41
        v_add_co_u32 v8, vcc, s40, {vL16}
        s_nop 1
        v_addc_co_u32 v9, vcc, 0, v9, vcc
        global_load_dwordx4 v[20:23], v[8:9], off
        L_nopf:""")
    A(f"""s_waitcnt lgkmcnt(0)
    s_add_u32 {sTAG}, {sTAG}, {hex(TAGINC)}
    s_lshr_b32 {sTAG1}, {sTAG}, 8
    s_cmp_ge_u32 {sCW}, 4
    s_cbranch_scc1 L_table
    s_waitcnt vmcnt(3)""")
    C("LayerNorm of row cw of x (waves 0..3), bf16 rounding as the reference")
    A("L_ln:\ns_setprio 2")
    for k in range(4):
        unpack2(f"v{20 + 2 * k}", f"v{21 + 2 * k}", f"v{16 + k}")
    A("""v_pk_add_f32 v[28:29], v[20:21], v[22:23]
    v_pk_add_f32 v[30:31], v[24:25], v[26:27]
    v_pk_add_f32 v[28:29], v[28:29], v[30:31]
    v_add_f32 v28, v28, v29""")
    wave_sums(["v28"], [sT0])
    A(f"v_mov_b32 v32, {hex(fbits(1.0 / 448.0))}\nv_mul_f32 v30, {sT0}, v32\nv_mov_b32 v28, 0\ns_mov_b32 exec_hi, 0x00ffffff")
    for k in range(8):
        A(f"v_sub_f32 v29, v{20 + k}, v30\nv_fmac_f32 v28, v29, v29")
    A("s_mov_b32 exec_hi, -1")
    wave_sums(["v28"], [sT1])
    ln_scale("v30", "v31", sT0, sT1, "v32", False)
    normalize([20, 22, 24, 26], 30, 31, False)
    for k in range(4):
        A(f"v_cvt_pk_bf16_f32 v{16 + k}, v{20 + 2 * k}, v{21 + 2 * k}")
    A(f"""s_mul_i32 {sT0}, {sCW}, 960
    v_add3_u32 v5, {vL16}, {sT0}, {vM}
    s_mov_b32 exec_hi, 0x00ffffff
    ds_write_b128 v5, v[16:19] offset:{LN}
    s_mov_b32 exec_hi, -1""")
    signal(F_LNCNT)
    A(f"s_cmp_lg_u32 {sCW}, 0\ns_cbranch_scc1 L_table")
    C("partial q projection: 64 columns x 4 batches over 112 rows")
    stamp(1)
    A(f"""v_and_b32 v7, 3, {vN}
    v_lshlrev_b32 v12, 16, v7
    v_mul_u32_u24 v7, 960, v7
    v_lshl_add_u32 v7, {vG}, 3, v7
    s_mul_i32 {sT0}, {sB}, 224
    v_add3_u32 v7, v7, {sT0}, {vM}
    v_bfe_u32 v8, v0, 3, 2
    v_lshlrev_b32 v8, 5, v8
    v_lshrrev_b32 v9, 2, v0
    v_lshl_or_b32 v8, v9, 7, v8
    v_and_b32 v9, 3, v0
    v_lshl_or_b32 v8, v9, 3, v8
    v_add_u32 v8, {8 * SLOT}, v8
    v_xor_b32 v9, 32, v8
    v_xor_b32 v10, 64, v8
    v_xor_b32 v11, 0x60, v8
    v_lshrrev_b32 v13, 2, {vN}
    v_cmp_eq_u32 s[52:53], 1, v13
    v_cmp_eq_u32 s[54:55], 2, v13
    v_cmp_eq_u32 s[56:57], 3, v13
    v_lshl_or_b32 v12, v13, 6, v12
    v_lshl_or_b32 v12, {vG}, 4, v12
    v_mov_b32 v13, 8
    s_lshl_b32 {sT0}, {sG}, 3
    s_add_u32 {sT0}, {sT0}, {sS}
    s_lshl_b32 {sT0}, {sT0}, 10
    s_lshl_b32 {sT1}, {sB}, 8
    s_add_u32 {sT0}, {sT0}, {sT1}
    s_add_u32 {sT0}, {sT0}, {WS_Q}""")
    wait_lds(F_LNCNT, 4)
    for j in range(3):
        A(f"ds_read2_b64 v[{16 + 4 * j}:{19 + 4 * j}], v7 offset0:{8 * j} offset1:{8 * j + 4}")
    A("ds_read_b64 v[28:29], v7 offset:192")
    wait_lds(F_LANDED, 1)
    for j in range(4):
        for t in range(4):
            r = 48 + 16 * j + 4 * t
            A(f"ds_read_b64_tr_b16 v[{r}:{r + 1}], v{8 + t} offset:{4096 * j}")
            if j < 3:
                A(f"ds_read_b64_tr_b16 v[{r + 2}:{r + 3}], v{8 + t} offset:{4096 * j + 2048}")
    signal(F_FREE, "v13")
    A("s_waitcnt lgkmcnt(0)")
    for j in range(4):
        for t in range(4):
            r, d = 48 + 16 * j + 4 * t, 112 + 4 * t
            if j < 3:
                A(f"v_mfma_f32_16x16x32_bf16 v[{d}:{d + 3}], v[{r}:{r + 3}], v[{16 + 4 * j}:{19 + 4 * j}], {'0' if j == 0 else f'v[{d}:{d + 3}]'}")
            else:
                A(f"v_mfma_f32_16x16x16_bf16 v[{d}:{d + 3}], v[{r}:{r + 1}], v[28:29], v[{d}:{d + 3}]")
    A("s_nop 7")
    for t in range(1, 4):
        for r in range(4):
            A(f"v_cndmask_b32 v{112 + r}, v{112 + r}, v{112 + 4 * t + r}, s[{50 + 2 * t}:{51 + 2 * t}]")
    put_tag(range(112, 116))
    A(f"""buffer_store_dwordx4 v[112:115], v12, {SRD}, {sT0} offen {qst}
    s_add_u32 s58, {sT0}, {WS_FAR}
    v_mov_b32 v14, v12""")
    stamp(2)
    if x_stop == 1:
        A("s_endpgm")
    A("s_branch L_qk")
    C("waves 1..7: this workgroup's entries of the scalar map t -> MLP(t), t running over bf16 values")
    A("L_table:\ns_setprio 0\ns_waitcnt vmcnt(0)")
    if x_stop == 1:
        A("s_endpgm")
    unpack_w()
    A(f"""s_and_b32 {sT0}, {sWT}, 127
    s_mul_i32 {sT0}, {sT0}, {NE}
    s_add_u32 {sT0}, {sT0}, {E0 << 7}
    s_lshr_b32 {sT1}, {sWT}, 7
    s_lshl_b32 {sT1}, {sT1}, 15
    s_or_b32 {sT0}, {sT0}, {sT1}
    s_lshl_b32 s50, {sT0}, 16
    s_mov_b32 s54, 0
    s_lshl_b32 {sT0}, {sCW}, 7
    v_lshl_add_u32 v8, {vG}, 2, {vM}
    v_add_u32 v8, {sT0}, v8
    L_tloop:
    s_cmp_lg_u32 s54, {(x_tl or NE) - 4 * qit}
    s_cbranch_scc1 L_tnoq
    buffer_load_dwordx4 v[20:23], {vL16}, {SRD}, s47 offen sc1
    L_tnoq:
    s_add_u32 s51, s50, 0x10000
    s_add_u32 s52, s50, 0x20000
    s_add_u32 s53, s50, 0x30000""")
    gelu(["s50", "s51"], ["v80", "v81"], True)
    gelu(["s52", "s53"], ["v82", "v83"], True)
    swap_reduce4(("v80", "v81", "v82", "v83"))
    A("s_add_u32 s50, s50, 0x40000\ns_add_u32 s54, s54, 4")
    for m in DPP[:4]:
        A(f"v_add_f32_dpp v80, v80, v80 {m} bank_mask:0xf\ns_nop 1")
    A(f"""s_cmp_lt_u32 s54, {x_tl or NE}
    ds_write_b32 v8, v80 offset:{TP - 128}
    v_add_u32 v8, 16, v8
    s_cbranch_scc1 L_tloop""")
    signal(F_TCNT)
    stamp(1)
    C("key slot cw -> registers, slot is released at once")
    A(f"""L_qk:
    s_setprio 1
    v_and_b32 v8, 7, {vN}
    v_lshlrev_b32 v8, 1, v8
    v_xor_b32 v8, v8, {vG}
    v_lshlrev_b32 v8, 4, v8
    v_lshl_or_b32 v8, {vN}, 9, v8
    s_lshl_b32 {sT0}, {sCW}, 14
    v_add_u32 v8, {sT0}, v8
    v_xor_b32 v9, 64, v8
    v_xor_b32 v10, 0x80, v8
    v_xor_b32 v11, 0xc0, v8
    s_lshl_b32 {sT0}, {sCW}, 2
    v_add_u32 v12, {sT0}, {vM}
    v_mov_b32 v13, 8
    s_add_u32 {sT4}, {sCW}, {1 + LB}""")
    wait_lds(F_LANDED, sT4)
    for j in range(8):
        for t in range(2):
            r = 48 + 8 * j + 4 * t
            A(f"ds_read_b128 v[{r}:{r + 3}], v{8 + (j & 3)} offset:{256 * (j >> 2) + 8192 * t}")
    signal(F_FREE + 4, "v13", "v12")
    stamp(3)
    if x_stop == 2:
        A("s_endpgm")
    C("64 columns of q: sum of the four row-quarter partials")
    A(f"""s_lshr_b32 {sT1}, {sCW}, 2
    s_mul_i32 {sT1}, {sT1}, {HP}
    s_and_b32 {sT2}, {sCW}, 3
    s_lshl_b32 {sT2}, {sT2}, 7
    s_add_u32 {sT1}, {sT1}, {sT2}
    v_lshlrev_b32 v12, 1, {vG}
    v_lshl_or_b32 v12, {vN}, 3, v12
    v_add3_u32 v12, v12, {sT1}, {vM}
    s_cmp_lg_u32 {sCW}, 0
    s_cbranch_scc1 L_qchk""")
    wait_lds(F_LANDED, QT + LB)
    A(f"buffer_load_dwordx4 v[20:23], {vL16}, {SRD}, s47 offen sc1")
    C("wave 0: do the 32 workgroups of this kv head share this compute die (one L2)?  Not seen yet counts as no")
    A(f"""v_and_b32 v16, 31, v0
    v_lshlrev_b32 v16, 2, v16
    buffer_load_dword v17, v16, {SRD}, s59 offen sc1
    s_waitcnt vmcnt(0)
    v_cmp_ne_u32 vcc, {sXCC}, v17
    v_mov_b32 v17, 1
    s_cmp_lg_u64 vcc, 0
    s_cbranch_scc1 L_idfar
    {"s_branch L_idfar" if x_far else ""}
    L_idloc:
    ds_write_b32 {vM}, v17 offset:{F_LOC}
    L_qchk:
    s_waitcnt vmcnt(0)""")
    cold.append(f"""L_idfar:
    buffer_store_dwordx4 v[112:115], v14, {SRD}, s58 offen sc1
    v_mov_b32 v17, {WS_FAR + 1}
    s_branch L_idloc""")
    tags_ok([20, 21, 22, 23], "L_qok")
    wait_lds(F_LOC, 1, sleep=qback)
    A(f"""s_sub_u32 {sT5}, {sT5}, 1
    s_xor_b32 s47, s47, {sT5}
    s_sleep {qback}
    buffer_load_dwordx4 v[20:23], {vL16}, {SRD}, s47 offen sc1""")
    spin_tail("L_qchk", 0)
    A("L_qok:")
    strip_tag(range(20, 24))
    swap_reduce4(("v20", "v21", "v22", "v23"))
    A(f"""v_cvt_pk_bf16_f32 v20, v20, v20
    ds_write_b16 v12, v20 offset:{QL}""")
    signal(F_QCNT)
    A(f"""v_and_b32 v7, 1, {vN}
    v_lshl_add_u32 v8, v7, 2, {vM}
    v_mul_u32_u24 v7, {HP}, v7
    v_lshl_add_u32 v7, {vG}, 4, v7
    v_add_u32 v7, v7, {vM}
    s_lshl_b32 {sT0}, {sCW}, 6
    v_add_u32 v9, {sT0}, v7
    s_mov_b32 s46, {hex(fbits(CEXP))}""")
    wait_lds(F_QCNT, 8)
    stamp(4)
    A(f"ds_read_b32 v5, {vM} offset:{F_LOC}")
    for j in range(8):
        A(f"ds_read_b128 v[{16 + 4 * j}:{19 + 4 * j}], v7 offset:{QL + 64 * j}")
    for j in range(8):
        A(f"s_waitcnt lgkmcnt({7 - j})")
        if j == 0:
            A(f"v_readfirstlane_b32 {sFAR}, v5")
        for t in range(2):
            r = 48 + 8 * j + 4 * t
            d = 112 + 4 * t
            A(f"v_mfma_f32_16x16x32_bf16 v[{d}:{d + 3}], v[{r}:{r + 3}], v[{16 + 4 * j}:{19 + 4 * j}], {'0' if j == 0 else f'v[{d}:{d + 3}]'}")
    A(f"s_sub_u32 {sFAR}, {sFAR}, 1\ns_nop 6")
    for k in range(8):
        rne1(f"v{112 + k}", f"v{112 + k}")
    A(f"""v_max3_f32 v120, v112, v113, v114
    v_max3_f32 v121, v115, v116, v117
    v_max3_f32 v120, v120, v118, v119
    v_max_f32 v120, v120, v121
    s_mov_b32 exec_lo, 0x00030003
    s_mov_b32 exec_hi, 0x00030003
    ds_max_f32 v8, v120 offset:{F_MX}
    s_mov_b64 exec, -1""")
    signal(F_MAXCNT)
    wait_lds(F_MAXCNT, 8)
    A(f"ds_read_b32 v124, v8 offset:{F_MX}\ns_waitcnt lgkmcnt(0)")
    for k in range(8):
        A(f"v_sub_f32 v{112 + k}, v{112 + k}, v124")
    for k in range(8):
        A(f"v_mul_f32 v{112 + k}, s46, v{112 + k}")
    for k in range(8):
        A(f"v_exp_f32 v{112 + k}, v{112 + k}")
    A("s_nop 0")
    for k in range(4):
        A(f"v_cvt_pk_bf16_f32 v{120 + k}, v{112 + 2 * k}, v{113 + 2 * k}")
    A(f"""s_mov_b32 exec_lo, 0x00030003
    s_mov_b32 exec_hi, 0x00030003
    ds_write_b128 v9, v[120:123] offset:{PL}
    s_mov_b64 exec, -1""")
    signal(F_PCNT)
    C("addresses of the PV loop and of the stages behind it")
    A(f"""v_mov_b32 v43, v7
    v_bfe_u32 v8, v0, 2, 3
    s_lshl_b32 {sT0}, {sCW}, 1
    v_xor_b32 v8, {sT0}, v8
    v_lshlrev_b32 v8, 5, v8
    v_lshrrev_b32 v9, 2, v0
    v_lshl_or_b32 v8, v9, 9, v8
    v_and_b32 v10, 3, v0
    v_lshl_or_b32 v44, v10, 3, v8
    v_xor_b32 v45, 32, v44""")
    for r in range(112, 120):
        A(f"v_mov_b32 v{r}, 0")
    A(f"""v_and_b32 v28, 1, {vN}
    v_lshlrev_b32 v28, 10, v28
    v_bfe_u32 v29, {vN}, 1, 1
    v_lshl_or_b32 v28, v29, 6, v28
    v_lshl_or_b32 v160, {vG}, 4, v28
    v_cmp_ne_u32 s[56:57], 0, v29
    s_lshl_b32 s51, {sIDX}, 11
    s_lshl_b32 {sT0}, {sCW}, 7
    s_add_u32 s51, s51, {sT0}
    s_add_u32 s51, s51, {WS_OP}
    v_lshlrev_b32 v161, 6, {vG}
    v_lshlrev_b32 v28, 4, {vN}
    v_lshl_or_b32 v162, {vG}, 11, v28
    s_and_b32 {sT2}, {sBG}, 0x17
    s_lshr_b32 {sT1}, {sCW}, 2
    s_lshl_b32 {sT1}, {sT1}, 3
    s_add_u32 {sT2}, {sT2}, {sT1}
    s_and_b32 {sT3}, {sB}, 1
    s_lshl_b32 s52, {sT2}, 14
    s_lshl_b32 {sT1}, {sT3}, 10
    s_add_u32 s52, s52, {sT1}
    s_and_b32 {sT1}, {sCW}, 3
    s_lshl_b32 {sT1}, {sT1}, 8
    s_add_u32 s52, s52, {sT1}
    s_add_u32 s52, s52, {WS_OP}
    s_add_u32 s59, s52, {4 << 11}
    v_bfe_u32 v28, v0, 3, 2
    s_and_b32 {sT1}, {sCW}, 3
    v_xor_b32 v28, {sT1}, v28
    v_lshlrev_b32 v28, 5, v28
    v_lshl_or_b32 v28, v9, 7, v28
    v_lshl_or_b32 v163, v10, 3, v28
    v_add_u32 v164, {((8 + wpos) % 9) * SLOT}, v163
    v_lshlrev_b32 v28, 4, v10
    v_bfe_u32 v29, v0, 2, 1
    v_lshl_or_b32 v28, v29, 3, v28
    v_bfe_u32 v29, v0, 3, 1
    v_lshl_or_b32 v28, v29, 6, v28
    v_lshl_or_b32 v28, {vG}, 1, v28
    s_lshr_b32 {sT0}, {sCW}, 2
    s_mul_i32 {sT0}, {sT0}, {HP}
    s_lshl_b32 {sT1}, {sT1}, 7
    s_add_u32 {sT0}, {sT0}, {sT1}
    v_add3_u32 v165, v28, {sT0}, {vM}
    s_lshl_b32 {sT0}, {sCW}, 6
    v_add_u32 v166, {OL - PL}, v7
    v_mul_u32_u24 v14, {16 * 1792}, {vN}
    v_lshl_add_u32 v14, {vG}, 4, v14
    s_and_b32 s53, {sB}, 2
    s_lshl_b32 s53, s53, 3
    s_add_u32 s53, s53, {sG}
    s_lshl_b32 s53, s53, 1
    s_add_u32 s53, s53, {sT3}
    s_mul_i32 s53, s53, 1792
    s_lshl_b32 {sT1}, {sS}, 8
    s_add_u32 s53, s53, {sT1}
    s_add_u32 s53, s53, {sT0}
    s_add_u32 s53, s53, {WS_OUTP + (KC - 1) * 0x20000}
    s_lshl_b32 s54, {sT2}, 9
    s_lshl_b32 {sT1}, {sT3}, 3
    s_add_u32 s54, s54, {sT1}
    s_add_u32 s54, s54, {WS_STATS}
    v_lshl_add_u32 v136, {vN}, 2, {vG}
    v_add_u32 v136, {sT0}, v136
    s_mul_i32 {sT1}, {sB}, 896
    v_lshl_add_u32 v137, v136, 1, {sT1}
    s_and_b32 s55, {sWT}, 0xf8
    s_mul_i32 s55, s55, {NE * 4}
    s_xor_b32 {sT1}, {sS}, 7
    s_or_b32 {sFIN}, {sFIN}, {sT1}""")
    if ppre:
        C("first read of the lines that will hold this workgroup's partial rows (brings them into the L2; speed only)")
        A(f"""s_cmp_lg_u32 {sCW}, 5
        s_cbranch_scc1 L_noppre
        v_lshlrev_b32 v28, 7, v0
        s_lshl_b32 {sT0}, {sIDX}, 11
        s_add_u32 {sT0}, {sT0}, {WS_OP}
        s_mov_b64 exec, 0xffff
        buffer_load_dword v128, v28, {SRD}, {sT0} offen {pprefl}
        s_mov_b64 exec, -1
        L_noppre:""")
    if tpre:
        C("first read of the table lines this workgroup passes on (brings them on chip; speed only)")
        A(f"""s_xor_b32 {sT0}, {sS}, 7
        s_xor_b32 {sT1}, {sCW}, 7
        s_or_b32 {sT0}, {sT0}, {sT1}
        s_cbranch_scc1 L_notpre
        v_lshlrev_b32 v28, 7, v0
        s_add_u32 {sT0}, s55, {WS_TBL}
        s_mov_b64 exec, {(1 << (NE // 4)) - 1}
        buffer_load_dword v128, v28, {SRD}, {sT0} offen sc1
        s_mov_b64 exec, -1
        L_notpre:""")
    if opre == 2:
        C("first read of the lines this workgroup writes in stage 3 (brings them on chip; speed only)")
        A(f"""s_and_b32 {sT0}, {sCW}, 5
        s_cbranch_scc1 L_nopre
        s_cmp_eq_u32 {sS}, 7
        s_cbranch_scc1 L_nopre
        s_mov_b64 exec, 3
        s_mov_b32 {sT0}, s53""")
        for k in range(KC):
            A(f"buffer_load_dword v128, v14, {SRD}, {sT0} offen {oprefl}\ns_sub_u32 {sT0}, {sT0}, 0x20000")
        A("s_mov_b64 exec, -1\nL_nopre:")
    wait_lds(F_PCNT, 8)
    stamp(5)
    if x_stop == 3:
        A("s_endpgm")
    C("wave 0: row sums of the bf16 probabilities (ones x P), publish (max, sum) of both heads")
    A(f"s_cmp_lg_u32 {sCW}, 0\ns_cbranch_scc1 L_nostat")
    for j in range(8):
        A(f"ds_read_b128 v[{48 + 4 * j}:{51 + 4 * j}], v43 offset:{PL + 64 * j}")
    for r in range(16, 20):
        A(f"v_mov_b32 v{r}, 0x3f803f80")
    A(f"""s_lshl_b32 {sT0}, {sIDX}, 6
    s_add_u32 {sT0}, {sT0}, {WS_STATS}
    s_waitcnt lgkmcnt(0)""")
    for j in range(8):
        A(f"v_mfma_f32_16x16x32_bf16 v[20:23], v[16:19], v[{48 + 4 * j}:{51 + 4 * j}], {'0' if j == 0 else 'v[20:23]'}")
    A(f"""v_mov_b32_dpp v126, v124 quad_perm:[1,0,3,2] row_mask:0xf bank_mask:0xf
    s_nop 6
    v_mov_b32 v125, v20
    v_mov_b32_dpp v127, v20 quad_perm:[1,0,3,2] row_mask:0xf bank_mask:0xf""")
    put_tag([125, 127], tag=sTAG1)
    put_tag([124, 126], True, sTAG)
    A("s_mov_b64 exec, 1")
    store_group(f"buffer_store_dwordx4 v[124:127], {vL16}, {SRD}, {{}} offen", sT0)
    C("wave 0: finish and publish the table entries")
    A(f"s_mov_b64 exec, -1\nv_and_b32 v7, 31, v0\nv_lshl_add_u32 v7, v7, 2, {vM}")
    wait_lds(F_TCNT, 7)
    for k in range(7):
        A(f"ds_read_b32 v{16 + k}, v7 offset:{TP + 128 * k}")
    A(f"""s_mul_i32 {sT0}, {sWT}, {NE * 4}
    s_add_u32 {sT0}, {sT0}, {WS_TBLN}
    v_lshlrev_b32 v8, 2, v0
    v_lshlrev_b32 v46, 16, v167
    s_waitcnt lgkmcnt(0)
    v_add_f32 v16, v16, v17
    v_add_f32 v18, v18, v19
    v_add_f32 v20, v20, v21
    v_add_f32 v16, v16, v18
    v_add_f32 v20, v20, v22
    v_add_f32 v16, v16, v20""")
    rne1("v16", "v16")
    A("v_add_f32 v16, v16, v46")
    rne1("v16", "v16")
    A(f"v_mov_b32 v17, {sTAG}\nv_bfi_b32 v16, {sMASK}, v16, v17")
    A(f"s_mov_b64 exec, {(1 << NE) - 1}")
    store_group(f"buffer_store_dword v16, v8, {SRD}, {{}} offen", sT0)
    A("s_mov_b64 exec, -1\nL_nostat:")
    sJ, sVS, sJL = "s48", "s49", "s50"
    ntl = (NE * 128 + 1023) // 1024
    lastm = (1 << ((NE * 128 - 1024 * (ntl - 1)) // 16)) - 1

    def table_loads():
        for k in range(ntl):
            if k == ntl - 1:
                A(f"s_mov_b32 exec_lo, {hex(lastm & 0xffffffff)}\ns_mov_b32 exec_hi, {hex(lastm >> 32)}")
            A(f"buffer_load_dwordx4 v[{140 + 4 * k}:{143 + 4 * k}], {vL16}, {SRD}, s55 offen offset:{1024 * k} sc1")
        A("s_mov_b64 exec, -1")

    A(f"""s_mov_b32 {sJ}, 0
    s_mov_b32 {sVS}, {8 * SLOT}
    s_mov_b32 {sJL}, {jmid}
    v_add_u32 v12, {F_FREE + 36}, {vM}
    s_mov_b32 {sT4}, {9 + LB}
    s_cmp_eq_u32 {sS}, 7
    s_cselect_b32 s58, 0, 2
    L_pv:
    ds_read_b128 v[16:19], v43 offset:{PL}
    v_add_u32 v10, {sVS}, v44
    v_add_u32 v11, {sVS}, v45""")
    if vbar:
        C("the last slot is announced by a barrier with the loader")
        A(f"s_cmp_lg_u32 {sJ}, 7\ns_waitcnt lgkmcnt(0)\ns_cbranch_scc1 L_pvwait\ns_barrier\nL_pvgo:")
        pvwait = (f"""L_pvwait:
        ds_read_b32 v5, {vM} offset:{F_LANDED}
        s_waitcnt lgkmcnt(0)
        v_readfirstlane_b32 {sT5}, v5
        s_cmp_ge_u32 {sT5}, {sT4}
        s_cbranch_scc1 L_pvgo
        s_sleep 1
        s_sub_u32 {sBUD}, {sBUD}, 1
        s_cbranch_scc0 L_pvwait
        s_branch L_end""")
    else:
        wait_lds(F_LANDED, sT4, sleep=pvslp)
    A(f"""ds_read_b64_tr_b16 v[20:21], v10
    ds_read_b64_tr_b16 v[22:23], v10 offset:8192
    ds_read_b64_tr_b16 v[24:25], v11
    ds_read_b64_tr_b16 v[26:27], v11 offset:8192""")
    signal(0, vONE, "v12")
    A(f"""v_add_u32 v43, 64, v43
    s_add_u32 {sJ}, {sJ}, 1""")
    if wpos < 8:
        A(f"""s_cmp_eq_u32 {sJ}, {wpos}
        s_cselect_b32 {sT0}, s58, 0
        s_add_u32 {sT0}, {sT0}, 1
        s_add_u32 {sT4}, {sT4}, {sT0}
        s_lshl_b32 {sT1}, {sT0}, 2
        v_add_u32 v12, {sT1}, v12
        s_lshl_b32 {sT1}, {sT0}, 14
        s_add_u32 {sVS}, {sVS}, {sT1}
        s_sub_u32 {sT1}, {sVS}, {9 * SLOT}
        s_cselect_b32 {sVS}, {sVS}, {sT1}""")
    else:
        A(f"""v_add_u32 v12, 4, v12
        s_add_u32 {sT4}, {sT4}, 1
        s_add_u32 {sVS}, {sVS}, {SLOT}
        s_cmp_eq_u32 {sVS}, {9 * SLOT}
        s_cselect_b32 {sVS}, 0, {sVS}""")
    A(f"""    s_cmp_lt_u32 {sJ}, {sJL}
    s_waitcnt lgkmcnt(3)
    v_mfma_f32_16x16x32_bf16 v[112:115], v[20:23], v[16:19], v[112:115]
    s_waitcnt lgkmcnt(1)
    v_mfma_f32_16x16x32_bf16 v[116:119], v[24:27], v[16:19], v[116:119]
    s_cbranch_scc1 L_pv
    s_cmp_eq_u32 {sJ}, 8
    s_cbranch_scc1 L_pv_done""")
    C("before the last value slots: fetch what the next stage needs besides the partial rows")
    A(f"""s_mov_b32 {sJL}, 8
    s_cmp_eq_u32 {sS}, 7
    s_cbranch_scc1 L_mid7""")
    if opre == 1:
        A(f"""s_cmp_ge_u32 {sCW}, 4
        s_cbranch_scc1 L_nopre
        s_mov_b32 exec_lo, 0x00030003
        s_mov_b32 exec_hi, 0
        s_mov_b32 {sT0}, s53""")
        for k in range(KC):
            A(f"buffer_load_dword v128, v14, {SRD}, {sT0} offen {oprefl}\ns_sub_u32 {sT0}, {sT0}, 0x20000")
        A("s_mov_b64 exec, -1\nL_nopre:")
    A(f"""    buffer_load_dwordx2 v[32:33], v161, {SRD}, s54 offen sc1
    buffer_load_dwordx2 v[34:35], v161, {SRD}, s54 offen offset:256 sc1""")
    A(f"""s_branch L_pv
    L_mid7:
    s_cmp_lg_u32 {sCW}, {7 if t7 else 0}
    s_cbranch_scc1 L_mid8
    v_mov_b32 v32, {sTAG}
    v_mov_b32 v33, {sTAG}
    v_mov_b32 v34, {sTAG}
    v_mov_b32 v35, {sTAG}
    s_add_u32 s54, s55, {WS_TBLN}
    s_mov_b32 exec_hi, {hex((1 << (2 * NE - 32)) - 1)}
    buffer_load_dwordx4 v[32:35], {vL16}, {SRD}, s54 offen sc1
    s_mov_b32 exec_hi, -1
    L_mid8:
    s_cmp_lg_u32 {sFIN}, 0
    s_cbranch_scc1 L_pv
    s_cmp_eq_u32 {sCW}, 7
    s_cbranch_scc1 L_pv
    global_load_ushort v138, v137, {pX}
    s_branch L_pv""")
    if vbar:
        A(pvwait)
    A("L_pv_done:")
    stamp(7)
    if x_stop == 4:
        A("s_endpgm")
    C("publish the partial output rows")
    A(f"""s_nop 4
    v_cndmask_b32 v112, v112, v116, s[56:57]
    v_cndmask_b32 v113, v113, v117, s[56:57]
    v_cndmask_b32 v114, v114, v118, s[56:57]
    v_cndmask_b32 v115, v115, v119, s[56:57]""")
    put_tag(range(112, 116), True)
    A(f"""s_mov_b32 exec_lo, 0x000f000f
    s_mov_b32 exec_hi, 0x000f000f
""")
    store_group(f"buffer_store_dwordx4 v[112:115], v160, {SRD}, {{}} offen", "s51")
    opoll = f"""buffer_load_dwordx4 v[24:27], v162, {SRD}, s52 offen sc1
    buffer_load_dwordx4 v[28:31], v162, {SRD}, s59 offen sc1"""
    A(f"""s_mov_b64 exec, -1
    s_cmp_eq_u32 {sS}, 7
    s_cbranch_scc1 L_last""")
    if obar:
        C("all partial rows of this workgroup are on their way before the first look at the group's rows")
        A("s_barrier")
    A(opoll)
    A(f"s_cmp_lg_u32 {sFAR}, 0\ns_cbranch_scc1 L_spoll0\ns_waitcnt vmcnt(3)\nL_spoll:")
    cold.append("L_spoll0:\ns_waitcnt vmcnt(0)\ns_branch L_spoll")
    tags_ok([32, 34, 33, 35], "L_sok", tags=[sTAG, sTAG1])
    A(f"""s_xor_b32 s54, s54, {sFAR}
    buffer_load_dwordx2 v[32:33], v161, {SRD}, s54 offen sc1
    buffer_load_dwordx2 v[34:35], v161, {SRD}, s54 offen offset:256 sc1
    s_waitcnt vmcnt(0)""")
    spin_tail("L_spoll", 0)
    A(f"""L_oagain:
    s_xor_b32 s52, s52, {sFAR}
    s_xor_b32 s59, s59, {sFAR}""")
    A(opoll)
    spin_tail("L_opoll", 0)
    A("L_sok:")
    C("weights of the splits row and row+4")
    A(f"""v_and_b32 v32, {sMASK}, v32
    v_and_b32 v34, {sMASK}, v34""")
    strip_tag([33, 35])

    def rowred(op, d, t):
        for sw in ("v_permlane16_swap_b32", "v_permlane32_swap_b32"):
            A(f"v_mov_b32 {t}, {d}\ns_nop 1\n{sw} {d}, {t}\n{op} {d}, {d}, {t}")

    A("v_max_f32 v36, v32, v34")
    rowred("v_max_f32", "v36", "v37")
    A("""v_sub_f32 v32, v32, v36
    v_sub_f32 v34, v34, v36
    v_mul_f32 v32, s46, v32
    v_mul_f32 v34, s46, v34
    v_exp_f32 v32, v32
    v_exp_f32 v34, v34
    s_nop 0
    v_mul_f32 v36, v33, v32
    v_fmac_f32 v36, v35, v34""")
    rowred("v_add_f32", "v36", "v37")
    A("""v_rcp_f32 v36, v36
    s_nop 0
    v_mul_f32 v32, v32, v36
    v_mul_f32 v34, v34, v36""")
    if wbar:
        C("wo has landed (barrier with the loader)")
        A(f"s_cmp_ge_u32 {sCW}, 4\ns_barrier\ns_cbranch_scc1 L_opoll")
    else:
        A(f"s_cmp_ge_u32 {sCW}, 4\ns_cbranch_scc1 L_opoll")
        wait_lds(F_LANDED, 10 + wpos + LB, sleep=pvslp)
    for j in range(8):
        for u in range(2):
            part = j >> 2
            sl0, sl = (8 + wpos) % 9, (8 + wpos + part) % 9
            base, off = ("v164", (sl - sl0) * SLOT) if sl >= sl0 else ("v163", sl * SLOT)
            r = 48 + 4 * j + 2 * u
            A(f"ds_read_b64_tr_b16 v[{r}:{r + 1}], {base} offset:{off + 4096 * (j & 3) + 2048 * u}")
    stamp(8)
    A("L_opoll:\ns_waitcnt vmcnt(0)")

    def o_scale():
        strip_tag(range(28, 32))
        A("""v_pk_mul_f32 v[24:25], v[24:25], v[32:33] op_sel_hi:[1,0]
        v_pk_mul_f32 v[26:27], v[26:27], v[32:33] op_sel_hi:[1,0]
        v_pk_fma_f32 v[24:25], v[28:29], v[34:35], v[24:25] op_sel_hi:[1,0,1]
        v_pk_fma_f32 v[26:27], v[30:31], v[34:35], v[26:27] op_sel_hi:[1,0,1]""")

    tags_ok(list(range(24, 32)), None, retry="L_oagain", between=lambda: strip_tag(range(24, 28)))
    stamp(9)
    o_scale()
    swap_reduce4(("v24", "v25", "v26", "v27"))
    A(f"""v_cvt_pk_bf16_f32 v24, v24, v24
    ds_write_b16 v165, v24 offset:{OL}
    s_cmp_ge_u32 {sCW}, 4
    s_waitcnt lgkmcnt(0)
    s_barrier
    s_cbranch_scc1 {"L_wb" if wb else "L_exit"}""")
    if wb:
        cold.append(f"""L_wb:
        s_or_b32 {sT0}, {sB}, {sS}
        s_xor_b32 {sT1}, {sCW}, 7
        s_or_b32 {sT0}, {sT0}, {sT1}
        s_cbranch_scc1 L_exit
        {f"s_sleep {wb}" if wb > 1 else ""}
        buffer_wbl2 sc1
        s_branch L_exit""")
    for j in range(8):
        A(f"ds_read_b128 v[{16 + 4 * j}:{19 + 4 * j}], v166 offset:{PL + 64 * j}")
    for j in range(8):
        A(f"s_waitcnt lgkmcnt({7 - j})\nv_mfma_f32_16x16x32_bf16 v[112:115], v[{48 + 4 * j}:{51 + 4 * j}], v[{16 + 4 * j}:{19 + 4 * j}], {'0' if j == 0 else 'v[112:115]'}")
    A(f"""s_mov_b32 exec_lo, 0x00030003
    s_mov_b32 exec_hi, 0x00030003
    s_nop 5""")
    put_tag(range(112, 116), True)
    for k in range(KC):
        A(f"buffer_store_dwordx4 v[112:115], v14, {SRD}, s53 offen {ost}")
        if k < KC - 1:
            A("s_sub_u32 s53, s53, 0x20000")
    A("s_mov_b64 exec, -1")
    stamp(10)
    A("s_branch L_exit")
    C("workgroups of split 7, one wave: pass the table entries of the 8 splits on to the finishing workgroups")
    A(f"""L_last:
    s_cmp_lg_u32 {sCW}, {7 if t7 else 0}
    s_cbranch_scc1 L_nofwd
    L_fpoll:
    s_waitcnt vmcnt(0)""")
    tags_ok([32, 33, 34, 35], "L_fok", tags=[sTAG] * 2, sel="WORD_0")
    A(f"""s_xor_b32 s54, s54, {sFAR}
    s_mov_b32 exec_hi, {hex((1 << (2 * NE - 32)) - 1)}
    buffer_load_dwordx4 v[32:35], {vL16}, {SRD}, s54 offen sc1
    s_mov_b32 exec_hi, -1""")
    spin_tail("L_fpoll")
    A(f"""L_fok:
    s_add_u32 s54, s55, {WS_TBL}
    s_mov_b32 exec_hi, {hex((1 << (2 * NE - 32)) - 1)}
    {"" if x_nofwd else f"buffer_store_dwordx4 v[32:35], {vL16}, {SRD}, s54 offen sc1"}
    s_mov_b32 exec_hi, -1
    L_nofwd:""")
    if t7:
        assert NE % 8 == 0
        nl = NE // 8
        A(f"""s_cmp_lg_u32 {sFIN}, 0
        s_cbranch_scc1 L_exit
        s_cmp_lg_u32 {sCW}, 7
        s_cbranch_scc1 L_hget0""")
        C("finishing workgroup, wave 7: the whole table to LDS (own kv head's share from the L2 copy when the group is on one die)")
        A(f"""s_cmp_eq_u32 {sFAR}, 0
        s_cselect_b32 s48, {sG}, 8
        v_add_u32 v13, {TBL_LDS}, {vL16}""")
        wait_lds(F_FREE + 36, 8)
        A("s_branch L_tload\nL_tagain:\ns_waitcnt lgkmcnt(0)")
        if tback:
            A(f"s_sleep {tback}")
        A(f"s_sub_u32 {sBUD}, {sBUD}, 1\ns_cbranch_scc1 L_end\nL_tload:")
        for gp in range(8):
            A(f"s_cmp_eq_u32 s48, {gp}\ns_cselect_b32 {sT0}, {sTBLN}, {WS_TBL}\ns_add_u32 {sT0}, {sT0}, {gp * NE * 128}")
            for k in range(nl):
                r = 48 + 4 * (gp * nl + k)
                A(f"buffer_load_dwordx4 v[{r}:{r + 3}], {vL16}, {SRD}, {sT0} offen offset:{1024 * k} sc1")
        A("v_mov_b32 v5, 0")
        for k in range(8 * nl):
            r = 48 + 4 * k
            A(f"""s_waitcnt vmcnt({8 * nl - 1 - k})
            v_bitop3_b32 v7, v{r}, v{r + 1}, {sTAG} bitop3:0x7e
            v_bitop3_b32 v8, v{r + 2}, v{r + 3}, {sTAG} bitop3:0x7e
            ds_write_b128 v13, v[{r}:{r + 3}] offset:{1024 * k}
            v_or3_b32 v5, v5, v7, v8""")
        A(f"""v_cmp_ne_u32_sdwa vcc, v5, 0 src0_sel:WORD_0 src1_sel:DWORD
        s_cmp_lg_u64 vcc, 0
        {"" if x_nofwd else "s_cbranch_scc1 L_tagain"}""")
        A("s_waitcnt lgkmcnt(0)\ns_barrier")
    else:
        C("finishing workgroup of batch b: table to LDS, sum the 16 head partials, residual, LN, LN, table lookup")
        A(f"""s_cmp_lg_u32 {sFIN}, 0
    s_cbranch_scc1 L_exit
    s_xor_b32 {sT0}, {sCW}, {sG}
    s_or_b32 {sT0}, {sT0}, {sFAR}
    s_cselect_b32 s55, {WS_TBL}, {sTBLN}
    s_mul_i32 {sT0}, {sCW}, {NE * 128}
    s_add_u32 s55, s55, {sT0}
    s_add_u32 {sT0}, {sT0}, {TBL_LDS}
    v_add_u32 v13, {sT0}, {vL16}""")
        for r in range(140 + 4 * (ntl - 1), 140 + 4 * ntl):
            A(f"v_mov_b32 v{r}, {sTAG}")
        table_loads()
        A(f"""    s_mul_i32 s48, {sB}, {16 * 1792}
    s_lshl_b32 {sT0}, {sCW}, 8
    s_add_u32 s48, s48, {sT0}
    s_add_u32 s48, s48, {WS_OUTP}
    s_add_u32 s49, s48, {4 * 1792}
    s_add_u32 s50, s48, {8 * 1792}
    s_add_u32 s51, s48, {12 * 1792}
    v_mul_u32_u24 v12, 1792, {vG}
    v_lshl_add_u32 v12, {vN}, 4, v12
    L_tpoll:
    s_waitcnt vmcnt(0)""")
        tags_ok(list(range(140, 140 + 4 * ntl)), "L_tok", tags=[sTAG] * (2 * ntl), sel="WORD_0")
        if x_nofwd:
            A("s_branch L_tok")
        A(f"s_sleep {tback}")
        table_loads()
        spin_tail("L_tpoll", 0)
        A(f"L_tok:\ns_mov_b32 s47, {128 * NE}")
        stamp(6)
        wait_lds(F_FREE + 36, 8)
        for k in range(ntl):
            if k == ntl - 1:
                A(f"s_mov_b32 exec_lo, {hex(lastm & 0xffffffff)}\ns_mov_b32 exec_hi, {hex(lastm >> 32)}")
            A(f"ds_write_b128 v13, v[{140 + 4 * k}:{143 + 4 * k}] offset:{1024 * k}")
        A("s_mov_b64 exec, -1")
        A(f"""s_cmp_eq_u32 {sCW}, 7
    s_cbranch_scc0 L_hget
    s_waitcnt lgkmcnt(0)
    s_barrier""")
    C("every workgroup has read the epoch word (its table entries carry the tag): advance it")
    A(f"""s_cmp_lg_u32 {sB}, 0
    s_cbranch_scc1 L_exit
    v_mov_b32 v5, {sTAG}
    s_mov_b64 exec, 1
    buffer_store_dword v5, {vL16}, {SRD}, 0 offen {efl}
    s_mov_b64 exec, -1
    s_branch L_exit""")
    if t7:
        C("finishing workgroup of batch b, waves 0..6: sum the 16 head partials, residual, LN, LN, table lookup")
        A(f"""L_hget0:
        s_mul_i32 s48, {sB}, {16 * 1792}
        s_lshl_b32 {sT0}, {sCW}, 8
        s_add_u32 s48, s48, {sT0}
        s_add_u32 s48, s48, {WS_OUTP}
        s_add_u32 s49, s48, {4 * 1792}
        s_add_u32 s50, s48, {8 * 1792}
        s_add_u32 s51, s48, {12 * 1792}
        v_mul_u32_u24 v12, 1792, {vG}
        v_lshl_add_u32 v12, {vN}, 4, v12
        s_mov_b32 s47, {128 * NE}
        s_waitcnt vmcnt(0)""")
        stamp(6)
    A(f"""L_hget:
    v_lshl_add_u32 v13, v136, 2, {vM}
    v_lshl_add_u32 v14, v0, 5, {vM}
""")
    if olin:
        A(f"""s_mul_i32 {sT0}, {sCW}, 448
        v_lshl_add_u32 v40, v0, 3, {sT0}
        v_add_u32 v40, v40, {vM}
        s_lshl2_add_u32 {sT1}, {sB}, {sCW}
        s_mul_i32 {sT1}, {sT1}, 224
        v_lshl_add_u32 v41, v0, 2, {sT1}""")
    else:
        A(f"""s_lshl_b32 {sT0}, {sCW}, 3
        v_add_u32 v40, {sT0}, v14
        s_mul_i32 {sT1}, {sB}, 896
        s_lshl_b32 {sT0}, {sCW}, 2
        s_add_u32 {sT1}, {sT1}, {sT0}
        v_add_u32 v41, {sT1}, {vL16}""")
    A(f"""    v_lshlrev_b32 v137, 16, v138
    v_mov_b32 v42, {hex(fbits(1.0 / 448.0))}
    s_mov_b32 s52, {TBL_LDS}
    s_mov_b32 s53, 0x7060302""")
    for r in range(48, 56):
        A(f"v_mov_b32 v{r}, 0")
    assert not dry

    def h_loads(r0):
        for m in range(4):
            A(f"buffer_load_dwordx4 v[{r0 + 4 * m}:{r0 + 3 + 4 * m}], v12, {SRD}, s{48 + m} offen {hld}")

    def h_sum(r):
        strip_tag(range(r + 4, r + 16))
        A(f"""v_pk_add_f32 v[{r}:{r + 1}], v[{r}:{r + 1}], v[{r + 4}:{r + 5}]
        v_pk_add_f32 v[{r + 2}:{r + 3}], v[{r + 2}:{r + 3}], v[{r + 6}:{r + 7}]
        v_pk_add_f32 v[{r + 8}:{r + 9}], v[{r + 8}:{r + 9}], v[{r + 12}:{r + 13}]
        v_pk_add_f32 v[{r + 10}:{r + 11}], v[{r + 10}:{r + 11}], v[{r + 14}:{r + 15}]
        v_pk_add_f32 v[32:33], v[{r}:{r + 1}], v[{r + 8}:{r + 9}]
        v_pk_add_f32 v[34:35], v[{r + 2}:{r + 3}], v[{r + 10}:{r + 11}]""")

    if h2:
        h_loads(96)
        A(f"s_sleep {h2}")
        h_loads(112)
        A(f"""s_branch L_hchkA
        L_hagainB:
        s_sub_u32 {sBUD}, {sBUD}, 1
        s_cbranch_scc1 L_end""")
        h_loads(112)
        A("L_hchkA:\ns_waitcnt vmcnt(4)")
        tags_ok(list(range(96, 112)), None, retry="L_hagainA", between=lambda: strip_tag(range(96, 100)))
        h_sum(96)
        A("s_branch L_hok\nL_hagainA:")
        h_loads(96)
        A("s_waitcnt vmcnt(4)")
        tags_ok(list(range(112, 128)), None, retry="L_hagainB", between=lambda: strip_tag(range(112, 116)))
        h_sum(112)
        A("L_hok:")
        stamp(11)
    else:
        if hdel:
            A(f"s_sleep {hdel}")
        A(f"""s_branch L_hpoll
        L_hagain:
        s_sub_u32 {sBUD}, {sBUD}, 1
        s_cbranch_scc1 L_end""")
        if hback:
            A(f"s_sleep {hback}")
        if KC > 1:
            C("next copy: lines nobody has read yet take the producers' writes faster")
            A(f"""s_cmp_lt_u32 s48, {WS_OUTP + (KC - 1) * 0x20000}
            s_cselect_b32 {sT0}, 0x20000, 0""")
            for m in range(4):
                A(f"s_add_u32 s{48 + m}, s{48 + m}, {sT0}")
        A("L_hpoll:")
        h_loads(16)
        A("s_waitcnt vmcnt(0)")
        tags_ok(list(range(16, 32)), None, retry="L_hagain", between=lambda: strip_tag(range(16, 20)))
        stamp(11)
        h_sum(16)
    swap_reduce4(("v32", "v33", "v34", "v35"))
    rne1("v32", "v32")
    A("v_add_f32 v32, v32, v137")
    rne1("v32", "v32")
    A(f"ds_write_b32 v13, v32 offset:{HL}")
    if dry:
        A("s_cmp_lg_u32 s54, 0\ns_cbranch_scc1 L_hdry")
    A(f"""s_cmp_ge_u32 {sCW}, 4
    s_waitcnt lgkmcnt(0)
    s_barrier
    s_cbranch_scc1 L_exit
    L_hdry:""")
    if fst:
        stamp(8)
    A(f"""    s_mov_b32 exec_hi, 0x00ffffff
    ds_read_b128 v[48:51], v14 offset:{HL}
    ds_read_b128 v[52:55], v14 offset:{HL + 16}
    ds_read_b64 v[138:139], v40 offset:{HL}
    s_mov_b32 exec_hi, -1
    s_waitcnt lgkmcnt(1)""")

    def stats8():
        sums8()
        ln_scale("v22", "v23", sT0, sT1, "v42", True)

    def sums8():
        A("""v_pk_add_f32 v[20:21], v[48:49], v[50:51]
        v_pk_mul_f32 v[24:25], v[48:49], v[48:49]
        v_pk_add_f32 v[22:23], v[52:53], v[54:55]
        v_pk_fma_f32 v[24:25], v[50:51], v[50:51], v[24:25]
        v_pk_add_f32 v[20:21], v[20:21], v[22:23]
        v_pk_fma_f32 v[24:25], v[52:53], v[52:53], v[24:25]
        v_add_f32 v20, v20, v21
        v_pk_fma_f32 v[24:25], v[54:55], v[54:55], v[24:25]
        v_add_f32 v24, v24, v25""")
        wave_sums(["v20", "v24"], [sT0, sT1])

    if alg:
        C("first LayerNorm: mean / variance of h.  Its output is a = (h - m1) * r1, so the second LayerNorm's")
        C("statistics follow exactly: mean(a) = (mean - m1) * r1, var(a) = var * r1 * r1")
        sums8()
        if fst:
            stamp(9)
        A(f"""v_mul_f32 v26, {sT1}, v42
        v_mul_f32 v27, {sT0}, v42
        v_fma_f32 v26, -v27, v27, v26""")
        rne1("v22", "v27")
        A(f"""v_cvt_pk_bf16_f32 v23, 0, abs(v26)
        v_sub_f32 v24, v27, v22
        v_add_f32 v23, {hex(fbits(1e-5))}, v23""")
        rne1("v23", "v23")
        A("""v_sqrt_f32 v23, v23
        s_waitcnt lgkmcnt(0)
        v_pk_add_f32 v[36:37], v[138:139], v[22:23] op_sel_hi:[1,0] neg_lo:[0,1] neg_hi:[0,1]""")
        rne1("v23", "v23")
        A("v_rcp_f32 v23, v23")
        rne1("v36", "v36")
        A("v_mul_f32 v25, abs(v26), v23")
        rne1("v37", "v37")
        A("v_mul_f32 v25, v25, v23\nv_mul_f32 v24, v24, v23")
        rne1("v25", "v25")
        A(f"""v_pk_mul_f32 v[36:37], v[36:37], v[22:23] op_sel:[0,1] op_sel_hi:[1,1]
        v_add_f32 v25, {hex(fbits(1e-5))}, v25""")
        rne1("v24", "v24")
        rne1("v25", "v25")
        rne1("v36", "v36")
        A("v_sqrt_f32 v25, v25")
        rne1("v37", "v37")
        rne1("v25", "v25")
        A("v_pk_add_f32 v[36:37], v[36:37], v[24:25] op_sel_hi:[1,0] neg_lo:[0,1] neg_hi:[0,1]\nv_rcp_f32 v25, v25")
        rne1("v36", "v36")
        rne1("v37", "v37")
        A("s_mov_b32 exec_hi, 0x00ffffff\nv_pk_mul_f32 v[36:37], v[36:37], v[24:25] op_sel:[0,1] op_sel_hi:[1,1]")
        rne1("v36", "v36")
        rne1("v37", "v37")
    else:
        stats8()
        A("s_waitcnt lgkmcnt(0)\nv_mov_b32 v36, v138\nv_mov_b32 v37, v139\ns_mov_b32 exec_hi, 0x00ffffff")
        normalize([48, 50, 52, 54, 36], 22, 23)
        A("s_mov_b32 exec_hi, -1")
        stats8()
        A("s_mov_b32 exec_hi, 0x00ffffff")
        normalize([36], 22, 23)
    if fst:
        stamp(10)
    A(f"""v_bfe_u32 v16, v36, 16, 15
    v_bfe_u32 v17, v37, 16, 15
    v_subrev_u32 v16, {E0 << 7}, v16
    v_subrev_u32 v17, {E0 << 7}, v17
    v_lshrrev_b32 v18, 31, v36
    v_lshrrev_b32 v19, 31, v37
    v_cmp_le_u32 vcc, {128 * NE}, v16
    v_cmp_le_u32 s[56:57], s47, v17
    v_mad_u32_u24 v16, v18, s47, v16
    v_mad_u32_u24 v17, v19, s47, v17
    v_cndmask_b32 v16, v16, 0, vcc
    v_cndmask_b32 v17, v17, 0, s[56:57]
    v_lshl_add_u32 v16, v16, 2, s52
    v_lshl_add_u32 v17, v17, 2, s52
    ds_read_b32 v38, v16
    ds_read_b32 v39, v17""")
    if dry:
        A("s_cmp_lg_u32 s54, 0\ns_cbranch_scc1 L_hreal")
    A(f"""s_or_b64 s[58:59], vcc, s[56:57]
    s_waitcnt lgkmcnt(0)
    v_and_b32 v38, {sMASK}, v38
    v_and_b32 v39, {sMASK}, v39
    s_cbranch_scc1 L_direct
    L_fin:
    v_pk_add_f32 v[38:39], v[38:39], v[138:139]""")
    if x_pert:
        A(f"v_cmp_eq_u32 vcc, 0, v41\nv_mov_b32 v5, {hex(fbits(x_pert / 10000.0))}\ns_nop 0\nv_cndmask_b32 v5, 0, v5, vcc\nv_add_f32 v38, v38, v5")
    A(f"""    v_cvt_pk_bf16_f32 v38, v38, v39
    global_store_dword v41, v38, {pOUT} {fst_fl}
    s_mov_b32 exec_hi, -1""")
    stamp(12)
    A("L_exit:")
    if diag:
        A(f"s_cmp_eq_u32 {sCW}, 0\ns_cbranch_scc0 L_st1")
        stamps_out(8, 13)
        A(f"L_st1:\ns_cmp_eq_u32 {sCW}, 3\ns_cbranch_scc0 L_end")
        stamps_out(24, 13)
    A("L_end:\ns_endpgm\nL_pfend:")
    C("inputs outside the tabulated binades: evaluate the MLP directly, one element at a time")
    A(f"""L_direct:
    s_mov_b32 exec_hi, -1
    s_mov_b64 s[54:55], vcc
    s_mov_b32 s58, 0
    v_mov_b32 v7, 0
    global_load_ushort v46, v7, {pB2}
    L_dpass:
    s_cmp_eq_u64 s[54:55], 0
    s_cbranch_scc1 L_dswap
    s_ff1_i32_b64 s52, s[54:55]
    s_bitset0_b64 s[54:55], s52
    s_nop 3
    v_readlane_b32 s50, v36, s52
    v_mov_b32 v80, 0
    v_lshlrev_b32 v5, 3, v0
    s_mov_b32 s53, 0
    L_dloop:""")
    load_w()
    A("v_add_u32 v5, 512, v5\ns_waitcnt vmcnt(0)")
    unpack_w()
    gelu(["s50"], ["v80"], False)
    A("s_add_u32 s53, s53, 1\ns_cmp_lt_u32 s53, 7\ns_cbranch_scc1 L_dloop")
    wave_sums(["v80"], [sT0])
    A(f"v_mov_b32 v80, {sT0}")
    rne1("v80", "v80")
    A("v_lshlrev_b32 v81, 16, v46\nv_add_f32 v80, v80, v81")
    rne1("v80", "v80")
    A(f"""v_cmp_eq_u32 vcc, s52, v0
    s_nop 1
    v_cndmask_b32 v38, v38, v80, vcc
    s_branch L_dpass
    L_dswap:
    v_swap_b32 v36, v37
    v_swap_b32 v38, v39
    s_mov_b64 s[54:55], s[56:57]
    s_add_u32 s58, s58, 1
    s_cmp_eq_u32 s58, 1
    s_cbranch_scc1 L_dpass
    s_mov_b32 exec_hi, 0x00ffffff
    s_branch L_fin""")
    for c in cold:
        A(c)
    A("L_codeend:")
    if epf >= 3:
        L.append(".if L_codeend - L_pc0 < 9216\n.error \"code prefetch would run past the code\"\n.endif")
    L.append(f""".section .rodata,"a"
.p2align 6
.amdhsa_kernel {KN}_kernel
  .amdhsa_next_free_vgpr 168
  .amdhsa_next_free_sgpr 96
  .amdhsa_accum_offset 168
  .amdhsa_float_denorm_mode_32 3
  .amdhsa_group_segment_fixed_size 0
  .amdhsa_kernarg_size 104
  .amdhsa_user_sgpr_count 2
  .amdhsa_user_sgpr_kernarg_segment_ptr 1
  .amdhsa_system_sgpr_workgroup_id_x 1
.end_amdhsa_kernel""")
    return "\n".join(L) + "\n"


if __name__ == "__main__":
    names = []
    for spec in sys.argv[1:]:
        kw = {}
        name = None
        for kv in spec.split(","):
            if not kv:
                continue
            k, v = kv.split("=")
            if k == "o":
                name = v
                continue
            kw[k] = int(v) if v.lstrip("-").isdigit() else v.replace("+", " ").replace("none", "")
        name = name or "k_" + spec.replace(":", "-").replace(",", "_").replace("=", "").replace("+", "") + ".s"
        open(name, "w").write(gen(**kw))
        names.append(name)
    print(" ".join(names))
```

```python
import sys, struct, math
KN = "sequential_preLN__sliding_block_cached__mixer_token_mlp__decode"

def fbits(x):
    return struct.unpack("<I", struct.pack("<f", x))[0]

WS_E, WS_IDS, WS_TBL, WS_TBLN, WS_STATS, WS_Q, WS_OP, WS_OUTP = 0, 0x1000, 0x20000, 0x28000, 0x30000, 0x40000, 0x80000, 0x100000
WS_FAR = 0x200000
WS_STAMP = 0x10000000
SLOT = 16384
MISC = 9 * SLOT
LN, QL, PL, OL, TP, FL, HL = 0x0, 0x1000, 0x1500, 0x1A00, 0x1F00, 0x2300, 0x2400
HP = 576
F_LANDED, F_LNCNT, F_QCNT, F_MAXCNT, F_PCNT, F_TCNT, F_TAG, F_LOC, F_MX, F_FREE = FL, FL + 4, FL + 8, FL + 12, FL + 16, FL + 20, FL + 24, FL + 28, FL + 32, FL + 64
TBL_LDS = 7 * SLOT
TAGINC = 0x9E3779B9


def gen(D=24, DV=0, DW=40, NE=24, diag=0, ld="nt", ldq="nt", ldo="nt", rot=2, ra=1, rc=0, pf=1, epf=4, pfm=7, bar=4, uni=1, nL=16, dl="", dlx=0, bmap=0, ufree=0, efree=1, xr=0, tight=1, touch=0, h2=0, olin=1, KC=1, opre=2, tpre=1, t7=0, ppre=0, pprefl="sc1", oprefl="sc1", hdel=0, obar=1, olate=0, hmask=0, omask=0, vbar=1, wbar=1, slp=1, pvslp=0, qback=8, tback=8, hback=0, oback=0, nst="", qst="", fst_fl="", wb=0, efl="", ost="sc1", fst=0, lst=0, hld="sc1", jmid=6, QT=4, qit=1, rnd=1, dry=0, alg=1,
        x_tl=0, x_far=0, x_nofree=0, x_stop=0, x_pert=0, x_nofwd=0, x_dbg=0):
    L = []
    uid = [0]
    cold = []

    def A(s):
        for ln in s.split("\n"):
            ln = ln.strip()
            if ln:
                L.append(ln if ln.endswith(":") else "    " + ln)

    def C(s):
        L.append("    ; " + s)

    def lab(p):
        uid[0] += 1
        return f"L_{p}{uid[0]}"

    assert NE % 4 == 0
    E0 = 132 - NE
    LB = 1
    wpos = 8
    sW, sWV = "s2", "s3"
    pX, pK, pV, pWQ, pWO, pW1, pB1, pW2, pB2, pOUT, pWS = "s[4:5]", (6, 7), (8, 9), (10, 11), (12, 13), "s[16:17]", "s[18:19]", "s[20:21]", "s[22:23]", "s[24:25]", "s[28:29]"
    sG, sI, sB, sS, sIDX, sBG = "s30", "s31", "s32", "s33", "s34", "s35"
    SRD = "s[36:39]"
    sBUD, sTAG, sFIN, sMASK, sXCC, sFAR = "s60", "s61", "s62", "s63", "s14", "s15"
    sTAG1 = "s0"
    tagof = lambda r: sTAG1 if r & 2 else sTAG
    sTBLN = "s27"
    sWT = "s26"
    sT0, sT1, sT2, sT3, sT4, sT5 = "s40", "s41", "s42", "s43", "s44", "s45"
    vM, vG, vN, vONE, vL16, vFF = "v1", "v2", "v3", "v4", "v6", "v15"

    def stamp(k):
        if diag:
            A(f"s_memrealtime s[{64 + 2 * k}:{65 + 2 * k}]")

    def stamps_out(base, n):
        if not diag:
            return
        A(f"s_waitcnt lgkmcnt(0)\ns_lshl_b32 {sT0}, {sW}, 9\ns_add_u32 {sT0}, {sT0}, {WS_STAMP + base * 8}\nv_mov_b32 v5, {sT0}\ns_mov_b64 exec, 1")
        for k in range(n):
            A(f"v_mov_b32 v6, s{64 + 2 * k}\nv_mov_b32 v7, s{65 + 2 * k}\nglobal_store_dwordx2 v5, v[6:7], {pWS} offset:{8 * k}\ns_nop 1")
        A("s_mov_b64 exec, -1")

    def spin_tail(top, sleep=None):
        sleep = slp if sleep is None else sleep
        if sleep:
            A(f"s_sleep {sleep}")
        A(f"s_sub_u32 {sBUD}, {sBUD}, 1\ns_cbranch_scc0 {top}\ns_branch L_end")

    def wait_lds(off, val, vt="v5", addr=vM, sleep=None):
        top, done = lab("w"), lab("d")
        A(f"{top}:\nds_read_b32 {vt}, {addr} offset:{off}\ns_waitcnt lgkmcnt(0)\nv_readfirstlane_b32 {sT5}, {vt}\ns_cmp_ge_u32 {sT5}, {val}\ns_cbranch_scc1 {done}")
        spin_tail(top, sleep)
        A(f"{done}:")

    def signal(off, vval=vONE, addr=vM):
        A(f"s_mov_b64 exec, 1\nds_add_u32 {addr}, {vval} offset:{off}\ns_mov_b64 exec, -1")

    def tags_ok(regs, ok, guard=None, tags=None, sel="BYTE_0", retry=None, between=None):
        t = ["v5", "v7", "v8", "v9", "v10", "v11", "v56", "v57"]
        parts = []
        for k in range(0, len(regs), 2):
            A(f"v_bitop3_b32 {t[k // 2]}, v{regs[k]}, v{regs[k + 1]}, {tags[k // 2] if tags else tagof(regs[k])} bitop3:0x7e")
            parts.append(t[k // 2])
        if guard:
            A(guard(parts))
        while len(parts) > 1:
            if len(parts) >= 3:
                A(f"v_or3_b32 {parts[0]}, {parts[0]}, {parts[-1]}, {parts[-2]}")
                parts = parts[:-2]
            else:
                A(f"v_or_b32 {parts[0]}, {parts[0]}, {parts[1]}")
                parts = parts[:1]
        A(f"v_cmp_ne_u32_sdwa vcc, v5, 0 src0_sel:{sel} src1_sel:DWORD")
        if retry:
            between()
            A(f"s_cmp_lg_u64 vcc, 0\ns_cbranch_scc1 {retry}")
        else:
            A(f"s_cmp_eq_u64 vcc, 0\ns_cbranch_scc1 {ok}")

    def strip_tag(regs):
        for r in regs:
            A(f"v_bfi_b32 v{r}, {vFF}, 0, v{r}")

    def store_group(ins, soff):
        far, done = lab("far"), lab("pub")
        A(f"{ins.format(soff)} {nst}\ns_cmp_lg_u32 {sFAR}, 0\ns_cbranch_scc1 {far}\n{done}:")
        cold.append(f"{far}:\ns_add_u32 {sT5}, {soff}, {WS_FAR}\n{ins.format(sT5)} sc1\ns_branch {done}")

    def put_tag(regs, exact=False, tag=None):
        if rnd and not exact:
            for r in regs:
                A(f"v_add_u32 v{r}, 0x80, v{r}")
        for r in regs:
            A(f"v_bfi_b32 v{r}, {vFF}, {tag or tagof(r)}, v{r}")

    DPP = ["quad_perm:[1,0,3,2] row_mask:0xf", "quad_perm:[2,3,0,1] row_mask:0xf", "row_half_mirror row_mask:0xf",
           "row_mirror row_mask:0xf", "row_bcast:15 row_mask:0xa", "row_bcast:31 row_mask:0xc"]

    def wave_sums(regs, sdst):
        A("s_nop 1" if len(regs) == 1 else "s_nop 0")
        for m in DPP:
            for r in regs:
                A(f"v_add_f32_dpp {r}, {r}, {r} {m} bank_mask:0xf")
            if len(regs) == 1 or m != DPP[-1]:
                A("s_nop 1" if len(regs) == 1 else "s_nop 0")
        for r, s in zip(regs, sdst):
            A(f"v_readlane_b32 {s}, {r}, 63")
        A("s_nop 1")

    def rne1(dst, src):
        A(f"v_cvt_pk_bf16_f32 {dst}, 0, {src}")

    def unpack2(lo, hi, src):
        A(f"v_lshlrev_b32 {lo}, 16, {src}\nv_and_b32 {hi}, {sMASK}, {src}")

    def ln_scale(vm, vr, sS1, sS2, vinv, onepass):
        A(f"v_mul_f32 {vr}, {sS2}, {vinv}\nv_mul_f32 {vm}, {sS1}, {vinv}")
        if onepass:
            A(f"v_fma_f32 {vr}, -{vm}, {vm}, {vr}")
        A(f"v_cvt_pk_bf16_f32 {vr}, 0, abs({vr})")
        rne1(vm, vm)
        A(f"v_add_f32 {vr}, {hex(fbits(1e-5))}, {vr}")
        rne1(vr, vr)
        A(f"v_sqrt_f32 {vr}, {vr}\ns_nop 0")
        rne1(vr, vr)
        A(f"v_rcp_f32 {vr}, {vr}\ns_nop 0")

    def normalize(pairs, vm, vr, last=True):
        for a in pairs:
            A(f"v_pk_add_f32 v[{a}:{a + 1}], v[{a}:{a + 1}], v[{vm}:{vm + 1}] op_sel_hi:[1,0] neg_lo:[0,1] neg_hi:[0,1]")
        for a in pairs:
            rne1(f"v{a}", f"v{a}")
            rne1(f"v{a + 1}", f"v{a + 1}")
        for a in pairs:
            A(f"v_pk_mul_f32 v[{a}:{a + 1}], v[{a}:{a + 1}], v[{vm}:{vm + 1}] op_sel:[0,1] op_sel_hi:[1,1]")
        if last:
            for a in pairs:
                rne1(f"v{a}", f"v{a}")
                rne1(f"v{a + 1}", f"v{a + 1}")

    K1 = -2.0 * math.sqrt(2.0 / math.pi) * math.log2(math.e)
    K2 = K1 * 0.044715
    CEXP = math.log2(math.e) / 16.0

    def gelu(sTs, accs, first):
        el = [(i, e) for e in range(4) for i in range(len(sTs))]
        u = lambda i, e: f"v{60 + 4 * i + e}"
        p = lambda i, e: f"v{68 + 4 * i + e}"
        for i, e in el:
            A(f"v_fma_f32 {u(i, e)}, {sTs[i]}, v{48 + e}, v{52 + e}")
        for i, e in el:
            A(f"v_mul_f32 {p(i, e)}, {u(i, e)}, {u(i, e)}")
        for i, e in el:
            A(f"v_fmaak_f32 {p(i, e)}, {p(i, e)}, v47, {hex(fbits(K1))}")
        for i, e in el:
            A(f"v_mul_f32 {p(i, e)}, {p(i, e)}, {u(i, e)}")
        for i, e in el:
            A(f"v_exp_f32 {p(i, e)}, {p(i, e)}\nv_mul_f32 {u(i, e)}, {u(i, e)}, v{56 + e}")
        for i, e in el:
            A(f"v_add_f32 {p(i, e)}, 1.0, {p(i, e)}")
        for i, e in el:
            A(f"v_rcp_f32 {p(i, e)}, {p(i, e)}")
        A("s_nop 0")
        for i, e in el:
            A(f"v_mul_f32 {accs[i]}, {u(i, e)}, {p(i, e)}" if first and e == 0 else f"v_fmac_f32 {accs[i]}, {u(i, e)}, {p(i, e)}")

    def unpack_w():
        for k, src in enumerate((76, 77, 78, 79, 84, 85)):
            unpack2(f"v{48 + 2 * k}", f"v{49 + 2 * k}", f"v{src}")
        A(f"v_mov_b32 v47, {hex(fbits(K2))}")

    def load_w():
        A(f"global_load_dwordx2 v[76:77], v5, {pW1}\nglobal_load_dwordx2 v[78:79], v5, {pB1}\nglobal_load_dwordx2 v[84:85], v5, {pW2}")

    def swap_reduce4(*sets, pad=True):
        if pad:
            A("s_nop 0")
        for a, b, c, d in sets:
            A(f"v_permlane16_swap_b32 {a}, {b}\nv_permlane16_swap_b32 {c}, {d}")
        for a, b, c, d in sets:
            A(f"v_add_f32 {a}, {a}, {b}\nv_add_f32 {c}, {c}, {d}")
        A("s_nop 1")
        for a, b, c, d in sets:
            A(f"v_permlane32_swap_b32 {a}, {c}")
        for a, b, c, d in sets:
            A(f"v_add_f32 {a}, {a}, {c}")

    L.append(f"""; Fused decode block, one launch: LN -> q projection -> sliding-window GQA attention (last 2048 keys) -> output
;
;   all 32 members run on its own die it also writes a second copy through to memory, and readers then try both copies.""")
    L.append(f"; @launch grid=(256,1,1) block=(576,1,1) lds={10 * SLOT}")
    L.append('.amdgcn_target "amdgcn-amd-amdhsa--gfx950"\n.text')
    L.append(f".globl {KN}_kernel\n.p2align 8\n.type {KN}_kernel,@function\n{KN}_kernel:")
    A(f"""s_cmpk_ge_u32 {sW}, 256
    s_cbranch_scc1 L_end
    s_load_dwordx16 s[4:19], s[0:1], 0""")
    if x_dbg:
        A("s_memrealtime s[64:65]\ns_load_dwordx2 s[66:67], s[0:1], 88")
    if epf == 4:
        C("some waves pull 1 KiB of this kernel's code towards the L2 (speed only)")
        A(f"""v_lshrrev_b32 v1, 6, v0
        s_lshr_b32 {sI}, {sW}, 3
        v_readfirstlane_b32 {sWV}, v1
        s_getpc_b64 s[40:41]
        L_pc0:
        v_lshlrev_b32 v8, 4, v0
        s_add_u32 {sT2}, {sWV}, {sI}
        s_and_b32 {sT2}, {sT2}, {pfm}
        s_cbranch_scc1 L_nopf0
        v_mov_b32 v9, s41
        v_add_co_u32 v8, vcc, s40, v8
        v_addc_co_u32 v9, vcc, 0, v9, vcc
        global_load_dwordx4 v[20:23], v[8:9], off
        L_nopf0:""")
    if epf == 3:
        C("every wave pulls 1 KiB of this kernel's code towards the L2 (speed only)")
        A("""s_getpc_b64 s[40:41]
        L_pc0:
        v_lshlrev_b32 v8, 4, v0
        v_mov_b32 v9, s41
        v_add_co_u32 v8, vcc, s40, v8
        v_addc_co_u32 v9, vcc, 0, v9, vcc
        global_load_dwordx4 v[20:23], v[8:9], off""")
    rest = "s_load_dwordx8 s[20:27], s[0:1], 64\ns_load_dwordx2 s[28:29], s[0:1], 96"
    if not tight:
        A(rest)
    stamp(0)
    if epf != 4:
        A(f"v_lshrrev_b32 v1, 6, v0\ns_lshr_b32 {sI}, {sW}, 3\nv_readfirstlane_b32 {sWV}, v1")
    A(f"""s_and_b32 {sG}, {sW}, 7
    {f"s_lshr_b32 {sB}, {sI}, 3" if bmap else f"s_and_b32 {sB}, {sI}, 3"}
    {f"s_and_b32 {sS}, {sI}, 7" if bmap else f"s_lshr_b32 {sS}, {sI}, 2"}""")
    A(f"""s_lshl3_add_u32 {sBG}, {sB}, {sG}
""")
    A(f"s_cmp_eq_u32 {sWV}, 0\ns_cbranch_scc1 L_loader")
    if epf in (1, 2):
        C("compute waves: pull this kernel's code towards the L2, 1 KiB pieces (speed only)")
        A(f"""s_getpc_b64 s[40:41]
        L_pc0:
        v_lshlrev_b32 v8, 4, v0
        v_add_u32 v10, {8 * 1024 - 1024}, v8
        v_min_u32 v10, L_codeend-L_pc0-16, v10
        v_add_u32 v8, {-1024 & 0xffffffff}, v8
        v_mov_b32 v9, s41
        v_add_co_u32 v8, vcc, s40, v8
        v_mov_b32 v11, s41
        v_addc_co_u32 v9, vcc, 0, v9, vcc
        global_load_dwordx4 v[20:23], v[8:9], off""")
        if epf > 1:
            A(f"""v_add_co_u32 v10, vcc, s40, v10
            s_nop 1
            v_addc_co_u32 v11, vcc, 0, v11, vcc
            global_load_dwordx4 v[20:23], v[10:11], off""")
    A("s_barrier\ns_branch L_compute\nL_loader:")
    C("---------------- loader wave")
    sN, sSLOT, sBASE, sGS, sRG, sRS, sCNT, sGI, sKV = "s48", "s49", "s50", "s51", "s52", "s53", "s54", "s55", "s56"
    sKJ = "s57"
    if True:
        C("rows 112b.. of wq, columns 512g+64s.. -> ring slot 8 (two lanes-wide issues run past the slice's descriptor)")
        A(f"""s_mov_b32 s46, {112 * 8192}
        s_mul_i32 {sT0}, {sB}, s46
        s_lshl3_add_u32 {sT1}, {sG}, {sS}
        s_lshl_b32 {sT1}, {sT1}, 7
        s_add_u32 {sT0}, {sT0}, {sT1}
        s_mov_b32 {sT3}, {65536 - 1024}
        v_lshrrev_b32 v12, 3, v0
        v_lshlrev_b32 v12, 13, v12
        v_and_b32 v13, 7, v0
        v_lshrrev_b32 v14, 4, v0
        v_lshlrev_b32 v14, 1, v14
        v_xor_b32 v13, v13, v14
        v_lshl_or_b32 v12, v13, 4, v12
        v_add_u32 v13, {sT3}, v12
        v_add_u32 v14, {sT3}, v13
        v_add_u32 v15, {sT3}, v14
        s_mov_b32 s47, 0x20000
        s_mov_b32 m0, s47
        {f"s_lshl_b32 {sT2}, s47, 1" if tight else ""}
        {f"s_mov_b32 {sT1}, 0" if tight else ""}
        s_waitcnt lgkmcnt(0)
        s_add_u32 s44, s{pWQ[0]}, {sT0}
        s_addc_u32 s45, s{pWQ[1]}, 0""")
        if lst:
            stamp(7)
        flags = f"""s_setprio 3
        s_mov_b32 {sBUD}, 0x80000
        v_mov_b32 {vM}, {MISC}
        s_mov_b32 s39, 0x20000
        v_lshrrev_b32 v6, {3 if ufree else 1}, v0
        v_cmp_eq_u32 vcc, {1 if ufree else 4}, v6
        v_lshl_add_u32 v5, v0, 2, {vM}
        v_mov_b32 v7, 0xff800000
        v_cndmask_b32 v6, 0, v7, vcc
        ds_write_b32 v5, v6 offset:{FL}
        s_waitcnt lgkmcnt(0)
        s_barrier"""
        if tight:
            A("L_wq:")
            for k in range(4):
                A(f"buffer_load_dwordx4 v{12 + k}, s[44:47], {sT1} offen offset:{1024 * k} {ldq} lds")
            A(f"""s_addk_i32 m0, 4096
            s_add_u32 {sT1}, {sT1}, {sT2}
            s_bitcmp0_b32 {sT1}, 20
            s_cbranch_scc1 L_wq""")
            A(flags)
            stamp(1)
            if diag:
                A("s_load_dwordx2 s[28:29], s[0:1], 96")
        for u in range(0 if tight else 16):
            if u % 4 == 0 and u:
                A(f"s_mov_b32 m0, {8 * SLOT + 1024 * u}\ns_mov_b32 {sT1}, {65536 * u}")
            A(f"buffer_load_dwordx4 v{12 + u % 4}, s[44:47], {sT1 if u > 3 else 0} offen offset:{1024 * (u % 4)} {ldq} lds")
            if u == bar - 1:
                A(flags)
                stamp(1)
    A(f"""    v_lshrrev_b32 v5, 5, v0
    v_and_b32 v6, 31, v0
    v_lshlrev_b32 v7, 1, v5
    v_xor_b32 v6, v6, v7
    v_lshlrev_b32 v6, 4, v6
    v_lshl_or_b32 v8, v5, 9, v6
    v_xor_b32 v9, 64, v8
    v_xor_b32 v10, 0x80, v8
    v_xor_b32 v11, 0xc0, v8
    s_mov_b32 {sN}, 0
    s_mov_b32 {sSLOT}, 0
    s_mov_b32 {sGS}, 4096
    s_mov_b32 {sCNT}, 16
    s_mov_b32 s38, {8 * SLOT}""")
    sR = sI
    if ra != 1 or rc:
        A(f"s_mul_i32 {sT0}, {sI}, {ra}\ns_mul_i32 {sT1}, {sG}, {rc}\ns_add_u32 {sT0}, {sT0}, {sT1}\ns_and_b32 {sT0}, {sT0}, 31")
        sR = sT0
    if rot == 9:
        A(f"""s_load_dwordx2 s[58:59], s[0:1], 88
        s_and_b32 {sT0}, {sW}, 0xfc
        s_waitcnt lgkmcnt(0)
        s_load_dword {sT1}, s[58:59], {sT0}
        s_and_b32 {sT0}, {sW}, 3
        s_lshl_b32 {sT0}, {sT0}, 3
        s_waitcnt lgkmcnt(0)
        s_lshr_b32 {sT0}, {sT1}, {sT0}
        s_and_b32 {sRG}, {sT0}, 3
        s_bfe_u32 {sRS}, {sT0}, 0x30002""")
    elif rot == 1:
        A(f"s_and_b32 {sRG}, {sR}, 3\ns_lshr_b32 {sRS}, {sR}, 2")
    elif rot == 2:
        A(f"s_lshr_b32 {sRG}, {sR}, 3\ns_and_b32 {sRS}, {sR}, 7")
    elif rot == 3:
        A(f"s_mov_b32 {sRG}, 0\ns_and_b32 {sRS}, {sR}, 7")
    elif rot == 4:
        A(f"s_and_b32 {sRG}, {sR}, 3\ns_mov_b32 {sRS}, 0")
    elif rot == 5:
        A(f"s_lshr_b32 {sRG}, {sR}, 2\ns_and_b32 {sRS}, {sR}, 3")
    else:
        A(f"s_mov_b32 {sRG}, 0\ns_mov_b32 {sRS}, 0")
    A(f"""s_lshl_b32 {sKV}, {sBG}, 22
    s_lshl_b32 {sT1}, {sS}, 17
    s_add_u32 {sKV}, {sKV}, {sT1}
    s_add_u32 {sKV}, {sKV}, 0x300000
""")
    A(f"""s_add_u32 s36, s{pK[0]}, {sKV}
    s_addc_u32 s37, s{pK[1]}, 0""")

    def group_loop(flag, first, D, vb=8):
        top = lab("grp")
        A(f"s_mov_b32 {sT2}, 0")
        A(f"""{top}:
        {f"s_xor_b32 {sGI}, {sT2}, {sRG}" if xr else f"s_add_u32 {sGI}, {sT2}, {sRG}"}
        {"" if xr else f"s_and_b32 {sGI}, {sGI}, 3"}
        s_lshl_b32 {sT0}, {sGI}, 12
        s_mul_i32 {sT1}, {sGI}, {sGS}
        s_add_u32 m0, {sT0}, {sSLOT}
        s_add_u32 {sT1}, {sT1}, {sBASE}""")
        for k in range(4):
            A(f"s_waitcnt vmcnt({D - 1})\nbuffer_load_dwordx4 v{vb + k}, {SRD}, {sT1} offen offset:{1024 * k} {flag} lds")
        nb, nw = lab("nb"), lab("nw")
        A(f"s_add_u32 {sCNT}, {sCNT}, 4")
        A(f"""s_sub_u32 {sT0}, {sCNT}, {(D + 3) // 4 * 4}
        s_cbranch_scc1 {nw}
        s_and_b32 {sT1}, {sT0}, 15
        s_cbranch_scc1 {nw}
        s_lshr_b32 {sT0}, {sT0}, 4
        v_mov_b32 v5, {sT0}
        ds_write_b32 {vM}, v5 offset:{F_LANDED}
        {nw}:
        s_add_u32 {sT2}, {sT2}, 1
        s_cmp_lt_u32 {sT2}, 4
        s_cbranch_scc1 {top}""")

    def next_slot():
        A(f"""s_add_u32 {sN}, {sN}, 1
        s_add_u32 {sSLOT}, {sSLOT}, {SLOT}
        s_cmp_eq_u32 {sSLOT}, {9 * SLOT}
        s_cselect_b32 {sSLOT}, 0, {sSLOT}""")

    def wait_free():
        if x_nofree:
            return
        A(f"s_lshl_b32 {sT0}, {sN}, 2\nv_add_u32 v6, {sT0}, {vM}")
        wait_lds(F_FREE - 32, 8, "v5", "v6")

    def landed(k):
        A(f"v_mov_b32 v5, {k}\nds_write_b32 {vM}, v5 offset:{F_LANDED}")

    def drain(total, D):
        for k in range(total - (D + 15) // 16 + 1, total + 1):
            A(f"s_waitcnt vmcnt({16 * (total - k)})")
            if vbar and k == total:
                A("s_barrier")
            else:
                landed(k)

    def seg_base():
        A(f"{'s_xor_b32' if xr else 's_add_u32'} {sT0}, {sN}, {sRS}\ns_and_b32 {sT0}, {sT0}, 7\ns_lshl_b32 {sBASE}, {sT0}, 14")

    assert wpos == 8
    DV = DV or D
    if lst:
        stamp(8)
    if uni:
        assert DV == D or nL < 16
        C("segments 0..7: K, 8..15: V (each V segment into a slot its readers have released)")
        dls = [int(x) for x in dl.split(":")] if dl else [D] * 8
        uniq = sorted(set(dls))
        DV = max(uniq)
        if dlx:
            A(f"s_getreg_b32 {sT1}, hwreg(HW_REG_XCC_ID, 0, 3)")
        for d in uniq[1:]:
            mask = sum(1 << x for x in range(8) if dls[x] == d)
            A(f"s_movk_i32 {sT0}, {mask}\ns_bitcmp1_b32 {sT0}, {sT1 if dlx else sG}\ns_cbranch_scc1 L_kv{d}")
        for d in uniq:
            A(f"L_kv{d}:")
            if efree:
                A(f"s_lshl_b32 {sT0}, {sN}, 2\nv_add_u32 v6, {sT0}, {vM}\nds_read_b32 v7, v6 offset:{F_FREE - 28}")
            seg_base()
            group_loop(ld, True, d)
            next_slot()
            if ufree:
                A(f"""s_cmp_eq_u32 {sN}, {nL}
                s_cbranch_scc1 L_kvend
                s_cmp_lt_u32 {sN}, 8
                s_cselect_b64 s[36:37], s[{pK[0]}:{pK[1]}], s[{pV[0]}:{pV[1]}]
                s_add_u32 s36, s36, {sKV}
                s_addc_u32 s37, s37, 0""")
            else:
                A(f"""s_cmp_lt_u32 {sN}, 8
                s_cbranch_scc1 L_kv{d}
                s_cmp_eq_u32 {sN}, {nL}
                s_cbranch_scc1 L_kvend
                s_add_u32 s36, s{pV[0]}, {sKV}
                s_addc_u32 s37, s{pV[1]}, 0""")
            if diag:
                A(f"s_cmp_lg_u32 {sN}, 8\ns_cbranch_scc1 L_nost2{d}")
                stamp(2)
                A(f"L_nost2{d}:")
            if x_nofree:
                A(f"s_branch L_kv{d}")
            if efree:
                A(f"""s_waitcnt lgkmcnt(0)
                v_readfirstlane_b32 {sT5}, v7
                s_cmp_ge_u32 {sT5}, 8
                s_cbranch_scc1 L_kv{d}""")
            else:
                A(f"s_lshl_b32 {sT0}, {sN}, 2\nv_add_u32 v6, {sT0}, {vM}")
            A(f"""L_free{d}:
            ds_read_b32 v5, v6 offset:{F_FREE - (28 if efree else 32)}
            s_waitcnt lgkmcnt(0)
            v_readfirstlane_b32 {sT5}, v5
            s_cmp_ge_u32 {sT5}, 8
            s_cbranch_scc1 L_kv{d}""")
            spin_tail(f"L_free{d}")
        A("L_kvend:")
        if nL < 16:
            A("L_v:")
            wait_free()
            seg_base()
            group_loop(ld, False, DV)
            next_slot()
            A(f"s_cmp_lt_u32 {sN}, 16\ns_cbranch_scc1 L_v")
    else:
        C("segments 0..7: K")
        A("L_k:")
        seg_base()
        group_loop(ld, True, D)
        next_slot()
        A(f"""s_cmp_lt_u32 {sN}, 8
        s_cbranch_scc1 L_k
        s_add_u32 s36, s{pV[0]}, {sKV}
        s_addc_u32 s37, s{pV[1]}, 0""")
        stamp(2)
        C("segments 8..15: V, each into a slot its readers have released")
        A("L_v:")
        wait_free()
        seg_base()
        group_loop(ld, False, DV)
        next_slot()
        A(f"s_cmp_lt_u32 {sN}, 16\ns_cbranch_scc1 L_v")
    stamp(3)
    A(f"s_cmp_lg_u32 {sS}, 7\ns_cbranch_scc1 L_wo")
    A("L_nowo:")
    drain(16 + LB, DV)
    A("s_branch L_ldone")
    C("two segments of wo: rows of head 2g + (b&1), 64 columns -> slots 7, 8")
    A(f"""L_wo:
    {"s_branch L_nowo" if x_stop == 9 else ""}
    v_lshrrev_b32 v5, 3, v0
    v_and_b32 v6, 7, v0
    v_lshrrev_b32 v7, 4, v0
    v_lshlrev_b32 v7, 1, v7
    v_xor_b32 v6, v6, v7
    v_lshlrev_b32 v6, 4, v6
    v_mul_u32_u24 v5, 896, v5
    v_add_u32 v12, v5, v6
    v_add_u32 v13, {7168 - 1024}, v12
    v_add_u32 v14, {7168 - 1024}, v13
    v_add_u32 v15, {7168 - 1024}, v14
    s_mov_b32 s36, s{pWO[0]}
    s_mov_b32 s37, s{pWO[1]}
    s_mov_b32 s38, {4096 * 896}
    s_lshl_b32 {sT0}, {sG}, 1
    s_and_b32 {sT1}, {sB}, 1
    s_add_u32 {sT0}, {sT0}, {sT1}
    s_mul_i32 {sBASE}, {sT0}, {256 * 896}
    s_lshl_b32 {sT1}, {sS}, 7
    s_add_u32 {sBASE}, {sBASE}, {sT1}""")
    T0 = 16 * (16 + LB)
    done = (T0 - (DV + 3) // 4 * 4) // 16
    for u in range(32):
        if u == 0 and efree and not x_nofree:
            wait_lds(F_FREE + 4 * 9, 8)
        elif u % 16 == 0 and not x_nofree and not efree:
            wait_lds(F_FREE + 4 * (8 + u // 16), 8)
        if u % 4 == 0:
            A(f"s_mov_b32 m0, {7 * SLOT + 1024 * u}")
            A(f"s_add_u32 {sBASE}, {sBASE}, {4 * 7168}" if u else "s_nop 0")
        if u + DV >= DW:
            A(f"s_waitcnt vmcnt({DW - 1})")
            k = (T0 + u - DW + 1) // 16
            if k > done:
                landed(k)
                done = k
        A(f"buffer_load_dwordx4 v{12 + u % 4}, {SRD}, {sBASE} offen offset:{1024 * (u % 4)} {ldo} lds")
    stamp(4)
    assert done < 16 + LB
    for k in range(done + 1, 18 + LB + 1):
        if k != 17 + LB:
            A(f"s_waitcnt vmcnt({16 * (18 + LB - k)})")
            if (vbar and k == 16 + LB) or (wbar and k == 18 + LB):
                A("s_barrier")
            else:
                landed(k)
            if obar and k == 16 + LB:
                if olate:
                    A(f"s_waitcnt vmcnt({olate})")
                A("s_barrier")
    A("L_ldone:")
    if x_dbg:
        A(f"""s_memrealtime s[68:69]
        s_cmp_ge_u32 {sW}, 8
        s_cbranch_scc1 L_nodbg
        s_getreg_b32 s70, hwreg(HW_REG_XCC_ID, 0, 4)
        s_waitcnt lgkmcnt(0)
        s_lshl_b32 s64, s64, 4
        s_or_b32 s64, s64, s70
        s_lshl_b32 s71, {sW}, 2
        v_mov_b32 v5, s71
        v_mov_b32 v6, s64
        v_mov_b32 v7, s68
        s_mov_b64 exec, 1
        global_store_dword v5, v6, s[66:67]
        global_store_dword v5, v7, s[66:67] offset:32
        L_nodbg:""")
    stamp(5)
    A("s_waitcnt lgkmcnt(0)")
    if diag:
        A(f"s_sub_u32 {sT0}, 0x80000, {sBUD}\ns_mul_i32 {sT0}, {sT0}, 100\ns_add_u32 s76, s64, {sT0}\ns_addc_u32 s77, s65, 0")
    stamps_out(0, 7)
    if lst:
        A('s_mov_b32 s64, s78\ns_mov_b32 s65, s79\ns_mov_b32 s66, s80\ns_mov_b32 s67, s81')
        stamps_out(40, 2)
    A("s_endpgm")

    C("---------------- compute waves")
    sCW = sWV
    A(f"""L_compute:
    {"s_endpgm" if x_stop == 9 else ""}
    {rest if tight else ""}
    s_sub_u32 {sCW}, {sWV}, 1
    s_mov_b32 {sBUD}, 0x80000
    v_mov_b32 {vM}, {MISC}
    s_mov_b32 s39, 0x20000
    v_and_b32 v0, 63, v0
    v_lshlrev_b32 {vL16}, 4, v0
    s_mul_i32 {sT0}, {sCW}, 896
    v_add_u32 v5, {sT0}, {vL16}
    v_mov_b32 v16, 0
    v_mov_b32 v17, 0
    v_mov_b32 v18, 0
    v_mov_b32 v19, 0
    v_lshrrev_b32 {vG}, 4, v0
    v_and_b32 {vN}, 15, v0
    v_mov_b32 {vONE}, 1
    v_mov_b32 {vFF}, 0xff
    v_mov_b32 v14, 0
    s_mov_b32 {sMASK}, 0xffff0000
    s_lshl_b32 {sIDX}, {sBG}, 3
    s_add_u32 {sIDX}, {sIDX}, {sS}
    s_lshl_b32 {sT0}, {sB}, 1
    s_xor_b32 {sFIN}, {sT0}, {sG}
    s_mov_b32 s38, 0x400000
    s_lshl_b32 {sT0}, {sG}, 2
    s_add_u32 {sT0}, {sT0}, {sB}
    s_lshl_b32 {sT0}, {sT0}, 3
    s_add_u32 {sT0}, {sT0}, {sS}
    s_waitcnt lgkmcnt(0)
    s_mov_b32 {sWT}, {sT0}
    s_mov_b32 {sTBLN}, {WS_TBLN}
    s_lshl_b32 s47, {sBG}, 13
    s_lshl_b32 {sT0}, {sCW}, 10
    s_or_b32 s47, s47, {sT0}
    s_or_b32 s47, s47, {WS_Q}
    s_cmp_ge_u32 {sCW}, 4
    s_mov_b32 s36, s28
    s_mov_b32 s37, s29
    s_load_dword {sTAG}, {pWS}, {WS_E}
    s_cbranch_scc1 L_nox
    s_mov_b32 exec_hi, 0x00ffffff
    global_load_dwordx4 v[16:19], v5, {pX}
    s_mov_b32 exec_hi, -1
    L_nox:
    s_cmp_lg_u32 {sCW}, 0
    s_cbranch_scc1 L_notq0
    v_mov_b32 v7, 0
    global_load_ushort v167, v7, {pB2}
    s_getreg_b32 {sXCC}, hwreg(HW_REG_XCC_ID, 0, 4)
    s_lshl_b32 s59, {sG}, 7
    s_add_u32 s59, s59, {WS_IDS}
    s_lshl_b32 {sT0}, {sI}, 2
    s_add_u32 {sT0}, {sT0}, s59
    s_lshl_b32 {sXCC}, {sXCC}, 24
    s_waitcnt lgkmcnt(0)
    s_add_u32 {sTAG}, {sTAG}, {hex(TAGINC)}
    s_lshr_b32 {sTAG1}, {sTAG}, 8
    s_and_b32 {sT1}, {sTAG}, 0xffffff
    s_or_b32 {sXCC}, {sXCC}, {sT1}
    v_mov_b32 v8, {sXCC}
    s_mov_b64 exec, 1
    buffer_store_dword v8, {vL16}, {SRD}, {sT0} offen
    s_mov_b64 exec, -1
    s_waitcnt vmcnt(2)
    s_branch L_ln
    L_notq0:
    s_lshl_b32 {sT0}, {sCW}, 9
    s_sub_u32 {sT0}, {sT0}, 512
    v_lshl_add_u32 v5, v0, 3, {sT0}""")
    load_w()
    if touch:
        C("wave 6: first touch of the pages that are streamed later (address translation, speed only)")
        A(f"""s_cmp_lg_u32 {sCW}, 6
        s_cbranch_scc1 L_notouch
        s_lshl_b32 {sT0}, {sBG}, 22
        s_lshl_b32 {sT1}, {sS}, 17
        s_add_u32 {sT0}, {sT0}, {sT1}
        s_add_u32 {sT0}, {sT0}, 0x300000
        v_mov_b32 v8, {sT0}
        s_mul_i32 {sT0}, {sG}, {512 * 896}
        v_mov_b32 v9, {sT0}
        s_mov_b64 exec, 1
        global_load_dword v20, v8, s[8:9] nt""")
        if touch > 1:
            A(f"""global_load_dword v21, v9, s[12:13] nt
            v_add_u32 v9, {512 * 896 - 4}, v9
            global_load_dword v22, v9, s[12:13] nt""")
        if touch > 2:
            A(f"v_mov_b32 v9, 0\nglobal_load_dword v23, v9, {pOUT} nt")
        A("s_mov_b64 exec, -1\nL_notouch:")
    if pf:
        C("waves 6, 7: the last two KiB of the code")
        A(f"""s_cmp_lt_u32 {sCW}, 6
        s_cbranch_scc1 L_nopf
        s_getpc_b64 s[40:41]
        L_pfpc:
        s_lshl_b32 {sT2}, {sCW}, 10
        s_add_u32 {sT2}, {sT2}, L_pfend-L_pfpc-8192
        s_add_u32 s40, s40, {sT2}
        s_addc_u32 s41, s41, 0
        v_mov_b32 v9, s41
        v_add_co_u32 v8, vcc, s40, {vL16}
        s_nop 1
        v_addc_co_u32 v9, vcc, 0, v9, vcc
        global_load_dwordx4 v[20:23], v[8:9], off
        L_nopf:""")
    A(f"""s_waitcnt lgkmcnt(0)
    s_add_u32 {sTAG}, {sTAG}, {hex(TAGINC)}
    s_lshr_b32 {sTAG1}, {sTAG}, 8
    s_cmp_ge_u32 {sCW}, 4
    s_cbranch_scc1 L_table
    s_waitcnt vmcnt(3)""")
    C("LayerNorm of row cw of x (waves 0..3), bf16 rounding as the reference")
    A("L_ln:\ns_setprio 2")
    for k in range(4):
        unpack2(f"v{20 + 2 * k}", f"v{21 + 2 * k}", f"v{16 + k}")
    A("""v_pk_add_f32 v[28:29], v[20:21], v[22:23]
    v_pk_add_f32 v[30:31], v[24:25], v[26:27]
    v_pk_add_f32 v[28:29], v[28:29], v[30:31]
    v_add_f32 v28, v28, v29""")
    wave_sums(["v28"], [sT0])
    A(f"v_mov_b32 v32, {hex(fbits(1.0 / 448.0))}\nv_mul_f32 v30, {sT0}, v32\nv_mov_b32 v28, 0\ns_mov_b32 exec_hi, 0x00ffffff")
    for k in range(8):
        A(f"v_sub_f32 v29, v{20 + k}, v30\nv_fmac_f32 v28, v29, v29")
    A("s_mov_b32 exec_hi, -1")
    wave_sums(["v28"], [sT1])
    ln_scale("v30", "v31", sT0, sT1, "v32", False)
    normalize([20, 22, 24, 26], 30, 31, False)
    for k in range(4):
        A(f"v_cvt_pk_bf16_f32 v{16 + k}, v{20 + 2 * k}, v{21 + 2 * k}")
    A(f"""s_mul_i32 {sT0}, {sCW}, 960
    v_add3_u32 v5, {vL16}, {sT0}, {vM}
    s_mov_b32 exec_hi, 0x00ffffff
    ds_write_b128 v5, v[16:19] offset:{LN}
    s_mov_b32 exec_hi, -1""")
    signal(F_LNCNT)
    A(f"s_cmp_lg_u32 {sCW}, 0\ns_cbranch_scc1 L_table")
    C("partial q projection: 64 columns x 4 batches over 112 rows")
    stamp(1)
    A(f"""v_and_b32 v7, 3, {vN}
    v_lshlrev_b32 v12, 16, v7
    v_mul_u32_u24 v7, 960, v7
    v_lshl_add_u32 v7, {vG}, 3, v7
    s_mul_i32 {sT0}, {sB}, 224
    v_add3_u32 v7, v7, {sT0}, {vM}
    v_bfe_u32 v8, v0, 3, 2
    v_lshlrev_b32 v8, 5, v8
    v_lshrrev_b32 v9, 2, v0
    v_lshl_or_b32 v8, v9, 7, v8
    v_and_b32 v9, 3, v0
    v_lshl_or_b32 v8, v9, 3, v8
    v_add_u32 v8, {8 * SLOT}, v8
    v_xor_b32 v9, 32, v8
    v_xor_b32 v10, 64, v8
    v_xor_b32 v11, 0x60, v8
    v_lshrrev_b32 v13, 2, {vN}
    v_cmp_eq_u32 s[52:53], 1, v13
    v_cmp_eq_u32 s[54:55], 2, v13
    v_cmp_eq_u32 s[56:57], 3, v13
    v_lshl_or_b32 v12, v13, 6, v12
    v_lshl_or_b32 v12, {vG}, 4, v12
    v_mov_b32 v13, 8
    s_lshl_b32 {sT0}, {sG}, 3
    s_add_u32 {sT0}, {sT0}, {sS}
    s_lshl_b32 {sT0}, {sT0}, 10
    s_lshl_b32 {sT1}, {sB}, 8
    s_add_u32 {sT0}, {sT0}, {sT1}
    s_add_u32 {sT0}, {sT0}, {WS_Q}""")
    wait_lds(F_LNCNT, 4)
    for j in range(3):
        A(f"ds_read2_b64 v[{16 + 4 * j}:{19 + 4 * j}], v7 offset0:{8 * j} offset1:{8 * j + 4}")
    A("ds_read_b64 v[28:29], v7 offset:192")
    wait_lds(F_LANDED, 1)
    for j in range(4):
        for t in range(4):
            r = 48 + 16 * j + 4 * t
            A(f"ds_read_b64_tr_b16 v[{r}:{r + 1}], v{8 + t} offset:{4096 * j}")
            if j < 3:
                A(f"ds_read_b64_tr_b16 v[{r + 2}:{r + 3}], v{8 + t} offset:{4096 * j + 2048}")
    signal(F_FREE, "v13")
    A("s_waitcnt lgkmcnt(0)")
    for j in range(4):
        for t in range(4):
            r, d = 48 + 16 * j + 4 * t, 112 + 4 * t
            if j < 3:
                A(f"v_mfma_f32_16x16x32_bf16 v[{d}:{d + 3}], v[{r}:{r + 3}], v[{16 + 4 * j}:{19 + 4 * j}], {'0' if j == 0 else f'v[{d}:{d + 3}]'}")
            else:
                A(f"v_mfma_f32_16x16x16_bf16 v[{d}:{d + 3}], v[{r}:{r + 1}], v[28:29], v[{d}:{d + 3}]")
    A("s_nop 7")
    for t in range(1, 4):
        for r in range(4):
            A(f"v_cndmask_b32 v{112 + r}, v{112 + r}, v{112 + 4 * t + r}, s[{50 + 2 * t}:{51 + 2 * t}]")
    put_tag(range(112, 116))
    A(f"""buffer_store_dwordx4 v[112:115], v12, {SRD}, {sT0} offen {qst}
    s_add_u32 s58, {sT0}, {WS_FAR}
    v_mov_b32 v14, v12""")
    stamp(2)
    if x_stop == 1:
        A("s_endpgm")
    A("s_branch L_qk")
    C("waves 1..7: this workgroup's entries of the scalar map t -> MLP(t), t running over bf16 values")
    A("L_table:\ns_setprio 0\ns_waitcnt vmcnt(0)")
    if x_stop == 1:
        A("s_endpgm")
    unpack_w()
    A(f"""s_and_b32 {sT0}, {sWT}, 127
    s_mul_i32 {sT0}, {sT0}, {NE}
    s_add_u32 {sT0}, {sT0}, {E0 << 7}
    s_lshr_b32 {sT1}, {sWT}, 7
    s_lshl_b32 {sT1}, {sT1}, 15
    s_or_b32 {sT0}, {sT0}, {sT1}
    s_lshl_b32 s50, {sT0}, 16
    s_mov_b32 s54, 0
    s_lshl_b32 {sT0}, {sCW}, 7
    v_lshl_add_u32 v8, {vG}, 2, {vM}
    v_add_u32 v8, {sT0}, v8
    L_tloop:
    s_cmp_lg_u32 s54, {(x_tl or NE) - 4 * qit}
    s_cbranch_scc1 L_tnoq
    buffer_load_dwordx4 v[20:23], {vL16}, {SRD}, s47 offen sc1
    L_tnoq:
    s_add_u32 s51, s50, 0x10000
    s_add_u32 s52, s50, 0x20000
    s_add_u32 s53, s50, 0x30000""")
    gelu(["s50", "s51"], ["v80", "v81"], True)
    gelu(["s52", "s53"], ["v82", "v83"], True)
    swap_reduce4(("v80", "v81", "v82", "v83"))
    A("s_add_u32 s50, s50, 0x40000\ns_add_u32 s54, s54, 4")
    for m in DPP[:4]:
        A(f"v_add_f32_dpp v80, v80, v80 {m} bank_mask:0xf\ns_nop 1")
    A(f"""s_cmp_lt_u32 s54, {x_tl or NE}
    ds_write_b32 v8, v80 offset:{TP - 128}
    v_add_u32 v8, 16, v8
    s_cbranch_scc1 L_tloop""")
    signal(F_TCNT)
    stamp(1)
    C("key slot cw -> registers, slot is released at once")
    A(f"""L_qk:
    s_setprio 1
    v_and_b32 v8, 7, {vN}
    v_lshlrev_b32 v8, 1, v8
    v_xor_b32 v8, v8, {vG}
    v_lshlrev_b32 v8, 4, v8
    v_lshl_or_b32 v8, {vN}, 9, v8
    s_lshl_b32 {sT0}, {sCW}, 14
    v_add_u32 v8, {sT0}, v8
    v_xor_b32 v9, 64, v8
    v_xor_b32 v10, 0x80, v8
    v_xor_b32 v11, 0xc0, v8
    s_lshl_b32 {sT0}, {sCW}, 2
    v_add_u32 v12, {sT0}, {vM}
    v_mov_b32 v13, 8
    s_add_u32 {sT4}, {sCW}, {1 + LB}""")
    wait_lds(F_LANDED, sT4)
    for j in range(8):
        for t in range(2):
            r = 48 + 8 * j + 4 * t
            A(f"ds_read_b128 v[{r}:{r + 3}], v{8 + (j & 3)} offset:{256 * (j >> 2) + 8192 * t}")
    signal(F_FREE + 4, "v13", "v12")
    stamp(3)
    if x_stop == 2:
        A("s_endpgm")
    C("64 columns of q: sum of the four row-quarter partials")
    A(f"""s_lshr_b32 {sT1}, {sCW}, 2
    s_mul_i32 {sT1}, {sT1}, {HP}
    s_and_b32 {sT2}, {sCW}, 3
    s_lshl_b32 {sT2}, {sT2}, 7
    s_add_u32 {sT1}, {sT1}, {sT2}
    v_lshlrev_b32 v12, 1, {vG}
    v_lshl_or_b32 v12, {vN}, 3, v12
    v_add3_u32 v12, v12, {sT1}, {vM}
    s_cmp_lg_u32 {sCW}, 0
    s_cbranch_scc1 L_qchk""")
    wait_lds(F_LANDED, QT + LB)
    A(f"buffer_load_dwordx4 v[20:23], {vL16}, {SRD}, s47 offen sc1")
    C("wave 0: do the 32 workgroups of this kv head share this compute die (one L2)?  Not seen yet counts as no")
    A(f"""v_and_b32 v16, 31, v0
    v_lshlrev_b32 v16, 2, v16
    buffer_load_dword v17, v16, {SRD}, s59 offen sc1
    s_waitcnt vmcnt(0)
    v_cmp_ne_u32 vcc, {sXCC}, v17
    v_mov_b32 v17, 1
    s_cmp_lg_u64 vcc, 0
    s_cbranch_scc1 L_idfar
    {"s_branch L_idfar" if x_far else ""}
    L_idloc:
    ds_write_b32 {vM}, v17 offset:{F_LOC}
    L_qchk:
    s_waitcnt vmcnt(0)""")
    cold.append(f"""L_idfar:
    buffer_store_dwordx4 v[112:115], v14, {SRD}, s58 offen sc1
    v_mov_b32 v17, {WS_FAR + 1}
    s_branch L_idloc""")
    tags_ok([20, 21, 22, 23], "L_qok")
    wait_lds(F_LOC, 1, sleep=qback)
    A(f"""s_sub_u32 {sT5}, {sT5}, 1
    s_xor_b32 s47, s47, {sT5}
    s_sleep {qback}
    buffer_load_dwordx4 v[20:23], {vL16}, {SRD}, s47 offen sc1""")
    spin_tail("L_qchk", 0)
    A("L_qok:")
    strip_tag(range(20, 24))
    swap_reduce4(("v20", "v21", "v22", "v23"))
    A(f"""v_cvt_pk_bf16_f32 v20, v20, v20
    ds_write_b16 v12, v20 offset:{QL}""")
    signal(F_QCNT)
    A(f"""v_and_b32 v7, 1, {vN}
    v_lshl_add_u32 v8, v7, 2, {vM}
    v_mul_u32_u24 v7, {HP}, v7
    v_lshl_add_u32 v7, {vG}, 4, v7
    v_add_u32 v7, v7, {vM}
    s_lshl_b32 {sT0}, {sCW}, 6
    v_add_u32 v9, {sT0}, v7
    s_mov_b32 s46, {hex(fbits(CEXP))}""")
    wait_lds(F_QCNT, 8)
    stamp(4)
    A(f"ds_read_b32 v5, {vM} offset:{F_LOC}")
    for j in range(8):
        A(f"ds_read_b128 v[{16 + 4 * j}:{19 + 4 * j}], v7 offset:{QL + 64 * j}")
    for j in range(8):
        A(f"s_waitcnt lgkmcnt({7 - j})")
        if j == 0:
            A(f"v_readfirstlane_b32 {sFAR}, v5")
        for t in range(2):
            r = 48 + 8 * j + 4 * t
            d = 112 + 4 * t
            A(f"v_mfma_f32_16x16x32_bf16 v[{d}:{d + 3}], v[{r}:{r + 3}], v[{16 + 4 * j}:{19 + 4 * j}], {'0' if j == 0 else f'v[{d}:{d + 3}]'}")
    A(f"s_sub_u32 {sFAR}, {sFAR}, 1\ns_nop 6")
    for k in range(8):
        rne1(f"v{112 + k}", f"v{112 + k}")
    A(f"""v_max3_f32 v120, v112, v113, v114
    v_max3_f32 v121, v115, v116, v117
    v_max3_f32 v120, v120, v118, v119
    v_max_f32 v120, v120, v121
    s_mov_b32 exec_lo, 0x00030003
    s_mov_b32 exec_hi, 0x00030003
    ds_max_f32 v8, v120 offset:{F_MX}
    s_mov_b64 exec, -1""")
    signal(F_MAXCNT)
    wait_lds(F_MAXCNT, 8)
    A(f"ds_read_b32 v124, v8 offset:{F_MX}\ns_waitcnt lgkmcnt(0)")
    for k in range(8):
        A(f"v_sub_f32 v{112 + k}, v{112 + k}, v124")
    for k in range(8):
        A(f"v_mul_f32 v{112 + k}, s46, v{112 + k}")
    for k in range(8):
        A(f"v_exp_f32 v{112 + k}, v{112 + k}")
    A("s_nop 0")
    for k in range(4):
        A(f"v_cvt_pk_bf16_f32 v{120 + k}, v{112 + 2 * k}, v{113 + 2 * k}")
    A(f"""s_mov_b32 exec_lo, 0x00030003
    s_mov_b32 exec_hi, 0x00030003
    ds_write_b128 v9, v[120:123] offset:{PL}
    s_mov_b64 exec, -1""")
    signal(F_PCNT)
    C("addresses of the PV loop and of the stages behind it")
    A(f"""v_mov_b32 v43, v7
    v_bfe_u32 v8, v0, 2, 3
    s_lshl_b32 {sT0}, {sCW}, 1
    v_xor_b32 v8, {sT0}, v8
    v_lshlrev_b32 v8, 5, v8
    v_lshrrev_b32 v9, 2, v0
    v_lshl_or_b32 v8, v9, 9, v8
    v_and_b32 v10, 3, v0
    v_lshl_or_b32 v44, v10, 3, v8
    v_xor_b32 v45, 32, v44""")
    for r in range(112, 120):
        A(f"v_mov_b32 v{r}, 0")
    A(f"""v_and_b32 v28, 1, {vN}
    v_lshlrev_b32 v28, 10, v28
    v_bfe_u32 v29, {vN}, 1, 1
    v_lshl_or_b32 v28, v29, 6, v28
    v_lshl_or_b32 v160, {vG}, 4, v28
    v_cmp_ne_u32 s[56:57], 0, v29
    s_lshl_b32 s51, {sIDX}, 11
    s_lshl_b32 {sT0}, {sCW}, 7
    s_add_u32 s51, s51, {sT0}
    s_add_u32 s51, s51, {WS_OP}
    v_lshlrev_b32 v161, 6, {vG}
    v_lshlrev_b32 v28, 4, {vN}
    v_lshl_or_b32 v162, {vG}, 11, v28
    s_and_b32 {sT2}, {sBG}, 0x17
    s_lshr_b32 {sT1}, {sCW}, 2
    s_lshl_b32 {sT1}, {sT1}, 3
    s_add_u32 {sT2}, {sT2}, {sT1}
    s_and_b32 {sT3}, {sB}, 1
    s_lshl_b32 s52, {sT2}, 14
    s_lshl_b32 {sT1}, {sT3}, 10
    s_add_u32 s52, s52, {sT1}
    s_and_b32 {sT1}, {sCW}, 3
    s_lshl_b32 {sT1}, {sT1}, 8
    s_add_u32 s52, s52, {sT1}
    s_add_u32 s52, s52, {WS_OP}
    s_add_u32 s59, s52, {4 << 11}
    v_bfe_u32 v28, v0, 3, 2
    s_and_b32 {sT1}, {sCW}, 3
    v_xor_b32 v28, {sT1}, v28
    v_lshlrev_b32 v28, 5, v28
    v_lshl_or_b32 v28, v9, 7, v28
    v_lshl_or_b32 v163, v10, 3, v28
    v_add_u32 v164, {((8 + wpos) % 9) * SLOT}, v163
    v_lshlrev_b32 v28, 4, v10
    v_bfe_u32 v29, v0, 2, 1
    v_lshl_or_b32 v28, v29, 3, v28
    v_bfe_u32 v29, v0, 3, 1
    v_lshl_or_b32 v28, v29, 6, v28
    v_lshl_or_b32 v28, {vG}, 1, v28
    s_lshr_b32 {sT0}, {sCW}, 2
    s_mul_i32 {sT0}, {sT0}, {HP}
    s_lshl_b32 {sT1}, {sT1}, 7
    s_add_u32 {sT0}, {sT0}, {sT1}
    v_add3_u32 v165, v28, {sT0}, {vM}
    s_lshl_b32 {sT0}, {sCW}, 6
    v_add_u32 v166, {OL - PL}, v7
    v_mul_u32_u24 v14, {16 * 1792}, {vN}
    v_lshl_add_u32 v14, {vG}, 4, v14
    s_and_b32 s53, {sB}, 2
    s_lshl_b32 s53, s53, 3
    s_add_u32 s53, s53, {sG}
    s_lshl_b32 s53, s53, 1
    s_add_u32 s53, s53, {sT3}
    s_mul_i32 s53, s53, 1792
    s_lshl_b32 {sT1}, {sS}, 8
    s_add_u32 s53, s53, {sT1}
    s_add_u32 s53, s53, {sT0}
    s_add_u32 s53, s53, {WS_OUTP + (KC - 1) * 0x20000}
    s_lshl_b32 s54, {sT2}, 9
    s_lshl_b32 {sT1}, {sT3}, 3
    s_add_u32 s54, s54, {sT1}
    s_add_u32 s54, s54, {WS_STATS}
    v_lshl_add_u32 v136, {vN}, 2, {vG}
    v_add_u32 v136, {sT0}, v136
    s_mul_i32 {sT1}, {sB}, 896
    v_lshl_add_u32 v137, v136, 1, {sT1}
    s_and_b32 s55, {sWT}, 0xf8
    s_mul_i32 s55, s55, {NE * 4}
    s_xor_b32 {sT1}, {sS}, 7
    s_or_b32 {sFIN}, {sFIN}, {sT1}""")
    if ppre:
        C("first read of the lines that will hold this workgroup's partial rows (brings them into the L2; speed only)")
        A(f"""s_cmp_lg_u32 {sCW}, 5
        s_cbranch_scc1 L_noppre
        v_lshlrev_b32 v28, 7, v0
        s_lshl_b32 {sT0}, {sIDX}, 11
        s_add_u32 {sT0}, {sT0}, {WS_OP}
        s_mov_b64 exec, 0xffff
        buffer_load_dword v128, v28, {SRD}, {sT0} offen {pprefl}
        s_mov_b64 exec, -1
        L_noppre:""")
    if tpre:
        C("first read of the table lines this workgroup passes on (brings them on chip; speed only)")
        A(f"""s_xor_b32 {sT0}, {sS}, 7
        s_xor_b32 {sT1}, {sCW}, 7
        s_or_b32 {sT0}, {sT0}, {sT1}
        s_cbranch_scc1 L_notpre
        v_lshlrev_b32 v28, 7, v0
        s_add_u32 {sT0}, s55, {WS_TBL}
        s_mov_b64 exec, {(1 << (NE // 4)) - 1}
        buffer_load_dword v128, v28, {SRD}, {sT0} offen sc1
        s_mov_b64 exec, -1
        L_notpre:""")
    if opre == 2:
        C("first read of the lines this workgroup writes in stage 3 (brings them on chip; speed only)")
        A(f"""s_and_b32 {sT0}, {sCW}, 5
        s_cbranch_scc1 L_nopre
        s_cmp_eq_u32 {sS}, 7
        s_cbranch_scc1 L_nopre
        s_mov_b64 exec, 3
        s_mov_b32 {sT0}, s53""")
        for k in range(KC):
            A(f"buffer_load_dword v128, v14, {SRD}, {sT0} offen {oprefl}\ns_sub_u32 {sT0}, {sT0}, 0x20000")
        A("s_mov_b64 exec, -1\nL_nopre:")
    wait_lds(F_PCNT, 8)
    stamp(5)
    if x_stop == 3:
        A("s_endpgm")
    C("wave 0: row sums of the bf16 probabilities (ones x P), publish (max, sum) of both heads")
    A(f"s_cmp_lg_u32 {sCW}, 0\ns_cbranch_scc1 L_nostat")
    for j in range(8):
        A(f"ds_read_b128 v[{48 + 4 * j}:{51 + 4 * j}], v43 offset:{PL + 64 * j}")
    for r in range(16, 20):
        A(f"v_mov_b32 v{r}, 0x3f803f80")
    A(f"""s_lshl_b32 {sT0}, {sIDX}, 6
    s_add_u32 {sT0}, {sT0}, {WS_STATS}
    s_waitcnt lgkmcnt(0)""")
    for j in range(8):
        A(f"v_mfma_f32_16x16x32_bf16 v[20:23], v[16:19], v[{48 + 4 * j}:{51 + 4 * j}], {'0' if j == 0 else 'v[20:23]'}")
    A(f"""v_mov_b32_dpp v126, v124 quad_perm:[1,0,3,2] row_mask:0xf bank_mask:0xf
    s_nop 6
    v_mov_b32 v125, v20
    v_mov_b32_dpp v127, v20 quad_perm:[1,0,3,2] row_mask:0xf bank_mask:0xf""")
    put_tag([125, 127], tag=sTAG1)
    put_tag([124, 126], True, sTAG)
    A("s_mov_b64 exec, 1")
    store_group(f"buffer_store_dwordx4 v[124:127], {vL16}, {SRD}, {{}} offen", sT0)
    C("wave 0: finish and publish the table entries")
    A(f"s_mov_b64 exec, -1\nv_and_b32 v7, 31, v0\nv_lshl_add_u32 v7, v7, 2, {vM}")
    wait_lds(F_TCNT, 7)
    for k in range(7):
        A(f"ds_read_b32 v{16 + k}, v7 offset:{TP + 128 * k}")
    A(f"""s_mul_i32 {sT0}, {sWT}, {NE * 4}
    s_add_u32 {sT0}, {sT0}, {WS_TBLN}
    v_lshlrev_b32 v8, 2, v0
    v_lshlrev_b32 v46, 16, v167
    s_waitcnt lgkmcnt(0)
    v_add_f32 v16, v16, v17
    v_add_f32 v18, v18, v19
    v_add_f32 v20, v20, v21
    v_add_f32 v16, v16, v18
    v_add_f32 v20, v20, v22
    v_add_f32 v16, v16, v20""")
    rne1("v16", "v16")
    A("v_add_f32 v16, v16, v46")
    rne1("v16", "v16")
    A(f"v_mov_b32 v17, {sTAG}\nv_bfi_b32 v16, {sMASK}, v16, v17")
    A(f"s_mov_b64 exec, {(1 << NE) - 1}")
    store_group(f"buffer_store_dword v16, v8, {SRD}, {{}} offen", sT0)
    A("s_mov_b64 exec, -1\nL_nostat:")
    sJ, sVS, sJL = "s48", "s49", "s50"
    ntl = (NE * 128 + 1023) // 1024
    lastm = (1 << ((NE * 128 - 1024 * (ntl - 1)) // 16)) - 1

    def table_loads():
        for k in range(ntl):
            if k == ntl - 1:
                A(f"s_mov_b32 exec_lo, {hex(lastm & 0xffffffff)}\ns_mov_b32 exec_hi, {hex(lastm >> 32)}")
            A(f"buffer_load_dwordx4 v[{140 + 4 * k}:{143 + 4 * k}], {vL16}, {SRD}, s55 offen offset:{1024 * k} sc1")
        A("s_mov_b64 exec, -1")

    A(f"""s_mov_b32 {sJ}, 0
    s_mov_b32 {sVS}, {8 * SLOT}
    s_mov_b32 {sJL}, {jmid}
    v_add_u32 v12, {F_FREE + 36}, {vM}
    s_mov_b32 {sT4}, {9 + LB}
    s_cmp_eq_u32 {sS}, 7
    s_cselect_b32 s58, 0, 2
    L_pv:
    ds_read_b128 v[16:19], v43 offset:{PL}
    v_add_u32 v10, {sVS}, v44
    v_add_u32 v11, {sVS}, v45""")
    if vbar:
        C("the last slot is announced by a barrier with the loader")
        A(f"s_cmp_lg_u32 {sJ}, 7\ns_waitcnt lgkmcnt(0)\ns_cbranch_scc1 L_pvwait\ns_barrier\nL_pvgo:")
        pvwait = (f"""L_pvwait:
        ds_read_b32 v5, {vM} offset:{F_LANDED}
        s_waitcnt lgkmcnt(0)
        v_readfirstlane_b32 {sT5}, v5
        s_cmp_ge_u32 {sT5}, {sT4}
        s_cbranch_scc1 L_pvgo
        s_sleep 1
        s_sub_u32 {sBUD}, {sBUD}, 1
        s_cbranch_scc0 L_pvwait
        s_branch L_end""")
    else:
        wait_lds(F_LANDED, sT4, sleep=pvslp)
    A(f"""ds_read_b64_tr_b16 v[20:21], v10
    ds_read_b64_tr_b16 v[22:23], v10 offset:8192
    ds_read_b64_tr_b16 v[24:25], v11
    ds_read_b64_tr_b16 v[26:27], v11 offset:8192""")
    signal(0, vONE, "v12")
    A(f"""v_add_u32 v43, 64, v43
    s_add_u32 {sJ}, {sJ}, 1""")
    if wpos < 8:
        A(f"""s_cmp_eq_u32 {sJ}, {wpos}
        s_cselect_b32 {sT0}, s58, 0
        s_add_u32 {sT0}, {sT0}, 1
        s_add_u32 {sT4}, {sT4}, {sT0}
        s_lshl_b32 {sT1}, {sT0}, 2
        v_add_u32 v12, {sT1}, v12
        s_lshl_b32 {sT1}, {sT0}, 14
        s_add_u32 {sVS}, {sVS}, {sT1}
        s_sub_u32 {sT1}, {sVS}, {9 * SLOT}
        s_cselect_b32 {sVS}, {sVS}, {sT1}""")
    else:
        A(f"""v_add_u32 v12, 4, v12
        s_add_u32 {sT4}, {sT4}, 1
        s_add_u32 {sVS}, {sVS}, {SLOT}
        s_cmp_eq_u32 {sVS}, {9 * SLOT}
        s_cselect_b32 {sVS}, 0, {sVS}""")
    A(f"""    s_cmp_lt_u32 {sJ}, {sJL}
    s_waitcnt lgkmcnt(3)
    v_mfma_f32_16x16x32_bf16 v[112:115], v[20:23], v[16:19], v[112:115]
    s_waitcnt lgkmcnt(1)
    v_mfma_f32_16x16x32_bf16 v[116:119], v[24:27], v[16:19], v[116:119]
    s_cbranch_scc1 L_pv
    s_cmp_eq_u32 {sJ}, 8
    s_cbranch_scc1 L_pv_done""")
    C("before the last value slots: fetch what the next stage needs besides the partial rows")
    A(f"""s_mov_b32 {sJL}, 8
    s_cmp_eq_u32 {sS}, 7
    s_cbranch_scc1 L_mid7""")
    if opre == 1:
        A(f"""s_cmp_ge_u32 {sCW}, 4
        s_cbranch_scc1 L_nopre
        s_mov_b32 exec_lo, 0x00030003
        s_mov_b32 exec_hi, 0
        s_mov_b32 {sT0}, s53""")
        for k in range(KC):
            A(f"buffer_load_dword v128, v14, {SRD}, {sT0} offen {oprefl}\ns_sub_u32 {sT0}, {sT0}, 0x20000")
        A("s_mov_b64 exec, -1\nL_nopre:")
    A(f"""    buffer_load_dwordx2 v[32:33], v161, {SRD}, s54 offen sc1
    buffer_load_dwordx2 v[34:35], v161, {SRD}, s54 offen offset:256 sc1""")
    A(f"""s_branch L_pv
    L_mid7:
    s_cmp_lg_u32 {sCW}, {7 if t7 else 0}
    s_cbranch_scc1 L_mid8
    v_mov_b32 v32, {sTAG}
    v_mov_b32 v33, {sTAG}
    v_mov_b32 v34, {sTAG}
    v_mov_b32 v35, {sTAG}
    s_add_u32 s54, s55, {WS_TBLN}
    s_mov_b32 exec_hi, {hex((1 << (2 * NE - 32)) - 1)}
    buffer_load_dwordx4 v[32:35], {vL16}, {SRD}, s54 offen sc1
    s_mov_b32 exec_hi, -1
    L_mid8:
    s_cmp_lg_u32 {sFIN}, 0
    s_cbranch_scc1 L_pv
    s_cmp_eq_u32 {sCW}, 7
    s_cbranch_scc1 L_pv
    global_load_ushort v138, v137, {pX}
    s_branch L_pv""")
    if vbar:
        A(pvwait)
    A("L_pv_done:")
    stamp(7)
    if x_stop == 4:
        A("s_endpgm")
    C("publish the partial output rows")
    A(f"""s_nop 4
    v_cndmask_b32 v112, v112, v116, s[56:57]
    v_cndmask_b32 v113, v113, v117, s[56:57]
    v_cndmask_b32 v114, v114, v118, s[56:57]
    v_cndmask_b32 v115, v115, v119, s[56:57]""")
    put_tag(range(112, 116), True)
    A(f"""s_mov_b32 exec_lo, 0x000f000f
    s_mov_b32 exec_hi, 0x000f000f
""")
    store_group(f"buffer_store_dwordx4 v[112:115], v160, {SRD}, {{}} offen", "s51")
    opoll = f"""buffer_load_dwordx4 v[24:27], v162, {SRD}, s52 offen sc1
    buffer_load_dwordx4 v[28:31], v162, {SRD}, s59 offen sc1"""
    A(f"""s_mov_b64 exec, -1
    s_cmp_eq_u32 {sS}, 7
    s_cbranch_scc1 L_last""")
    if not olate:
        if obar:
            C("all partial rows of this workgroup are on their way before the first look at the group's rows")
            A("s_barrier")
        A(opoll)
    A(f"s_cmp_lg_u32 {sFAR}, 0\ns_cbranch_scc1 L_spoll0\ns_waitcnt vmcnt({1 if olate else 3})\nL_spoll:")
    cold.append("L_spoll0:\ns_waitcnt vmcnt(0)\ns_branch L_spoll")
    tags_ok([32, 34, 33, 35], "L_sok", tags=[sTAG, sTAG1])
    A(f"""s_xor_b32 s54, s54, {sFAR}
    buffer_load_dwordx2 v[32:33], v161, {SRD}, s54 offen sc1
    buffer_load_dwordx2 v[34:35], v161, {SRD}, s54 offen offset:256 sc1
    s_waitcnt vmcnt(0)""")
    spin_tail("L_spoll", 0)
    A(f"""L_oagain:
    {"s_mov_b64 exec, vcc" if omask else ""}
    s_xor_b32 s52, s52, {sFAR}
    s_xor_b32 s59, s59, {sFAR}""")
    A(opoll)
    spin_tail("L_opoll", 0)
    A("L_sok:")
    C("weights of the splits row and row+4")
    A(f"""v_and_b32 v32, {sMASK}, v32
    v_and_b32 v34, {sMASK}, v34""")
    strip_tag([33, 35])

    def rowred(op, d, t):
        for sw in ("v_permlane16_swap_b32", "v_permlane32_swap_b32"):
            A(f"v_mov_b32 {t}, {d}\ns_nop 1\n{sw} {d}, {t}\n{op} {d}, {d}, {t}")

    A("v_max_f32 v36, v32, v34")
    rowred("v_max_f32", "v36", "v37")
    A("""v_sub_f32 v32, v32, v36
    v_sub_f32 v34, v34, v36
    v_mul_f32 v32, s46, v32
    v_mul_f32 v34, s46, v34
    v_exp_f32 v32, v32
    v_exp_f32 v34, v34
    s_nop 0
    v_mul_f32 v36, v33, v32
    v_fmac_f32 v36, v35, v34""")
    rowred("v_add_f32", "v36", "v37")
    A("""v_rcp_f32 v36, v36
    s_nop 0
    v_mul_f32 v32, v32, v36
    v_mul_f32 v34, v34, v36""")
    if olate:
        C("first look at the group's rows: own rows are on their way, wo is about to land (barrier with the loader)")
        A("s_barrier")
        A(opoll)
    if wbar:
        C("wo has landed (barrier with the loader)")
        A(f"s_cmp_ge_u32 {sCW}, 4\ns_barrier\ns_cbranch_scc1 L_opoll")
    else:
        A(f"s_cmp_ge_u32 {sCW}, 4\ns_cbranch_scc1 L_opoll")
        wait_lds(F_LANDED, 10 + wpos + LB, sleep=pvslp)
    for j in range(8):
        for u in range(2):
            part = j >> 2
            sl0, sl = (8 + wpos) % 9, (8 + wpos + part) % 9
            base, off = ("v164", (sl - sl0) * SLOT) if sl >= sl0 else ("v163", sl * SLOT)
            r = 48 + 4 * j + 2 * u
            A(f"ds_read_b64_tr_b16 v[{r}:{r + 1}], {base} offset:{off + 4096 * (j & 3) + 2048 * u}")
    stamp(8)
    A("L_opoll:\ns_waitcnt vmcnt(0)")

    def o_scale():
        strip_tag(range(28, 32))
        A("""v_pk_mul_f32 v[24:25], v[24:25], v[32:33] op_sel_hi:[1,0]
        v_pk_mul_f32 v[26:27], v[26:27], v[32:33] op_sel_hi:[1,0]
        v_pk_fma_f32 v[24:25], v[28:29], v[34:35], v[24:25] op_sel_hi:[1,0,1]
        v_pk_fma_f32 v[26:27], v[30:31], v[34:35], v[26:27] op_sel_hi:[1,0,1]""")

    tags_ok(list(range(24, 32)), None, retry="L_oagain", between=lambda: strip_tag(range(24, 28)))
    stamp(9)
    if omask:
        A("s_mov_b64 exec, -1")
    o_scale()
    swap_reduce4(("v24", "v25", "v26", "v27"))
    A(f"""v_cvt_pk_bf16_f32 v24, v24, v24
    ds_write_b16 v165, v24 offset:{OL}
    s_cmp_ge_u32 {sCW}, 4
    s_waitcnt lgkmcnt(0)
    s_barrier
    s_cbranch_scc1 {"L_wb" if wb else "L_exit"}""")
    if wb:
        cold.append(f"""L_wb:
        s_or_b32 {sT0}, {sB}, {sS}
        s_xor_b32 {sT1}, {sCW}, 7
        s_or_b32 {sT0}, {sT0}, {sT1}
        s_cbranch_scc1 L_exit
        {f"s_sleep {wb}" if wb > 1 else ""}
        buffer_wbl2 sc1
        s_branch L_exit""")
    for j in range(8):
        A(f"ds_read_b128 v[{16 + 4 * j}:{19 + 4 * j}], v166 offset:{PL + 64 * j}")
    for j in range(8):
        A(f"s_waitcnt lgkmcnt({7 - j})\nv_mfma_f32_16x16x32_bf16 v[112:115], v[{48 + 4 * j}:{51 + 4 * j}], v[{16 + 4 * j}:{19 + 4 * j}], {'0' if j == 0 else 'v[112:115]'}")
    A(f"""s_mov_b32 exec_lo, 0x00030003
    s_mov_b32 exec_hi, 0x00030003
    s_nop 5""")
    put_tag(range(112, 116), True)
    for k in range(KC):
        A(f"buffer_store_dwordx4 v[112:115], v14, {SRD}, s53 offen {ost}")
        if k < KC - 1:
            A("s_sub_u32 s53, s53, 0x20000")
    A("s_mov_b64 exec, -1")
    stamp(10)
    A("s_branch L_exit")
    C("workgroups of split 7, one wave: pass the table entries of the 8 splits on to the finishing workgroups")
    A(f"""L_last:
    s_cmp_lg_u32 {sCW}, {7 if t7 else 0}
    s_cbranch_scc1 L_nofwd
    L_fpoll:
    s_waitcnt vmcnt(0)""")
    tags_ok([32, 33, 34, 35], "L_fok", tags=[sTAG] * 2, sel="WORD_0")
    A(f"""s_xor_b32 s54, s54, {sFAR}
    s_mov_b32 exec_hi, {hex((1 << (2 * NE - 32)) - 1)}
    buffer_load_dwordx4 v[32:35], {vL16}, {SRD}, s54 offen sc1
    s_mov_b32 exec_hi, -1""")
    spin_tail("L_fpoll")
    A(f"""L_fok:
    s_add_u32 s54, s55, {WS_TBL}
    s_mov_b32 exec_hi, {hex((1 << (2 * NE - 32)) - 1)}
    {"" if x_nofwd else f"buffer_store_dwordx4 v[32:35], {vL16}, {SRD}, s54 offen sc1"}
    s_mov_b32 exec_hi, -1
    L_nofwd:""")
    if t7:
        assert NE % 8 == 0
        nl = NE // 8
        A(f"""s_cmp_lg_u32 {sFIN}, 0
        s_cbranch_scc1 L_exit
        s_cmp_lg_u32 {sCW}, 7
        s_cbranch_scc1 L_hget0""")
        C("finishing workgroup, wave 7: the whole table to LDS (own kv head's share from the L2 copy when the group is on one die)")
        A(f"""s_cmp_eq_u32 {sFAR}, 0
        s_cselect_b32 s48, {sG}, 8
        v_add_u32 v13, {TBL_LDS}, {vL16}""")
        wait_lds(F_FREE + 36, 8)
        A("s_branch L_tload\nL_tagain:\ns_waitcnt lgkmcnt(0)")
        if tback:
            A(f"s_sleep {tback}")
        A(f"s_sub_u32 {sBUD}, {sBUD}, 1\ns_cbranch_scc1 L_end\nL_tload:")
        for gp in range(8):
            A(f"s_cmp_eq_u32 s48, {gp}\ns_cselect_b32 {sT0}, {sTBLN}, {WS_TBL}\ns_add_u32 {sT0}, {sT0}, {gp * NE * 128}")
            for k in range(nl):
                r = 48 + 4 * (gp * nl + k)
                A(f"buffer_load_dwordx4 v[{r}:{r + 3}], {vL16}, {SRD}, {sT0} offen offset:{1024 * k} sc1")
        A("v_mov_b32 v5, 0")
        for k in range(8 * nl):
            r = 48 + 4 * k
            A(f"""s_waitcnt vmcnt({8 * nl - 1 - k})
            v_bitop3_b32 v7, v{r}, v{r + 1}, {sTAG} bitop3:0x7e
            v_bitop3_b32 v8, v{r + 2}, v{r + 3}, {sTAG} bitop3:0x7e
            ds_write_b128 v13, v[{r}:{r + 3}] offset:{1024 * k}
            v_or3_b32 v5, v5, v7, v8""")
        A(f"""v_cmp_ne_u32_sdwa vcc, v5, 0 src0_sel:WORD_0 src1_sel:DWORD
        s_cmp_lg_u64 vcc, 0
        {"" if x_nofwd else "s_cbranch_scc1 L_tagain"}""")
        A("s_waitcnt lgkmcnt(0)\ns_barrier")
    else:
        C("finishing workgroup of batch b: table to LDS, sum the 16 head partials, residual, LN, LN, table lookup")
        A(f"""s_cmp_lg_u32 {sFIN}, 0
    s_cbranch_scc1 L_exit
    s_xor_b32 {sT0}, {sCW}, {sG}
    s_or_b32 {sT0}, {sT0}, {sFAR}
    s_cselect_b32 s55, {WS_TBL}, {sTBLN}
    s_mul_i32 {sT0}, {sCW}, {NE * 128}
    s_add_u32 s55, s55, {sT0}
    s_add_u32 {sT0}, {sT0}, {TBL_LDS}
    v_add_u32 v13, {sT0}, {vL16}""")
        for r in range(140 + 4 * (ntl - 1), 140 + 4 * ntl):
            A(f"v_mov_b32 v{r}, {sTAG}")
        table_loads()
        A(f"""    s_mul_i32 s48, {sB}, {16 * 1792}
    s_lshl_b32 {sT0}, {sCW}, 8
    s_add_u32 s48, s48, {sT0}
    s_add_u32 s48, s48, {WS_OUTP}
    s_add_u32 s49, s48, {4 * 1792}
    s_add_u32 s50, s48, {8 * 1792}
    s_add_u32 s51, s48, {12 * 1792}
    v_mul_u32_u24 v12, 1792, {vG}
    v_lshl_add_u32 v12, {vN}, 4, v12
    L_tpoll:
    s_waitcnt vmcnt(0)""")
        tags_ok(list(range(140, 140 + 4 * ntl)), "L_tok", tags=[sTAG] * (2 * ntl), sel="WORD_0")
        if x_nofwd:
            A("s_branch L_tok")
        A(f"s_sleep {tback}")
        table_loads()
        spin_tail("L_tpoll", 0)
        A(f"L_tok:\ns_mov_b32 s47, {128 * NE}")
        stamp(6)
        wait_lds(F_FREE + 36, 8)
        for k in range(ntl):
            if k == ntl - 1:
                A(f"s_mov_b32 exec_lo, {hex(lastm & 0xffffffff)}\ns_mov_b32 exec_hi, {hex(lastm >> 32)}")
            A(f"ds_write_b128 v13, v[{140 + 4 * k}:{143 + 4 * k}] offset:{1024 * k}")
        A("s_mov_b64 exec, -1")
        A(f"""s_cmp_eq_u32 {sCW}, 7
    s_cbranch_scc0 L_hget
    s_waitcnt lgkmcnt(0)
    s_barrier""")
    C("every workgroup has read the epoch word (its table entries carry the tag): advance it")
    A(f"""s_cmp_lg_u32 {sB}, 0
    s_cbranch_scc1 L_exit
    v_mov_b32 v5, {sTAG}
    s_mov_b64 exec, 1
    buffer_store_dword v5, {vL16}, {SRD}, 0 offen {efl}
    s_mov_b64 exec, -1
    s_branch L_exit""")
    if t7:
        C("finishing workgroup of batch b, waves 0..6: sum the 16 head partials, residual, LN, LN, table lookup")
        A(f"""L_hget0:
        s_mul_i32 s48, {sB}, {16 * 1792}
        s_lshl_b32 {sT0}, {sCW}, 8
        s_add_u32 s48, s48, {sT0}
        s_add_u32 s48, s48, {WS_OUTP}
        s_add_u32 s49, s48, {4 * 1792}
        s_add_u32 s50, s48, {8 * 1792}
        s_add_u32 s51, s48, {12 * 1792}
        v_mul_u32_u24 v12, 1792, {vG}
        v_lshl_add_u32 v12, {vN}, 4, v12
        s_mov_b32 s47, {128 * NE}
        s_waitcnt vmcnt(0)""")
        stamp(6)
    A(f"""L_hget:
    v_lshl_add_u32 v13, v136, 2, {vM}
    v_lshl_add_u32 v14, v0, 5, {vM}
""")
    if olin:
        A(f"""s_mul_i32 {sT0}, {sCW}, 448
        v_lshl_add_u32 v40, v0, 3, {sT0}
        v_add_u32 v40, v40, {vM}
        s_lshl2_add_u32 {sT1}, {sB}, {sCW}
        s_mul_i32 {sT1}, {sT1}, 224
        v_lshl_add_u32 v41, v0, 2, {sT1}""")
    else:
        A(f"""s_lshl_b32 {sT0}, {sCW}, 3
        v_add_u32 v40, {sT0}, v14
        s_mul_i32 {sT1}, {sB}, 896
        s_lshl_b32 {sT0}, {sCW}, 2
        s_add_u32 {sT1}, {sT1}, {sT0}
        v_add_u32 v41, {sT1}, {vL16}""")
    A(f"""    v_lshlrev_b32 v137, 16, v138
    v_mov_b32 v42, {hex(fbits(1.0 / 448.0))}
    s_mov_b32 s52, {TBL_LDS}
    s_mov_b32 s53, 0x7060302""")
    for r in range(48, 56):
        A(f"v_mov_b32 v{r}, 0")
    assert not dry

    def h_loads(r0):
        for m in range(4):
            A(f"buffer_load_dwordx4 v[{r0 + 4 * m}:{r0 + 3 + 4 * m}], v12, {SRD}, s{48 + m} offen {hld}")

    def h_sum(r):
        strip_tag(range(r + 4, r + 16))
        A(f"""v_pk_add_f32 v[{r}:{r + 1}], v[{r}:{r + 1}], v[{r + 4}:{r + 5}]
        v_pk_add_f32 v[{r + 2}:{r + 3}], v[{r + 2}:{r + 3}], v[{r + 6}:{r + 7}]
        v_pk_add_f32 v[{r + 8}:{r + 9}], v[{r + 8}:{r + 9}], v[{r + 12}:{r + 13}]
        v_pk_add_f32 v[{r + 10}:{r + 11}], v[{r + 10}:{r + 11}], v[{r + 14}:{r + 15}]
        v_pk_add_f32 v[32:33], v[{r}:{r + 1}], v[{r + 8}:{r + 9}]
        v_pk_add_f32 v[34:35], v[{r + 2}:{r + 3}], v[{r + 10}:{r + 11}]""")

    if h2:
        h_loads(96)
        A(f"s_sleep {h2}")
        h_loads(112)
        A(f"""s_branch L_hchkA
        L_hagainB:
        s_sub_u32 {sBUD}, {sBUD}, 1
        s_cbranch_scc1 L_end""")
        h_loads(112)
        A("L_hchkA:\ns_waitcnt vmcnt(4)")
        tags_ok(list(range(96, 112)), None, retry="L_hagainA", between=lambda: strip_tag(range(96, 100)))
        h_sum(96)
        A("s_branch L_hok\nL_hagainA:")
        h_loads(96)
        A("s_waitcnt vmcnt(4)")
        tags_ok(list(range(112, 128)), None, retry="L_hagainB", between=lambda: strip_tag(range(112, 116)))
        h_sum(112)
        A("L_hok:")
        stamp(11)
    else:
        if hdel:
            A(f"s_sleep {hdel}")
        A(f"""s_branch L_hpoll
        L_hagain:
        {"s_mov_b64 exec, vcc" if hmask else ""}
        s_sub_u32 {sBUD}, {sBUD}, 1
        s_cbranch_scc1 L_end""")
        if hback:
            A(f"s_sleep {hback}")
        if KC > 1:
            C("next copy: lines nobody has read yet take the producers' writes faster")
            A(f"""s_cmp_lt_u32 s48, {WS_OUTP + (KC - 1) * 0x20000}
            s_cselect_b32 {sT0}, 0x20000, 0""")
            for m in range(4):
                A(f"s_add_u32 s{48 + m}, s{48 + m}, {sT0}")
        A("L_hpoll:")
        h_loads(16)
        A("s_waitcnt vmcnt(0)")
        tags_ok(list(range(16, 32)), None, retry="L_hagain", between=lambda: strip_tag(range(16, 20)))
        stamp(11)
        if hmask:
            A("s_mov_b64 exec, -1")
        h_sum(16)
    swap_reduce4(("v32", "v33", "v34", "v35"))
    rne1("v32", "v32")
    A("v_add_f32 v32, v32, v137")
    rne1("v32", "v32")
    A(f"ds_write_b32 v13, v32 offset:{HL}")
    if dry:
        A("s_cmp_lg_u32 s54, 0\ns_cbranch_scc1 L_hdry")
    A(f"""s_cmp_ge_u32 {sCW}, 4
    s_waitcnt lgkmcnt(0)
    s_barrier
    s_cbranch_scc1 L_exit
    L_hdry:""")
    if fst:
        stamp(8)
    A(f"""    s_mov_b32 exec_hi, 0x00ffffff
    ds_read_b128 v[48:51], v14 offset:{HL}
    ds_read_b128 v[52:55], v14 offset:{HL + 16}
    ds_read_b64 v[138:139], v40 offset:{HL}
    s_mov_b32 exec_hi, -1
    s_waitcnt lgkmcnt(1)""")

    def stats8():
        sums8()
        ln_scale("v22", "v23", sT0, sT1, "v42", True)

    def sums8():
        A("""v_pk_add_f32 v[20:21], v[48:49], v[50:51]
        v_pk_mul_f32 v[24:25], v[48:49], v[48:49]
        v_pk_add_f32 v[22:23], v[52:53], v[54:55]
        v_pk_fma_f32 v[24:25], v[50:51], v[50:51], v[24:25]
        v_pk_add_f32 v[20:21], v[20:21], v[22:23]
        v_pk_fma_f32 v[24:25], v[52:53], v[52:53], v[24:25]
        v_add_f32 v20, v20, v21
        v_pk_fma_f32 v[24:25], v[54:55], v[54:55], v[24:25]
        v_add_f32 v24, v24, v25""")
        wave_sums(["v20", "v24"], [sT0, sT1])

    if alg:
        C("first LayerNorm: mean / variance of h.  Its output is a = (h - m1) * r1, so the second LayerNorm's")
        C("statistics follow exactly: mean(a) = (mean - m1) * r1, var(a) = var * r1 * r1")
        sums8()
        if fst:
            stamp(9)
        A(f"""v_mul_f32 v26, {sT1}, v42
        v_mul_f32 v27, {sT0}, v42
        v_fma_f32 v26, -v27, v27, v26""")
        rne1("v22", "v27")
        A(f"""v_cvt_pk_bf16_f32 v23, 0, abs(v26)
        v_sub_f32 v24, v27, v22
        v_add_f32 v23, {hex(fbits(1e-5))}, v23""")
        rne1("v23", "v23")
        A("""v_sqrt_f32 v23, v23
        s_waitcnt lgkmcnt(0)
        v_pk_add_f32 v[36:37], v[138:139], v[22:23] op_sel_hi:[1,0] neg_lo:[0,1] neg_hi:[0,1]""")
        rne1("v23", "v23")
        A("v_rcp_f32 v23, v23")
        rne1("v36", "v36")
        A("v_mul_f32 v25, abs(v26), v23")
        rne1("v37", "v37")
        A("v_mul_f32 v25, v25, v23\nv_mul_f32 v24, v24, v23")
        rne1("v25", "v25")
        A(f"""v_pk_mul_f32 v[36:37], v[36:37], v[22:23] op_sel:[0,1] op_sel_hi:[1,1]
        v_add_f32 v25, {hex(fbits(1e-5))}, v25""")
        rne1("v24", "v24")
        rne1("v25", "v25")
        rne1("v36", "v36")
        A("v_sqrt_f32 v25, v25")
        rne1("v37", "v37")
        rne1("v25", "v25")
        A("v_pk_add_f32 v[36:37], v[36:37], v[24:25] op_sel_hi:[1,0] neg_lo:[0,1] neg_hi:[0,1]\nv_rcp_f32 v25, v25")
        rne1("v36", "v36")
        rne1("v37", "v37")
        A("s_mov_b32 exec_hi, 0x00ffffff\nv_pk_mul_f32 v[36:37], v[36:37], v[24:25] op_sel:[0,1] op_sel_hi:[1,1]")
        rne1("v36", "v36")
        rne1("v37", "v37")
    else:
        stats8()
        A("s_waitcnt lgkmcnt(0)\nv_mov_b32 v36, v138\nv_mov_b32 v37, v139\ns_mov_b32 exec_hi, 0x00ffffff")
        normalize([48, 50, 52, 54, 36], 22, 23)
        A("s_mov_b32 exec_hi, -1")
        stats8()
        A("s_mov_b32 exec_hi, 0x00ffffff")
        normalize([36], 22, 23)
    if fst:
        stamp(10)
    A(f"""v_bfe_u32 v16, v36, 16, 15
    v_bfe_u32 v17, v37, 16, 15
    v_subrev_u32 v16, {E0 << 7}, v16
    v_subrev_u32 v17, {E0 << 7}, v17
    v_lshrrev_b32 v18, 31, v36
    v_lshrrev_b32 v19, 31, v37
    v_cmp_le_u32 vcc, {128 * NE}, v16
    v_cmp_le_u32 s[56:57], s47, v17
    v_mad_u32_u24 v16, v18, s47, v16
    v_mad_u32_u24 v17, v19, s47, v17
    v_cndmask_b32 v16, v16, 0, vcc
    v_cndmask_b32 v17, v17, 0, s[56:57]
    v_lshl_add_u32 v16, v16, 2, s52
    v_lshl_add_u32 v17, v17, 2, s52
    ds_read_b32 v38, v16
    ds_read_b32 v39, v17""")
    if dry:
        A("s_cmp_lg_u32 s54, 0\ns_cbranch_scc1 L_hreal")
    A(f"""s_or_b64 s[58:59], vcc, s[56:57]
    s_waitcnt lgkmcnt(0)
    v_and_b32 v38, {sMASK}, v38
    v_and_b32 v39, {sMASK}, v39
    s_cbranch_scc1 L_direct
    L_fin:
    v_pk_add_f32 v[38:39], v[38:39], v[138:139]""")
    if x_pert:
        A(f"v_cmp_eq_u32 vcc, 0, v41\nv_mov_b32 v5, {hex(fbits(x_pert / 10000.0))}\ns_nop 0\nv_cndmask_b32 v5, 0, v5, vcc\nv_add_f32 v38, v38, v5")
    A(f"""    v_cvt_pk_bf16_f32 v38, v38, v39
    global_store_dword v41, v38, {pOUT} {fst_fl}
    s_mov_b32 exec_hi, -1""")
    stamp(12)
    A("L_exit:")
    if diag:
        A(f"s_cmp_eq_u32 {sCW}, 0\ns_cbranch_scc0 L_st1")
        stamps_out(8, 13)
        A(f"L_st1:\ns_cmp_eq_u32 {sCW}, 3\ns_cbranch_scc0 L_end")
        stamps_out(24, 13)
    A("L_end:\ns_endpgm\nL_pfend:")
    C("inputs outside the tabulated binades: evaluate the MLP directly, one element at a time")
    A(f"""L_direct:
    s_mov_b32 exec_hi, -1
    s_mov_b64 s[54:55], vcc
    s_mov_b32 s58, 0
    v_mov_b32 v7, 0
    global_load_ushort v46, v7, {pB2}
    L_dpass:
    s_cmp_eq_u64 s[54:55], 0
    s_cbranch_scc1 L_dswap
    s_ff1_i32_b64 s52, s[54:55]
    s_bitset0_b64 s[54:55], s52
    s_nop 3
    v_readlane_b32 s50, v36, s52
    v_mov_b32 v80, 0
    v_lshlrev_b32 v5, 3, v0
    s_mov_b32 s53, 0
    L_dloop:""")
    load_w()
    A("v_add_u32 v5, 512, v5\ns_waitcnt vmcnt(0)")
    unpack_w()
    gelu(["s50"], ["v80"], False)
    A("s_add_u32 s53, s53, 1\ns_cmp_lt_u32 s53, 7\ns_cbranch_scc1 L_dloop")
    wave_sums(["v80"], [sT0])
    A(f"v_mov_b32 v80, {sT0}")
    rne1("v80", "v80")
    A("v_lshlrev_b32 v81, 16, v46\nv_add_f32 v80, v80, v81")
    rne1("v80", "v80")
    A(f"""v_cmp_eq_u32 vcc, s52, v0
    s_nop 1
    v_cndmask_b32 v38, v38, v80, vcc
    s_branch L_dpass
    L_dswap:
    v_swap_b32 v36, v37
    v_swap_b32 v38, v39
    s_mov_b64 s[54:55], s[56:57]
    s_add_u32 s58, s58, 1
    s_cmp_eq_u32 s58, 1
    s_cbranch_scc1 L_dpass
    s_mov_b32 exec_hi, 0x00ffffff
    s_branch L_fin""")
    for c in cold:
        A(c)
    A("L_codeend:")
    if epf >= 3:
        L.append(".if L_codeend - L_pc0 < 9216\n.error \"code prefetch would run past the code\"\n.endif")
    L.append(f""".section .rodata,"a"
.p2align 6
.amdhsa_kernel {KN}_kernel
  .amdhsa_next_free_vgpr 168
  .amdhsa_next_free_sgpr 96
  .amdhsa_accum_offset 168
  .amdhsa_float_denorm_mode_32 3
  .amdhsa_group_segment_fixed_size 0
  .amdhsa_kernarg_size 104
  .amdhsa_user_sgpr_count 2
  .amdhsa_user_sgpr_kernarg_segment_ptr 1
  .amdhsa_system_sgpr_workgroup_id_x 1
.end_amdhsa_kernel""")
    return "\n".join(L) + "\n"


if __name__ == "__main__":
    names = []
    for spec in sys.argv[1:]:
        kw = {}
        name = None
        for kv in spec.split(","):
            if not kv:
                continue
            k, v = kv.split("=")
            if k == "o":
                name = v
                continue
            kw[k] = int(v) if v.lstrip("-").isdigit() else v.replace("+", " ").replace("none", "")
        name = name or "k_" + spec.replace(":", "-").replace(",", "_").replace("=", "").replace("+", "") + ".s"
        open(name, "w").write(gen(**kw))
        names.append(name)
    print(" ".join(names))
```

```python
import sys, struct, math
KN = "sequential_preLN__sliding_block_cached__mixer_token_mlp__decode"

def fbits(x):
    return struct.unpack("<I", struct.pack("<f", x))[0]

WS_E, WS_IDS, WS_TBL, WS_TBLN, WS_STATS, WS_Q, WS_OP, WS_OUTP = 0, 0x1000, 0x20000, 0x28000, 0x30000, 0x40000, 0x80000, 0x100000
WS_FAR = 0x200000
WS_STAMP = 0x10000000
SLOT = 16384
MISC = 9 * SLOT
LN, QL, PL, OL, TP, FL, HL = 0x0, 0x1000, 0x1500, 0x1A00, 0x1F00, 0x2300, 0x2400
HP = 576
F_LANDED, F_LNCNT, F_QCNT, F_MAXCNT, F_PCNT, F_TCNT, F_TAG, F_LOC, F_MX, F_FREE = FL, FL + 4, FL + 8, FL + 12, FL + 16, FL + 20, FL + 24, FL + 28, FL + 32, FL + 64
TBL_LDS = 7 * SLOT
TAGINC = 0x9E3779B9


def gen(D=24, DV=0, DW=40, NE=24, diag=0, ld="nt", ldq="nt", ldo="nt", rot=2, ra=1, rc=0, pf=2, epf=4, pfm=7, bar=4, uni=1, nL=16, dl="", dlx=0, bmap=0, ufree=0, efree=1, xr=0, tight=1, touch=0, h2=0, olin=1, KC=1, opre=2, tpre=1, t7=0, ppre=0, pprefl="sc1", oprefl="sc1", hdel=0, obar=1, olate=0, hmask=0, omask=0, vbar=1, wbar=1, slp=1, pvslp=0, qback=8, tback=8, hback=0, oback=0, nst="", qst="", fst_fl="", wb=0, efl="", ost="sc1", fst=0, lst=0, hld="sc1", jmid=6, QT=4, qit=1, rnd=1, dry=0, alg=1,
        x_tl=0, x_far=0, x_nofree=0, x_stop=0, x_pert=0, x_nofwd=0, x_dbg=0):
    L = []
    uid = [0]
    cold = []

    def A(s):
        for ln in s.split("\n"):
            ln = ln.strip()
            if ln:
                L.append(ln if ln.endswith(":") else "    " + ln)

    def C(s):
        L.append("    ; " + s)

    def lab(p):
        uid[0] += 1
        return f"L_{p}{uid[0]}"

    assert NE % 4 == 0
    E0 = 132 - NE
    LB = 1
    wpos = 8
    sW, sWV = "s2", "s3"
    pX, pK, pV, pWQ, pWO, pW1, pB1, pW2, pB2, pOUT, pWS = "s[4:5]", (6, 7), (8, 9), (10, 11), (12, 13), "s[16:17]", "s[18:19]", "s[20:21]", "s[22:23]", "s[24:25]", "s[28:29]"
    sG, sI, sB, sS, sIDX, sBG = "s30", "s31", "s32", "s33", "s34", "s35"
    SRD = "s[36:39]"
    sBUD, sTAG, sFIN, sMASK, sXCC, sFAR = "s60", "s61", "s62", "s63", "s14", "s15"
    sTAG1 = "s0"
    tagof = lambda r: sTAG1 if r & 2 else sTAG
    sTBLN = "s27"
    sWT = "s26"
    sT0, sT1, sT2, sT3, sT4, sT5 = "s40", "s41", "s42", "s43", "s44", "s45"
    vM, vG, vN, vONE, vL16, vFF = "v1", "v2", "v3", "v4", "v6", "v15"

    def stamp(k):
        if diag:
            A(f"s_memrealtime s[{64 + 2 * k}:{65 + 2 * k}]")

    def stamps_out(base, n):
        if not diag:
            return
        A(f"s_waitcnt lgkmcnt(0)\ns_lshl_b32 {sT0}, {sW}, 9\ns_add_u32 {sT0}, {sT0}, {WS_STAMP + base * 8}\nv_mov_b32 v5, {sT0}\ns_mov_b64 exec, 1")
        for k in range(n):
            A(f"v_mov_b32 v6, s{64 + 2 * k}\nv_mov_b32 v7, s{65 + 2 * k}\nglobal_store_dwordx2 v5, v[6:7], {pWS} offset:{8 * k}\ns_nop 1")
        A("s_mov_b64 exec, -1")

    def spin_tail(top, sleep=None):
        sleep = slp if sleep is None else sleep
        if sleep:
            A(f"s_sleep {sleep}")
        A(f"s_sub_u32 {sBUD}, {sBUD}, 1\ns_cbranch_scc0 {top}\ns_branch L_end")

    def wait_lds(off, val, vt="v5", addr=vM, sleep=None):
        top, done = lab("w"), lab("d")
        A(f"{top}:\nds_read_b32 {vt}, {addr} offset:{off}\ns_waitcnt lgkmcnt(0)\nv_readfirstlane_b32 {sT5}, {vt}\ns_cmp_ge_u32 {sT5}, {val}\ns_cbranch_scc1 {done}")
        spin_tail(top, sleep)
        A(f"{done}:")

    def signal(off, vval=vONE, addr=vM):
        A(f"s_mov_b64 exec, 1\nds_add_u32 {addr}, {vval} offset:{off}\ns_mov_b64 exec, -1")

    def tags_ok(regs, ok, guard=None, tags=None, sel="BYTE_0", retry=None, between=None):
        t = ["v5", "v7", "v8", "v9", "v10", "v11", "v56", "v57"]
        parts = []
        for k in range(0, len(regs), 2):
            A(f"v_bitop3_b32 {t[k // 2]}, v{regs[k]}, v{regs[k + 1]}, {tags[k // 2] if tags else tagof(regs[k])} bitop3:0x7e")
            parts.append(t[k // 2])
        if guard:
            A(guard(parts))
        while len(parts) > 1:
            if len(parts) >= 3:
                A(f"v_or3_b32 {parts[0]}, {parts[0]}, {parts[-1]}, {parts[-2]}")
                parts = parts[:-2]
            else:
                A(f"v_or_b32 {parts[0]}, {parts[0]}, {parts[1]}")
                parts = parts[:1]
        A(f"v_cmp_ne_u32_sdwa vcc, v5, 0 src0_sel:{sel} src1_sel:DWORD")
        if retry:
            between()
            A(f"s_cmp_lg_u64 vcc, 0\ns_cbranch_scc1 {retry}")
        else:
            A(f"s_cmp_eq_u64 vcc, 0\ns_cbranch_scc1 {ok}")

    def strip_tag(regs):
        for r in regs:
            A(f"v_bfi_b32 v{r}, {vFF}, 0, v{r}")

    def store_group(ins, soff):
        far, done = lab("far"), lab("pub")
        A(f"{ins.format(soff)} {nst}\ns_cmp_lg_u32 {sFAR}, 0\ns_cbranch_scc1 {far}\n{done}:")
        cold.append(f"{far}:\ns_add_u32 {sT5}, {soff}, {WS_FAR}\n{ins.format(sT5)} sc1\ns_branch {done}")

    def put_tag(regs, exact=False, tag=None):
        if rnd and not exact:
            for r in regs:
                A(f"v_add_u32 v{r}, 0x80, v{r}")
        for r in regs:
            A(f"v_bfi_b32 v{r}, {vFF}, {tag or tagof(r)}, v{r}")

    DPP = ["quad_perm:[1,0,3,2] row_mask:0xf", "quad_perm:[2,3,0,1] row_mask:0xf", "row_half_mirror row_mask:0xf",
           "row_mirror row_mask:0xf", "row_bcast:15 row_mask:0xa", "row_bcast:31 row_mask:0xc"]

    def wave_sums(regs, sdst):
        A("s_nop 1" if len(regs) == 1 else "s_nop 0")
        for m in DPP:
            for r in regs:
                A(f"v_add_f32_dpp {r}, {r}, {r} {m} bank_mask:0xf")
            if len(regs) == 1 or m != DPP[-1]:
                A("s_nop 1" if len(regs) == 1 else "s_nop 0")
        for r, s in zip(regs, sdst):
            A(f"v_readlane_b32 {s}, {r}, 63")
        A("s_nop 1")

    def rne1(dst, src):
        A(f"v_cvt_pk_bf16_f32 {dst}, 0, {src}")

    def unpack2(lo, hi, src):
        A(f"v_lshlrev_b32 {lo}, 16, {src}\nv_and_b32 {hi}, {sMASK}, {src}")

    def ln_scale(vm, vr, sS1, sS2, vinv, onepass):
        A(f"v_mul_f32 {vr}, {sS2}, {vinv}\nv_mul_f32 {vm}, {sS1}, {vinv}")
        if onepass:
            A(f"v_fma_f32 {vr}, -{vm}, {vm}, {vr}")
        A(f"v_cvt_pk_bf16_f32 {vr}, 0, abs({vr})")
        rne1(vm, vm)
        A(f"v_add_f32 {vr}, {hex(fbits(1e-5))}, {vr}")
        rne1(vr, vr)
        A(f"v_sqrt_f32 {vr}, {vr}\ns_nop 0")
        rne1(vr, vr)
        A(f"v_rcp_f32 {vr}, {vr}\ns_nop 0")

    def normalize(pairs, vm, vr, last=True):
        for a in pairs:
            A(f"v_pk_add_f32 v[{a}:{a + 1}], v[{a}:{a + 1}], v[{vm}:{vm + 1}] op_sel_hi:[1,0] neg_lo:[0,1] neg_hi:[0,1]")
        for a in pairs:
            rne1(f"v{a}", f"v{a}")
            rne1(f"v{a + 1}", f"v{a + 1}")
        for a in pairs:
            A(f"v_pk_mul_f32 v[{a}:{a + 1}], v[{a}:{a + 1}], v[{vm}:{vm + 1}] op_sel:[0,1] op_sel_hi:[1,1]")
        if last:
            for a in pairs:
                rne1(f"v{a}", f"v{a}")
                rne1(f"v{a + 1}", f"v{a + 1}")

    K1 = -2.0 * math.sqrt(2.0 / math.pi) * math.log2(math.e)
    K2 = K1 * 0.044715
    CEXP = math.log2(math.e) / 16.0

    def gelu(sTs, accs, first):
        el = [(i, e) for e in range(4) for i in range(len(sTs))]
        u = lambda i, e: f"v{60 + 4 * i + e}"
        p = lambda i, e: f"v{68 + 4 * i + e}"
        for i, e in el:
            A(f"v_fma_f32 {u(i, e)}, {sTs[i]}, v{48 + e}, v{52 + e}")
        for i, e in el:
            A(f"v_mul_f32 {p(i, e)}, {u(i, e)}, {u(i, e)}")
        for i, e in el:
            A(f"v_fmaak_f32 {p(i, e)}, {p(i, e)}, v47, {hex(fbits(K1))}")
        for i, e in el:
            A(f"v_mul_f32 {p(i, e)}, {p(i, e)}, {u(i, e)}")
        for i, e in el:
            A(f"v_exp_f32 {p(i, e)}, {p(i, e)}\nv_mul_f32 {u(i, e)}, {u(i, e)}, v{56 + e}")
        for i, e in el:
            A(f"v_add_f32 {p(i, e)}, 1.0, {p(i, e)}")
        for i, e in el:
            A(f"v_rcp_f32 {p(i, e)}, {p(i, e)}")
        A("s_nop 0")
        for i, e in el:
            A(f"v_mul_f32 {accs[i]}, {u(i, e)}, {p(i, e)}" if first and e == 0 else f"v_fmac_f32 {accs[i]}, {u(i, e)}, {p(i, e)}")

    def unpack_w():
        for k, src in enumerate((76, 77, 78, 79, 84, 85)):
            unpack2(f"v{48 + 2 * k}", f"v{49 + 2 * k}", f"v{src}")
        A(f"v_mov_b32 v47, {hex(fbits(K2))}")

    def load_w():
        A(f"global_load_dwordx2 v[76:77], v5, {pW1}\nglobal_load_dwordx2 v[78:79], v5, {pB1}\nglobal_load_dwordx2 v[84:85], v5, {pW2}")

    def swap_reduce4(*sets, pad=True):
        if pad:
            A("s_nop 0")
        for a, b, c, d in sets:
            A(f"v_permlane16_swap_b32 {a}, {b}\nv_permlane16_swap_b32 {c}, {d}")
        for a, b, c, d in sets:
            A(f"v_add_f32 {a}, {a}, {b}\nv_add_f32 {c}, {c}, {d}")
        A("s_nop 1")
        for a, b, c, d in sets:
            A(f"v_permlane32_swap_b32 {a}, {c}")
        for a, b, c, d in sets:
            A(f"v_add_f32 {a}, {a}, {c}")

    L.append(f"""; Fused decode block, one launch: LN -> q projection -> sliding-window GQA attention (last 2048 keys) -> output
;
;   all 32 members run on its own die it also writes a second copy through to memory, and readers then try both copies.""")
    L.append(f"; @launch grid=(256,1,1) block=(576,1,1) lds={10 * SLOT}")
    L.append('.amdgcn_target "amdgcn-amd-amdhsa--gfx950"\n.text')
    L.append(f".globl {KN}_kernel\n.p2align 8\n.type {KN}_kernel,@function\n{KN}_kernel:")
    A(f"""s_cmpk_ge_u32 {sW}, 256
    s_cbranch_scc1 L_end
    s_load_dwordx16 s[4:19], s[0:1], 0""")
    if x_dbg:
        A("s_memrealtime s[64:65]\ns_load_dwordx2 s[66:67], s[0:1], 88")
    if epf == 4:
        C("some waves pull 1 KiB of this kernel's code towards the L2 (speed only)")
        A(f"""v_lshrrev_b32 v1, 6, v0
        s_lshr_b32 {sI}, {sW}, 3
        v_readfirstlane_b32 {sWV}, v1
        s_getpc_b64 s[40:41]
        L_pc0:
        v_lshlrev_b32 v8, 4, v0
        s_add_u32 {sT2}, {sWV}, {sI}
        s_and_b32 {sT2}, {sT2}, {pfm}
        s_cbranch_scc1 L_nopf0
        v_mov_b32 v9, s41
        v_add_co_u32 v8, vcc, s40, v8
        v_addc_co_u32 v9, vcc, 0, v9, vcc
        global_load_dwordx4 v[20:23], v[8:9], off
        L_nopf0:""")
    if epf == 3:
        C("every wave pulls 1 KiB of this kernel's code towards the L2 (speed only)")
        A("""s_getpc_b64 s[40:41]
        L_pc0:
        v_lshlrev_b32 v8, 4, v0
        v_mov_b32 v9, s41
        v_add_co_u32 v8, vcc, s40, v8
        v_addc_co_u32 v9, vcc, 0, v9, vcc
        global_load_dwordx4 v[20:23], v[8:9], off""")
    rest = "s_load_dwordx8 s[20:27], s[0:1], 64\ns_load_dwordx2 s[28:29], s[0:1], 96"
    if not tight:
        A(rest)
    stamp(0)
    if epf != 4:
        A(f"v_lshrrev_b32 v1, 6, v0\ns_lshr_b32 {sI}, {sW}, 3\nv_readfirstlane_b32 {sWV}, v1")
    A(f"""s_and_b32 {sG}, {sW}, 7
    {f"s_lshr_b32 {sB}, {sI}, 3" if bmap else f"s_and_b32 {sB}, {sI}, 3"}
    {f"s_and_b32 {sS}, {sI}, 7" if bmap else f"s_lshr_b32 {sS}, {sI}, 2"}""")
    A(f"""s_lshl3_add_u32 {sBG}, {sB}, {sG}
""")
    A(f"s_cmp_eq_u32 {sWV}, 0\ns_cbranch_scc1 L_loader")
    if epf in (1, 2):
        C("compute waves: pull this kernel's code towards the L2, 1 KiB pieces (speed only)")
        A(f"""s_getpc_b64 s[40:41]
        L_pc0:
        v_lshlrev_b32 v8, 4, v0
        v_add_u32 v10, {8 * 1024 - 1024}, v8
        v_min_u32 v10, L_codeend-L_pc0-16, v10
        v_add_u32 v8, {-1024 & 0xffffffff}, v8
        v_mov_b32 v9, s41
        v_add_co_u32 v8, vcc, s40, v8
        v_mov_b32 v11, s41
        v_addc_co_u32 v9, vcc, 0, v9, vcc
        global_load_dwordx4 v[20:23], v[8:9], off""")
        if epf > 1:
            A(f"""v_add_co_u32 v10, vcc, s40, v10
            s_nop 1
            v_addc_co_u32 v11, vcc, 0, v11, vcc
            global_load_dwordx4 v[20:23], v[10:11], off""")
    A("s_barrier\ns_branch L_compute\nL_loader:")
    C("---------------- loader wave")
    sN, sSLOT, sBASE, sGS, sRG, sRS, sCNT, sGI, sKV = "s48", "s49", "s50", "s51", "s52", "s53", "s54", "s55", "s56"
    sKJ = "s57"
    if True:
        C("rows 112b.. of wq, columns 512g+64s.. -> ring slot 8 (two lanes-wide issues run past the slice's descriptor)")
        A(f"""s_mov_b32 s46, {112 * 8192}
        s_mul_i32 {sT0}, {sB}, s46
        s_lshl3_add_u32 {sT1}, {sG}, {sS}
        s_lshl_b32 {sT1}, {sT1}, 7
        s_add_u32 {sT0}, {sT0}, {sT1}
        s_mov_b32 {sT3}, {65536 - 1024}
        v_lshrrev_b32 v12, 3, v0
        v_lshlrev_b32 v12, 13, v12
        v_and_b32 v13, 7, v0
        v_lshrrev_b32 v14, 4, v0
        v_lshlrev_b32 v14, 1, v14
        v_xor_b32 v13, v13, v14
        v_lshl_or_b32 v12, v13, 4, v12
        v_add_u32 v13, {sT3}, v12
        v_add_u32 v14, {sT3}, v13
        v_add_u32 v15, {sT3}, v14
        s_mov_b32 s47, 0x20000
        s_mov_b32 m0, s47
        {f"s_lshl_b32 {sT2}, s47, 1" if tight else ""}
        {f"s_mov_b32 {sT1}, 0" if tight else ""}
        s_waitcnt lgkmcnt(0)
        s_add_u32 s44, s{pWQ[0]}, {sT0}
        s_addc_u32 s45, s{pWQ[1]}, 0""")
        if lst:
            stamp(7)
        flags = f"""s_setprio 3
        s_mov_b32 {sBUD}, 0x80000
        v_mov_b32 {vM}, {MISC}
        s_mov_b32 s39, 0x20000
        v_lshrrev_b32 v6, {3 if ufree else 1}, v0
        v_cmp_eq_u32 vcc, {1 if ufree else 4}, v6
        v_lshl_add_u32 v5, v0, 2, {vM}
        v_mov_b32 v7, 0xff800000
        v_cndmask_b32 v6, 0, v7, vcc
        ds_write_b32 v5, v6 offset:{FL}
        s_waitcnt lgkmcnt(0)
        s_barrier"""
        if tight:
            A("L_wq:")
            for k in range(4):
                A(f"buffer_load_dwordx4 v{12 + k}, s[44:47], {sT1} offen offset:{1024 * k} {ldq} lds")
            A(f"""s_addk_i32 m0, 4096
            s_add_u32 {sT1}, {sT1}, {sT2}
            s_bitcmp0_b32 {sT1}, 20
            s_cbranch_scc1 L_wq""")
            A(flags)
            stamp(1)
            if diag:
                A("s_load_dwordx2 s[28:29], s[0:1], 96")
        for u in range(0 if tight else 16):
            if u % 4 == 0 and u:
                A(f"s_mov_b32 m0, {8 * SLOT + 1024 * u}\ns_mov_b32 {sT1}, {65536 * u}")
            A(f"buffer_load_dwordx4 v{12 + u % 4}, s[44:47], {sT1 if u > 3 else 0} offen offset:{1024 * (u % 4)} {ldq} lds")
            if u == bar - 1:
                A(flags)
                stamp(1)
    A(f"""    v_lshrrev_b32 v5, 5, v0
    v_and_b32 v6, 31, v0
    v_lshlrev_b32 v7, 1, v5
    v_xor_b32 v6, v6, v7
    v_lshlrev_b32 v6, 4, v6
    v_lshl_or_b32 v8, v5, 9, v6
    v_xor_b32 v9, 64, v8
    v_xor_b32 v10, 0x80, v8
    v_xor_b32 v11, 0xc0, v8
    s_mov_b32 {sN}, 0
    s_mov_b32 {sSLOT}, 0
    s_mov_b32 {sGS}, 4096
    s_mov_b32 {sCNT}, 16
    s_mov_b32 s38, {8 * SLOT}""")
    sR = sI
    if ra != 1 or rc:
        A(f"s_mul_i32 {sT0}, {sI}, {ra}\ns_mul_i32 {sT1}, {sG}, {rc}\ns_add_u32 {sT0}, {sT0}, {sT1}\ns_and_b32 {sT0}, {sT0}, 31")
        sR = sT0
    if rot == 9:
        A(f"""s_load_dwordx2 s[58:59], s[0:1], 88
        s_and_b32 {sT0}, {sW}, 0xfc
        s_waitcnt lgkmcnt(0)
        s_load_dword {sT1}, s[58:59], {sT0}
        s_and_b32 {sT0}, {sW}, 3
        s_lshl_b32 {sT0}, {sT0}, 3
        s_waitcnt lgkmcnt(0)
        s_lshr_b32 {sT0}, {sT1}, {sT0}
        s_and_b32 {sRG}, {sT0}, 3
        s_bfe_u32 {sRS}, {sT0}, 0x30002
        s_bfe_u32 s57, {sT0}, 0x20005""")
    elif rot == 1:
        A(f"s_and_b32 {sRG}, {sR}, 3\ns_lshr_b32 {sRS}, {sR}, 2")
    elif rot == 2:
        A(f"s_lshr_b32 {sRG}, {sR}, 3\ns_and_b32 {sRS}, {sR}, 7")
    elif rot == 3:
        A(f"s_mov_b32 {sRG}, 0\ns_and_b32 {sRS}, {sR}, 7")
    elif rot == 4:
        A(f"s_and_b32 {sRG}, {sR}, 3\ns_mov_b32 {sRS}, 0")
    elif rot == 5:
        A(f"s_lshr_b32 {sRG}, {sR}, 2\ns_and_b32 {sRS}, {sR}, 3")
    else:
        A(f"s_mov_b32 {sRG}, 0\ns_mov_b32 {sRS}, 0")
    A(f"""s_lshl_b32 {sKV}, {sBG}, 22
    s_lshl_b32 {sT1}, {sS}, 17
    s_add_u32 {sKV}, {sKV}, {sT1}
    s_add_u32 {sKV}, {sKV}, 0x300000
""")
    A(f"""s_add_u32 s36, s{pK[0]}, {sKV}
    s_addc_u32 s37, s{pK[1]}, 0""")

    def group_loop(flag, first, D, vb=8):
        top = lab("grp")
        A(f"s_mov_b32 {sT2}, 0")
        A(f"""{top}:
        {f"s_xor_b32 {sGI}, {sT2}, {sRG}" if xr else f"s_add_u32 {sGI}, {sT2}, {sRG}"}
        {"" if xr else f"s_and_b32 {sGI}, {sGI}, 3"}
        s_lshl_b32 {sT0}, {sGI}, 12
        s_mul_i32 {sT1}, {sGI}, {sGS}
        s_add_u32 m0, {sT0}, {sSLOT}
        s_add_u32 {sT1}, {sT1}, {sBASE}""")
        for k in range(4):
            A(f"s_waitcnt vmcnt({D - 1})\nbuffer_load_dwordx4 v{vb + k}, {SRD}, {sT1} offen offset:{1024 * k} {flag} lds")
        nb, nw = lab("nb"), lab("nw")
        A(f"s_add_u32 {sCNT}, {sCNT}, 4")
        A(f"""s_sub_u32 {sT0}, {sCNT}, {(D + 3) // 4 * 4}
        s_cbranch_scc1 {nw}
        s_and_b32 {sT1}, {sT0}, 15
        s_cbranch_scc1 {nw}
        s_lshr_b32 {sT0}, {sT0}, 4
        v_mov_b32 v5, {sT0}
        ds_write_b32 {vM}, v5 offset:{F_LANDED}
        {nw}:
        s_add_u32 {sT2}, {sT2}, 1
        s_cmp_lt_u32 {sT2}, 4
        s_cbranch_scc1 {top}""")

    def next_slot():
        A(f"""s_add_u32 {sN}, {sN}, 1
        s_add_u32 {sSLOT}, {sSLOT}, {SLOT}
        s_cmp_eq_u32 {sSLOT}, {9 * SLOT}
        s_cselect_b32 {sSLOT}, 0, {sSLOT}""")

    def wait_free():
        if x_nofree:
            return
        A(f"s_lshl_b32 {sT0}, {sN}, 2\nv_add_u32 v6, {sT0}, {vM}")
        wait_lds(F_FREE - 32, 8, "v5", "v6")

    def landed(k):
        A(f"v_mov_b32 v5, {k}\nds_write_b32 {vM}, v5 offset:{F_LANDED}")

    def drain(total, D):
        for k in range(total - (D + 15) // 16 + 1, total + 1):
            A(f"s_waitcnt vmcnt({16 * (total - k)})")
            if vbar and k == total:
                A("s_barrier")
            else:
                landed(k)

    def seg_base():
        A(f"{'s_xor_b32' if xr else 's_add_u32'} {sT0}, {sN}, {sRS}\ns_and_b32 {sT0}, {sT0}, 7\ns_lshl_b32 {sBASE}, {sT0}, 14")

    assert wpos == 8
    DV = DV or D
    if lst:
        stamp(8)
    if uni:
        assert DV == D or nL < 16
        C("segments 0..7: K, 8..15: V (each V segment into a slot its readers have released)")
        dls = [int(x) for x in dl.split(":")] if dl else [D] * 8
        uniq = sorted(set(dls))
        DV = max(uniq)
        if dlx:
            A(f"s_getreg_b32 {sT1}, hwreg(HW_REG_XCC_ID, 0, 3)")
        for d in uniq[1:]:
            mask = sum(1 << x for x in range(8) if dls[x] == d)
            A(f"s_movk_i32 {sT0}, {mask}\ns_bitcmp1_b32 {sT0}, {sT1 if dlx else sG}\ns_cbranch_scc1 L_kv{d}")
        for d in uniq:
            A(f"L_kv{d}:")
            if efree:
                A(f"s_lshl_b32 {sT0}, {sN}, 2\nv_add_u32 v6, {sT0}, {vM}\nds_read_b32 v7, v6 offset:{F_FREE - 28}")
            seg_base()
            group_loop(ld, True, d)
            if rot == 9:
                A(f"s_xor_b32 {sRG}, {sRG}, s57")
            next_slot()
            if ufree:
                A(f"""s_cmp_eq_u32 {sN}, {nL}
                s_cbranch_scc1 L_kvend
                s_cmp_lt_u32 {sN}, 8
                s_cselect_b64 s[36:37], s[{pK[0]}:{pK[1]}], s[{pV[0]}:{pV[1]}]
                s_add_u32 s36, s36, {sKV}
                s_addc_u32 s37, s37, 0""")
            else:
                A(f"""s_cmp_lt_u32 {sN}, 8
                s_cbranch_scc1 L_kv{d}
                s_cmp_eq_u32 {sN}, {nL}
                s_cbranch_scc1 L_kvend
                s_add_u32 s36, s{pV[0]}, {sKV}
                s_addc_u32 s37, s{pV[1]}, 0""")
            if diag:
                A(f"s_cmp_lg_u32 {sN}, 8\ns_cbranch_scc1 L_nost2{d}")
                stamp(2)
                A(f"L_nost2{d}:")
            if x_nofree:
                A(f"s_branch L_kv{d}")
            if efree:
                A(f"""s_waitcnt lgkmcnt(0)
                v_readfirstlane_b32 {sT5}, v7
                s_cmp_ge_u32 {sT5}, 8
                s_cbranch_scc1 L_kv{d}""")
            else:
                A(f"s_lshl_b32 {sT0}, {sN}, 2\nv_add_u32 v6, {sT0}, {vM}")
            A(f"""L_free{d}:
            ds_read_b32 v5, v6 offset:{F_FREE - (28 if efree else 32)}
            s_waitcnt lgkmcnt(0)
            v_readfirstlane_b32 {sT5}, v5
            s_cmp_ge_u32 {sT5}, 8
            s_cbranch_scc1 L_kv{d}""")
            spin_tail(f"L_free{d}")
        A("L_kvend:")
        if nL < 16:
            A("L_v:")
            wait_free()
            seg_base()
            group_loop(ld, False, DV)
            next_slot()
            A(f"s_cmp_lt_u32 {sN}, 16\ns_cbranch_scc1 L_v")
    else:
        C("segments 0..7: K")
        A("L_k:")
        seg_base()
        group_loop(ld, True, D)
        next_slot()
        A(f"""s_cmp_lt_u32 {sN}, 8
        s_cbranch_scc1 L_k
        s_add_u32 s36, s{pV[0]}, {sKV}
        s_addc_u32 s37, s{pV[1]}, 0""")
        stamp(2)
        C("segments 8..15: V, each into a slot its readers have released")
        A("L_v:")
        wait_free()
        seg_base()
        group_loop(ld, False, DV)
        next_slot()
        A(f"s_cmp_lt_u32 {sN}, 16\ns_cbranch_scc1 L_v")
    stamp(3)
    A(f"s_cmp_lg_u32 {sS}, 7\ns_cbranch_scc1 L_wo")
    A("L_nowo:")
    drain(16 + LB, DV)
    A("s_branch L_ldone")
    C("two segments of wo: rows of head 2g + (b&1), 64 columns -> slots 7, 8")
    A(f"""L_wo:
    {"s_branch L_nowo" if x_stop == 9 else ""}
    v_lshrrev_b32 v5, 3, v0
    v_and_b32 v6, 7, v0
    v_lshrrev_b32 v7, 4, v0
    v_lshlrev_b32 v7, 1, v7
    v_xor_b32 v6, v6, v7
    v_lshlrev_b32 v6, 4, v6
    v_mul_u32_u24 v5, 896, v5
    v_add_u32 v12, v5, v6
    v_add_u32 v13, {7168 - 1024}, v12
    v_add_u32 v14, {7168 - 1024}, v13
    v_add_u32 v15, {7168 - 1024}, v14
    s_mov_b32 s36, s{pWO[0]}
    s_mov_b32 s37, s{pWO[1]}
    s_mov_b32 s38, {4096 * 896}
    s_lshl_b32 {sT0}, {sG}, 1
    s_and_b32 {sT1}, {sB}, 1
    s_add_u32 {sT0}, {sT0}, {sT1}
    s_mul_i32 {sBASE}, {sT0}, {256 * 896}
    s_lshl_b32 {sT1}, {sS}, 7
    s_add_u32 {sBASE}, {sBASE}, {sT1}""")
    T0 = 16 * (16 + LB)
    done = (T0 - (DV + 3) // 4 * 4) // 16
    for u in range(32):
        if u == 0 and efree and not x_nofree:
            wait_lds(F_FREE + 4 * 9, 8)
        elif u % 16 == 0 and not x_nofree and not efree:
            wait_lds(F_FREE + 4 * (8 + u // 16), 8)
        if u % 4 == 0:
            A(f"s_mov_b32 m0, {7 * SLOT + 1024 * u}")
            A(f"s_add_u32 {sBASE}, {sBASE}, {4 * 7168}" if u else "s_nop 0")
        if u + DV >= DW:
            A(f"s_waitcnt vmcnt({DW - 1})")
            k = (T0 + u - DW + 1) // 16
            if k > done:
                landed(k)
                done = k
        A(f"buffer_load_dwordx4 v{12 + u % 4}, {SRD}, {sBASE} offen offset:{1024 * (u % 4)} {ldo} lds")
    stamp(4)
    assert done < 16 + LB
    for k in range(done + 1, 18 + LB + 1):
        if k != 17 + LB:
            A(f"s_waitcnt vmcnt({16 * (18 + LB - k)})")
            if (vbar and k == 16 + LB) or (wbar and k == 18 + LB):
                A("s_barrier")
            else:
                landed(k)
            if obar and k == 16 + LB:
                if olate:
                    A(f"s_waitcnt vmcnt({olate})")
                A("s_barrier")
    A("L_ldone:")
    if x_dbg:
        A(f"""s_memrealtime s[68:69]
        s_cmp_ge_u32 {sW}, 8
        s_cbranch_scc1 L_nodbg
        s_getreg_b32 s70, hwreg(HW_REG_XCC_ID, 0, 4)
        s_waitcnt lgkmcnt(0)
        s_lshl_b32 s64, s64, 4
        s_or_b32 s64, s64, s70
        s_lshl_b32 s71, {sW}, 2
        v_mov_b32 v5, s71
        v_mov_b32 v6, s64
        v_mov_b32 v7, s68
        s_mov_b64 exec, 1
        global_store_dword v5, v6, s[66:67]
        global_store_dword v5, v7, s[66:67] offset:32
        L_nodbg:""")
    stamp(5)
    A("s_waitcnt lgkmcnt(0)")
    if diag:
        A(f"s_sub_u32 {sT0}, 0x80000, {sBUD}\ns_mul_i32 {sT0}, {sT0}, 100\ns_add_u32 s76, s64, {sT0}\ns_addc_u32 s77, s65, 0")
    stamps_out(0, 7)
    if lst:
        A('s_mov_b32 s64, s78\ns_mov_b32 s65, s79\ns_mov_b32 s66, s80\ns_mov_b32 s67, s81')
        stamps_out(40, 2)
    A("s_endpgm")

    C("---------------- compute waves")
    sCW = sWV
    A(f"""L_compute:
    {"s_endpgm" if x_stop == 9 else ""}
    {rest if tight else ""}
    s_sub_u32 {sCW}, {sWV}, 1
    s_mov_b32 {sBUD}, 0x80000
    v_mov_b32 {vM}, {MISC}
    s_mov_b32 s39, 0x20000
    v_and_b32 v0, 63, v0
    v_lshlrev_b32 {vL16}, 4, v0
    s_mul_i32 {sT0}, {sCW}, 896
    v_add_u32 v5, {sT0}, {vL16}
    v_mov_b32 v16, 0
    v_mov_b32 v17, 0
    v_mov_b32 v18, 0
    v_mov_b32 v19, 0
    v_lshrrev_b32 {vG}, 4, v0
    v_and_b32 {vN}, 15, v0
    v_mov_b32 {vONE}, 1
    v_mov_b32 {vFF}, 0xff
    v_mov_b32 v14, 0
    s_mov_b32 {sMASK}, 0xffff0000
    s_lshl_b32 {sIDX}, {sBG}, 3
    s_add_u32 {sIDX}, {sIDX}, {sS}
    s_lshl_b32 {sT0}, {sB}, 1
    s_xor_b32 {sFIN}, {sT0}, {sG}
    s_mov_b32 s38, 0x400000
    s_lshl_b32 {sT0}, {sG}, 2
    s_add_u32 {sT0}, {sT0}, {sB}
    s_lshl_b32 {sT0}, {sT0}, 3
    s_add_u32 {sT0}, {sT0}, {sS}
    s_waitcnt lgkmcnt(0)
    s_mov_b32 {sWT}, {sT0}
    s_mov_b32 {sTBLN}, {WS_TBLN}
    s_lshl_b32 s47, {sBG}, 13
    s_lshl_b32 {sT0}, {sCW}, 10
    s_or_b32 s47, s47, {sT0}
    s_or_b32 s47, s47, {WS_Q}
    s_cmp_ge_u32 {sCW}, 4
    s_mov_b32 s36, s28
    s_mov_b32 s37, s29
    s_load_dword {sTAG}, {pWS}, {WS_E}
    s_cbranch_scc1 L_nox
    s_mov_b32 exec_hi, 0x00ffffff
    global_load_dwordx4 v[16:19], v5, {pX}
    s_mov_b32 exec_hi, -1
    L_nox:
    s_cmp_lg_u32 {sCW}, 0
    s_cbranch_scc1 L_notq0
    v_mov_b32 v7, 0
    global_load_ushort v167, v7, {pB2}
    s_getreg_b32 {sXCC}, hwreg(HW_REG_XCC_ID, 0, 4)
    s_lshl_b32 s59, {sG}, 7
    s_add_u32 s59, s59, {WS_IDS}
    s_lshl_b32 {sT0}, {sI}, 2
    s_add_u32 {sT0}, {sT0}, s59
    s_lshl_b32 {sXCC}, {sXCC}, 24
    s_waitcnt lgkmcnt(0)
    s_add_u32 {sTAG}, {sTAG}, {hex(TAGINC)}
    s_lshr_b32 {sTAG1}, {sTAG}, 8
    s_and_b32 {sT1}, {sTAG}, 0xffffff
    s_or_b32 {sXCC}, {sXCC}, {sT1}
    v_mov_b32 v8, {sXCC}
    s_mov_b64 exec, 1
    buffer_store_dword v8, {vL16}, {SRD}, {sT0} offen
    s_mov_b64 exec, -1
    s_waitcnt vmcnt(2)
    s_branch L_ln
    L_notq0:
    s_lshl_b32 {sT0}, {sCW}, 9
    s_sub_u32 {sT0}, {sT0}, 512
    v_lshl_add_u32 v5, v0, 3, {sT0}""")
    load_w()
    if touch:
        C("wave 6: first touch of the pages that are streamed later (address translation, speed only)")
        A(f"""s_cmp_lg_u32 {sCW}, 6
        s_cbranch_scc1 L_notouch
        s_lshl_b32 {sT0}, {sBG}, 22
        s_lshl_b32 {sT1}, {sS}, 17
        s_add_u32 {sT0}, {sT0}, {sT1}
        s_add_u32 {sT0}, {sT0}, 0x300000
        v_mov_b32 v8, {sT0}
        s_mul_i32 {sT0}, {sG}, {512 * 896}
        v_mov_b32 v9, {sT0}
        s_mov_b64 exec, 1
        global_load_dword v20, v8, s[8:9] nt""")
        if touch > 1:
            A(f"""global_load_dword v21, v9, s[12:13] nt
            v_add_u32 v9, {512 * 896 - 4}, v9
            global_load_dword v22, v9, s[12:13] nt""")
        if touch > 2:
            A(f"v_mov_b32 v9, 0\nglobal_load_dword v23, v9, {pOUT} nt")
        A("s_mov_b64 exec, -1\nL_notouch:")
    if pf:
        C("waves 6, 7 (of the finishing workgroups): the last two KiB of the code")
        if pf == 2:
            A(f"s_xor_b32 {sT2}, {sS}, 7\ns_or_b32 {sT2}, {sT2}, {sFIN}\ns_cbranch_scc1 L_nopf")
        A(f"""s_cmp_lt_u32 {sCW}, 6
        s_cbranch_scc1 L_nopf
        s_getpc_b64 s[40:41]
        L_pfpc:
        s_lshl_b32 {sT2}, {sCW}, 10
        s_add_u32 {sT2}, {sT2}, L_pfend-L_pfpc-8192
        s_add_u32 s40, s40, {sT2}
        s_addc_u32 s41, s41, 0
        v_mov_b32 v9, s41
        v_add_co_u32 v8, vcc, s40, {vL16}
        s_nop 1
        v_addc_co_u32 v9, vcc, 0, v9, vcc
        global_load_dwordx4 v[20:23], v[8:9], off
        L_nopf:""")
    A(f"""s_waitcnt lgkmcnt(0)
    s_add_u32 {sTAG}, {sTAG}, {hex(TAGINC)}
    s_lshr_b32 {sTAG1}, {sTAG}, 8
    s_cmp_ge_u32 {sCW}, 4
    s_cbranch_scc1 L_table
    s_waitcnt vmcnt(3)""")
    C("LayerNorm of row cw of x (waves 0..3), bf16 rounding as the reference")
    A("L_ln:\ns_setprio 2")
    for k in range(4):
        unpack2(f"v{20 + 2 * k}", f"v{21 + 2 * k}", f"v{16 + k}")
    A("""v_pk_add_f32 v[28:29], v[20:21], v[22:23]
    v_pk_add_f32 v[30:31], v[24:25], v[26:27]
    v_pk_add_f32 v[28:29], v[28:29], v[30:31]
    v_add_f32 v28, v28, v29""")
    wave_sums(["v28"], [sT0])
    A(f"v_mov_b32 v32, {hex(fbits(1.0 / 448.0))}\nv_mul_f32 v30, {sT0}, v32\nv_mov_b32 v28, 0\ns_mov_b32 exec_hi, 0x00ffffff")
    for k in range(8):
        A(f"v_sub_f32 v29, v{20 + k}, v30\nv_fmac_f32 v28, v29, v29")
    A("s_mov_b32 exec_hi, -1")
    wave_sums(["v28"], [sT1])
    ln_scale("v30", "v31", sT0, sT1, "v32", False)
    normalize([20, 22, 24, 26], 30, 31, False)
    for k in range(4):
        A(f"v_cvt_pk_bf16_f32 v{16 + k}, v{20 + 2 * k}, v{21 + 2 * k}")
    A(f"""s_mul_i32 {sT0}, {sCW}, 960
    v_add3_u32 v5, {vL16}, {sT0}, {vM}
    s_mov_b32 exec_hi, 0x00ffffff
    ds_write_b128 v5, v[16:19] offset:{LN}
    s_mov_b32 exec_hi, -1""")
    signal(F_LNCNT)
    A(f"s_cmp_lg_u32 {sCW}, 0\ns_cbranch_scc1 L_table")
    C("partial q projection: 64 columns x 4 batches over 112 rows")
    stamp(1)
    A(f"""v_and_b32 v7, 3, {vN}
    v_lshlrev_b32 v12, 16, v7
    v_mul_u32_u24 v7, 960, v7
    v_lshl_add_u32 v7, {vG}, 3, v7
    s_mul_i32 {sT0}, {sB}, 224
    v_add3_u32 v7, v7, {sT0}, {vM}
    v_bfe_u32 v8, v0, 3, 2
    v_lshlrev_b32 v8, 5, v8
    v_lshrrev_b32 v9, 2, v0
    v_lshl_or_b32 v8, v9, 7, v8
    v_and_b32 v9, 3, v0
    v_lshl_or_b32 v8, v9, 3, v8
    v_add_u32 v8, {8 * SLOT}, v8
    v_xor_b32 v9, 32, v8
    v_xor_b32 v10, 64, v8
    v_xor_b32 v11, 0x60, v8
    v_lshrrev_b32 v13, 2, {vN}
    v_cmp_eq_u32 s[52:53], 1, v13
    v_cmp_eq_u32 s[54:55], 2, v13
    v_cmp_eq_u32 s[56:57], 3, v13
    v_lshl_or_b32 v12, v13, 6, v12
    v_lshl_or_b32 v12, {vG}, 4, v12
    v_mov_b32 v13, 8
    s_lshl_b32 {sT0}, {sG}, 3
    s_add_u32 {sT0}, {sT0}, {sS}
    s_lshl_b32 {sT0}, {sT0}, 10
    s_lshl_b32 {sT1}, {sB}, 8
    s_add_u32 {sT0}, {sT0}, {sT1}
    s_add_u32 {sT0}, {sT0}, {WS_Q}""")
    wait_lds(F_LNCNT, 4)
    for j in range(3):
        A(f"ds_read2_b64 v[{16 + 4 * j}:{19 + 4 * j}], v7 offset0:{8 * j} offset1:{8 * j + 4}")
    A("ds_read_b64 v[28:29], v7 offset:192")
    wait_lds(F_LANDED, 1)
    for j in range(4):
        for t in range(4):
            r = 48 + 16 * j + 4 * t
            A(f"ds_read_b64_tr_b16 v[{r}:{r + 1}], v{8 + t} offset:{4096 * j}")
            if j < 3:
                A(f"ds_read_b64_tr_b16 v[{r + 2}:{r + 3}], v{8 + t} offset:{4096 * j + 2048}")
    signal(F_FREE, "v13")
    A("s_waitcnt lgkmcnt(0)")
    for j in range(4):
        for t in range(4):
            r, d = 48 + 16 * j + 4 * t, 112 + 4 * t
            if j < 3:
                A(f"v_mfma_f32_16x16x32_bf16 v[{d}:{d + 3}], v[{r}:{r + 3}], v[{16 + 4 * j}:{19 + 4 * j}], {'0' if j == 0 else f'v[{d}:{d + 3}]'}")
            else:
                A(f"v_mfma_f32_16x16x16_bf16 v[{d}:{d + 3}], v[{r}:{r + 1}], v[28:29], v[{d}:{d + 3}]")
    A("s_nop 7")
    for t in range(1, 4):
        for r in range(4):
            A(f"v_cndmask_b32 v{112 + r}, v{112 + r}, v{112 + 4 * t + r}, s[{50 + 2 * t}:{51 + 2 * t}]")
    put_tag(range(112, 116))
    A(f"""buffer_store_dwordx4 v[112:115], v12, {SRD}, {sT0} offen {qst}
    s_add_u32 s58, {sT0}, {WS_FAR}
    v_mov_b32 v14, v12""")
    stamp(2)
    if x_stop == 1:
        A("s_endpgm")
    A("s_branch L_qk")
    C("waves 1..7: this workgroup's entries of the scalar map t -> MLP(t), t running over bf16 values")
    A("L_table:\ns_setprio 0\ns_waitcnt vmcnt(0)")
    if x_stop == 1:
        A("s_endpgm")
    unpack_w()
    A(f"""s_and_b32 {sT0}, {sWT}, 127
    s_mul_i32 {sT0}, {sT0}, {NE}
    s_add_u32 {sT0}, {sT0}, {E0 << 7}
    s_lshr_b32 {sT1}, {sWT}, 7
    s_lshl_b32 {sT1}, {sT1}, 15
    s_or_b32 {sT0}, {sT0}, {sT1}
    s_lshl_b32 s50, {sT0}, 16
    s_mov_b32 s54, 0
    s_lshl_b32 {sT0}, {sCW}, 7
    v_lshl_add_u32 v8, {vG}, 2, {vM}
    v_add_u32 v8, {sT0}, v8
    L_tloop:
    s_cmp_lg_u32 s54, {(x_tl or NE) - 4 * qit}
    s_cbranch_scc1 L_tnoq
    buffer_load_dwordx4 v[20:23], {vL16}, {SRD}, s47 offen sc1
    L_tnoq:
    s_add_u32 s51, s50, 0x10000
    s_add_u32 s52, s50, 0x20000
    s_add_u32 s53, s50, 0x30000""")
    gelu(["s50", "s51"], ["v80", "v81"], True)
    gelu(["s52", "s53"], ["v82", "v83"], True)
    swap_reduce4(("v80", "v81", "v82", "v83"))
    A("s_add_u32 s50, s50, 0x40000\ns_add_u32 s54, s54, 4")
    for m in DPP[:4]:
        A(f"v_add_f32_dpp v80, v80, v80 {m} bank_mask:0xf\ns_nop 1")
    A(f"""s_cmp_lt_u32 s54, {x_tl or NE}
    ds_write_b32 v8, v80 offset:{TP - 128}
    v_add_u32 v8, 16, v8
    s_cbranch_scc1 L_tloop""")
    signal(F_TCNT)
    stamp(1)
    C("key slot cw -> registers, slot is released at once")
    A(f"""L_qk:
    s_setprio 1
    v_and_b32 v8, 7, {vN}
    v_lshlrev_b32 v8, 1, v8
    v_xor_b32 v8, v8, {vG}
    v_lshlrev_b32 v8, 4, v8
    v_lshl_or_b32 v8, {vN}, 9, v8
    s_lshl_b32 {sT0}, {sCW}, 14
    v_add_u32 v8, {sT0}, v8
    v_xor_b32 v9, 64, v8
    v_xor_b32 v10, 0x80, v8
    v_xor_b32 v11, 0xc0, v8
    s_lshl_b32 {sT0}, {sCW}, 2
    v_add_u32 v12, {sT0}, {vM}
    v_mov_b32 v13, 8
    s_add_u32 {sT4}, {sCW}, {1 + LB}""")
    wait_lds(F_LANDED, sT4)
    for j in range(8):
        for t in range(2):
            r = 48 + 8 * j + 4 * t
            A(f"ds_read_b128 v[{r}:{r + 3}], v{8 + (j & 3)} offset:{256 * (j >> 2) + 8192 * t}")
    signal(F_FREE + 4, "v13", "v12")
    stamp(3)
    if x_stop == 2:
        A("s_endpgm")
    C("64 columns of q: sum of the four row-quarter partials")
    A(f"""s_lshr_b32 {sT1}, {sCW}, 2
    s_mul_i32 {sT1}, {sT1}, {HP}
    s_and_b32 {sT2}, {sCW}, 3
    s_lshl_b32 {sT2}, {sT2}, 7
    s_add_u32 {sT1}, {sT1}, {sT2}
    v_lshlrev_b32 v12, 1, {vG}
    v_lshl_or_b32 v12, {vN}, 3, v12
    v_add3_u32 v12, v12, {sT1}, {vM}
    s_cmp_lg_u32 {sCW}, 0
    s_cbranch_scc1 L_qchk""")
    wait_lds(F_LANDED, QT + LB)
    A(f"buffer_load_dwordx4 v[20:23], {vL16}, {SRD}, s47 offen sc1")
    C("wave 0: do the 32 workgroups of this kv head share this compute die (one L2)?  Not seen yet counts as no")
    A(f"""v_and_b32 v16, 31, v0
    v_lshlrev_b32 v16, 2, v16
    buffer_load_dword v17, v16, {SRD}, s59 offen sc1
    s_waitcnt vmcnt(0)
    v_cmp_ne_u32 vcc, {sXCC}, v17
    v_mov_b32 v17, 1
    s_cmp_lg_u64 vcc, 0
    s_cbranch_scc1 L_idfar
    {"s_branch L_idfar" if x_far else ""}
    L_idloc:
    ds_write_b32 {vM}, v17 offset:{F_LOC}
    L_qchk:
    s_waitcnt vmcnt(0)""")
    cold.append(f"""L_idfar:
    buffer_store_dwordx4 v[112:115], v14, {SRD}, s58 offen sc1
    v_mov_b32 v17, {WS_FAR + 1}
    s_branch L_idloc""")
    tags_ok([20, 21, 22, 23], "L_qok")
    wait_lds(F_LOC, 1, sleep=qback)
    A(f"""s_sub_u32 {sT5}, {sT5}, 1
    s_xor_b32 s47, s47, {sT5}
    s_sleep {qback}
    buffer_load_dwordx4 v[20:23], {vL16}, {SRD}, s47 offen sc1""")
    spin_tail("L_qchk", 0)
    A("L_qok:")
    strip_tag(range(20, 24))
    swap_reduce4(("v20", "v21", "v22", "v23"))
    A(f"""v_cvt_pk_bf16_f32 v20, v20, v20
    ds_write_b16 v12, v20 offset:{QL}""")
    signal(F_QCNT)
    A(f"""v_and_b32 v7, 1, {vN}
    v_lshl_add_u32 v8, v7, 2, {vM}
    v_mul_u32_u24 v7, {HP}, v7
    v_lshl_add_u32 v7, {vG}, 4, v7
    v_add_u32 v7, v7, {vM}
    s_lshl_b32 {sT0}, {sCW}, 6
    v_add_u32 v9, {sT0}, v7
    s_mov_b32 s46, {hex(fbits(CEXP))}""")
    wait_lds(F_QCNT, 8)
    stamp(4)
    A(f"ds_read_b32 v5, {vM} offset:{F_LOC}")
    for j in range(8):
        A(f"ds_read_b128 v[{16 + 4 * j}:{19 + 4 * j}], v7 offset:{QL + 64 * j}")
    for j in range(8):
        A(f"s_waitcnt lgkmcnt({7 - j})")
        if j == 0:
            A(f"v_readfirstlane_b32 {sFAR}, v5")
        for t in range(2):
            r = 48 + 8 * j + 4 * t
            d = 112 + 4 * t
            A(f"v_mfma_f32_16x16x32_bf16 v[{d}:{d + 3}], v[{r}:{r + 3}], v[{16 + 4 * j}:{19 + 4 * j}], {'0' if j == 0 else f'v[{d}:{d + 3}]'}")
    A(f"s_sub_u32 {sFAR}, {sFAR}, 1\ns_nop 6")
    for k in range(8):
        rne1(f"v{112 + k}", f"v{112 + k}")
    A(f"""v_max3_f32 v120, v112, v113, v114
    v_max3_f32 v121, v115, v116, v117
    v_max3_f32 v120, v120, v118, v119
    v_max_f32 v120, v120, v121
    s_mov_b32 exec_lo, 0x00030003
    s_mov_b32 exec_hi, 0x00030003
    ds_max_f32 v8, v120 offset:{F_MX}
    s_mov_b64 exec, -1""")
    signal(F_MAXCNT)
    wait_lds(F_MAXCNT, 8)
    A(f"ds_read_b32 v124, v8 offset:{F_MX}\ns_waitcnt lgkmcnt(0)")
    for k in range(8):
        A(f"v_sub_f32 v{112 + k}, v{112 + k}, v124")
    for k in range(8):
        A(f"v_mul_f32 v{112 + k}, s46, v{112 + k}")
    for k in range(8):
        A(f"v_exp_f32 v{112 + k}, v{112 + k}")
    A("s_nop 0")
    for k in range(4):
        A(f"v_cvt_pk_bf16_f32 v{120 + k}, v{112 + 2 * k}, v{113 + 2 * k}")
    A(f"""s_mov_b32 exec_lo, 0x00030003
    s_mov_b32 exec_hi, 0x00030003
    ds_write_b128 v9, v[120:123] offset:{PL}
    s_mov_b64 exec, -1""")
    signal(F_PCNT)
    C("addresses of the PV loop and of the stages behind it")
    A(f"""v_mov_b32 v43, v7
    v_bfe_u32 v8, v0, 2, 3
    s_lshl_b32 {sT0}, {sCW}, 1
    v_xor_b32 v8, {sT0}, v8
    v_lshlrev_b32 v8, 5, v8
    v_lshrrev_b32 v9, 2, v0
    v_lshl_or_b32 v8, v9, 9, v8
    v_and_b32 v10, 3, v0
    v_lshl_or_b32 v44, v10, 3, v8
    v_xor_b32 v45, 32, v44""")
    for r in range(112, 120):
        A(f"v_mov_b32 v{r}, 0")
    A(f"""v_and_b32 v28, 1, {vN}
    v_lshlrev_b32 v28, 10, v28
    v_bfe_u32 v29, {vN}, 1, 1
    v_lshl_or_b32 v28, v29, 6, v28
    v_lshl_or_b32 v160, {vG}, 4, v28
    v_cmp_ne_u32 s[56:57], 0, v29
    s_lshl_b32 s51, {sIDX}, 11
    s_lshl_b32 {sT0}, {sCW}, 7
    s_add_u32 s51, s51, {sT0}
    s_add_u32 s51, s51, {WS_OP}
    v_lshlrev_b32 v161, 6, {vG}
    v_lshlrev_b32 v28, 4, {vN}
    v_lshl_or_b32 v162, {vG}, 11, v28
    s_and_b32 {sT2}, {sBG}, 0x17
    s_lshr_b32 {sT1}, {sCW}, 2
    s_lshl_b32 {sT1}, {sT1}, 3
    s_add_u32 {sT2}, {sT2}, {sT1}
    s_and_b32 {sT3}, {sB}, 1
    s_lshl_b32 s52, {sT2}, 14
    s_lshl_b32 {sT1}, {sT3}, 10
    s_add_u32 s52, s52, {sT1}
    s_and_b32 {sT1}, {sCW}, 3
    s_lshl_b32 {sT1}, {sT1}, 8
    s_add_u32 s52, s52, {sT1}
    s_add_u32 s52, s52, {WS_OP}
    s_add_u32 s59, s52, {4 << 11}
    v_bfe_u32 v28, v0, 3, 2
    s_and_b32 {sT1}, {sCW}, 3
    v_xor_b32 v28, {sT1}, v28
    v_lshlrev_b32 v28, 5, v28
    v_lshl_or_b32 v28, v9, 7, v28
    v_lshl_or_b32 v163, v10, 3, v28
    v_add_u32 v164, {((8 + wpos) % 9) * SLOT}, v163
    v_lshlrev_b32 v28, 4, v10
    v_bfe_u32 v29, v0, 2, 1
    v_lshl_or_b32 v28, v29, 3, v28
    v_bfe_u32 v29, v0, 3, 1
    v_lshl_or_b32 v28, v29, 6, v28
    v_lshl_or_b32 v28, {vG}, 1, v28
    s_lshr_b32 {sT0}, {sCW}, 2
    s_mul_i32 {sT0}, {sT0}, {HP}
    s_lshl_b32 {sT1}, {sT1}, 7
    s_add_u32 {sT0}, {sT0}, {sT1}
    v_add3_u32 v165, v28, {sT0}, {vM}
    s_lshl_b32 {sT0}, {sCW}, 6
    v_add_u32 v166, {OL - PL}, v7
    v_mul_u32_u24 v14, {16 * 1792}, {vN}
    v_lshl_add_u32 v14, {vG}, 4, v14
    s_and_b32 s53, {sB}, 2
    s_lshl_b32 s53, s53, 3
    s_add_u32 s53, s53, {sG}
    s_lshl_b32 s53, s53, 1
    s_add_u32 s53, s53, {sT3}
    s_mul_i32 s53, s53, 1792
    s_lshl_b32 {sT1}, {sS}, 8
    s_add_u32 s53, s53, {sT1}
    s_add_u32 s53, s53, {sT0}
    s_add_u32 s53, s53, {WS_OUTP + (KC - 1) * 0x20000}
    s_lshl_b32 s54, {sT2}, 9
    s_lshl_b32 {sT1}, {sT3}, 3
    s_add_u32 s54, s54, {sT1}
    s_add_u32 s54, s54, {WS_STATS}
    v_lshl_add_u32 v136, {vN}, 2, {vG}
    v_add_u32 v136, {sT0}, v136
    s_mul_i32 {sT1}, {sB}, 896
    v_lshl_add_u32 v137, v136, 1, {sT1}
    s_and_b32 s55, {sWT}, 0xf8
    s_mul_i32 s55, s55, {NE * 4}
    s_xor_b32 {sT1}, {sS}, 7
    s_or_b32 {sFIN}, {sFIN}, {sT1}""")
    if ppre:
        C("first read of the lines that will hold this workgroup's partial rows (brings them into the L2; speed only)")
        A(f"""s_cmp_lg_u32 {sCW}, 5
        s_cbranch_scc1 L_noppre
        v_lshlrev_b32 v28, 7, v0
        s_lshl_b32 {sT0}, {sIDX}, 11
        s_add_u32 {sT0}, {sT0}, {WS_OP}
        s_mov_b64 exec, 0xffff
        buffer_load_dword v128, v28, {SRD}, {sT0} offen {pprefl}
        s_mov_b64 exec, -1
        L_noppre:""")
    if tpre:
        C("first read of the table lines this workgroup passes on (brings them on chip; speed only)")
        A(f"""s_xor_b32 {sT0}, {sS}, 7
        s_xor_b32 {sT1}, {sCW}, 7
        s_or_b32 {sT0}, {sT0}, {sT1}
        s_cbranch_scc1 L_notpre
        v_lshlrev_b32 v28, 7, v0
        s_add_u32 {sT0}, s55, {WS_TBL}
        s_mov_b64 exec, {(1 << (NE // 4)) - 1}
        buffer_load_dword v128, v28, {SRD}, {sT0} offen sc1
        s_mov_b64 exec, -1
        L_notpre:""")
    if opre == 2:
        C("first read of the lines this workgroup writes in stage 3 (brings them on chip; speed only)")
        A(f"""s_and_b32 {sT0}, {sCW}, 5
        s_cbranch_scc1 L_nopre
        s_cmp_eq_u32 {sS}, 7
        s_cbranch_scc1 L_nopre
        s_mov_b64 exec, 3
        s_mov_b32 {sT0}, s53""")
        for k in range(KC):
            A(f"buffer_load_dword v128, v14, {SRD}, {sT0} offen {oprefl}\ns_sub_u32 {sT0}, {sT0}, 0x20000")
        A("s_mov_b64 exec, -1\nL_nopre:")
    wait_lds(F_PCNT, 8)
    stamp(5)
    if x_stop == 3:
        A("s_endpgm")
    C("wave 0: row sums of the bf16 probabilities (ones x P), publish (max, sum) of both heads")
    A(f"s_cmp_lg_u32 {sCW}, 0\ns_cbranch_scc1 L_nostat")
    for j in range(8):
        A(f"ds_read_b128 v[{48 + 4 * j}:{51 + 4 * j}], v43 offset:{PL + 64 * j}")
    for r in range(16, 20):
        A(f"v_mov_b32 v{r}, 0x3f803f80")
    A(f"""s_lshl_b32 {sT0}, {sIDX}, 6
    s_add_u32 {sT0}, {sT0}, {WS_STATS}
    s_waitcnt lgkmcnt(0)""")
    for j in range(8):
        A(f"v_mfma_f32_16x16x32_bf16 v[20:23], v[16:19], v[{48 + 4 * j}:{51 + 4 * j}], {'0' if j == 0 else 'v[20:23]'}")
    A(f"""v_mov_b32_dpp v126, v124 quad_perm:[1,0,3,2] row_mask:0xf bank_mask:0xf
    s_nop 6
    v_mov_b32 v125, v20
    v_mov_b32_dpp v127, v20 quad_perm:[1,0,3,2] row_mask:0xf bank_mask:0xf""")
    put_tag([125, 127], tag=sTAG1)
    put_tag([124, 126], True, sTAG)
    A("s_mov_b64 exec, 1")
    store_group(f"buffer_store_dwordx4 v[124:127], {vL16}, {SRD}, {{}} offen", sT0)
    C("wave 0: finish and publish the table entries")
    A(f"s_mov_b64 exec, -1\nv_and_b32 v7, 31, v0\nv_lshl_add_u32 v7, v7, 2, {vM}")
    wait_lds(F_TCNT, 7)
    for k in range(7):
        A(f"ds_read_b32 v{16 + k}, v7 offset:{TP + 128 * k}")
    A(f"""s_mul_i32 {sT0}, {sWT}, {NE * 4}
    s_add_u32 {sT0}, {sT0}, {WS_TBLN}
    v_lshlrev_b32 v8, 2, v0
    v_lshlrev_b32 v46, 16, v167
    s_waitcnt lgkmcnt(0)
    v_add_f32 v16, v16, v17
    v_add_f32 v18, v18, v19
    v_add_f32 v20, v20, v21
    v_add_f32 v16, v16, v18
    v_add_f32 v20, v20, v22
    v_add_f32 v16, v16, v20""")
    rne1("v16", "v16")
    A("v_add_f32 v16, v16, v46")
    rne1("v16", "v16")
    A(f"v_mov_b32 v17, {sTAG}\nv_bfi_b32 v16, {sMASK}, v16, v17")
    A(f"s_mov_b64 exec, {(1 << NE) - 1}")
    store_group(f"buffer_store_dword v16, v8, {SRD}, {{}} offen", sT0)
    A("s_mov_b64 exec, -1\nL_nostat:")
    sJ, sVS, sJL = "s48", "s49", "s50"
    ntl = (NE * 128 + 1023) // 1024
    lastm = (1 << ((NE * 128 - 1024 * (ntl - 1)) // 16)) - 1

    def table_loads():
        for k in range(ntl):
            if k == ntl - 1:
                A(f"s_mov_b32 exec_lo, {hex(lastm & 0xffffffff)}\ns_mov_b32 exec_hi, {hex(lastm >> 32)}")
            A(f"buffer_load_dwordx4 v[{140 + 4 * k}:{143 + 4 * k}], {vL16}, {SRD}, s55 offen offset:{1024 * k} sc1")
        A("s_mov_b64 exec, -1")

    A(f"""s_mov_b32 {sJ}, 0
    s_mov_b32 {sVS}, {8 * SLOT}
    s_mov_b32 {sJL}, {jmid}
    v_add_u32 v12, {F_FREE + 36}, {vM}
    s_mov_b32 {sT4}, {9 + LB}
    s_cmp_eq_u32 {sS}, 7
    s_cselect_b32 s58, 0, 2
    L_pv:
    ds_read_b128 v[16:19], v43 offset:{PL}
    v_add_u32 v10, {sVS}, v44
    v_add_u32 v11, {sVS}, v45""")
    if vbar:
        C("the last slot is announced by a barrier with the loader")
        A(f"s_cmp_lg_u32 {sJ}, 7\ns_waitcnt lgkmcnt(0)\ns_cbranch_scc1 L_pvwait\ns_barrier\nL_pvgo:")
        pvwait = (f"""L_pvwait:
        ds_read_b32 v5, {vM} offset:{F_LANDED}
        s_waitcnt lgkmcnt(0)
        v_readfirstlane_b32 {sT5}, v5
        s_cmp_ge_u32 {sT5}, {sT4}
        s_cbranch_scc1 L_pvgo
        s_sleep 1
        s_sub_u32 {sBUD}, {sBUD}, 1
        s_cbranch_scc0 L_pvwait
        s_branch L_end""")
    else:
        wait_lds(F_LANDED, sT4, sleep=pvslp)
    A(f"""ds_read_b64_tr_b16 v[20:21], v10
    ds_read_b64_tr_b16 v[22:23], v10 offset:8192
    ds_read_b64_tr_b16 v[24:25], v11
    ds_read_b64_tr_b16 v[26:27], v11 offset:8192""")
    signal(0, vONE, "v12")
    A(f"""v_add_u32 v43, 64, v43
    s_add_u32 {sJ}, {sJ}, 1""")
    if wpos < 8:
        A(f"""s_cmp_eq_u32 {sJ}, {wpos}
        s_cselect_b32 {sT0}, s58, 0
        s_add_u32 {sT0}, {sT0}, 1
        s_add_u32 {sT4}, {sT4}, {sT0}
        s_lshl_b32 {sT1}, {sT0}, 2
        v_add_u32 v12, {sT1}, v12
        s_lshl_b32 {sT1}, {sT0}, 14
        s_add_u32 {sVS}, {sVS}, {sT1}
        s_sub_u32 {sT1}, {sVS}, {9 * SLOT}
        s_cselect_b32 {sVS}, {sVS}, {sT1}""")
    else:
        A(f"""v_add_u32 v12, 4, v12
        s_add_u32 {sT4}, {sT4}, 1
        s_add_u32 {sVS}, {sVS}, {SLOT}
        s_cmp_eq_u32 {sVS}, {9 * SLOT}
        s_cselect_b32 {sVS}, 0, {sVS}""")
    A(f"""    s_cmp_lt_u32 {sJ}, {sJL}
    s_waitcnt lgkmcnt(3)
    v_mfma_f32_16x16x32_bf16 v[112:115], v[20:23], v[16:19], v[112:115]
    s_waitcnt lgkmcnt(1)
    v_mfma_f32_16x16x32_bf16 v[116:119], v[24:27], v[16:19], v[116:119]
    s_cbranch_scc1 L_pv
    s_cmp_eq_u32 {sJ}, 8
    s_cbranch_scc1 L_pv_done""")
    C("before the last value slots: fetch what the next stage needs besides the partial rows")
    A(f"""s_mov_b32 {sJL}, 8
    s_cmp_eq_u32 {sS}, 7
    s_cbranch_scc1 L_mid7""")
    if opre == 1:
        A(f"""s_cmp_ge_u32 {sCW}, 4
        s_cbranch_scc1 L_nopre
        s_mov_b32 exec_lo, 0x00030003
        s_mov_b32 exec_hi, 0
        s_mov_b32 {sT0}, s53""")
        for k in range(KC):
            A(f"buffer_load_dword v128, v14, {SRD}, {sT0} offen {oprefl}\ns_sub_u32 {sT0}, {sT0}, 0x20000")
        A("s_mov_b64 exec, -1\nL_nopre:")
    A(f"""    buffer_load_dwordx2 v[32:33], v161, {SRD}, s54 offen sc1
    buffer_load_dwordx2 v[34:35], v161, {SRD}, s54 offen offset:256 sc1""")
    A(f"""s_branch L_pv
    L_mid7:
    s_cmp_lg_u32 {sCW}, {7 if t7 else 0}
    s_cbranch_scc1 L_mid8
    v_mov_b32 v32, {sTAG}
    v_mov_b32 v33, {sTAG}
    v_mov_b32 v34, {sTAG}
    v_mov_b32 v35, {sTAG}
    s_add_u32 s54, s55, {WS_TBLN}
    s_mov_b32 exec_hi, {hex((1 << (2 * NE - 32)) - 1)}
    buffer_load_dwordx4 v[32:35], {vL16}, {SRD}, s54 offen sc1
    s_mov_b32 exec_hi, -1
    L_mid8:
    s_cmp_lg_u32 {sFIN}, 0
    s_cbranch_scc1 L_pv
    s_cmp_eq_u32 {sCW}, 7
    s_cbranch_scc1 L_pv
    global_load_ushort v138, v137, {pX}
    s_branch L_pv""")
    if vbar:
        A(pvwait)
    A("L_pv_done:")
    stamp(7)
    if x_stop == 4:
        A("s_endpgm")
    C("publish the partial output rows")
    A(f"""s_nop 4
    v_cndmask_b32 v112, v112, v116, s[56:57]
    v_cndmask_b32 v113, v113, v117, s[56:57]
    v_cndmask_b32 v114, v114, v118, s[56:57]
    v_cndmask_b32 v115, v115, v119, s[56:57]""")
    put_tag(range(112, 116), True)
    A(f"""s_mov_b32 exec_lo, 0x000f000f
    s_mov_b32 exec_hi, 0x000f000f
""")
    store_group(f"buffer_store_dwordx4 v[112:115], v160, {SRD}, {{}} offen", "s51")
    opoll = f"""buffer_load_dwordx4 v[24:27], v162, {SRD}, s52 offen sc1
    buffer_load_dwordx4 v[28:31], v162, {SRD}, s59 offen sc1"""
    A(f"""s_mov_b64 exec, -1
    s_cmp_eq_u32 {sS}, 7
    s_cbranch_scc1 L_last""")
    if not olate:
        if obar:
            C("all partial rows of this workgroup are on their way before the first look at the group's rows")
            A("s_barrier")
        A(opoll)
    A(f"s_cmp_lg_u32 {sFAR}, 0\ns_cbranch_scc1 L_spoll0\ns_waitcnt vmcnt({1 if olate else 3})\nL_spoll:")
    cold.append("L_spoll0:\ns_waitcnt vmcnt(0)\ns_branch L_spoll")
    tags_ok([32, 34, 33, 35], "L_sok", tags=[sTAG, sTAG1])
    A(f"""s_xor_b32 s54, s54, {sFAR}
    buffer_load_dwordx2 v[32:33], v161, {SRD}, s54 offen sc1
    buffer_load_dwordx2 v[34:35], v161, {SRD}, s54 offen offset:256 sc1
    s_waitcnt vmcnt(0)""")
    spin_tail("L_spoll", 0)
    A(f"""L_oagain:
    {"s_mov_b64 exec, vcc" if omask else ""}
    s_xor_b32 s52, s52, {sFAR}
    s_xor_b32 s59, s59, {sFAR}""")
    A(opoll)
    spin_tail("L_opoll", 0)
    A("L_sok:")
    C("weights of the splits row and row+4")
    A(f"""v_and_b32 v32, {sMASK}, v32
    v_and_b32 v34, {sMASK}, v34""")
    strip_tag([33, 35])

    def rowred(op, d, t):
        for sw in ("v_permlane16_swap_b32", "v_permlane32_swap_b32"):
            A(f"v_mov_b32 {t}, {d}\ns_nop 1\n{sw} {d}, {t}\n{op} {d}, {d}, {t}")

    A("v_max_f32 v36, v32, v34")
    rowred("v_max_f32", "v36", "v37")
    A("""v_sub_f32 v32, v32, v36
    v_sub_f32 v34, v34, v36
    v_mul_f32 v32, s46, v32
    v_mul_f32 v34, s46, v34
    v_exp_f32 v32, v32
    v_exp_f32 v34, v34
    s_nop 0
    v_mul_f32 v36, v33, v32
    v_fmac_f32 v36, v35, v34""")
    rowred("v_add_f32", "v36", "v37")
    A("""v_rcp_f32 v36, v36
    s_nop 0
    v_mul_f32 v32, v32, v36
    v_mul_f32 v34, v34, v36""")
    if olate:
        C("first look at the group's rows: own rows are on their way, wo is about to land (barrier with the loader)")
        A("s_barrier")
        A(opoll)
    if wbar:
        C("wo has landed (barrier with the loader)")
        A(f"s_cmp_ge_u32 {sCW}, 4\ns_barrier\ns_cbranch_scc1 L_opoll")
    else:
        A(f"s_cmp_ge_u32 {sCW}, 4\ns_cbranch_scc1 L_opoll")
        wait_lds(F_LANDED, 10 + wpos + LB, sleep=pvslp)
    for j in range(8):
        for u in range(2):
            part = j >> 2
            sl0, sl = (8 + wpos) % 9, (8 + wpos + part) % 9
            base, off = ("v164", (sl - sl0) * SLOT) if sl >= sl0 else ("v163", sl * SLOT)
            r = 48 + 4 * j + 2 * u
            A(f"ds_read_b64_tr_b16 v[{r}:{r + 1}], {base} offset:{off + 4096 * (j & 3) + 2048 * u}")
    stamp(8)
    A("L_opoll:\ns_waitcnt vmcnt(0)")

    def o_scale():
        strip_tag(range(28, 32))
        A("""v_pk_mul_f32 v[24:25], v[24:25], v[32:33] op_sel_hi:[1,0]
        v_pk_mul_f32 v[26:27], v[26:27], v[32:33] op_sel_hi:[1,0]
        v_pk_fma_f32 v[24:25], v[28:29], v[34:35], v[24:25] op_sel_hi:[1,0,1]
        v_pk_fma_f32 v[26:27], v[30:31], v[34:35], v[26:27] op_sel_hi:[1,0,1]""")

    tags_ok(list(range(24, 32)), None, retry="L_oagain", between=lambda: strip_tag(range(24, 28)))
    stamp(9)
    if omask:
        A("s_mov_b64 exec, -1")
    o_scale()
    swap_reduce4(("v24", "v25", "v26", "v27"))
    A(f"""v_cvt_pk_bf16_f32 v24, v24, v24
    ds_write_b16 v165, v24 offset:{OL}
    s_cmp_ge_u32 {sCW}, 4
    s_waitcnt lgkmcnt(0)
    s_barrier
    s_cbranch_scc1 {"L_wb" if wb else "L_exit"}""")
    if wb:
        cold.append(f"""L_wb:
        s_or_b32 {sT0}, {sB}, {sS}
        s_xor_b32 {sT1}, {sCW}, 7
        s_or_b32 {sT0}, {sT0}, {sT1}
        s_cbranch_scc1 L_exit
        {f"s_sleep {wb}" if wb > 1 else ""}
        buffer_wbl2 sc1
        s_branch L_exit""")
    for j in range(8):
        A(f"ds_read_b128 v[{16 + 4 * j}:{19 + 4 * j}], v166 offset:{PL + 64 * j}")
    for j in range(8):
        A(f"s_waitcnt lgkmcnt({7 - j})\nv_mfma_f32_16x16x32_bf16 v[112:115], v[{48 + 4 * j}:{51 + 4 * j}], v[{16 + 4 * j}:{19 + 4 * j}], {'0' if j == 0 else 'v[112:115]'}")
    A(f"""s_mov_b32 exec_lo, 0x00030003
    s_mov_b32 exec_hi, 0x00030003
    s_nop 5""")
    put_tag(range(112, 116), True)
    for k in range(KC):
        A(f"buffer_store_dwordx4 v[112:115], v14, {SRD}, s53 offen {ost}")
        if k < KC - 1:
            A("s_sub_u32 s53, s53, 0x20000")
    A("s_mov_b64 exec, -1")
    stamp(10)
    A("s_branch L_exit")
    C("workgroups of split 7, one wave: pass the table entries of the 8 splits on to the finishing workgroups")
    A(f"""L_last:
    s_cmp_lg_u32 {sCW}, {7 if t7 else 0}
    s_cbranch_scc1 L_nofwd
    L_fpoll:
    s_waitcnt vmcnt(0)""")
    tags_ok([32, 33, 34, 35], "L_fok", tags=[sTAG] * 2, sel="WORD_0")
    A(f"""s_xor_b32 s54, s54, {sFAR}
    s_mov_b32 exec_hi, {hex((1 << (2 * NE - 32)) - 1)}
    buffer_load_dwordx4 v[32:35], {vL16}, {SRD}, s54 offen sc1
    s_mov_b32 exec_hi, -1""")
    spin_tail("L_fpoll")
    A(f"""L_fok:
    s_add_u32 s54, s55, {WS_TBL}
    s_mov_b32 exec_hi, {hex((1 << (2 * NE - 32)) - 1)}
    {"" if x_nofwd else f"buffer_store_dwordx4 v[32:35], {vL16}, {SRD}, s54 offen sc1"}
    s_mov_b32 exec_hi, -1
    L_nofwd:""")
    if t7:
        assert NE % 8 == 0
        nl = NE // 8
        A(f"""s_cmp_lg_u32 {sFIN}, 0
        s_cbranch_scc1 L_exit
        s_cmp_lg_u32 {sCW}, 7
        s_cbranch_scc1 L_hget0""")
        C("finishing workgroup, wave 7: the whole table to LDS (own kv head's share from the L2 copy when the group is on one die)")
        A(f"""s_cmp_eq_u32 {sFAR}, 0
        s_cselect_b32 s48, {sG}, 8
        v_add_u32 v13, {TBL_LDS}, {vL16}""")
        wait_lds(F_FREE + 36, 8)
        A("s_branch L_tload\nL_tagain:\ns_waitcnt lgkmcnt(0)")
        if tback:
            A(f"s_sleep {tback}")
        A(f"s_sub_u32 {sBUD}, {sBUD}, 1\ns_cbranch_scc1 L_end\nL_tload:")
        for gp in range(8):
            A(f"s_cmp_eq_u32 s48, {gp}\ns_cselect_b32 {sT0}, {sTBLN}, {WS_TBL}\ns_add_u32 {sT0}, {sT0}, {gp * NE * 128}")
            for k in range(nl):
                r = 48 + 4 * (gp * nl + k)
                A(f"buffer_load_dwordx4 v[{r}:{r + 3}], {vL16}, {SRD}, {sT0} offen offset:{1024 * k} sc1")
        A("v_mov_b32 v5, 0")
        for k in range(8 * nl):
            r = 48 + 4 * k
            A(f"""s_waitcnt vmcnt({8 * nl - 1 - k})
            v_bitop3_b32 v7, v{r}, v{r + 1}, {sTAG} bitop3:0x7e
            v_bitop3_b32 v8, v{r + 2}, v{r + 3}, {sTAG} bitop3:0x7e
            ds_write_b128 v13, v[{r}:{r + 3}] offset:{1024 * k}
            v_or3_b32 v5, v5, v7, v8""")
        A(f"""v_cmp_ne_u32_sdwa vcc, v5, 0 src0_sel:WORD_0 src1_sel:DWORD
        s_cmp_lg_u64 vcc, 0
        {"" if x_nofwd else "s_cbranch_scc1 L_tagain"}""")
        A("s_waitcnt lgkmcnt(0)\ns_barrier")
    else:
        C("finishing workgroup of batch b: table to LDS, sum the 16 head partials, residual, LN, LN, table lookup")
        A(f"""s_cmp_lg_u32 {sFIN}, 0
    s_cbranch_scc1 L_exit
    s_xor_b32 {sT0}, {sCW}, {sG}
    s_or_b32 {sT0}, {sT0}, {sFAR}
    s_cselect_b32 s55, {WS_TBL}, {sTBLN}
    s_mul_i32 {sT0}, {sCW}, {NE * 128}
    s_add_u32 s55, s55, {sT0}
    s_add_u32 {sT0}, {sT0}, {TBL_LDS}
    v_add_u32 v13, {sT0}, {vL16}""")
        for r in range(140 + 4 * (ntl - 1), 140 + 4 * ntl):
            A(f"v_mov_b32 v{r}, {sTAG}")
        table_loads()
        A(f"""    s_mul_i32 s48, {sB}, {16 * 1792}
    s_lshl_b32 {sT0}, {sCW}, 8
    s_add_u32 s48, s48, {sT0}
    s_add_u32 s48, s48, {WS_OUTP}
    s_add_u32 s49, s48, {4 * 1792}
    s_add_u32 s50, s48, {8 * 1792}
    s_add_u32 s51, s48, {12 * 1792}
    v_mul_u32_u24 v12, 1792, {vG}
    v_lshl_add_u32 v12, {vN}, 4, v12
    L_tpoll:
    s_waitcnt vmcnt(0)""")
        tags_ok(list(range(140, 140 + 4 * ntl)), "L_tok", tags=[sTAG] * (2 * ntl), sel="WORD_0")
        if x_nofwd:
            A("s_branch L_tok")
        A(f"s_sleep {tback}")
        table_loads()
        spin_tail("L_tpoll", 0)
        A(f"L_tok:\ns_mov_b32 s47, {128 * NE}")
        stamp(6)
        wait_lds(F_FREE + 36, 8)
        for k in range(ntl):
            if k == ntl - 1:
                A(f"s_mov_b32 exec_lo, {hex(lastm & 0xffffffff)}\ns_mov_b32 exec_hi, {hex(lastm >> 32)}")
            A(f"ds_write_b128 v13, v[{140 + 4 * k}:{143 + 4 * k}] offset:{1024 * k}")
        A("s_mov_b64 exec, -1")
        A(f"""s_cmp_eq_u32 {sCW}, 7
    s_cbranch_scc0 L_hget
    s_waitcnt lgkmcnt(0)
    s_barrier""")
    C("every workgroup has read the epoch word (its table entries carry the tag): advance it")
    A(f"""s_cmp_lg_u32 {sB}, 0
    s_cbranch_scc1 L_exit
    v_mov_b32 v5, {sTAG}
    s_mov_b64 exec, 1
    buffer_store_dword v5, {vL16}, {SRD}, 0 offen {efl}
    s_mov_b64 exec, -1
    s_branch L_exit""")
    if t7:
        C("finishing workgroup of batch b, waves 0..6: sum the 16 head partials, residual, LN, LN, table lookup")
        A(f"""L_hget0:
        s_mul_i32 s48, {sB}, {16 * 1792}
        s_lshl_b32 {sT0}, {sCW}, 8
        s_add_u32 s48, s48, {sT0}
        s_add_u32 s48, s48, {WS_OUTP}
        s_add_u32 s49, s48, {4 * 1792}
        s_add_u32 s50, s48, {8 * 1792}
        s_add_u32 s51, s48, {12 * 1792}
        v_mul_u32_u24 v12, 1792, {vG}
        v_lshl_add_u32 v12, {vN}, 4, v12
        s_mov_b32 s47, {128 * NE}
        s_waitcnt vmcnt(0)""")
        stamp(6)
    A(f"""L_hget:
    v_lshl_add_u32 v13, v136, 2, {vM}
    v_lshl_add_u32 v14, v0, 5, {vM}
""")
    if olin:
        A(f"""s_mul_i32 {sT0}, {sCW}, 448
        v_lshl_add_u32 v40, v0, 3, {sT0}
        v_add_u32 v40, v40, {vM}
        s_lshl2_add_u32 {sT1}, {sB}, {sCW}
        s_mul_i32 {sT1}, {sT1}, 224
        v_lshl_add_u32 v41, v0, 2, {sT1}""")
    else:
        A(f"""s_lshl_b32 {sT0}, {sCW}, 3
        v_add_u32 v40, {sT0}, v14
        s_mul_i32 {sT1}, {sB}, 896
        s_lshl_b32 {sT0}, {sCW}, 2
        s_add_u32 {sT1}, {sT1}, {sT0}
        v_add_u32 v41, {sT1}, {vL16}""")
    A(f"""    v_lshlrev_b32 v137, 16, v138
    v_mov_b32 v42, {hex(fbits(1.0 / 448.0))}
    s_mov_b32 s52, {TBL_LDS}
    s_mov_b32 s53, 0x7060302""")
    for r in range(48, 56):
        A(f"v_mov_b32 v{r}, 0")
    assert not dry

    def h_loads(r0):
        for m in range(4):
            A(f"buffer_load_dwordx4 v[{r0 + 4 * m}:{r0 + 3 + 4 * m}], v12, {SRD}, s{48 + m} offen {hld}")

    def h_sum(r):
        strip_tag(range(r + 4, r + 16))
        A(f"""v_pk_add_f32 v[{r}:{r + 1}], v[{r}:{r + 1}], v[{r + 4}:{r + 5}]
        v_pk_add_f32 v[{r + 2}:{r + 3}], v[{r + 2}:{r + 3}], v[{r + 6}:{r + 7}]
        v_pk_add_f32 v[{r + 8}:{r + 9}], v[{r + 8}:{r + 9}], v[{r + 12}:{r + 13}]
        v_pk_add_f32 v[{r + 10}:{r + 11}], v[{r + 10}:{r + 11}], v[{r + 14}:{r + 15}]
        v_pk_add_f32 v[32:33], v[{r}:{r + 1}], v[{r + 8}:{r + 9}]
        v_pk_add_f32 v[34:35], v[{r + 2}:{r + 3}], v[{r + 10}:{r + 11}]""")

    if h2:
        h_loads(96)
        A(f"s_sleep {h2}")
        h_loads(112)
        A(f"""s_branch L_hchkA
        L_hagainB:
        s_sub_u32 {sBUD}, {sBUD}, 1
        s_cbranch_scc1 L_end""")
        h_loads(112)
        A("L_hchkA:\ns_waitcnt vmcnt(4)")
        tags_ok(list(range(96, 112)), None, retry="L_hagainA", between=lambda: strip_tag(range(96, 100)))
        h_sum(96)
        A("s_branch L_hok\nL_hagainA:")
        h_loads(96)
        A("s_waitcnt vmcnt(4)")
        tags_ok(list(range(112, 128)), None, retry="L_hagainB", between=lambda: strip_tag(range(112, 116)))
        h_sum(112)
        A("L_hok:")
        stamp(11)
    else:
        if hdel:
            A(f"s_sleep {hdel}")
        A(f"""s_branch L_hpoll
        L_hagain:
        {"s_mov_b64 exec, vcc" if hmask else ""}
        s_sub_u32 {sBUD}, {sBUD}, 1
        s_cbranch_scc1 L_end""")
        if hback:
            A(f"s_sleep {hback}")
        if KC > 1:
            C("next copy: lines nobody has read yet take the producers' writes faster")
            A(f"""s_cmp_lt_u32 s48, {WS_OUTP + (KC - 1) * 0x20000}
            s_cselect_b32 {sT0}, 0x20000, 0""")
            for m in range(4):
                A(f"s_add_u32 s{48 + m}, s{48 + m}, {sT0}")
        A("L_hpoll:")
        h_loads(16)
        A("s_waitcnt vmcnt(0)")
        tags_ok(list(range(16, 32)), None, retry="L_hagain", between=lambda: strip_tag(range(16, 20)))
        stamp(11)
        if hmask:
            A("s_mov_b64 exec, -1")
        h_sum(16)
    swap_reduce4(("v32", "v33", "v34", "v35"))
    rne1("v32", "v32")
    A("v_add_f32 v32, v32, v137")
    rne1("v32", "v32")
    A(f"ds_write_b32 v13, v32 offset:{HL}")
    if dry:
        A("s_cmp_lg_u32 s54, 0\ns_cbranch_scc1 L_hdry")
    A(f"""s_cmp_ge_u32 {sCW}, 4
    s_waitcnt lgkmcnt(0)
    s_barrier
    s_cbranch_scc1 L_exit
    L_hdry:""")
    if fst:
        stamp(8)
    A(f"""    s_mov_b32 exec_hi, 0x00ffffff
    ds_read_b128 v[48:51], v14 offset:{HL}
    ds_read_b128 v[52:55], v14 offset:{HL + 16}
    ds_read_b64 v[138:139], v40 offset:{HL}
    s_mov_b32 exec_hi, -1
    s_waitcnt lgkmcnt(1)""")

    def stats8():
        sums8()
        ln_scale("v22", "v23", sT0, sT1, "v42", True)

    def sums8():
        A("""v_pk_add_f32 v[20:21], v[48:49], v[50:51]
        v_pk_mul_f32 v[24:25], v[48:49], v[48:49]
        v_pk_add_f32 v[22:23], v[52:53], v[54:55]
        v_pk_fma_f32 v[24:25], v[50:51], v[50:51], v[24:25]
        v_pk_add_f32 v[20:21], v[20:21], v[22:23]
        v_pk_fma_f32 v[24:25], v[52:53], v[52:53], v[24:25]
        v_add_f32 v20, v20, v21
        v_pk_fma_f32 v[24:25], v[54:55], v[54:55], v[24:25]
        v_add_f32 v24, v24, v25""")
        wave_sums(["v20", "v24"], [sT0, sT1])

    if alg:
        C("first LayerNorm: mean / variance of h.  Its output is a = (h - m1) * r1, so the second LayerNorm's")
        C("statistics follow exactly: mean(a) = (mean - m1) * r1, var(a) = var * r1 * r1")
        sums8()
        if fst:
            stamp(9)
        A(f"""v_mul_f32 v26, {sT1}, v42
        v_mul_f32 v27, {sT0}, v42
        v_fma_f32 v26, -v27, v27, v26""")
        rne1("v22", "v27")
        A(f"""v_cvt_pk_bf16_f32 v23, 0, abs(v26)
        v_sub_f32 v24, v27, v22
        v_add_f32 v23, {hex(fbits(1e-5))}, v23""")
        rne1("v23", "v23")
        A("""v_sqrt_f32 v23, v23
        s_waitcnt lgkmcnt(0)
        v_pk_add_f32 v[36:37], v[138:139], v[22:23] op_sel_hi:[1,0] neg_lo:[0,1] neg_hi:[0,1]""")
        rne1("v23", "v23")
        A("v_rcp_f32 v23, v23")
        rne1("v36", "v36")
        A("v_mul_f32 v25, abs(v26), v23")
        rne1("v37", "v37")
        A("v_mul_f32 v25, v25, v23\nv_mul_f32 v24, v24, v23")
        rne1("v25", "v25")
        A(f"""v_pk_mul_f32 v[36:37], v[36:37], v[22:23] op_sel:[0,1] op_sel_hi:[1,1]
        v_add_f32 v25, {hex(fbits(1e-5))}, v25""")
        rne1("v24", "v24")
        rne1("v25", "v25")
        rne1("v36", "v36")
        A("v_sqrt_f32 v25, v25")
        rne1("v37", "v37")
        rne1("v25", "v25")
        A("v_pk_add_f32 v[36:37], v[36:37], v[24:25] op_sel_hi:[1,0] neg_lo:[0,1] neg_hi:[0,1]\nv_rcp_f32 v25, v25")
        rne1("v36", "v36")
        rne1("v37", "v37")
        A("s_mov_b32 exec_hi, 0x00ffffff\nv_pk_mul_f32 v[36:37], v[36:37], v[24:25] op_sel:[0,1] op_sel_hi:[1,1]")
        rne1("v36", "v36")
        rne1("v37", "v37")
    else:
        stats8()
        A("s_waitcnt lgkmcnt(0)\nv_mov_b32 v36, v138\nv_mov_b32 v37, v139\ns_mov_b32 exec_hi, 0x00ffffff")
        normalize([48, 50, 52, 54, 36], 22, 23)
        A("s_mov_b32 exec_hi, -1")
        stats8()
        A("s_mov_b32 exec_hi, 0x00ffffff")
        normalize([36], 22, 23)
    if fst:
        stamp(10)
    A(f"""v_bfe_u32 v16, v36, 16, 15
    v_bfe_u32 v17, v37, 16, 15
    v_subrev_u32 v16, {E0 << 7}, v16
    v_subrev_u32 v17, {E0 << 7}, v17
    v_lshrrev_b32 v18, 31, v36
    v_lshrrev_b32 v19, 31, v37
    v_cmp_le_u32 vcc, {128 * NE}, v16
    v_cmp_le_u32 s[56:57], s47, v17
    v_mad_u32_u24 v16, v18, s47, v16
    v_mad_u32_u24 v17, v19, s47, v17
    v_cndmask_b32 v16, v16, 0, vcc
    v_cndmask_b32 v17, v17, 0, s[56:57]
    v_lshl_add_u32 v16, v16, 2, s52
    v_lshl_add_u32 v17, v17, 2, s52
    ds_read_b32 v38, v16
    ds_read_b32 v39, v17""")
    if dry:
        A("s_cmp_lg_u32 s54, 0\ns_cbranch_scc1 L_hreal")
    A(f"""s_or_b64 s[58:59], vcc, s[56:57]
    s_waitcnt lgkmcnt(0)
    v_and_b32 v38, {sMASK}, v38
    v_and_b32 v39, {sMASK}, v39
    s_cbranch_scc1 L_direct
    L_fin:
    v_pk_add_f32 v[38:39], v[38:39], v[138:139]""")
    if x_pert:
        A(f"v_cmp_eq_u32 vcc, 0, v41\nv_mov_b32 v5, {hex(fbits(x_pert / 10000.0))}\ns_nop 0\nv_cndmask_b32 v5, 0, v5, vcc\nv_add_f32 v38, v38, v5")
    A(f"""    v_cvt_pk_bf16_f32 v38, v38, v39
    global_store_dword v41, v38, {pOUT} {fst_fl}
    s_mov_b32 exec_hi, -1""")
    stamp(12)
    A("L_exit:")
    if diag:
        A(f"s_cmp_eq_u32 {sCW}, 0\ns_cbranch_scc0 L_st1")
        stamps_out(8, 13)
        A(f"L_st1:\ns_cmp_eq_u32 {sCW}, 3\ns_cbranch_scc0 L_end")
        stamps_out(24, 13)
    A("L_end:\ns_endpgm\nL_pfend:")
    C("inputs outside the tabulated binades: evaluate the MLP directly, one element at a time")
    A(f"""L_direct:
    s_mov_b32 exec_hi, -1
    s_mov_b64 s[54:55], vcc
    s_mov_b32 s58, 0
    v_mov_b32 v7, 0
    global_load_ushort v46, v7, {pB2}
    L_dpass:
    s_cmp_eq_u64 s[54:55], 0
    s_cbranch_scc1 L_dswap
    s_ff1_i32_b64 s52, s[54:55]
    s_bitset0_b64 s[54:55], s52
    s_nop 3
    v_readlane_b32 s50, v36, s52
    v_mov_b32 v80, 0
    v_lshlrev_b32 v5, 3, v0
    s_mov_b32 s53, 0
    L_dloop:""")
    load_w()
    A("v_add_u32 v5, 512, v5\ns_waitcnt vmcnt(0)")
    unpack_w()
    gelu(["s50"], ["v80"], False)
    A("s_add_u32 s53, s53, 1\ns_cmp_lt_u32 s53, 7\ns_cbranch_scc1 L_dloop")
    wave_sums(["v80"], [sT0])
    A(f"v_mov_b32 v80, {sT0}")
    rne1("v80", "v80")
    A("v_lshlrev_b32 v81, 16, v46\nv_add_f32 v80, v80, v81")
    rne1("v80", "v80")
    A(f"""v_cmp_eq_u32 vcc, s52, v0
    s_nop 1
    v_cndmask_b32 v38, v38, v80, vcc
    s_branch L_dpass
    L_dswap:
    v_swap_b32 v36, v37
    v_swap_b32 v38, v39
    s_mov_b64 s[54:55], s[56:57]
    s_add_u32 s58, s58, 1
    s_cmp_eq_u32 s58, 1
    s_cbranch_scc1 L_dpass
    s_mov_b32 exec_hi, 0x00ffffff
    s_branch L_fin""")
    for c in cold:
        A(c)
    A("L_codeend:")
    if epf >= 3:
        L.append(".if L_codeend - L_pc0 < 9216\n.error \"code prefetch would run past the code\"\n.endif")
    L.append(f""".section .rodata,"a"
.p2align 6
.amdhsa_kernel {KN}_kernel
  .amdhsa_next_free_vgpr 168
  .amdhsa_next_free_sgpr 96
  .amdhsa_accum_offset 168
  .amdhsa_float_denorm_mode_32 3
  .amdhsa_group_segment_fixed_size 0
  .amdhsa_kernarg_size 104
  .amdhsa_user_sgpr_count 2
  .amdhsa_user_sgpr_kernarg_segment_ptr 1
  .amdhsa_system_sgpr_workgroup_id_x 1
.end_amdhsa_kernel""")
    return "\n".join(L) + "\n"


if __name__ == "__main__":
    names = []
    for spec in sys.argv[1:]:
        kw = {}
        name = None
        for kv in spec.split(","):
            if not kv:
                continue
            k, v = kv.split("=")
            if k == "o":
                name = v
                continue
            kw[k] = int(v) if v.lstrip("-").isdigit() else v.replace("+", " ").replace("none", "")
        name = name or "k_" + spec.replace(":", "-").replace(",", "_").replace("=", "").replace("+", "") + ".s"
        open(name, "w").write(gen(**kw))
        names.append(name)
    print(" ".join(names))
```

```python
import sys, struct, math
KN = "sequential_preLN__sliding_block_cached__mixer_token_mlp__decode"

def fbits(x):
    return struct.unpack("<I", struct.pack("<f", x))[0]

WS_E, WS_IDS, WS_TBL, WS_TBLN, WS_STATS, WS_Q, WS_OP, WS_OUTP = 0, 0x1000, 0x20000, 0x28000, 0x30000, 0x40000, 0x80000, 0x100000
WS_FAR = 0x200000
WS_STAMP = 0x10000000
SLOT = 16384
MISC = 9 * SLOT
LN, QL, PL, OL, TP, FL, HL = 0x0, 0x1000, 0x1500, 0x1A00, 0x1F00, 0x2300, 0x2400
HP = 576
F_LANDED, F_LNCNT, F_QCNT, F_MAXCNT, F_PCNT, F_TCNT, F_TAG, F_LOC, F_MX, F_FREE = FL, FL + 4, FL + 8, FL + 12, FL + 16, FL + 20, FL + 24, FL + 28, FL + 32, FL + 64
TBL_LDS = 7 * SLOT
TAGINC = 0x9E3779B9


def gen(D=24, DV=0, DW=40, NE=24, diag=0, ld="nt", ldq="nt", ldo="nt", rot=2, ra=1, rc=0, pf=2, epf=4, pfm=7, bar=4, uni=1, nL=16, dl="", dlx=0, bmap=0, ufree=0, efree=1, xr=0, pos="", tight=1, touch=0, h2=0, olin=1, sand=1, KC=1, opre=2, tpre=1, t7=0, ppre=0, pprefl="sc1", oprefl="sc1", hdel=0, obar=1, olate=0, hmask=0, omask=0, vbar=1, wbar=1, slp=1, pvslp=0, qback=8, tback=8, hback=0, oback=0, nst="", qst="", fst_fl="", wb=0, efl="", ost="sc1", fst=0, lst=0, hld="sc1", jmid=6, QT=4, qit=1, rnd=1, dry=0, alg=1,
        x_tl=0, x_far=0, x_nofree=0, x_stop=0, x_pert=0, x_nofwd=0, x_dbg=0, x_now=0):
    L = []
    uid = [0]
    cold = []

    def A(s):
        for ln in s.split("\n"):
            ln = ln.strip()
            if ln:
                L.append(ln if ln.endswith(":") else "    " + ln)

    def C(s):
        L.append("    ; " + s)

    def lab(p):
        uid[0] += 1
        return f"L_{p}{uid[0]}"

    assert NE % 4 == 0
    E0 = 132 - NE
    LB = 1
    wpos = 8
    sW, sWV = "s2", "s3"
    pX, pK, pV, pWQ, pWO, pW1, pB1, pW2, pB2, pOUT, pWS = "s[4:5]", (6, 7), (8, 9), (10, 11), (12, 13), "s[16:17]", "s[18:19]", "s[20:21]", "s[22:23]", "s[24:25]", "s[28:29]"
    sG, sI, sB, sS, sIDX, sBG = "s30", "s31", "s32", "s33", "s34", "s35"
    SRD = "s[36:39]"
    sBUD, sTAG, sFIN, sMASK, sXCC, sFAR = "s60", "s61", "s62", "s63", "s14", "s15"
    sTAG1 = "s0"
    tagof = lambda r: sTAG1 if r & 2 else sTAG
    sTBLN = "s27"
    sWT = "s26"
    sT0, sT1, sT2, sT3, sT4, sT5 = "s40", "s41", "s42", "s43", "s44", "s45"
    vM, vG, vN, vONE, vL16, vFF = "v1", "v2", "v3", "v4", "v6", "v15"

    def stamp(k):
        if diag:
            A(f"s_memrealtime s[{64 + 2 * k}:{65 + 2 * k}]")

    def stamps_out(base, n):
        if not diag:
            return
        A(f"s_waitcnt lgkmcnt(0)\ns_lshl_b32 {sT0}, {sW}, 9\ns_add_u32 {sT0}, {sT0}, {WS_STAMP + base * 8}\nv_mov_b32 v5, {sT0}\ns_mov_b64 exec, 1")
        for k in range(n):
            A(f"v_mov_b32 v6, s{64 + 2 * k}\nv_mov_b32 v7, s{65 + 2 * k}\nglobal_store_dwordx2 v5, v[6:7], {pWS} offset:{8 * k}\ns_nop 1")
        A("s_mov_b64 exec, -1")

    def spin_tail(top, sleep=None):
        sleep = slp if sleep is None else sleep
        if sleep:
            A(f"s_sleep {sleep}")
        A(f"s_sub_u32 {sBUD}, {sBUD}, 1\ns_cbranch_scc0 {top}\ns_branch L_end")

    def wait_lds(off, val, vt="v5", addr=vM, sleep=None):
        top, done = lab("w"), lab("d")
        A(f"{top}:\nds_read_b32 {vt}, {addr} offset:{off}\ns_waitcnt lgkmcnt(0)\nv_readfirstlane_b32 {sT5}, {vt}\ns_cmp_ge_u32 {sT5}, {val}\ns_cbranch_scc1 {done}")
        spin_tail(top, sleep)
        A(f"{done}:")

    def signal(off, vval=vONE, addr=vM):
        A(f"s_mov_b64 exec, 1\nds_add_u32 {addr}, {vval} offset:{off}\ns_mov_b64 exec, -1")

    def tags_ok(regs, ok, guard=None, tags=None, sel="BYTE_0", retry=None, between=None):
        t = ["v5", "v7", "v8", "v9", "v10", "v11", "v56", "v57"]
        parts = []
        for k in range(0, len(regs), 2):
            A(f"v_bitop3_b32 {t[k // 2]}, v{regs[k]}, v{regs[k + 1]}, {tags[k // 2] if tags else tagof(regs[k])} bitop3:0x7e")
            parts.append(t[k // 2])
        if guard:
            A(guard(parts))
        while len(parts) > 1:
            if len(parts) >= 3:
                A(f"v_or3_b32 {parts[0]}, {parts[0]}, {parts[-1]}, {parts[-2]}")
                parts = parts[:-2]
            else:
                A(f"v_or_b32 {parts[0]}, {parts[0]}, {parts[1]}")
                parts = parts[:1]
        A(f"v_cmp_ne_u32_sdwa vcc, v5, 0 src0_sel:{sel} src1_sel:DWORD")
        if retry:
            between()
            A(f"s_cmp_lg_u64 vcc, 0\ns_cbranch_scc1 {retry}")
        else:
            A(f"s_cmp_eq_u64 vcc, 0\ns_cbranch_scc1 {ok}")

    def strip_tag(regs):
        for r in regs:
            A(f"v_and_b32 v{r}, s1, v{r}" if sand else f"v_bfi_b32 v{r}, {vFF}, 0, v{r}")

    def store_group(ins, soff):
        far, done = lab("far"), lab("pub")
        A(f"{ins.format(soff)} {nst}\ns_cmp_lg_u32 {sFAR}, 0\ns_cbranch_scc1 {far}\n{done}:")
        cold.append(f"{far}:\ns_add_u32 {sT5}, {soff}, {WS_FAR}\n{ins.format(sT5)} sc1\ns_branch {done}")

    def put_tag(regs, exact=False, tag=None):
        if rnd and not exact:
            for r in regs:
                A(f"v_add_u32 v{r}, 0x80, v{r}")
        for r in regs:
            A(f"v_bfi_b32 v{r}, {vFF}, {tag or tagof(r)}, v{r}")

    DPP = ["quad_perm:[1,0,3,2] row_mask:0xf", "quad_perm:[2,3,0,1] row_mask:0xf", "row_half_mirror row_mask:0xf",
           "row_mirror row_mask:0xf", "row_bcast:15 row_mask:0xa", "row_bcast:31 row_mask:0xc"]

    def wave_sums(regs, sdst):
        A("s_nop 1" if len(regs) == 1 else "s_nop 0")
        for m in DPP:
            for r in regs:
                A(f"v_add_f32_dpp {r}, {r}, {r} {m} bank_mask:0xf")
            if len(regs) == 1 or m != DPP[-1]:
                A("s_nop 1" if len(regs) == 1 else "s_nop 0")
        for r, s in zip(regs, sdst):
            A(f"v_readlane_b32 {s}, {r}, 63")
        A("s_nop 1")

    def rne1(dst, src):
        A(f"v_cvt_pk_bf16_f32 {dst}, 0, {src}")

    def unpack2(lo, hi, src):
        A(f"v_lshlrev_b32 {lo}, 16, {src}\nv_and_b32 {hi}, {sMASK}, {src}")

    def ln_scale(vm, vr, sS1, sS2, vinv, onepass):
        A(f"v_mul_f32 {vr}, {sS2}, {vinv}\nv_mul_f32 {vm}, {sS1}, {vinv}")
        if onepass:
            A(f"v_fma_f32 {vr}, -{vm}, {vm}, {vr}")
        A(f"v_cvt_pk_bf16_f32 {vr}, 0, abs({vr})")
        rne1(vm, vm)
        A(f"v_add_f32 {vr}, {hex(fbits(1e-5))}, {vr}")
        rne1(vr, vr)
        A(f"v_sqrt_f32 {vr}, {vr}\ns_nop 0")
        rne1(vr, vr)
        A(f"v_rcp_f32 {vr}, {vr}\ns_nop 0")

    def normalize(pairs, vm, vr, last=True):
        for a in pairs:
            A(f"v_pk_add_f32 v[{a}:{a + 1}], v[{a}:{a + 1}], v[{vm}:{vm + 1}] op_sel_hi:[1,0] neg_lo:[0,1] neg_hi:[0,1]")
        for a in pairs:
            rne1(f"v{a}", f"v{a}")
            rne1(f"v{a + 1}", f"v{a + 1}")
        for a in pairs:
            A(f"v_pk_mul_f32 v[{a}:{a + 1}], v[{a}:{a + 1}], v[{vm}:{vm + 1}] op_sel:[0,1] op_sel_hi:[1,1]")
        if last:
            for a in pairs:
                rne1(f"v{a}", f"v{a}")
                rne1(f"v{a + 1}", f"v{a + 1}")

    K1 = -2.0 * math.sqrt(2.0 / math.pi) * math.log2(math.e)
    K2 = K1 * 0.044715
    CEXP = math.log2(math.e) / 16.0

    def gelu(sTs, accs, first):
        el = [(i, e) for e in range(4) for i in range(len(sTs))]
        u = lambda i, e: f"v{60 + 4 * i + e}"
        p = lambda i, e: f"v{68 + 4 * i + e}"
        for i, e in el:
            A(f"v_fma_f32 {u(i, e)}, {sTs[i]}, v{48 + e}, v{52 + e}")
        for i, e in el:
            A(f"v_mul_f32 {p(i, e)}, {u(i, e)}, {u(i, e)}")
        for i, e in el:
            A(f"v_fmaak_f32 {p(i, e)}, {p(i, e)}, v47, {hex(fbits(K1))}")
        for i, e in el:
            A(f"v_mul_f32 {p(i, e)}, {p(i, e)}, {u(i, e)}")
        for i, e in el:
            A(f"v_exp_f32 {p(i, e)}, {p(i, e)}\nv_mul_f32 {u(i, e)}, {u(i, e)}, v{56 + e}")
        for i, e in el:
            A(f"v_add_f32 {p(i, e)}, 1.0, {p(i, e)}")
        for i, e in el:
            A(f"v_rcp_f32 {p(i, e)}, {p(i, e)}")
        A("s_nop 0")
        for i, e in el:
            A(f"v_mul_f32 {accs[i]}, {u(i, e)}, {p(i, e)}" if first and e == 0 else f"v_fmac_f32 {accs[i]}, {u(i, e)}, {p(i, e)}")

    def unpack_w():
        for k, src in enumerate((76, 77, 78, 79, 84, 85)):
            unpack2(f"v{48 + 2 * k}", f"v{49 + 2 * k}", f"v{src}")
        A(f"v_mov_b32 v47, {hex(fbits(K2))}")

    def load_w():
        A(f"global_load_dwordx2 v[76:77], v5, {pW1}\nglobal_load_dwordx2 v[78:79], v5, {pB1}\nglobal_load_dwordx2 v[84:85], v5, {pW2}")

    def swap_reduce4(*sets, pad=True):
        if pad:
            A("s_nop 0")
        for a, b, c, d in sets:
            A(f"v_permlane16_swap_b32 {a}, {b}\nv_permlane16_swap_b32 {c}, {d}")
        for a, b, c, d in sets:
            A(f"v_add_f32 {a}, {a}, {b}\nv_add_f32 {c}, {c}, {d}")
        A("s_nop 1")
        for a, b, c, d in sets:
            A(f"v_permlane32_swap_b32 {a}, {c}")
        for a, b, c, d in sets:
            A(f"v_add_f32 {a}, {a}, {c}")

    L.append(f"""; Fused decode block, one launch: LN -> q projection -> sliding-window GQA attention (last 2048 keys) -> output
;
;   all 32 members run on its own die it also writes a second copy through to memory, and readers then try both copies.""")
    L.append(f"; @launch grid=(256,1,1) block=(576,1,1) lds={10 * SLOT}")
    L.append('.amdgcn_target "amdgcn-amd-amdhsa--gfx950"\n.text')
    L.append(f".globl {KN}_kernel\n.p2align 8\n.type {KN}_kernel,@function\n{KN}_kernel:")
    A(f"""s_cmpk_ge_u32 {sW}, 256
    s_cbranch_scc1 L_end
    s_load_dwordx16 s[4:19], s[0:1], 0""")
    if x_dbg:
        A("s_memrealtime s[64:65]\ns_load_dwordx2 s[66:67], s[0:1], 88")
    if epf == 4:
        C("some waves pull 1 KiB of this kernel's code towards the L2 (speed only)")
        A(f"""v_lshrrev_b32 v1, 6, v0
        s_lshr_b32 {sI}, {sW}, 3
        v_readfirstlane_b32 {sWV}, v1
        s_getpc_b64 s[40:41]
        L_pc0:
        v_lshlrev_b32 v8, 4, v0
        s_add_u32 {sT2}, {sWV}, {sI}
        s_and_b32 {sT2}, {sT2}, {pfm}
        s_cbranch_scc1 L_nopf0
        v_mov_b32 v9, s41
        v_add_co_u32 v8, vcc, s40, v8
        v_addc_co_u32 v9, vcc, 0, v9, vcc
        global_load_dwordx4 v[20:23], v[8:9], off
        L_nopf0:""")
    if epf == 3:
        C("every wave pulls 1 KiB of this kernel's code towards the L2 (speed only)")
        A("""s_getpc_b64 s[40:41]
        L_pc0:
        v_lshlrev_b32 v8, 4, v0
        v_mov_b32 v9, s41
        v_add_co_u32 v8, vcc, s40, v8
        v_addc_co_u32 v9, vcc, 0, v9, vcc
        global_load_dwordx4 v[20:23], v[8:9], off""")
    rest = "s_load_dwordx8 s[20:27], s[0:1], 64\ns_load_dwordx2 s[28:29], s[0:1], 96"
    if not tight:
        A(rest)
    stamp(0)
    if epf != 4:
        A(f"v_lshrrev_b32 v1, 6, v0\ns_lshr_b32 {sI}, {sW}, 3\nv_readfirstlane_b32 {sWV}, v1")
    A(f"""s_and_b32 {sG}, {sW}, 7
    {f"s_lshr_b32 {sB}, {sI}, 3" if bmap else f"s_and_b32 {sB}, {sI}, 3"}
    {f"s_and_b32 {sS}, {sI}, 7" if bmap else f"s_lshr_b32 {sS}, {sI}, 2"}""")
    A(f"""s_lshl3_add_u32 {sBG}, {sB}, {sG}
""")
    A(f"s_cmp_eq_u32 {sWV}, 0\ns_cbranch_scc1 L_loader")
    if epf in (1, 2):
        C("compute waves: pull this kernel's code towards the L2, 1 KiB pieces (speed only)")
        A(f"""s_getpc_b64 s[40:41]
        L_pc0:
        v_lshlrev_b32 v8, 4, v0
        v_add_u32 v10, {8 * 1024 - 1024}, v8
        v_min_u32 v10, L_codeend-L_pc0-16, v10
        v_add_u32 v8, {-1024 & 0xffffffff}, v8
        v_mov_b32 v9, s41
        v_add_co_u32 v8, vcc, s40, v8
        v_mov_b32 v11, s41
        v_addc_co_u32 v9, vcc, 0, v9, vcc
        global_load_dwordx4 v[20:23], v[8:9], off""")
        if epf > 1:
            A(f"""v_add_co_u32 v10, vcc, s40, v10
            s_nop 1
            v_addc_co_u32 v11, vcc, 0, v11, vcc
            global_load_dwordx4 v[20:23], v[10:11], off""")
    A("s_barrier\ns_branch L_compute\nL_loader:")
    C("---------------- loader wave")
    sN, sSLOT, sBASE, sGS, sRG, sRS, sCNT, sGI, sKV = "s48", "s49", "s50", "s51", "s52", "s53", "s54", "s55", "s56"
    sKJ = "s57"
    if True:
        C("rows 112b.. of wq, columns 512g+64s.. -> ring slot 8 (two lanes-wide issues run past the slice's descriptor)")
        A(f"""s_mov_b32 s46, {112 * 8192}
        s_mul_i32 {sT0}, {sB}, s46
        s_lshl3_add_u32 {sT1}, {sG}, {sS}
        s_lshl_b32 {sT1}, {sT1}, 7
        s_add_u32 {sT0}, {sT0}, {sT1}
        s_mov_b32 {sT3}, {65536 - 1024}
        v_lshrrev_b32 v12, 3, v0
        v_lshlrev_b32 v12, 13, v12
        v_and_b32 v13, 7, v0
        v_lshrrev_b32 v14, 4, v0
        v_lshlrev_b32 v14, 1, v14
        v_xor_b32 v13, v13, v14
        v_lshl_or_b32 v12, v13, 4, v12
        v_add_u32 v13, {sT3}, v12
        v_add_u32 v14, {sT3}, v13
        v_add_u32 v15, {sT3}, v14
        s_mov_b32 s47, 0x20000
        s_mov_b32 m0, s47
        {f"s_lshl_b32 {sT2}, s47, 1" if tight else ""}
        {f"s_mov_b32 {sT1}, 0" if tight else ""}
        s_waitcnt lgkmcnt(0)
        s_add_u32 s44, s{pWQ[0]}, {sT0}
        s_addc_u32 s45, s{pWQ[1]}, 0""")
        if lst:
            stamp(7)
        flags = f"""s_setprio 3
        s_mov_b32 {sBUD}, 0x80000
        v_mov_b32 {vM}, {MISC}
        s_mov_b32 s39, 0x20000
        v_lshrrev_b32 v6, {3 if ufree else 1}, v0
        v_cmp_eq_u32 vcc, {1 if ufree else 4}, v6
        v_lshl_add_u32 v5, v0, 2, {vM}
        v_mov_b32 v7, 0xff800000
        v_cndmask_b32 v6, 0, v7, vcc
        ds_write_b32 v5, v6 offset:{FL}
        s_waitcnt lgkmcnt(0)
        s_barrier"""
        if tight:
            A("L_wq:")
            for k in range(4):
                A(f"buffer_load_dwordx4 v{12 + k}, s[44:47], {sT1} offen offset:{1024 * k} {ldq} lds")
            A(f"""s_addk_i32 m0, 4096
            s_add_u32 {sT1}, {sT1}, {sT2}
            s_bitcmp0_b32 {sT1}, 20
            s_cbranch_scc1 L_wq""")
            A(flags)
            stamp(1)
            if diag:
                A("s_load_dwordx2 s[28:29], s[0:1], 96")
        for u in range(0 if tight else 16):
            if u % 4 == 0 and u:
                A(f"s_mov_b32 m0, {8 * SLOT + 1024 * u}\ns_mov_b32 {sT1}, {65536 * u}")
            A(f"buffer_load_dwordx4 v{12 + u % 4}, s[44:47], {sT1 if u > 3 else 0} offen offset:{1024 * (u % 4)} {ldq} lds")
            if u == bar - 1:
                A(flags)
                stamp(1)
    A(f"""    v_lshrrev_b32 v5, 5, v0
    v_and_b32 v6, 31, v0
    v_lshlrev_b32 v7, 1, v5
    v_xor_b32 v6, v6, v7
    v_lshlrev_b32 v6, 4, v6
    v_lshl_or_b32 v8, v5, 9, v6
    v_xor_b32 v9, 64, v8
    v_xor_b32 v10, 0x80, v8
    v_xor_b32 v11, 0xc0, v8
    s_mov_b32 {sN}, 0
    s_mov_b32 {sSLOT}, 0
    s_mov_b32 {sGS}, 4096
    s_mov_b32 {sCNT}, 16
    s_mov_b32 s38, {8 * SLOT}""")
    sR = sI
    if ra != 1 or rc:
        A(f"s_mul_i32 {sT0}, {sI}, {ra}\ns_mul_i32 {sT1}, {sG}, {rc}\ns_add_u32 {sT0}, {sT0}, {sT1}\ns_and_b32 {sT0}, {sT0}, 31")
        sR = sT0
    if rot == 9:
        A(f"""s_load_dwordx2 s[58:59], s[0:1], 88
        s_and_b32 {sT0}, {sW}, 0xfc
        s_waitcnt lgkmcnt(0)
        s_load_dword {sT1}, s[58:59], {sT0}
        s_and_b32 {sT0}, {sW}, 3
        s_lshl_b32 {sT0}, {sT0}, 3
        s_waitcnt lgkmcnt(0)
        s_lshr_b32 {sT0}, {sT1}, {sT0}
        s_mov_b32 s58, {sT0}""")
        if pos:
            A(f"s_and_b32 s57, s58, 3\ns_bfe_u32 {sRG}, s58, 0x20002\ns_bfe_u32 {sRS}, s58, 0x30004")
        else:
            A(f"s_and_b32 {sRG}, s58, 3\ns_bfe_u32 {sRS}, s58, 0x30002\ns_bfe_u32 s57, s58, 0x20005")
    elif rot == 1:
        A(f"s_and_b32 {sRG}, {sR}, 3\ns_lshr_b32 {sRS}, {sR}, 2")
    elif rot == 2:
        A(f"s_lshr_b32 {sRG}, {sR}, 3\ns_and_b32 {sRS}, {sR}, 7")
    elif rot == 3:
        A(f"s_mov_b32 {sRG}, 0\ns_and_b32 {sRS}, {sR}, 7")
    elif rot == 4:
        A(f"s_and_b32 {sRG}, {sR}, 3\ns_mov_b32 {sRS}, 0")
    elif rot == 5:
        A(f"s_lshr_b32 {sRG}, {sR}, 2\ns_and_b32 {sRS}, {sR}, 3")
    else:
        A(f"s_mov_b32 {sRG}, 0\ns_mov_b32 {sRS}, 0")
    pk, pg, pn = [int(x) for x in pos.split(":")] if pos else (10, 12, 14)
    if pos:
        assert xr
        for k in range(4):
            A(f"s_xor_b32 {sT0}, s57, {k}\ns_lshl_b32 {sT0}, {sT0}, {pk}\ns_add_u32 {sT0}, {sT0}, {3072 - 1024 * k}\nv_add_u32 v{8 + k}, {sT0}, v{8 + k}")
        A(f"s_mov_b32 {sGS}, {1 << pg}\ns_mov_b32 s38, {8 * SLOT + 3072}")
    A(f"""s_lshl_b32 {sKV}, {sBG}, 22
    s_lshl_b32 {sT1}, {sS}, 17
    s_add_u32 {sKV}, {sKV}, {sT1}
    s_add_u32 {sKV}, {sKV}, {0x300000 - (3072 if pos else 0)}
""")
    A(f"""s_add_u32 s36, s{pK[0]}, {sKV}
    s_addc_u32 s37, s{pK[1]}, 0""")

    def group_loop(flag, first, D, vb=8):
        top = lab("grp")
        A(f"s_mov_b32 {sT2}, 0")
        A(f"""{top}:
        {f"s_xor_b32 {sGI}, {sT2}, {sRG}" if xr else f"s_add_u32 {sGI}, {sT2}, {sRG}"}
        {"" if xr else f"s_and_b32 {sGI}, {sGI}, 3"}
        s_lshl_b32 {sT0}, {sT2 if pos else sGI}, 12
        s_mul_i32 {sT1}, {sGI}, {sGS}
        s_add_u32 m0, {sT0}, {sSLOT}
        s_add_u32 {sT1}, {sT1}, {sBASE}""")
        for k in range(4):
            A(f"s_waitcnt vmcnt({D - 1})\nbuffer_load_dwordx4 v{vb + k}, {SRD}, {sT1} offen offset:{1024 * k} {flag} lds")
        nb, nw = lab("nb"), lab("nw")
        A(f"s_add_u32 {sCNT}, {sCNT}, 4")
        A(f"""s_sub_u32 {sT0}, {sCNT}, {(D + 3) // 4 * 4}
        s_cbranch_scc1 {nw}
        s_and_b32 {sT1}, {sT0}, 15
        s_cbranch_scc1 {nw}
        s_lshr_b32 {sT0}, {sT0}, 4
        v_mov_b32 v5, {sT0}
        ds_write_b32 {vM}, v5 offset:{F_LANDED}
        {nw}:
        s_add_u32 {sT2}, {sT2}, 1
        s_cmp_lt_u32 {sT2}, 4
        s_cbranch_scc1 {top}""")

    def next_slot():
        A(f"""s_add_u32 {sN}, {sN}, 1
        s_add_u32 {sSLOT}, {sSLOT}, {SLOT}
        s_cmp_eq_u32 {sSLOT}, {9 * SLOT}
        s_cselect_b32 {sSLOT}, 0, {sSLOT}""")

    def wait_free():
        if x_nofree:
            return
        A(f"s_lshl_b32 {sT0}, {sN}, 2\nv_add_u32 v6, {sT0}, {vM}")
        wait_lds(F_FREE - 32, 8, "v5", "v6")

    def landed(k):
        A(f"v_mov_b32 v5, {k}\nds_write_b32 {vM}, v5 offset:{F_LANDED}")

    def drain(total, D):
        for k in range(total - (D + 15) // 16 + 1, total + 1):
            A(f"s_waitcnt vmcnt({16 * (total - k)})")
            if vbar and k == total:
                A("s_barrier")
            else:
                landed(k)

    def seg_base():
        A(f"{'s_xor_b32' if xr else 's_add_u32'} {sT0}, {sN}, {sRS}\ns_and_b32 {sT0}, {sT0}, 7\ns_lshl_b32 {sBASE}, {sT0}, {pn}")

    assert wpos == 8
    DV = DV or D
    if lst:
        stamp(8)
    if uni:
        assert DV == D or nL < 16
        C("segments 0..7: K, 8..15: V (each V segment into a slot its readers have released)")
        dls = [int(x) for x in dl.split(":")] if dl else [D] * 8
        uniq = sorted(set(dls))
        DV = max(uniq)
        if dlx:
            A(f"s_getreg_b32 {sT1}, hwreg(HW_REG_XCC_ID, 0, 3)")
        for d in uniq[1:]:
            mask = sum(1 << x for x in range(8) if dls[x] == d)
            A(f"s_movk_i32 {sT0}, {mask}\ns_bitcmp1_b32 {sT0}, {sT1 if dlx else sG}\ns_cbranch_scc1 L_kv{d}")
        for d in uniq:
            A(f"L_kv{d}:")
            if efree:
                A(f"s_lshl_b32 {sT0}, {sN}, 2\nv_add_u32 v6, {sT0}, {vM}\nds_read_b32 v7, v6 offset:{F_FREE - 28}")
            seg_base()
            group_loop(ld, True, d)
            if rot == 9 and not pos:
                A(f"s_xor_b32 {sRG}, {sRG}, s57")
            next_slot()
            if ufree:
                A(f"""s_cmp_eq_u32 {sN}, {nL}
                s_cbranch_scc1 L_kvend
                s_cmp_lt_u32 {sN}, 8
                s_cselect_b64 s[36:37], s[{pK[0]}:{pK[1]}], s[{pV[0]}:{pV[1]}]
                s_add_u32 s36, s36, {sKV}
                s_addc_u32 s37, s37, 0""")
            else:
                A(f"""s_cmp_lt_u32 {sN}, 8
                s_cbranch_scc1 L_kv{d}
                s_cmp_eq_u32 {sN}, {nL}
                s_cbranch_scc1 L_kvend
                s_add_u32 s36, s{pV[0]}, {sKV}
                s_addc_u32 s37, s{pV[1]}, 0""")
            if diag:
                A(f"s_cmp_lg_u32 {sN}, 8\ns_cbranch_scc1 L_nost2{d}")
                stamp(2)
                A(f"L_nost2{d}:")
            if x_nofree:
                A(f"s_branch L_kv{d}")
            if efree:
                A(f"""s_waitcnt lgkmcnt(0)
                v_readfirstlane_b32 {sT5}, v7
                s_cmp_ge_u32 {sT5}, 8
                s_cbranch_scc1 L_kv{d}""")
            else:
                A(f"s_lshl_b32 {sT0}, {sN}, 2\nv_add_u32 v6, {sT0}, {vM}")
            A(f"""L_free{d}:
            ds_read_b32 v5, v6 offset:{F_FREE - (28 if efree else 32)}
            s_waitcnt lgkmcnt(0)
            v_readfirstlane_b32 {sT5}, v5
            s_cmp_ge_u32 {sT5}, 8
            s_cbranch_scc1 L_kv{d}""")
            spin_tail(f"L_free{d}")
        A("L_kvend:")
        if nL < 16:
            A("L_v:")
            wait_free()
            seg_base()
            group_loop(ld, False, DV)
            next_slot()
            A(f"s_cmp_lt_u32 {sN}, 16\ns_cbranch_scc1 L_v")
    else:
        C("segments 0..7: K")
        A("L_k:")
        seg_base()
        group_loop(ld, True, D)
        next_slot()
        A(f"""s_cmp_lt_u32 {sN}, 8
        s_cbranch_scc1 L_k
        s_add_u32 s36, s{pV[0]}, {sKV}
        s_addc_u32 s37, s{pV[1]}, 0""")
        stamp(2)
        C("segments 8..15: V, each into a slot its readers have released")
        A("L_v:")
        wait_free()
        seg_base()
        group_loop(ld, False, DV)
        next_slot()
        A(f"s_cmp_lt_u32 {sN}, 16\ns_cbranch_scc1 L_v")
    stamp(3)
    A(f"s_cmp_lg_u32 {sS}, 7\ns_cbranch_scc1 L_wo")
    A("L_nowo:")
    drain(16 + LB, DV)
    A("s_branch L_ldone")
    C("two segments of wo: rows of head 2g + (b&1), 64 columns -> slots 7, 8")
    A(f"""L_wo:
    {"s_branch L_nowo" if x_stop == 9 else ""}
    v_lshrrev_b32 v5, 3, v0
    v_and_b32 v6, 7, v0
    v_lshrrev_b32 v7, 4, v0
    v_lshlrev_b32 v7, 1, v7
    v_xor_b32 v6, v6, v7
    v_lshlrev_b32 v6, 4, v6
    v_mul_u32_u24 v5, 896, v5
    v_add_u32 v12, v5, v6
    v_add_u32 v13, {7168 - 1024}, v12
    v_add_u32 v14, {7168 - 1024}, v13
    v_add_u32 v15, {7168 - 1024}, v14
    s_mov_b32 s36, s{pWO[0]}
    s_mov_b32 s37, s{pWO[1]}
    s_mov_b32 s38, {4096 * 896}
    s_lshl_b32 {sT0}, {sG}, 1
    s_and_b32 {sT1}, {sB}, 1
    s_add_u32 {sT0}, {sT0}, {sT1}
    s_mul_i32 {sBASE}, {sT0}, {256 * 896}
    s_lshl_b32 {sT1}, {sS}, 7
    s_add_u32 {sBASE}, {sBASE}, {sT1}""")
    T0 = 16 * (16 + LB)
    done = (T0 - (DV + 3) // 4 * 4) // 16
    for u in range(32):
        if u == 0 and efree and not x_nofree:
            wait_lds(F_FREE + 4 * 9, 8)
        elif u % 16 == 0 and not x_nofree and not efree:
            wait_lds(F_FREE + 4 * (8 + u // 16), 8)
        if u % 4 == 0:
            A(f"s_mov_b32 m0, {7 * SLOT + 1024 * u}")
            A(f"s_add_u32 {sBASE}, {sBASE}, {4 * 7168}" if u else "s_nop 0")
        if u + DV >= DW:
            A(f"s_waitcnt vmcnt({DW - 1})")
            k = (T0 + u - DW + 1) // 16
            if k > done:
                landed(k)
                done = k
        A(f"buffer_load_dwordx4 v{12 + u % 4}, {SRD}, {sBASE} offen offset:{1024 * (u % 4)} {ldo} lds")
    stamp(4)
    assert done < 16 + LB
    for k in range(done + 1, 18 + LB + 1):
        if k != 17 + LB:
            A(f"s_waitcnt vmcnt({16 * (18 + LB - k)})")
            if (vbar and k == 16 + LB) or (wbar and k == 18 + LB):
                A("s_barrier")
            else:
                landed(k)
            if obar and k == 16 + LB:
                if olate:
                    A(f"s_waitcnt vmcnt({olate})")
                A("s_barrier")
    A("L_ldone:")
    if x_dbg:
        A(f"""s_memrealtime s[68:69]
        s_cmp_ge_u32 {sW}, 8
        s_cbranch_scc1 L_nodbg
        s_getreg_b32 s70, hwreg(HW_REG_XCC_ID, 0, 4)
        s_waitcnt lgkmcnt(0)
        s_lshl_b32 s64, s64, 4
        s_or_b32 s64, s64, s70
        s_lshl_b32 s71, {sW}, 2
        v_mov_b32 v5, s71
        v_mov_b32 v6, s64
        v_mov_b32 v7, s68
        s_mov_b64 exec, 1
        global_store_dword v5, v6, s[66:67]
        global_store_dword v5, v7, s[66:67] offset:32
        L_nodbg:""")
    stamp(5)
    A("s_waitcnt lgkmcnt(0)")
    if diag:
        A(f"s_sub_u32 {sT0}, 0x80000, {sBUD}\ns_mul_i32 {sT0}, {sT0}, 100\ns_add_u32 s76, s64, {sT0}\ns_addc_u32 s77, s65, 0")
    stamps_out(0, 7)
    if lst:
        A('s_mov_b32 s64, s78\ns_mov_b32 s65, s79\ns_mov_b32 s66, s80\ns_mov_b32 s67, s81')
        stamps_out(40, 2)
    A("s_endpgm")

    C("---------------- compute waves")
    sCW = sWV
    A(f"""L_compute:
    {"s_endpgm" if x_stop == 9 else ""}
    {rest if tight else ""}
    s_sub_u32 {sCW}, {sWV}, 1
    s_mov_b32 {sBUD}, 0x80000
    v_mov_b32 {vM}, {MISC}
    s_mov_b32 s39, 0x20000
    v_and_b32 v0, 63, v0
    v_lshlrev_b32 {vL16}, 4, v0
    s_mul_i32 {sT0}, {sCW}, 896
    v_add_u32 v5, {sT0}, {vL16}
    v_mov_b32 v16, 0
    v_mov_b32 v17, 0
    v_mov_b32 v18, 0
    v_mov_b32 v19, 0
    v_lshrrev_b32 {vG}, 4, v0
    v_and_b32 {vN}, 15, v0
    v_mov_b32 {vONE}, 1
    v_mov_b32 {vFF}, 0xff
    v_mov_b32 v14, 0
    s_mov_b32 {sMASK}, 0xffff0000
    s_lshl_b32 {sIDX}, {sBG}, 3
    s_add_u32 {sIDX}, {sIDX}, {sS}
    s_lshl_b32 {sT0}, {sB}, 1
    s_xor_b32 {sFIN}, {sT0}, {sG}
    s_mov_b32 s38, 0x400000
    s_lshl_b32 {sT0}, {sG}, 2
    s_add_u32 {sT0}, {sT0}, {sB}
    s_lshl_b32 {sT0}, {sT0}, 3
    s_add_u32 {sT0}, {sT0}, {sS}
    s_waitcnt lgkmcnt(0)
    s_mov_b32 {sWT}, {sT0}
    s_mov_b32 {sTBLN}, {WS_TBLN}
    s_mov_b32 s1, 0xffffff00
    s_lshl_b32 s47, {sBG}, 13
    s_lshl_b32 {sT0}, {sCW}, 10
    s_or_b32 s47, s47, {sT0}
    s_or_b32 s47, s47, {WS_Q}
    s_cmp_ge_u32 {sCW}, 4
    s_mov_b32 s36, s28
    s_mov_b32 s37, s29
    s_load_dword {sTAG}, {pWS}, {WS_E}
    s_cbranch_scc1 L_nox
    s_mov_b32 exec_hi, 0x00ffffff
    global_load_dwordx4 v[16:19], v5, {pX}
    s_mov_b32 exec_hi, -1
    L_nox:
    s_cmp_lg_u32 {sCW}, 0
    s_cbranch_scc1 L_notq0
    v_mov_b32 v7, 0
    global_load_ushort v167, v7, {pB2}
    s_getreg_b32 {sXCC}, hwreg(HW_REG_XCC_ID, 0, 4)
    s_lshl_b32 s59, {sG}, 7
    s_add_u32 s59, s59, {WS_IDS}
    s_lshl_b32 {sT0}, {sI}, 2
    s_add_u32 {sT0}, {sT0}, s59
    s_lshl_b32 {sXCC}, {sXCC}, 24
    s_waitcnt lgkmcnt(0)
    s_add_u32 {sTAG}, {sTAG}, {hex(TAGINC)}
    s_lshr_b32 {sTAG1}, {sTAG}, 8
    s_and_b32 {sT1}, {sTAG}, 0xffffff
    s_or_b32 {sXCC}, {sXCC}, {sT1}
    v_mov_b32 v8, {sXCC}
    s_mov_b64 exec, 1
    buffer_store_dword v8, {vL16}, {SRD}, {sT0} offen
    s_mov_b64 exec, -1
    s_waitcnt vmcnt(2)
    s_branch L_ln
    L_notq0:
    s_lshl_b32 {sT0}, {sCW}, 9
    s_sub_u32 {sT0}, {sT0}, 512
    v_lshl_add_u32 v5, v0, 3, {sT0}""")
    if x_now == 1:
        A("s_mov_b64 exec, 1")
    load_w()
    if x_now == 1:
        A("s_mov_b64 exec, -1")
    if touch:
        C("wave 6: first touch of the pages that are streamed later (address translation, speed only)")
        A(f"""s_cmp_lg_u32 {sCW}, 6
        s_cbranch_scc1 L_notouch
        s_lshl_b32 {sT0}, {sBG}, 22
        s_lshl_b32 {sT1}, {sS}, 17
        s_add_u32 {sT0}, {sT0}, {sT1}
        s_add_u32 {sT0}, {sT0}, 0x300000
        v_mov_b32 v8, {sT0}
        s_mul_i32 {sT0}, {sG}, {512 * 896}
        v_mov_b32 v9, {sT0}
        s_mov_b64 exec, 1
        global_load_dword v20, v8, s[8:9] nt""")
        if touch > 1:
            A(f"""global_load_dword v21, v9, s[12:13] nt
            v_add_u32 v9, {512 * 896 - 4}, v9
            global_load_dword v22, v9, s[12:13] nt""")
        if touch > 2:
            A(f"v_mov_b32 v9, 0\nglobal_load_dword v23, v9, {pOUT} nt")
        A("s_mov_b64 exec, -1\nL_notouch:")
    if pf:
        C("waves 6, 7 (of the finishing workgroups): the last two KiB of the code")
        if pf == 2:
            A(f"s_xor_b32 {sT2}, {sS}, 7\ns_or_b32 {sT2}, {sT2}, {sFIN}\ns_cbranch_scc1 L_nopf")
        A(f"""s_cmp_lt_u32 {sCW}, 6
        s_cbranch_scc1 L_nopf
        s_getpc_b64 s[40:41]
        L_pfpc:
        s_lshl_b32 {sT2}, {sCW}, 10
        s_add_u32 {sT2}, {sT2}, L_pfend-L_pfpc-8192
        s_add_u32 s40, s40, {sT2}
        s_addc_u32 s41, s41, 0
        v_mov_b32 v9, s41
        v_add_co_u32 v8, vcc, s40, {vL16}
        s_nop 1
        v_addc_co_u32 v9, vcc, 0, v9, vcc
        global_load_dwordx4 v[20:23], v[8:9], off
        L_nopf:""")
    A(f"""s_waitcnt lgkmcnt(0)
    s_add_u32 {sTAG}, {sTAG}, {hex(TAGINC)}
    s_lshr_b32 {sTAG1}, {sTAG}, 8
    s_cmp_ge_u32 {sCW}, 4
    s_cbranch_scc1 L_table
    s_waitcnt vmcnt(3)""")
    C("LayerNorm of row cw of x (waves 0..3), bf16 rounding as the reference")
    A("L_ln:\ns_setprio 2")
    for k in range(4):
        unpack2(f"v{20 + 2 * k}", f"v{21 + 2 * k}", f"v{16 + k}")
    A("""v_pk_add_f32 v[28:29], v[20:21], v[22:23]
    v_pk_add_f32 v[30:31], v[24:25], v[26:27]
    v_pk_add_f32 v[28:29], v[28:29], v[30:31]
    v_add_f32 v28, v28, v29""")
    wave_sums(["v28"], [sT0])
    A(f"v_mov_b32 v32, {hex(fbits(1.0 / 448.0))}\nv_mul_f32 v30, {sT0}, v32\nv_mov_b32 v28, 0\ns_mov_b32 exec_hi, 0x00ffffff")
    for k in range(8):
        A(f"v_sub_f32 v29, v{20 + k}, v30\nv_fmac_f32 v28, v29, v29")
    A("s_mov_b32 exec_hi, -1")
    wave_sums(["v28"], [sT1])
    ln_scale("v30", "v31", sT0, sT1, "v32", False)
    normalize([20, 22, 24, 26], 30, 31, False)
    for k in range(4):
        A(f"v_cvt_pk_bf16_f32 v{16 + k}, v{20 + 2 * k}, v{21 + 2 * k}")
    A(f"""s_mul_i32 {sT0}, {sCW}, 960
    v_add3_u32 v5, {vL16}, {sT0}, {vM}
    s_mov_b32 exec_hi, 0x00ffffff
    ds_write_b128 v5, v[16:19] offset:{LN}
    s_mov_b32 exec_hi, -1""")
    signal(F_LNCNT)
    A(f"s_cmp_lg_u32 {sCW}, 0\ns_cbranch_scc1 L_table")
    C("partial q projection: 64 columns x 4 batches over 112 rows")
    stamp(1)
    A(f"""v_and_b32 v7, 3, {vN}
    v_lshlrev_b32 v12, 16, v7
    v_mul_u32_u24 v7, 960, v7
    v_lshl_add_u32 v7, {vG}, 3, v7
    s_mul_i32 {sT0}, {sB}, 224
    v_add3_u32 v7, v7, {sT0}, {vM}
    v_bfe_u32 v8, v0, 3, 2
    v_lshlrev_b32 v8, 5, v8
    v_lshrrev_b32 v9, 2, v0
    v_lshl_or_b32 v8, v9, 7, v8
    v_and_b32 v9, 3, v0
    v_lshl_or_b32 v8, v9, 3, v8
    v_add_u32 v8, {8 * SLOT}, v8
    v_xor_b32 v9, 32, v8
    v_xor_b32 v10, 64, v8
    v_xor_b32 v11, 0x60, v8
    v_lshrrev_b32 v13, 2, {vN}
    v_cmp_eq_u32 s[52:53], 1, v13
    v_cmp_eq_u32 s[54:55], 2, v13
    v_cmp_eq_u32 s[56:57], 3, v13
    v_lshl_or_b32 v12, v13, 6, v12
    v_lshl_or_b32 v12, {vG}, 4, v12
    v_mov_b32 v13, 8
    s_lshl_b32 {sT0}, {sG}, 3
    s_add_u32 {sT0}, {sT0}, {sS}
    s_lshl_b32 {sT0}, {sT0}, 10
    s_lshl_b32 {sT1}, {sB}, 8
    s_add_u32 {sT0}, {sT0}, {sT1}
    s_add_u32 {sT0}, {sT0}, {WS_Q}""")
    wait_lds(F_LNCNT, 4)
    for j in range(3):
        A(f"ds_read2_b64 v[{16 + 4 * j}:{19 + 4 * j}], v7 offset0:{8 * j} offset1:{8 * j + 4}")
    A("ds_read_b64 v[28:29], v7 offset:192")
    wait_lds(F_LANDED, 1)
    for j in range(4):
        for t in range(4):
            r = 48 + 16 * j + 4 * t
            A(f"ds_read_b64_tr_b16 v[{r}:{r + 1}], v{8 + t} offset:{4096 * j}")
            if j < 3:
                A(f"ds_read_b64_tr_b16 v[{r + 2}:{r + 3}], v{8 + t} offset:{4096 * j + 2048}")
    signal(F_FREE, "v13")
    A("s_waitcnt lgkmcnt(0)")
    for j in range(4):
        for t in range(4):
            r, d = 48 + 16 * j + 4 * t, 112 + 4 * t
            if j < 3:
                A(f"v_mfma_f32_16x16x32_bf16 v[{d}:{d + 3}], v[{r}:{r + 3}], v[{16 + 4 * j}:{19 + 4 * j}], {'0' if j == 0 else f'v[{d}:{d + 3}]'}")
            else:
                A(f"v_mfma_f32_16x16x16_bf16 v[{d}:{d + 3}], v[{r}:{r + 1}], v[28:29], v[{d}:{d + 3}]")
    A("s_nop 7")
    for t in range(1, 4):
        for r in range(4):
            A(f"v_cndmask_b32 v{112 + r}, v{112 + r}, v{112 + 4 * t + r}, s[{50 + 2 * t}:{51 + 2 * t}]")
    put_tag(range(112, 116))
    A(f"""buffer_store_dwordx4 v[112:115], v12, {SRD}, {sT0} offen {qst}
    s_add_u32 s58, {sT0}, {WS_FAR}
    v_mov_b32 v14, v12""")
    stamp(2)
    if x_stop == 1:
        A("s_endpgm")
    A("s_branch L_qk")
    C("waves 1..7: this workgroup's entries of the scalar map t -> MLP(t), t running over bf16 values")
    A("L_table:\ns_setprio 0\ns_waitcnt vmcnt(0)")
    if x_stop == 1:
        A("s_endpgm")
    unpack_w()
    A(f"""s_and_b32 {sT0}, {sWT}, 127
    s_mul_i32 {sT0}, {sT0}, {NE}
    s_add_u32 {sT0}, {sT0}, {E0 << 7}
    s_lshr_b32 {sT1}, {sWT}, 7
    s_lshl_b32 {sT1}, {sT1}, 15
    s_or_b32 {sT0}, {sT0}, {sT1}
    s_lshl_b32 s50, {sT0}, 16
    s_mov_b32 s54, 0
    s_lshl_b32 {sT0}, {sCW}, 7
    v_lshl_add_u32 v8, {vG}, 2, {vM}
    v_add_u32 v8, {sT0}, v8
    L_tloop:
    s_cmp_lg_u32 s54, {(x_tl or NE) - 4 * qit}
    s_cbranch_scc1 L_tnoq
    buffer_load_dwordx4 v[20:23], {vL16}, {SRD}, s47 offen sc1
    L_tnoq:
    s_add_u32 s51, s50, 0x10000
    s_add_u32 s52, s50, 0x20000
    s_add_u32 s53, s50, 0x30000""")
    gelu(["s50", "s51"], ["v80", "v81"], True)
    gelu(["s52", "s53"], ["v82", "v83"], True)
    swap_reduce4(("v80", "v81", "v82", "v83"))
    A("s_add_u32 s50, s50, 0x40000\ns_add_u32 s54, s54, 4")
    for m in DPP[:4]:
        A(f"v_add_f32_dpp v80, v80, v80 {m} bank_mask:0xf\ns_nop 1")
    A(f"""s_cmp_lt_u32 s54, {x_tl or NE}
    ds_write_b32 v8, v80 offset:{TP - 128}
    v_add_u32 v8, 16, v8
    s_cbranch_scc1 L_tloop""")
    signal(F_TCNT)
    stamp(1)
    C("key slot cw -> registers, slot is released at once")
    A(f"""L_qk:
    s_setprio 1
    v_and_b32 v8, 7, {vN}
    v_lshlrev_b32 v8, 1, v8
    v_xor_b32 v8, v8, {vG}
    v_lshlrev_b32 v8, 4, v8
    v_lshl_or_b32 v8, {vN}, 9, v8
    s_lshl_b32 {sT0}, {sCW}, 14
    v_add_u32 v8, {sT0}, v8
    v_xor_b32 v9, 64, v8
    v_xor_b32 v10, 0x80, v8
    v_xor_b32 v11, 0xc0, v8
    s_lshl_b32 {sT0}, {sCW}, 2
    v_add_u32 v12, {sT0}, {vM}
    v_mov_b32 v13, 8
    s_add_u32 {sT4}, {sCW}, {1 + LB}""")
    wait_lds(F_LANDED, sT4)
    for j in range(8):
        for t in range(2):
            r = 48 + 8 * j + 4 * t
            A(f"ds_read_b128 v[{r}:{r + 3}], v{8 + (j & 3)} offset:{256 * (j >> 2) + 8192 * t}")
    signal(F_FREE + 4, "v13", "v12")
    stamp(3)
    if x_stop == 2:
        A("s_endpgm")
    C("64 columns of q: sum of the four row-quarter partials")
    A(f"""s_lshr_b32 {sT1}, {sCW}, 2
    s_mul_i32 {sT1}, {sT1}, {HP}
    s_and_b32 {sT2}, {sCW}, 3
    s_lshl_b32 {sT2}, {sT2}, 7
    s_add_u32 {sT1}, {sT1}, {sT2}
    v_lshlrev_b32 v12, 1, {vG}
    v_lshl_or_b32 v12, {vN}, 3, v12
    v_add3_u32 v12, v12, {sT1}, {vM}
    s_cmp_lg_u32 {sCW}, 0
    s_cbranch_scc1 L_qchk""")
    wait_lds(F_LANDED, QT + LB)
    A(f"buffer_load_dwordx4 v[20:23], {vL16}, {SRD}, s47 offen sc1")
    C("wave 0: do the 32 workgroups of this kv head share this compute die (one L2)?  Not seen yet counts as no")
    A(f"""v_and_b32 v16, 31, v0
    v_lshlrev_b32 v16, 2, v16
    buffer_load_dword v17, v16, {SRD}, s59 offen sc1
    s_waitcnt vmcnt(0)
    v_cmp_ne_u32 vcc, {sXCC}, v17
    v_mov_b32 v17, 1
    s_cmp_lg_u64 vcc, 0
    s_cbranch_scc1 L_idfar
    {"s_branch L_idfar" if x_far else ""}
    L_idloc:
    ds_write_b32 {vM}, v17 offset:{F_LOC}
    L_qchk:
    s_waitcnt vmcnt(0)""")
    cold.append(f"""L_idfar:
    buffer_store_dwordx4 v[112:115], v14, {SRD}, s58 offen sc1
    v_mov_b32 v17, {WS_FAR + 1}
    s_branch L_idloc""")
    tags_ok([20, 21, 22, 23], "L_qok")
    wait_lds(F_LOC, 1, sleep=qback)
    A(f"""s_sub_u32 {sT5}, {sT5}, 1
    s_xor_b32 s47, s47, {sT5}
    s_sleep {qback}
    buffer_load_dwordx4 v[20:23], {vL16}, {SRD}, s47 offen sc1""")
    spin_tail("L_qchk", 0)
    A("L_qok:")
    strip_tag(range(20, 24))
    swap_reduce4(("v20", "v21", "v22", "v23"))
    A(f"""v_cvt_pk_bf16_f32 v20, v20, v20
    ds_write_b16 v12, v20 offset:{QL}""")
    signal(F_QCNT)
    A(f"""v_and_b32 v7, 1, {vN}
    v_lshl_add_u32 v8, v7, 2, {vM}
    v_mul_u32_u24 v7, {HP}, v7
    v_lshl_add_u32 v7, {vG}, 4, v7
    v_add_u32 v7, v7, {vM}
    s_lshl_b32 {sT0}, {sCW}, 6
    v_add_u32 v9, {sT0}, v7
    s_mov_b32 s46, {hex(fbits(CEXP))}""")
    wait_lds(F_QCNT, 8)
    stamp(4)
    A(f"ds_read_b32 v5, {vM} offset:{F_LOC}")
    for j in range(8):
        A(f"ds_read_b128 v[{16 + 4 * j}:{19 + 4 * j}], v7 offset:{QL + 64 * j}")
    for j in range(8):
        A(f"s_waitcnt lgkmcnt({7 - j})")
        if j == 0:
            A(f"v_readfirstlane_b32 {sFAR}, v5")
        for t in range(2):
            r = 48 + 8 * j + 4 * t
            d = 112 + 4 * t
            A(f"v_mfma_f32_16x16x32_bf16 v[{d}:{d + 3}], v[{r}:{r + 3}], v[{16 + 4 * j}:{19 + 4 * j}], {'0' if j == 0 else f'v[{d}:{d + 3}]'}")
    A(f"s_sub_u32 {sFAR}, {sFAR}, 1\ns_nop 6")
    for k in range(8):
        rne1(f"v{112 + k}", f"v{112 + k}")
    A(f"""v_max3_f32 v120, v112, v113, v114
    v_max3_f32 v121, v115, v116, v117
    v_max3_f32 v120, v120, v118, v119
    v_max_f32 v120, v120, v121
    s_mov_b32 exec_lo, 0x00030003
    s_mov_b32 exec_hi, 0x00030003
    ds_max_f32 v8, v120 offset:{F_MX}
    s_mov_b64 exec, -1""")
    signal(F_MAXCNT)
    wait_lds(F_MAXCNT, 8)
    A(f"ds_read_b32 v124, v8 offset:{F_MX}\ns_waitcnt lgkmcnt(0)")
    for k in range(8):
        A(f"v_sub_f32 v{112 + k}, v{112 + k}, v124")
    for k in range(8):
        A(f"v_mul_f32 v{112 + k}, s46, v{112 + k}")
    for k in range(8):
        A(f"v_exp_f32 v{112 + k}, v{112 + k}")
    A("s_nop 0")
    for k in range(4):
        A(f"v_cvt_pk_bf16_f32 v{120 + k}, v{112 + 2 * k}, v{113 + 2 * k}")
    A(f"""s_mov_b32 exec_lo, 0x00030003
    s_mov_b32 exec_hi, 0x00030003
    ds_write_b128 v9, v[120:123] offset:{PL}
    s_mov_b64 exec, -1""")
    signal(F_PCNT)
    C("addresses of the PV loop and of the stages behind it")
    A(f"""v_mov_b32 v43, v7
    v_bfe_u32 v8, v0, 2, 3
    s_lshl_b32 {sT0}, {sCW}, 1
    v_xor_b32 v8, {sT0}, v8
    v_lshlrev_b32 v8, 5, v8
    v_lshrrev_b32 v9, 2, v0
    v_lshl_or_b32 v8, v9, 9, v8
    v_and_b32 v10, 3, v0
    v_lshl_or_b32 v44, v10, 3, v8
    v_xor_b32 v45, 32, v44""")
    for r in range(112, 120):
        A(f"v_mov_b32 v{r}, 0")
    A(f"""v_and_b32 v28, 1, {vN}
    v_lshlrev_b32 v28, 10, v28
    v_bfe_u32 v29, {vN}, 1, 1
    v_lshl_or_b32 v28, v29, 6, v28
    v_lshl_or_b32 v160, {vG}, 4, v28
    v_cmp_ne_u32 s[56:57], 0, v29
    s_lshl_b32 s51, {sIDX}, 11
    s_lshl_b32 {sT0}, {sCW}, 7
    s_add_u32 s51, s51, {sT0}
    s_add_u32 s51, s51, {WS_OP}
    v_lshlrev_b32 v161, 6, {vG}
    v_lshlrev_b32 v28, 4, {vN}
    v_lshl_or_b32 v162, {vG}, 11, v28
    s_and_b32 {sT2}, {sBG}, 0x17
    s_lshr_b32 {sT1}, {sCW}, 2
    s_lshl_b32 {sT1}, {sT1}, 3
    s_add_u32 {sT2}, {sT2}, {sT1}
    s_and_b32 {sT3}, {sB}, 1
    s_lshl_b32 s52, {sT2}, 14
    s_lshl_b32 {sT1}, {sT3}, 10
    s_add_u32 s52, s52, {sT1}
    s_and_b32 {sT1}, {sCW}, 3
    s_lshl_b32 {sT1}, {sT1}, 8
    s_add_u32 s52, s52, {sT1}
    s_add_u32 s52, s52, {WS_OP}
    s_add_u32 s59, s52, {4 << 11}
    v_bfe_u32 v28, v0, 3, 2
    s_and_b32 {sT1}, {sCW}, 3
    v_xor_b32 v28, {sT1}, v28
    v_lshlrev_b32 v28, 5, v28
    v_lshl_or_b32 v28, v9, 7, v28
    v_lshl_or_b32 v163, v10, 3, v28
    v_add_u32 v164, {((8 + wpos) % 9) * SLOT}, v163
    v_lshlrev_b32 v28, 4, v10
    v_bfe_u32 v29, v0, 2, 1
    v_lshl_or_b32 v28, v29, 3, v28
    v_bfe_u32 v29, v0, 3, 1
    v_lshl_or_b32 v28, v29, 6, v28
    v_lshl_or_b32 v28, {vG}, 1, v28
    s_lshr_b32 {sT0}, {sCW}, 2
    s_mul_i32 {sT0}, {sT0}, {HP}
    s_lshl_b32 {sT1}, {sT1}, 7
    s_add_u32 {sT0}, {sT0}, {sT1}
    v_add3_u32 v165, v28, {sT0}, {vM}
    s_lshl_b32 {sT0}, {sCW}, 6
    v_add_u32 v166, {OL - PL}, v7
    v_mul_u32_u24 v14, {16 * 1792}, {vN}
    v_lshl_add_u32 v14, {vG}, 4, v14
    s_and_b32 s53, {sB}, 2
    s_lshl_b32 s53, s53, 3
    s_add_u32 s53, s53, {sG}
    s_lshl_b32 s53, s53, 1
    s_add_u32 s53, s53, {sT3}
    s_mul_i32 s53, s53, 1792
    s_lshl_b32 {sT1}, {sS}, 8
    s_add_u32 s53, s53, {sT1}
    s_add_u32 s53, s53, {sT0}
    s_add_u32 s53, s53, {WS_OUTP + (KC - 1) * 0x20000}
    s_lshl_b32 s54, {sT2}, 9
    s_lshl_b32 {sT1}, {sT3}, 3
    s_add_u32 s54, s54, {sT1}
    s_add_u32 s54, s54, {WS_STATS}
    v_lshl_add_u32 v136, {vN}, 2, {vG}
    v_add_u32 v136, {sT0}, v136
    s_mul_i32 {sT1}, {sB}, 896
    v_lshl_add_u32 v137, v136, 1, {sT1}
    s_and_b32 s55, {sWT}, 0xf8
    s_mul_i32 s55, s55, {NE * 4}
    s_xor_b32 {sT1}, {sS}, 7
    s_or_b32 {sFIN}, {sFIN}, {sT1}""")
    if ppre:
        C("first read of the lines that will hold this workgroup's partial rows (brings them into the L2; speed only)")
        A(f"""s_cmp_lg_u32 {sCW}, 5
        s_cbranch_scc1 L_noppre
        v_lshlrev_b32 v28, 7, v0
        s_lshl_b32 {sT0}, {sIDX}, 11
        s_add_u32 {sT0}, {sT0}, {WS_OP}
        s_mov_b64 exec, 0xffff
        buffer_load_dword v128, v28, {SRD}, {sT0} offen {pprefl}
        s_mov_b64 exec, -1
        L_noppre:""")
    if tpre:
        C("first read of the table lines this workgroup passes on (brings them on chip; speed only)")
        A(f"""s_xor_b32 {sT0}, {sS}, 7
        s_xor_b32 {sT1}, {sCW}, 7
        s_or_b32 {sT0}, {sT0}, {sT1}
        s_cbranch_scc1 L_notpre
        v_lshlrev_b32 v28, 7, v0
        s_add_u32 {sT0}, s55, {WS_TBL}
        s_mov_b64 exec, {(1 << (NE // 4)) - 1}
        buffer_load_dword v128, v28, {SRD}, {sT0} offen sc1
        s_mov_b64 exec, -1
        L_notpre:""")
    if opre == 2:
        C("first read of the lines this workgroup writes in stage 3 (brings them on chip; speed only)")
        A(f"""s_and_b32 {sT0}, {sCW}, 5
        s_cbranch_scc1 L_nopre
        s_cmp_eq_u32 {sS}, 7
        s_cbranch_scc1 L_nopre
        s_mov_b64 exec, 3
        s_mov_b32 {sT0}, s53""")
        for k in range(KC):
            A(f"buffer_load_dword v128, v14, {SRD}, {sT0} offen {oprefl}\ns_sub_u32 {sT0}, {sT0}, 0x20000")
        A("s_mov_b64 exec, -1\nL_nopre:")
    wait_lds(F_PCNT, 8)
    stamp(5)
    if x_stop == 3:
        A("s_endpgm")
    C("wave 0: row sums of the bf16 probabilities (ones x P), publish (max, sum) of both heads")
    A(f"s_cmp_lg_u32 {sCW}, 0\ns_cbranch_scc1 L_nostat")
    for j in range(8):
        A(f"ds_read_b128 v[{48 + 4 * j}:{51 + 4 * j}], v43 offset:{PL + 64 * j}")
    for r in range(16, 20):
        A(f"v_mov_b32 v{r}, 0x3f803f80")
    A(f"""s_lshl_b32 {sT0}, {sIDX}, 6
    s_add_u32 {sT0}, {sT0}, {WS_STATS}
    s_waitcnt lgkmcnt(0)""")
    for j in range(8):
        A(f"v_mfma_f32_16x16x32_bf16 v[20:23], v[16:19], v[{48 + 4 * j}:{51 + 4 * j}], {'0' if j == 0 else 'v[20:23]'}")
    A(f"""v_mov_b32_dpp v126, v124 quad_perm:[1,0,3,2] row_mask:0xf bank_mask:0xf
    s_nop 6
    v_mov_b32 v125, v20
    v_mov_b32_dpp v127, v20 quad_perm:[1,0,3,2] row_mask:0xf bank_mask:0xf""")
    put_tag([125, 127], tag=sTAG1)
    put_tag([124, 126], True, sTAG)
    A("s_mov_b64 exec, 1")
    store_group(f"buffer_store_dwordx4 v[124:127], {vL16}, {SRD}, {{}} offen", sT0)
    C("wave 0: finish and publish the table entries")
    A(f"s_mov_b64 exec, -1\nv_and_b32 v7, 31, v0\nv_lshl_add_u32 v7, v7, 2, {vM}")
    wait_lds(F_TCNT, 7)
    for k in range(7):
        A(f"ds_read_b32 v{16 + k}, v7 offset:{TP + 128 * k}")
    A(f"""s_mul_i32 {sT0}, {sWT}, {NE * 4}
    s_add_u32 {sT0}, {sT0}, {WS_TBLN}
    v_lshlrev_b32 v8, 2, v0
    v_lshlrev_b32 v46, 16, v167
    s_waitcnt lgkmcnt(0)
    v_add_f32 v16, v16, v17
    v_add_f32 v18, v18, v19
    v_add_f32 v20, v20, v21
    v_add_f32 v16, v16, v18
    v_add_f32 v20, v20, v22
    v_add_f32 v16, v16, v20""")
    rne1("v16", "v16")
    A("v_add_f32 v16, v16, v46")
    rne1("v16", "v16")
    A(f"v_mov_b32 v17, {sTAG}\nv_bfi_b32 v16, {sMASK}, v16, v17")
    A(f"s_mov_b64 exec, {(1 << NE) - 1}")
    store_group(f"buffer_store_dword v16, v8, {SRD}, {{}} offen", sT0)
    A("s_mov_b64 exec, -1\nL_nostat:")
    sJ, sVS, sJL = "s48", "s49", "s50"
    ntl = (NE * 128 + 1023) // 1024
    lastm = (1 << ((NE * 128 - 1024 * (ntl - 1)) // 16)) - 1

    def table_loads():
        for k in range(ntl):
            if k == ntl - 1:
                A(f"s_mov_b32 exec_lo, {hex(lastm & 0xffffffff)}\ns_mov_b32 exec_hi, {hex(lastm >> 32)}")
            A(f"buffer_load_dwordx4 v[{140 + 4 * k}:{143 + 4 * k}], {vL16}, {SRD}, s55 offen offset:{1024 * k} sc1")
        A("s_mov_b64 exec, -1")

    A(f"""s_mov_b32 {sJ}, 0
    s_mov_b32 {sVS}, {8 * SLOT}
    s_mov_b32 {sJL}, {jmid}
    v_add_u32 v12, {F_FREE + 36}, {vM}
    s_mov_b32 {sT4}, {9 + LB}
    s_cmp_eq_u32 {sS}, 7
    s_cselect_b32 s58, 0, 2
    L_pv:
    ds_read_b128 v[16:19], v43 offset:{PL}
    v_add_u32 v10, {sVS}, v44
    v_add_u32 v11, {sVS}, v45""")
    if vbar:
        C("the last slot is announced by a barrier with the loader")
        A(f"s_cmp_lg_u32 {sJ}, 7\ns_waitcnt lgkmcnt(0)\ns_cbranch_scc1 L_pvwait\ns_barrier\nL_pvgo:")
        pvwait = (f"""L_pvwait:
        ds_read_b32 v5, {vM} offset:{F_LANDED}
        s_waitcnt lgkmcnt(0)
        v_readfirstlane_b32 {sT5}, v5
        s_cmp_ge_u32 {sT5}, {sT4}
        s_cbranch_scc1 L_pvgo
        s_sleep 1
        s_sub_u32 {sBUD}, {sBUD}, 1
        s_cbranch_scc0 L_pvwait
        s_branch L_end""")
    else:
        wait_lds(F_LANDED, sT4, sleep=pvslp)
    A(f"""ds_read_b64_tr_b16 v[20:21], v10
    ds_read_b64_tr_b16 v[22:23], v10 offset:8192
    ds_read_b64_tr_b16 v[24:25], v11
    ds_read_b64_tr_b16 v[26:27], v11 offset:8192""")
    signal(0, vONE, "v12")
    A(f"""v_add_u32 v43, 64, v43
    s_add_u32 {sJ}, {sJ}, 1""")
    if wpos < 8:
        A(f"""s_cmp_eq_u32 {sJ}, {wpos}
        s_cselect_b32 {sT0}, s58, 0
        s_add_u32 {sT0}, {sT0}, 1
        s_add_u32 {sT4}, {sT4}, {sT0}
        s_lshl_b32 {sT1}, {sT0}, 2
        v_add_u32 v12, {sT1}, v12
        s_lshl_b32 {sT1}, {sT0}, 14
        s_add_u32 {sVS}, {sVS}, {sT1}
        s_sub_u32 {sT1}, {sVS}, {9 * SLOT}
        s_cselect_b32 {sVS}, {sVS}, {sT1}""")
    else:
        A(f"""v_add_u32 v12, 4, v12
        s_add_u32 {sT4}, {sT4}, 1
        s_add_u32 {sVS}, {sVS}, {SLOT}
        s_cmp_eq_u32 {sVS}, {9 * SLOT}
        s_cselect_b32 {sVS}, 0, {sVS}""")
    A(f"""    s_cmp_lt_u32 {sJ}, {sJL}
    s_waitcnt lgkmcnt(3)
    v_mfma_f32_16x16x32_bf16 v[112:115], v[20:23], v[16:19], v[112:115]
    s_waitcnt lgkmcnt(1)
    v_mfma_f32_16x16x32_bf16 v[116:119], v[24:27], v[16:19], v[116:119]
    s_cbranch_scc1 L_pv
    s_cmp_eq_u32 {sJ}, 8
    s_cbranch_scc1 L_pv_done""")
    C("before the last value slots: fetch what the next stage needs besides the partial rows")
    A(f"""s_mov_b32 {sJL}, 8
    s_cmp_eq_u32 {sS}, 7
    s_cbranch_scc1 L_mid7""")
    if opre == 1:
        A(f"""s_cmp_ge_u32 {sCW}, 4
        s_cbranch_scc1 L_nopre
        s_mov_b32 exec_lo, 0x00030003
        s_mov_b32 exec_hi, 0
        s_mov_b32 {sT0}, s53""")
        for k in range(KC):
            A(f"buffer_load_dword v128, v14, {SRD}, {sT0} offen {oprefl}\ns_sub_u32 {sT0}, {sT0}, 0x20000")
        A("s_mov_b64 exec, -1\nL_nopre:")
    A(f"""    buffer_load_dwordx2 v[32:33], v161, {SRD}, s54 offen sc1
    buffer_load_dwordx2 v[34:35], v161, {SRD}, s54 offen offset:256 sc1""")
    A(f"""s_branch L_pv
    L_mid7:
    s_cmp_lg_u32 {sCW}, {7 if t7 else 0}
    s_cbranch_scc1 L_mid8
    v_mov_b32 v32, {sTAG}
    v_mov_b32 v33, {sTAG}
    v_mov_b32 v34, {sTAG}
    v_mov_b32 v35, {sTAG}
    s_add_u32 s54, s55, {WS_TBLN}
    s_mov_b32 exec_hi, {hex((1 << (2 * NE - 32)) - 1)}
    buffer_load_dwordx4 v[32:35], {vL16}, {SRD}, s54 offen sc1
    s_mov_b32 exec_hi, -1
    L_mid8:
    s_cmp_lg_u32 {sFIN}, 0
    s_cbranch_scc1 L_pv
    s_cmp_eq_u32 {sCW}, 7
    s_cbranch_scc1 L_pv
    global_load_ushort v138, v137, {pX}
    s_branch L_pv""")
    if vbar:
        A(pvwait)
    A("L_pv_done:")
    stamp(7)
    if x_stop == 4:
        A("s_endpgm")
    C("publish the partial output rows")
    A(f"""s_nop 4
    v_cndmask_b32 v112, v112, v116, s[56:57]
    v_cndmask_b32 v113, v113, v117, s[56:57]
    v_cndmask_b32 v114, v114, v118, s[56:57]
    v_cndmask_b32 v115, v115, v119, s[56:57]""")
    put_tag(range(112, 116), True)
    A(f"""s_mov_b32 exec_lo, 0x000f000f
    s_mov_b32 exec_hi, 0x000f000f
""")
    store_group(f"buffer_store_dwordx4 v[112:115], v160, {SRD}, {{}} offen", "s51")
    opoll = f"""buffer_load_dwordx4 v[24:27], v162, {SRD}, s52 offen sc1
    buffer_load_dwordx4 v[28:31], v162, {SRD}, s59 offen sc1"""
    A(f"""s_mov_b64 exec, -1
    s_cmp_eq_u32 {sS}, 7
    s_cbranch_scc1 L_last""")
    if not olate:
        if obar:
            C("all partial rows of this workgroup are on their way before the first look at the group's rows")
            A("s_barrier")
        A(opoll)
    A(f"s_cmp_lg_u32 {sFAR}, 0\ns_cbranch_scc1 L_spoll0\ns_waitcnt vmcnt({1 if olate else 3})\nL_spoll:")
    cold.append("L_spoll0:\ns_waitcnt vmcnt(0)\ns_branch L_spoll")
    tags_ok([32, 34, 33, 35], "L_sok", tags=[sTAG, sTAG1])
    A(f"""s_xor_b32 s54, s54, {sFAR}
    buffer_load_dwordx2 v[32:33], v161, {SRD}, s54 offen sc1
    buffer_load_dwordx2 v[34:35], v161, {SRD}, s54 offen offset:256 sc1
    s_waitcnt vmcnt(0)""")
    spin_tail("L_spoll", 0)
    A(f"""L_oagain:
    {"s_mov_b64 exec, vcc" if omask else ""}
    s_xor_b32 s52, s52, {sFAR}
    s_xor_b32 s59, s59, {sFAR}""")
    A(opoll)
    spin_tail("L_opoll", 0)
    A("L_sok:")
    C("weights of the splits row and row+4")
    A(f"""v_and_b32 v32, {sMASK}, v32
    v_and_b32 v34, {sMASK}, v34""")
    strip_tag([33, 35])

    def rowred(op, d, t):
        for sw in ("v_permlane16_swap_b32", "v_permlane32_swap_b32"):
            A(f"v_mov_b32 {t}, {d}\ns_nop 1\n{sw} {d}, {t}\n{op} {d}, {d}, {t}")

    A("v_max_f32 v36, v32, v34")
    rowred("v_max_f32", "v36", "v37")
    A("""v_sub_f32 v32, v32, v36
    v_sub_f32 v34, v34, v36
    v_mul_f32 v32, s46, v32
    v_mul_f32 v34, s46, v34
    v_exp_f32 v32, v32
    v_exp_f32 v34, v34
    s_nop 0
    v_mul_f32 v36, v33, v32
    v_fmac_f32 v36, v35, v34""")
    rowred("v_add_f32", "v36", "v37")
    A("""v_rcp_f32 v36, v36
    s_nop 0
    v_mul_f32 v32, v32, v36
    v_mul_f32 v34, v34, v36""")
    if olate:
        C("first look at the group's rows: own rows are on their way, wo is about to land (barrier with the loader)")
        A("s_barrier")
        A(opoll)
    if wbar:
        C("wo has landed (barrier with the loader)")
        A(f"s_cmp_ge_u32 {sCW}, 4\ns_barrier\ns_cbranch_scc1 L_opoll")
    else:
        A(f"s_cmp_ge_u32 {sCW}, 4\ns_cbranch_scc1 L_opoll")
        wait_lds(F_LANDED, 10 + wpos + LB, sleep=pvslp)
    for j in range(8):
        for u in range(2):
            part = j >> 2
            sl0, sl = (8 + wpos) % 9, (8 + wpos + part) % 9
            base, off = ("v164", (sl - sl0) * SLOT) if sl >= sl0 else ("v163", sl * SLOT)
            r = 48 + 4 * j + 2 * u
            A(f"ds_read_b64_tr_b16 v[{r}:{r + 1}], {base} offset:{off + 4096 * (j & 3) + 2048 * u}")
    stamp(8)
    A("L_opoll:\ns_waitcnt vmcnt(0)")

    def o_scale():
        strip_tag(range(28, 32))
        A("""v_pk_mul_f32 v[24:25], v[24:25], v[32:33] op_sel_hi:[1,0]
        v_pk_mul_f32 v[26:27], v[26:27], v[32:33] op_sel_hi:[1,0]
        v_pk_fma_f32 v[24:25], v[28:29], v[34:35], v[24:25] op_sel_hi:[1,0,1]
        v_pk_fma_f32 v[26:27], v[30:31], v[34:35], v[26:27] op_sel_hi:[1,0,1]""")

    tags_ok(list(range(24, 32)), None, retry="L_oagain", between=lambda: strip_tag(range(24, 28)))
    stamp(9)
    if omask:
        A("s_mov_b64 exec, -1")
    o_scale()
    swap_reduce4(("v24", "v25", "v26", "v27"))
    A(f"""v_cvt_pk_bf16_f32 v24, v24, v24
    ds_write_b16 v165, v24 offset:{OL}
    s_cmp_ge_u32 {sCW}, 4
    s_waitcnt lgkmcnt(0)
    s_barrier
    s_cbranch_scc1 {"L_wb" if wb else "L_exit"}""")
    if wb:
        cold.append(f"""L_wb:
        s_or_b32 {sT0}, {sB}, {sS}
        s_xor_b32 {sT1}, {sCW}, 7
        s_or_b32 {sT0}, {sT0}, {sT1}
        s_cbranch_scc1 L_exit
        {f"s_sleep {wb}" if wb > 1 else ""}
        buffer_wbl2 sc1
        s_branch L_exit""")
    for j in range(8):
        A(f"ds_read_b128 v[{16 + 4 * j}:{19 + 4 * j}], v166 offset:{PL + 64 * j}")
    for j in range(8):
        A(f"s_waitcnt lgkmcnt({7 - j})\nv_mfma_f32_16x16x32_bf16 v[112:115], v[{48 + 4 * j}:{51 + 4 * j}], v[{16 + 4 * j}:{19 + 4 * j}], {'0' if j == 0 else 'v[112:115]'}")
    A(f"""s_mov_b32 exec_lo, 0x00030003
    s_mov_b32 exec_hi, 0x00030003
    s_nop 5""")
    put_tag(range(112, 116), True)
    for k in range(KC):
        A(f"buffer_store_dwordx4 v[112:115], v14, {SRD}, s53 offen {ost}")
        if k < KC - 1:
            A("s_sub_u32 s53, s53, 0x20000")
    A("s_mov_b64 exec, -1")
    stamp(10)
    A("s_branch L_exit")
    C("workgroups of split 7, one wave: pass the table entries of the 8 splits on to the finishing workgroups")
    A(f"""L_last:
    s_cmp_lg_u32 {sCW}, {7 if t7 else 0}
    s_cbranch_scc1 L_nofwd
    L_fpoll:
    s_waitcnt vmcnt(0)""")
    tags_ok([32, 33, 34, 35], "L_fok", tags=[sTAG] * 2, sel="WORD_0")
    A(f"""s_xor_b32 s54, s54, {sFAR}
    s_mov_b32 exec_hi, {hex((1 << (2 * NE - 32)) - 1)}
    buffer_load_dwordx4 v[32:35], {vL16}, {SRD}, s54 offen sc1
    s_mov_b32 exec_hi, -1""")
    spin_tail("L_fpoll")
    A(f"""L_fok:
    s_add_u32 s54, s55, {WS_TBL}
    s_mov_b32 exec_hi, {hex((1 << (2 * NE - 32)) - 1)}
    {"" if x_nofwd else f"buffer_store_dwordx4 v[32:35], {vL16}, {SRD}, s54 offen sc1"}
    s_mov_b32 exec_hi, -1
    L_nofwd:""")
    if t7:
        assert NE % 8 == 0
        nl = NE // 8
        A(f"""s_cmp_lg_u32 {sFIN}, 0
        s_cbranch_scc1 L_exit
        s_cmp_lg_u32 {sCW}, 7
        s_cbranch_scc1 L_hget0""")
        C("finishing workgroup, wave 7: the whole table to LDS (own kv head's share from the L2 copy when the group is on one die)")
        A(f"""s_cmp_eq_u32 {sFAR}, 0
        s_cselect_b32 s48, {sG}, 8
        v_add_u32 v13, {TBL_LDS}, {vL16}""")
        wait_lds(F_FREE + 36, 8)
        A("s_branch L_tload\nL_tagain:\ns_waitcnt lgkmcnt(0)")
        if tback:
            A(f"s_sleep {tback}")
        A(f"s_sub_u32 {sBUD}, {sBUD}, 1\ns_cbranch_scc1 L_end\nL_tload:")
        for gp in range(8):
            A(f"s_cmp_eq_u32 s48, {gp}\ns_cselect_b32 {sT0}, {sTBLN}, {WS_TBL}\ns_add_u32 {sT0}, {sT0}, {gp * NE * 128}")
            for k in range(nl):
                r = 48 + 4 * (gp * nl + k)
                A(f"buffer_load_dwordx4 v[{r}:{r + 3}], {vL16}, {SRD}, {sT0} offen offset:{1024 * k} sc1")
        A("v_mov_b32 v5, 0")
        for k in range(8 * nl):
            r = 48 + 4 * k
            A(f"""s_waitcnt vmcnt({8 * nl - 1 - k})
            v_bitop3_b32 v7, v{r}, v{r + 1}, {sTAG} bitop3:0x7e
            v_bitop3_b32 v8, v{r + 2}, v{r + 3}, {sTAG} bitop3:0x7e
            ds_write_b128 v13, v[{r}:{r + 3}] offset:{1024 * k}
            v_or3_b32 v5, v5, v7, v8""")
        A(f"""v_cmp_ne_u32_sdwa vcc, v5, 0 src0_sel:WORD_0 src1_sel:DWORD
        s_cmp_lg_u64 vcc, 0
        {"" if x_nofwd else "s_cbranch_scc1 L_tagain"}""")
        A("s_waitcnt lgkmcnt(0)\ns_barrier")
    else:
        C("finishing workgroup of batch b: table to LDS, sum the 16 head partials, residual, LN, LN, table lookup")
        A(f"""s_cmp_lg_u32 {sFIN}, 0
    s_cbranch_scc1 L_exit
    s_xor_b32 {sT0}, {sCW}, {sG}
    s_or_b32 {sT0}, {sT0}, {sFAR}
    s_cselect_b32 s55, {WS_TBL}, {sTBLN}
    s_mul_i32 {sT0}, {sCW}, {NE * 128}
    s_add_u32 s55, s55, {sT0}
    s_add_u32 {sT0}, {sT0}, {TBL_LDS}
    v_add_u32 v13, {sT0}, {vL16}""")
        for r in range(140 + 4 * (ntl - 1), 140 + 4 * ntl):
            A(f"v_mov_b32 v{r}, {sTAG}")
        table_loads()
        A(f"""    s_mul_i32 s48, {sB}, {16 * 1792}
    s_lshl_b32 {sT0}, {sCW}, 8
    s_add_u32 s48, s48, {sT0}
    s_add_u32 s48, s48, {WS_OUTP}
    s_add_u32 s49, s48, {4 * 1792}
    s_add_u32 s50, s48, {8 * 1792}
    s_add_u32 s51, s48, {12 * 1792}
    v_mul_u32_u24 v12, 1792, {vG}
    v_lshl_add_u32 v12, {vN}, 4, v12
    L_tpoll:
    s_waitcnt vmcnt(0)""")
        tags_ok(list(range(140, 140 + 4 * ntl)), "L_tok", tags=[sTAG] * (2 * ntl), sel="WORD_0")
        if x_nofwd:
            A("s_branch L_tok")
        A(f"s_sleep {tback}")
        table_loads()
        spin_tail("L_tpoll", 0)
        A(f"L_tok:\ns_mov_b32 s47, {128 * NE}")
        stamp(6)
        wait_lds(F_FREE + 36, 8)
        for k in range(ntl):
            if k == ntl - 1:
                A(f"s_mov_b32 exec_lo, {hex(lastm & 0xffffffff)}\ns_mov_b32 exec_hi, {hex(lastm >> 32)}")
            A(f"ds_write_b128 v13, v[{140 + 4 * k}:{143 + 4 * k}] offset:{1024 * k}")
        A("s_mov_b64 exec, -1")
        A(f"""s_cmp_eq_u32 {sCW}, 7
    s_cbranch_scc0 L_hget
    s_waitcnt lgkmcnt(0)
    s_barrier""")
    C("every workgroup has read the epoch word (its table entries carry the tag): advance it")
    A(f"""s_cmp_lg_u32 {sB}, 0
    s_cbranch_scc1 L_exit
    v_mov_b32 v5, {sTAG}
    s_mov_b64 exec, 1
    buffer_store_dword v5, {vL16}, {SRD}, 0 offen {efl}
    s_mov_b64 exec, -1
    s_branch L_exit""")
    if t7:
        C("finishing workgroup of batch b, waves 0..6: sum the 16 head partials, residual, LN, LN, table lookup")
        A(f"""L_hget0:
        s_mul_i32 s48, {sB}, {16 * 1792}
        s_lshl_b32 {sT0}, {sCW}, 8
        s_add_u32 s48, s48, {sT0}
        s_add_u32 s48, s48, {WS_OUTP}
        s_add_u32 s49, s48, {4 * 1792}
        s_add_u32 s50, s48, {8 * 1792}
        s_add_u32 s51, s48, {12 * 1792}
        v_mul_u32_u24 v12, 1792, {vG}
        v_lshl_add_u32 v12, {vN}, 4, v12
        s_mov_b32 s47, {128 * NE}
        s_waitcnt vmcnt(0)""")
        stamp(6)
    A(f"""L_hget:
    v_lshl_add_u32 v13, v136, 2, {vM}
    v_lshl_add_u32 v14, v0, 5, {vM}
""")
    if olin:
        A(f"""s_mul_i32 {sT0}, {sCW}, 448
        v_lshl_add_u32 v40, v0, 3, {sT0}
        v_add_u32 v40, v40, {vM}
        s_lshl2_add_u32 {sT1}, {sB}, {sCW}
        s_mul_i32 {sT1}, {sT1}, 224
        v_lshl_add_u32 v41, v0, 2, {sT1}""")
    else:
        A(f"""s_lshl_b32 {sT0}, {sCW}, 3
        v_add_u32 v40, {sT0}, v14
        s_mul_i32 {sT1}, {sB}, 896
        s_lshl_b32 {sT0}, {sCW}, 2
        s_add_u32 {sT1}, {sT1}, {sT0}
        v_add_u32 v41, {sT1}, {vL16}""")
    A(f"""    v_lshlrev_b32 v137, 16, v138
    v_mov_b32 v42, {hex(fbits(1.0 / 448.0))}
    s_mov_b32 s52, {TBL_LDS}
    s_mov_b32 s53, 0x7060302""")
    for r in range(48, 56):
        A(f"v_mov_b32 v{r}, 0")
    assert not dry

    def h_loads(r0):
        for m in range(4):
            A(f"buffer_load_dwordx4 v[{r0 + 4 * m}:{r0 + 3 + 4 * m}], v12, {SRD}, s{48 + m} offen {hld}")

    def h_sum(r):
        strip_tag(range(r + 4, r + 16))
        A(f"""v_pk_add_f32 v[{r}:{r + 1}], v[{r}:{r + 1}], v[{r + 4}:{r + 5}]
        v_pk_add_f32 v[{r + 2}:{r + 3}], v[{r + 2}:{r + 3}], v[{r + 6}:{r + 7}]
        v_pk_add_f32 v[{r + 8}:{r + 9}], v[{r + 8}:{r + 9}], v[{r + 12}:{r + 13}]
        v_pk_add_f32 v[{r + 10}:{r + 11}], v[{r + 10}:{r + 11}], v[{r + 14}:{r + 15}]
        v_pk_add_f32 v[32:33], v[{r}:{r + 1}], v[{r + 8}:{r + 9}]
        v_pk_add_f32 v[34:35], v[{r + 2}:{r + 3}], v[{r + 10}:{r + 11}]""")

    if h2:
        h_loads(96)
        A(f"s_sleep {h2}")
        h_loads(112)
        A(f"""s_branch L_hchkA
        L_hagainB:
        s_sub_u32 {sBUD}, {sBUD}, 1
        s_cbranch_scc1 L_end""")
        h_loads(112)
        A("L_hchkA:\ns_waitcnt vmcnt(4)")
        tags_ok(list(range(96, 112)), None, retry="L_hagainA", between=lambda: strip_tag(range(96, 100)))
        h_sum(96)
        A("s_branch L_hok\nL_hagainA:")
        h_loads(96)
        A("s_waitcnt vmcnt(4)")
        tags_ok(list(range(112, 128)), None, retry="L_hagainB", between=lambda: strip_tag(range(112, 116)))
        h_sum(112)
        A("L_hok:")
        stamp(11)
    else:
        if hdel:
            A(f"s_sleep {hdel}")
        A(f"""s_branch L_hpoll
        L_hagain:
        {"s_mov_b64 exec, vcc" if hmask else ""}
        s_sub_u32 {sBUD}, {sBUD}, 1
        s_cbranch_scc1 L_end""")
        if hback:
            A(f"s_sleep {hback}")
        if KC > 1:
            C("next copy: lines nobody has read yet take the producers' writes faster")
            A(f"""s_cmp_lt_u32 s48, {WS_OUTP + (KC - 1) * 0x20000}
            s_cselect_b32 {sT0}, 0x20000, 0""")
            for m in range(4):
                A(f"s_add_u32 s{48 + m}, s{48 + m}, {sT0}")
        A("L_hpoll:")
        h_loads(16)
        A("s_waitcnt vmcnt(0)")
        tags_ok(list(range(16, 32)), None, retry="L_hagain", between=lambda: strip_tag(range(16, 20)))
        stamp(11)
        if hmask:
            A("s_mov_b64 exec, -1")
        h_sum(16)
    swap_reduce4(("v32", "v33", "v34", "v35"))
    rne1("v32", "v32")
    A("v_add_f32 v32, v32, v137")
    rne1("v32", "v32")
    A(f"ds_write_b32 v13, v32 offset:{HL}")
    if dry:
        A("s_cmp_lg_u32 s54, 0\ns_cbranch_scc1 L_hdry")
    A(f"""s_cmp_ge_u32 {sCW}, 4
    s_waitcnt lgkmcnt(0)
    s_barrier
    s_cbranch_scc1 L_exit
    L_hdry:""")
    if fst:
        stamp(8)
    A(f"""    s_mov_b32 exec_hi, 0x00ffffff
    ds_read_b128 v[48:51], v14 offset:{HL}
    ds_read_b128 v[52:55], v14 offset:{HL + 16}
    ds_read_b64 v[138:139], v40 offset:{HL}
    s_mov_b32 exec_hi, -1
    s_waitcnt lgkmcnt(1)""")

    def stats8():
        sums8()
        ln_scale("v22", "v23", sT0, sT1, "v42", True)

    def sums8():
        A("""v_pk_add_f32 v[20:21], v[48:49], v[50:51]
        v_pk_mul_f32 v[24:25], v[48:49], v[48:49]
        v_pk_add_f32 v[22:23], v[52:53], v[54:55]
        v_pk_fma_f32 v[24:25], v[50:51], v[50:51], v[24:25]
        v_pk_add_f32 v[20:21], v[20:21], v[22:23]
        v_pk_fma_f32 v[24:25], v[52:53], v[52:53], v[24:25]
        v_add_f32 v20, v20, v21
        v_pk_fma_f32 v[24:25], v[54:55], v[54:55], v[24:25]
        v_add_f32 v24, v24, v25""")
        wave_sums(["v20", "v24"], [sT0, sT1])

    if alg:
        C("first LayerNorm: mean / variance of h.  Its output is a = (h - m1) * r1, so the second LayerNorm's")
        C("statistics follow exactly: mean(a) = (mean - m1) * r1, var(a) = var * r1 * r1")
        sums8()
        if fst:
            stamp(9)
        A(f"""v_mul_f32 v26, {sT1}, v42
        v_mul_f32 v27, {sT0}, v42
        v_fma_f32 v26, -v27, v27, v26""")
        rne1("v22", "v27")
        A(f"""v_cvt_pk_bf16_f32 v23, 0, abs(v26)
        v_sub_f32 v24, v27, v22
        v_add_f32 v23, {hex(fbits(1e-5))}, v23""")
        rne1("v23", "v23")
        A("""v_sqrt_f32 v23, v23
        s_waitcnt lgkmcnt(0)
        v_pk_add_f32 v[36:37], v[138:139], v[22:23] op_sel_hi:[1,0] neg_lo:[0,1] neg_hi:[0,1]""")
        rne1("v23", "v23")
        A("v_rcp_f32 v23, v23")
        rne1("v36", "v36")
        A("v_mul_f32 v25, abs(v26), v23")
        rne1("v37", "v37")
        A("v_mul_f32 v25, v25, v23\nv_mul_f32 v24, v24, v23")
        rne1("v25", "v25")
        A(f"""v_pk_mul_f32 v[36:37], v[36:37], v[22:23] op_sel:[0,1] op_sel_hi:[1,1]
        v_add_f32 v25, {hex(fbits(1e-5))}, v25""")
        rne1("v24", "v24")
        rne1("v25", "v25")
        rne1("v36", "v36")
        A("v_sqrt_f32 v25, v25")
        rne1("v37", "v37")
        rne1("v25", "v25")
        A("v_pk_add_f32 v[36:37], v[36:37], v[24:25] op_sel_hi:[1,0] neg_lo:[0,1] neg_hi:[0,1]\nv_rcp_f32 v25, v25")
        rne1("v36", "v36")
        rne1("v37", "v37")
        A("s_mov_b32 exec_hi, 0x00ffffff\nv_pk_mul_f32 v[36:37], v[36:37], v[24:25] op_sel:[0,1] op_sel_hi:[1,1]")
        rne1("v36", "v36")
        rne1("v37", "v37")
    else:
        stats8()
        A("s_waitcnt lgkmcnt(0)\nv_mov_b32 v36, v138\nv_mov_b32 v37, v139\ns_mov_b32 exec_hi, 0x00ffffff")
        normalize([48, 50, 52, 54, 36], 22, 23)
        A("s_mov_b32 exec_hi, -1")
        stats8()
        A("s_mov_b32 exec_hi, 0x00ffffff")
        normalize([36], 22, 23)
    if fst:
        stamp(10)
    A(f"""v_bfe_u32 v16, v36, 16, 15
    v_bfe_u32 v17, v37, 16, 15
    v_subrev_u32 v16, {E0 << 7}, v16
    v_subrev_u32 v17, {E0 << 7}, v17
    v_lshrrev_b32 v18, 31, v36
    v_lshrrev_b32 v19, 31, v37
    v_cmp_le_u32 vcc, {128 * NE}, v16
    v_cmp_le_u32 s[56:57], s47, v17
    v_mad_u32_u24 v16, v18, s47, v16
    v_mad_u32_u24 v17, v19, s47, v17
    v_cndmask_b32 v16, v16, 0, vcc
    v_cndmask_b32 v17, v17, 0, s[56:57]
    v_lshl_add_u32 v16, v16, 2, s52
    v_lshl_add_u32 v17, v17, 2, s52
    ds_read_b32 v38, v16
    ds_read_b32 v39, v17""")
    if dry:
        A("s_cmp_lg_u32 s54, 0\ns_cbranch_scc1 L_hreal")
    A(f"""s_or_b64 s[58:59], vcc, s[56:57]
    s_waitcnt lgkmcnt(0)
    v_and_b32 v38, {sMASK}, v38
    v_and_b32 v39, {sMASK}, v39
    s_cbranch_scc1 L_direct
    L_fin:
    v_pk_add_f32 v[38:39], v[38:39], v[138:139]""")
    if x_pert:
        A(f"v_cmp_eq_u32 vcc, 0, v41\nv_mov_b32 v5, {hex(fbits(x_pert / 10000.0))}\ns_nop 0\nv_cndmask_b32 v5, 0, v5, vcc\nv_add_f32 v38, v38, v5")
    A(f"""    v_cvt_pk_bf16_f32 v38, v38, v39
    global_store_dword v41, v38, {pOUT} {fst_fl}
    s_mov_b32 exec_hi, -1""")
    stamp(12)
    A("L_exit:")
    if diag:
        A(f"s_cmp_eq_u32 {sCW}, 0\ns_cbranch_scc0 L_st1")
        stamps_out(8, 13)
        A(f"L_st1:\ns_cmp_eq_u32 {sCW}, 3\ns_cbranch_scc0 L_end")
        stamps_out(24, 13)
    A("L_end:\ns_endpgm\nL_pfend:")
    C("inputs outside the tabulated binades: evaluate the MLP directly, one element at a time")
    A(f"""L_direct:
    s_mov_b32 exec_hi, -1
    s_mov_b64 s[54:55], vcc
    s_mov_b32 s58, 0
    v_mov_b32 v7, 0
    global_load_ushort v46, v7, {pB2}
    L_dpass:
    s_cmp_eq_u64 s[54:55], 0
    s_cbranch_scc1 L_dswap
    s_ff1_i32_b64 s52, s[54:55]
    s_bitset0_b64 s[54:55], s52
    s_nop 3
    v_readlane_b32 s50, v36, s52
    v_mov_b32 v80, 0
    v_lshlrev_b32 v5, 3, v0
    s_mov_b32 s53, 0
    L_dloop:""")
    load_w()
    A("v_add_u32 v5, 512, v5\ns_waitcnt vmcnt(0)")
    unpack_w()
    gelu(["s50"], ["v80"], False)
    A("s_add_u32 s53, s53, 1\ns_cmp_lt_u32 s53, 7\ns_cbranch_scc1 L_dloop")
    wave_sums(["v80"], [sT0])
    A(f"v_mov_b32 v80, {sT0}")
    rne1("v80", "v80")
    A("v_lshlrev_b32 v81, 16, v46\nv_add_f32 v80, v80, v81")
    rne1("v80", "v80")
    A(f"""v_cmp_eq_u32 vcc, s52, v0
    s_nop 1
    v_cndmask_b32 v38, v38, v80, vcc
    s_branch L_dpass
    L_dswap:
    v_swap_b32 v36, v37
    v_swap_b32 v38, v39
    s_mov_b64 s[54:55], s[56:57]
    s_add_u32 s58, s58, 1
    s_cmp_eq_u32 s58, 1
    s_cbranch_scc1 L_dpass
    s_mov_b32 exec_hi, 0x00ffffff
    s_branch L_fin""")
    for c in cold:
        A(c)
    A("L_codeend:")
    if epf >= 3:
        L.append(".if L_codeend - L_pc0 < 9216\n.error \"code prefetch would run past the code\"\n.endif")
    L.append(f""".section .rodata,"a"
.p2align 6
.amdhsa_kernel {KN}_kernel
  .amdhsa_next_free_vgpr 168
  .amdhsa_next_free_sgpr 96
  .amdhsa_accum_offset 168
  .amdhsa_float_denorm_mode_32 3
  .amdhsa_group_segment_fixed_size 0
  .amdhsa_kernarg_size 104
  .amdhsa_user_sgpr_count 2
  .amdhsa_user_sgpr_kernarg_segment_ptr 1
  .amdhsa_system_sgpr_workgroup_id_x 1
.end_amdhsa_kernel""")
    return "\n".join(L) + "\n"


if __name__ == "__main__":
    names = []
    for spec in sys.argv[1:]:
        kw = {}
        name = None
        for kv in spec.split(","):
            if not kv:
                continue
            k, v = kv.split("=")
            if k == "o":
                name = v
                continue
            kw[k] = int(v) if v.lstrip("-").isdigit() else v.replace("+", " ").replace("none", "")
        name = name or "k_" + spec.replace(":", "-").replace(",", "_").replace("=", "").replace("+", "") + ".s"
        open(name, "w").write(gen(**kw))
        names.append(name)
    print(" ".join(names))
```
